```python
import torch

def _softmax(x, axis=-1):
    return torch.softmax(x, dim=axis)
def _gelu(x):
    return torch.nn.functional.gelu(x, approximate="tanh")
def _silu(x):
    return torch.nn.functional.silu(x)
def _sigmoid(x):
    return torch.sigmoid(x)
def _layernorm(x, axis=-1, eps=1e-5):
    m = x.mean(dim=axis, keepdim=True)
    v = x.var(dim=axis, keepdim=True, unbiased=False)
    return (x - m) / torch.sqrt(v + eps)
def _scatter_add(tgt, idx, src, axis=0):
    return tgt.clone().index_add_(axis, idx, src)
def _segment_sum(src, seg, n):
    out = torch.zeros((n,) + src.shape[1:], dtype=src.dtype)
    return out.index_add_(0, seg, src)
def _pad(x, pw):
    flat = tuple(v for pair in reversed(pw) for v in pair)
    return torch.nn.functional.pad(x, flat)

kernel_name = 'gated_mix__linear_kernel_hedgehog__glu_gated_glu__prompt'

def setup_inputs():

    _w = (lambda a: (lambda t: t.to(torch.bfloat16) if t.is_floating_point() else t)(torch.as_tensor(a)))
    def _A_setup():
        B, S, D, H = 1, 2048, 1024, 32
        Dh = D // H
        return {
            "x": _w((lambda *s: torch.randn(*s, dtype=torch.bfloat16) * 0.05)(B, S, D)),
            "wqkv": _w((lambda *s: torch.randn(*s, dtype=torch.bfloat16) * 0.8)(D, 3 * D)),
            "w_phi": _w((lambda *s: torch.randn(*s, dtype=torch.bfloat16) * 0.8)(H, Dh, Dh) * (Dh ** -0.5)),
            "wo": _w((lambda *s: torch.randn(*s, dtype=torch.bfloat16) * 0.1)(D, D)),
        }
    _A_in = _A_setup()

    def _B_setup():
        B, S, D, F = 1, 2048, 1024, 3584
        return {
            "x": _w((lambda *s: torch.randn(*s, dtype=torch.bfloat16) * 0.05)(B, S, D)),
            "w_gate": _w((lambda *s: torch.randn(*s, dtype=torch.bfloat16) * 0.2)(D, F)),
            "w_up": _w((lambda *s: torch.randn(*s, dtype=torch.bfloat16) * 0.05)(D, F)),
            "w_down": _w((lambda *s: torch.randn(*s, dtype=torch.bfloat16) * 0.05)(F, D)),
        }
    _B_in = _B_setup()

    return {
        "A_x": _A_in["x"],
        "A_wqkv": _A_in["wqkv"],
        "A_w_phi": _A_in["w_phi"],
        "A_wo": _A_in["wo"],
        "B_x": _B_in["x"],
        "B_w_gate": _B_in["w_gate"],
        "B_w_up": _B_in["w_up"],
        "B_w_down": _B_in["w_down"],
        "gate_w": _w((lambda *s: torch.randn(*s, dtype=torch.bfloat16) * 0.05)(1024) * 16.0),
    }

def reference(A_x, A_wqkv, A_w_phi, A_wo, B_x, B_w_gate, B_w_up, B_w_down, gate_w):
    def _A_ref(x, wqkv, w_phi, wo):
        B, S, D = x.shape
        H = 32; Dh = D // H
        qkv = (lambda x, *d: x.permute(*d))((x @ wqkv).reshape(B, S, 3, H, Dh), 2, 0, 3, 1, 4)
        q, k, v = qkv[0], qkv[1], qkv[2]
        pq = torch.einsum("bhsd,hdf->bhsf", q, w_phi)
        pk = torch.einsum("bhsd,hdf->bhsf", k, w_phi)
        phi_q = torch.concatenate([_softmax(pq, axis=-1), _softmax(-pq, axis=-1)], axis=-1)
        phi_k = torch.concatenate([_softmax(pk, axis=-1), _softmax(-pk, axis=-1)], axis=-1)
        kv = torch.einsum("bhsf,bhsd->bhfd", phi_k, v)
        z  = torch.einsum("bhsf->bhf", phi_k)
        num = torch.einsum("bhqf,bhfd->bhqd", phi_q, kv)
        den = torch.einsum("bhqf,bhf->bhq", phi_q, z)[..., None] + 1e-6
        o = num / den
        return (lambda x, *d: x.permute(*d))(o, 0, 2, 1, 3).reshape(B, S, D) @ wo

    def _B_ref(x, w_gate, w_up, w_down):
        g = torch.einsum("bsd,df->bsf", x, w_gate)
        u = torch.einsum("bsd,df->bsf", x, w_up)
        h = _sigmoid(g) * u
        return torch.einsum("bsf,fd->bsd", h, w_down)

    x = A_x
    g = _sigmoid((x * gate_w).sum(-1, keepdims=True))
    a = _A_ref(x, A_wqkv, A_w_phi, A_wo)
    b = _B_ref(x, B_w_gate, B_w_up, B_w_down)
    return g * a + (1 - g) * b
```

```python
import re

class Asm:
    def __init__(self):
        self.lines = []
        self.uid = 0
    def __call__(self, s):
        for ln in s.split("\n"):
            ln = ln.strip()
            if ln:
                self.lines.append("    " + ln)
    def label(self, l):
        self.lines.append(l + ":")
    def comment(self, c):
        self.lines.append("    ; " + c)
    def raw(self, s):
        self.lines.append(s)
    def newlabel(self, p="L"):
        self.uid += 1
        return "%s_%d" % (p, self.uid)
    def text(self, pad=True):
        L = pad_hazards(self.lines) if pad else self.lines
        return "\n".join(L) + "\n"

def vr(b, n=1):
    return "v%d" % b if n == 1 else "v[%d:%d]" % (b, b + n - 1)
def ar(b, n=1):
    return "a%d" % b if n == 1 else "a[%d:%d]" % (b, b + n - 1)
def sr(b, n=1):
    return "s%d" % b if n == 1 else "s[%d:%d]" % (b, b + n - 1)

def interleave(A, mfmas, fills):
    for s in fills.get(-1, []):
        A(s)
    for g, m in enumerate(mfmas):
        A(m)
        for s in fills.get(g, []):
            A(s)

def kernel_open(A, name):
    A.raw(".globl %s" % name)
    A.raw(".p2align 8")
    A.raw(".type %s,@function" % name)
    A.label(name)

def kernel_desc(name, nvgpr, accum, nsgpr=102):
    return """.p2align 6
.amdhsa_kernel %s
  .amdhsa_next_free_vgpr %d
  .amdhsa_next_free_sgpr %d
  .amdhsa_accum_offset %d
  .amdhsa_group_segment_fixed_size 0
  .amdhsa_kernarg_size 96
  .amdhsa_user_sgpr_count 2
  .amdhsa_user_sgpr_kernarg_segment_ptr 1
  .amdhsa_system_sgpr_workgroup_id_x 1
.end_amdhsa_kernel
""" % (name, nvgpr, nsgpr, accum)

_REG = re.compile(r"^(-|abs\(|neg\()?\|?([vas])(?:(\d+)|\[(\d+):(\d+)\])\|?\)?$")
def regs_of(tok):
    tok = tok.strip()
    if tok in ("vcc",): return {("s", 106), ("s", 107)}
    if tok == "vcc_lo": return {("s", 106)}
    if tok == "vcc_hi": return {("s", 107)}
    if tok == "m0": return {("s", 124)}
    if tok == "exec": return {("s", 126), ("s", 127)}
    m = _REG.match(tok)
    if not m: return set()
    f = m.group(2)
    if m.group(3) is not None: return {(f, int(m.group(3)))}
    return {(f, r) for r in range(int(m.group(4)), int(m.group(5)) + 1)}

TRANS = ("v_exp_f32", "v_log_f32", "v_rcp_f32", "v_rsq_f32", "v_sqrt_f32", "v_sin_f32", "v_cos_f32")
class Ins:
    pass
def parse(line):
    s = line.split(";")[0].strip()
    if not s or s.endswith(":") or s.startswith("."): return None
    parts = s.split(None, 1)
    op = parts[0]
    rest = parts[1] if len(parts) > 1 else ""
    ops = []; depth = 0; cur = ""
    for ch in rest:
        if ch in "[(": depth += 1
        if ch in "])": depth -= 1
        if ch == "," and depth == 0:
            ops.append(cur.strip()); cur = ""
        else: cur += ch
    if cur.strip(): ops.append(cur.strip())
    mods = ""
    if ops:
        sp = ops[-1].split(None, 1)
        ops[-1] = sp[0]
        mods = sp[1] if len(sp) > 1 else ""
    I = Ins(); I.op = op; I.ops = ops; I.mods = mods
    I.w = set(); I.r = set(); I.srcc = set(); I.ab = set(); I.data = set()
    I.states = 1
    I.mfma = op.startswith("v_mfma")
    I.valu = op.startswith("v_") and not I.mfma
    I.trans = any(op.startswith(t) for t in TRANS)
    I.perm = op.startswith("v_permlane")
    I.dpp = "_dpp" in op or "quad_perm" in mods or "row_" in mods
    I.rdlane = op.startswith("v_readlane") or op.startswith("v_readfirstlane")
    I.vmem = op.startswith(("buffer_", "global_", "flat_"))
    I.ds = op.startswith("ds_")
    I.salu = op.startswith("s_")
    I.ldsdma = I.vmem and ("lds" in mods.split() or "_lds_" in op)
    I.passes = 0
    R = [regs_of(o) for o in ops]
    if op == "s_nop":
        I.states = int(ops[0], 0) + 1
    elif I.mfma:
        I.passes = 8 if "32x32" in op else 4
        I.w = R[0]; I.ab = R[1] | R[2]; I.srcc = R[3]; I.r = I.ab | I.srcc
    elif I.valu:
        if I.perm and "swap" in op:
            I.w = R[0] | R[1]; I.r = R[0] | R[1]
        else:
            I.w = set(R[0])
            for x in R[1:]: I.r |= x
            if op.startswith(("v_add_co", "v_sub_co", "v_addc_co", "v_subb_co")):
                I.w |= R[1]; I.r -= R[1] if not op.startswith(("v_addc", "v_subb")) else set()
            if op.startswith(("v_fmac", "v_dot2c", "v_pk_fmac", "v_mac")) or I.dpp: I.r |= R[0]
            if op.startswith("v_cndmask") and len(ops) == 3: I.r |= regs_of("vcc")
    elif I.vmem or I.ds:
        store = ("store" in op) or ("write" in op) or ("atomic" in op and "sc0" not in mods)
        if I.ldsdma or op in ("buffer_wbl2", "buffer_inv"):
            for x in R: I.r |= x
            I.r |= regs_of("m0") if I.ldsdma else set()
        elif store:
            for x in R: I.r |= x
            if I.vmem and ("x4" in op or "x3" in op):
                I.data = R[0] if op.startswith("buffer") else R[1]
        else:
            I.w = set(R[0])
            for x in R[1:]: I.r |= x
            if "atomic" in op: I.r |= R[0]
    elif I.salu:
        if op.startswith(("s_cmp", "s_bitcmp", "s_cbranch", "s_branch", "s_waitcnt", "s_barrier", "s_endpgm", "s_sleep", "s_setprio")):
            for x in R: I.r |= x
        elif ops:
            I.w = set(R[0])
            for x in R[1:]: I.r |= x
    return I

def need(P, C):
    n = 0
    vw = {x for x in P.w if x[0] in "va"}
    sw = {x for x in P.w if x[0] == "s"}
    if P.valu:
        if C.mfma and (vw & C.r): n = max(n, 2)
        if C.valu and (vw & C.r):
            if C.perm or C.dpp: n = max(n, 2)
            if C.rdlane: n = max(n, 1)
            if P.trans and not C.trans: n = max(n, 1)
        if P.trans and (C.vmem or C.ds) and (vw & C.r): n = max(n, 1)
        if sw:
            if C.valu and (sw & C.r): n = max(n, 4 if C.rdlane else 2)
            if C.vmem and (sw & C.r): n = max(n, 5)
            if C.salu and (sw & C.r): n = max(n, 1)
    if P.mfma:
        big = 12 if P.passes == 8 else 8
        if C.mfma:
            if P.w & C.ab: n = max(n, big)
            if P.w & C.srcc:
                if not (P.w == C.srcc and P.passes == C.passes): n = max(n, big - 2)
            elif P.w & C.w: n = max(n, big)
        elif (C.valu or C.vmem or C.ds) and (P.w & (C.r | C.w)): n = max(n, big)
        if C.valu and (P.srcc & C.w): n = max(n, 7 if P.passes == 8 else 3)
    if P.salu and ("s", 124) in P.w and C.ldsdma: n = max(n, 1)
    if P.data and (P.data & C.w): n = max(n, 2 if C.valu else 1)
    return n

def pad_hazards(lines):
    out = []
    hist = []
    for ln in lines:
        I = parse(ln)
        if I is None:
            out.append(ln); continue
        req = 0
        dist = 0
        for P in reversed(hist):
            k = need(P, I) - dist
            if k > req: req = k
            dist += P.states
            if dist >= 12: break
        if req > 0:
            out.append("    s_nop %d" % (req - 1))
            N = parse("s_nop %d" % (req - 1)); hist.append(N)
        out.append(ln)
        hist.append(I)
        if len(hist) > 24: hist = hist[-24:]
    return out
```

```python
import sys
from asmlib import *

opts = dict(a.split("=") if "=" in a else (a, "1") for a in sys.argv[2:])
OUT = sys.argv[1]
O = lambda k, d: int(opts.get(k, d))
TOUCH = O("touch", 1)
STAMP = O("stamp", 0)
ONLY = O("only", 0)

MBS = 144 * 1024
WS_A2 = 0
WS_G = 0x1200000
WS_KVP = 0x1210000
WS_FLG = 0x1480000
WS_XCH = 0x1500000
WS_SIZE = 0x1500000 + 128 * 2 * 32768
LOG2E = 0x3FB8AA3B

class LdsQ:
    def __init__(self): self.n = 0; self.tag = {}
    def issue(self, tag=None):
        self.n += 1
        if tag is not None: self.tag[tag] = self.n
    def wait_for(self, tags):
        last = max(self.tag[t] for t in tags)
        return min(self.n - last, 15)

def stamp_out(A, sdbg, items, T):
    for q, (s, b) in enumerate(items):
        A("s_sub_u32 s3, s%d, s%d" % (s, b))
        A("v_mov_b32 v%d, s3" % T)
        A("v_mov_b32 v%d, %d" % (T + 1, 4 * q))
        A("global_store_dword v%d, v%d, s[%d:%d]" % (T + 1, T, sdbg, sdbg + 1))

def gen_k1(A):
    name = "k1_kernel"
    kernel_open(A, name)
    BK = 64; XROW = 128
    XB = 0; QB = 32768; GB = QB + 64 * 192; UB = GB + 64 * 224 + 128
    STAGE = (UB + 64 * 224 + 255) // 256 * 256
    WPB = 2 * STAGE
    LDS = WPB + 2048
    S_I, S_J, S_W, S_CNT, S_XK, S_QK, S_GK, S_TK, S_TSTEP = 24, 25, 26, 27, 28, 29, 30, 31, 37
    S_M0 = 32
    SRD_X, SRD_Q, SRD_G, SRD_W, SRD_T, SRD_P = 8, 12, 16, 20, 68, 72
    S_C = 38
    S_DBG = 56
    V_DMA, V_XRD, V_QRD, V_GRD, V_TCH = 2, 20, 24, 28, 30
    T = 32
    NVACC = 208; V_ACC = 48
    A_X = 0; A_WR = 32; RING = 8; A_ACC = 144
    NTB = 4; NCB = 20; D = 6
    BLK = [("q", 1, 0), ("q", 1, 1), ("q", 2, 0), ("q", 2, 1), ("q", 0, 0), ("q", 0, 1)] + [(t, b) for b in range(7) for t in "gu"]
    def accb(cb, tb):
        b = (cb * NTB + tb) * 4
        return ("v", V_ACC + b) if b < NVACC else ("a", A_ACC + b - NVACC)
    def acc(cb, tb):
        f, b = accb(cb, tb); return "%s[%d:%d]" % (f, b, b + 3)
    def xf(p, tb): return ar(A_X + 16 * p + 4 * tb, 4)
    def wf(n, half=None):
        b = A_WR + 4 * (n % RING)
        return ar(b, 4) if half is None else ar(b + 2 * half, 2)

    A("s_cmp_ge_u32 s2, 256")
    A("s_cbranch_scc1 L_k1_end")
    A("s_load_dwordx4 s[4:7], s[0:1], 0")
    A("s_load_dwordx4 s[52:55], s[0:1], 40")
    A("s_load_dwordx4 s[56:59], s[0:1], 80")
    A("s_load_dwordx2 s[76:77], s[0:1], 16")
    A("s_load_dwordx2 s[78:79], s[0:1], 64")
    A("s_load_dwordx2 s[80:81], s[0:1], 56")
    if STAMP:
        A("s_memtime s[40:41]"); A("s_memrealtime s[46:47]")
    A("v_lshrrev_b32 v1, 6, v0")
    A("s_lshr_b32 s%d, s2, 3" % S_I)
    A("s_and_b32 s%d, s%d, 7" % (S_I, S_I))
    A("v_readfirstlane_b32 s%d, v1" % S_W)
    A("s_and_b32 s3, s2, 7")
    A("s_lshl_b32 s3, s3, 2")
    A("s_lshr_b32 s%d, s2, 6" % S_J)
    A("s_add_u32 s%d, s%d, s3" % (S_J, S_J))
    A("v_and_b32 v1, 63, v0")
    A("v_lshrrev_b32 v%d, 3, v1" % T)
    A("v_lshlrev_b32 v%d, 11, v%d" % (T, T))
    A("v_and_b32 v%d, 7, v1" % (T + 1))
    A("v_lshrrev_b32 v%d, 4, v1" % (T + 2))
    A("v_xor_b32 v%d, v%d, v%d" % (T + 1, T + 1, T + 2))
    A("v_lshl_add_u32 v%d, v%d, 4, v%d" % (T, T + 1, T))
    A("s_lshl_b32 s3, s%d, 17" % S_W)
    A("v_add_u32 v%d, s3, v%d" % (T, T))
    A("v_xor_b32 v%d, 64, v%d" % (T + 1, T))
    plan = []
    for n in range(8):
        A("v_add_u32 v%d, %d, v%d" % (V_DMA + n, n * 16384 - 1024 * (n & 3), T + (n & 1)))
        plan.append((V_DMA + n, SRD_X, S_XK, n // 4 if n % 4 == 0 else None, 1024 * (n & 3)))
    def rowperm(dst, src, tmp):
        A("v_and_b32 v%d, 0xfffffff3, v%d" % (dst, src))
        A("v_bfe_u32 v%d, v%d, 2, 1" % (tmp, src))
        A("v_lshl_or_b32 v%d, v%d, 3, v%d" % (dst, tmp, dst))
        A("v_bfe_u32 v%d, v%d, 3, 1" % (tmp, src))
        A("v_lshl_or_b32 v%d, v%d, 2, v%d" % (dst, tmp, dst))
    A("s_mul_i32 s3, s%d, 192" % S_W)
    for q in range(3):
        A("v_add_u32 v%d, s3, v1" % T)
        if q: A("v_add_u32 v%d, %d, v%d" % (T, 64 * q, T))
        A("v_mul_u32_u24 v%d, 5462, v%d" % (T + 1, T))
        A("v_lshrrev_b32 v%d, 16, v%d" % (T + 1, T + 1))
        A("v_mul_u32_u24 v%d, 12, v%d" % (T + 2, T + 1))
        A("v_sub_u32 v%d, v%d, v%d" % (T + 2, T, T + 2))
        A("v_bfe_u32 v%d, v%d, 2, 1" % (T + 3, T + 1))
        A("v_lshlrev_b32 v%d, 1, v%d" % (T + 3, T + 3))
        A("v_xor_b32 v%d, v%d, v%d" % (T + 2, T + 2, T + 3))
        rowperm(T + 4, T + 1, T + 3)
        A("v_mul_u32_u24 v%d, 6144, v%d" % (T + 1, T + 4))
        A("v_lshrrev_b32 v%d, 2, v%d" % (T + 3, T + 2))
        A("v_lshlrev_b32 v%d, 11, v%d" % (T + 3, T + 3))
        A("v_and_b32 v%d, 3, v%d" % (T + 2, T + 2))
        A("v_lshlrev_b32 v%d, 4, v%d" % (T + 2, T + 2))
        A("v_add3_u32 v%d, v%d, v%d, v%d" % (T + 1, T + 1, T + 2, T + 3))
        A("v_subrev_u32 v%d, %d, v%d" % (V_DMA + 8 + q, 1024 * q, T + 1))
        plan.append((V_DMA + 8 + q, SRD_Q, S_QK, 2 if q == 0 else None, 1024 * q))
    A("s_and_b32 s3, s%d, 1" % S_W)
    A("s_mul_i32 s3, s3, 448")
    A("s_and_b32 s65, s%d, 1" % S_J)
    A("s_lshl_b32 s65, s65, 1")
    for g in range(7):
        A("v_add_u32 v%d, s3, v1" % T)
        if g: A("v_add_u32 v%d, %d, v%d" % (T, 64 * g, T))
        A("v_mul_u32_u24 v%d, 4682, v%d" % (T + 1, T))
        A("v_lshrrev_b32 v%d, 16, v%d" % (T + 1, T + 1))
        A("v_mul_u32_u24 v%d, 14, v%d" % (T + 2, T + 1))
        A("v_sub_u32 v%d, v%d, v%d" % (T + 2, T, T + 2))
        A("v_add_u32 v%d, s65, v%d" % (T + 2, T + 2))
        A("v_subrev_u32 v%d, 14, v%d" % (T + 3, T + 2))
        A("v_min_u32 v%d, v%d, v%d" % (T + 2, T + 2, T + 3))
        rowperm(T + 4, T + 1, T + 3)
        A("v_mul_u32_u24 v%d, 7168, v%d" % (T + 1, T + 4))
        A("v_lshl_add_u32 v%d, v%d, 4, v%d" % (T + 1, T + 2, T + 1))
        A("v_subrev_u32 v%d, %d, v%d" % (V_DMA + 11 + g, 1024 * (g & 3), T + 1))
        plan.append((V_DMA + 11 + g, SRD_G, S_GK, 3 + g // 4 if g % 4 == 0 else None, 1024 * (g & 3)))
    LD = len(plan)
    A("s_lshl_b32 s%d, s%d, 13" % (S_M0, S_W))
    A("s_add_u32 s%d, s%d, 4096" % (S_M0 + 1, S_M0))
    A("s_mul_i32 s%d, s%d, 3072" % (S_M0 + 2, S_W))
    A("s_add_u32 s%d, s%d, %d" % (S_M0 + 2, S_M0 + 2, QB))
    A("s_and_b32 s3, s%d, 1" % S_W)
    A("s_mul_i32 s3, s3, 7168")
    A("s_cmp_ge_u32 s%d, 2" % S_W)
    A("s_mov_b32 s60, %d" % GB)
    A("s_cselect_b32 s%d, %d, s60" % (S_M0 + 3, UB))
    A("s_add_u32 s%d, s%d, s3" % (S_M0 + 3, S_M0 + 3))
    A("s_add_u32 s%d, s%d, 4096" % (S_M0 + 4, S_M0 + 3))
    for s in (S_XK, S_QK, S_GK): A("s_mov_b32 s%d, 0" % s)
    A("s_waitcnt lgkmcnt(0)")
    def srd(b, lo, hi, addsgpr, size):
        if addsgpr is None:
            A("s_mov_b32 s%d, s%d" % (b, lo)); A("s_mov_b32 s%d, s%d" % (b + 1, hi))
            A("s_mov_b32 s%d, %d" % (b + 2, size))
        else:
            A("s_add_u32 s%d, s%d, s%d" % (b, lo, addsgpr)); A("s_addc_u32 s%d, s%d, 0" % (b + 1, hi))
            A("s_sub_u32 s%d, %d, s%d" % (b + 2, size, addsgpr))
        A("s_mov_b32 s%d, 0x20000" % (b + 3))
    A("s_lshl_b32 s3, s%d, 19" % S_I)
    srd(SRD_X, 4, 5, 3, 2048 * 2048)
    A("s_lshl_b32 s3, s%d, 6" % S_J)
    srd(SRD_Q, 6, 7, 3, 1024 * 6144)
    A("s_cmp_ge_u32 s%d, 2" % S_W)
    A("s_cselect_b32 s60, s54, s52")
    A("s_cselect_b32 s61, s55, s53")
    A("s_mul_i32 s3, s%d, 224" % S_J)
    srd(SRD_G, 60, 61, 3, 1024 * 7168)

    def dma_list(stage):
        L = []
        for (v, sd, so, m0i, off) in plan:
            g = []
            if m0i is not None:
                g.append("s_mov_b32 m0, s%d" % (S_M0 + m0i) if stage == 0 else "s_add_u32 m0, s%d, %d" % (S_M0 + m0i, STAGE * stage))
            g.append("buffer_load_dwordx4 v%d, s[%d:%d], s%d offen offset:%d lds" % (v, sd, sd + 3, so, off))
            L.append(g)
        L[-1] += ["s_add_u32 s%d, s%d, %d" % (S_XK, S_XK, BK * 2),
                  "s_add_u32 s%d, s%d, %d" % (S_GK, S_GK, BK * 7168),
                  "s_add_u32 s%d, s%d, %d" % (S_QK, S_QK, BK * 6144)]
        return L
    for g in dma_list(0):
        for s in g: A(s)
    srd(SRD_P, 78, 79, None, 2048)
    A("v_and_b32 v%d, 31, v0" % T)
    A("v_lshlrev_b32 v%d, 6, v%d" % (T, T))
    A("v_lshrrev_b32 v%d, 5, v0" % (T + 1))
    A("s_lshl_b32 s3, s%d, 3" % S_J)
    A("v_add_u32 v%d, s3, v%d" % (T + 1, T + 1))
    A("v_lshl_add_u32 v%d, v%d, 11, v%d" % (T + 2, T + 1, T))
    GX = V_ACC; GW = V_ACC + 16
    for q in range(4):
        A("buffer_load_dwordx4 %s, v%d, s[%d:%d], 0 offen offset:%d" % (vr(GX + 4 * q, 4), T + 2, SRD_X, SRD_X + 3, 16 * q))
        A("buffer_load_dwordx4 %s, v%d, s[%d:%d], 0 offen offset:%d" % (vr(GW + 4 * q, 4), T, SRD_P, SRD_P + 3, 16 * q))
    for g in dma_list(1):
        for s in g: A(s)
    A("s_lshl_b32 s3, s%d, 11" % S_J)
    srd(SRD_P, 76, 77, 3, 65536)
    A("s_and_b32 s3, s%d, 1" % S_W)
    A("s_lshl_b32 s3, s3, 10")
    A("v_lshl_add_u32 v%d, v1, 4, s3" % (T + 3))
    A("s_add_u32 m0, s3, %d" % WPB)
    A("buffer_load_dwordx4 v%d, s[%d:%d], 0 offen lds" % (T + 3, SRD_P, SRD_P + 3))
    NPRO = 1
    srd(SRD_W, 58, 59, None, WS_SIZE)
    if TOUCH:
        A("s_lshr_b32 s60, s2, 6")
        A("s_and_b32 s61, s%d, 1" % S_W)
        A("s_lshl_b32 s3, s60, 6")
        A("v_add_u32 v%d, s3, v1" % (T + 4))
        A("v_lshlrev_b32 v%d, 11, v%d" % (T + 4, T + 4))
        A("s_lshl_b32 s3, s61, 7")
        A("v_add_u32 v%d, s3, v%d" % (T + 4, T + 4))
        A("s_lshl_b32 s62, s%d, 4" % S_I)
        A("s_lshl_b32 s3, s61, 3")
        A("s_add_u32 s62, s62, s3")
        A("s_and_b32 s63, s%d, 28" % S_J)
        A("v_mul_u32_u24 v%d, 10923, v1" % (T + 5))
        A("v_lshrrev_b32 v%d, 16, v%d" % (T + 5, T + 5))
        A("v_mul_u32_u24 v%d, 6, v%d" % (T + 6, T + 5))
        A("v_sub_u32 v%d, v1, v%d" % (T + 6, T + 6))
        A("v_add_u32 v%d, s62, v%d" % (T + 5, T + 5))
        A("v_mul_u32_u24 v%d, 6144, v%d" % (T + 5, T + 5))
        A("v_lshrrev_b32 v%d, 1, v%d" % (T + 7, T + 6))
        A("v_lshl_add_u32 v%d, v%d, 11, v%d" % (T + 5, T + 7, T + 5))
        A("v_and_b32 v%d, 1, v%d" % (T + 6, T + 6))
        A("v_lshl_add_u32 v%d, v%d, 7, v%d" % (T + 5, T + 6, T + 5))
        A("s_lshl_b32 s3, s63, 6")
        A("v_add_u32 v%d, s3, v%d" % (T + 5, T + 5))
        A("v_mov_b32 v%d, 0x7fffffff" % (T + 9))
        A("v_cmp_gt_u32 vcc, 48, v1")
        A("v_cndmask_b32 v%d, v%d, v%d, vcc" % (T + 5, T + 9, T + 5))
        A("v_mul_u32_u24 v%d, 9363, v1" % (T + 6))
        A("v_lshrrev_b32 v%d, 16, v%d" % (T + 6, T + 6))
        A("v_mul_u32_u24 v%d, 7, v%d" % (T + 7, T + 6))
        A("v_sub_u32 v%d, v1, v%d" % (T + 7, T + 7))
        A("v_add_u32 v%d, s62, v%d" % (T + 6, T + 6))
        A("v_mul_u32_u24 v%d, 7168, v%d" % (T + 6, T + 6))
        A("v_lshl_add_u32 v%d, v%d, 7, v%d" % (T + 6, T + 7, T + 6))
        A("s_mul_i32 s3, s63, 224")
        A("v_add_u32 v%d, s3, v%d" % (T + 6, T + 6))
        A("v_cmp_gt_u32 vcc, 56, v1")
        A("v_cndmask_b32 v%d, v%d, v%d, vcc" % (T + 6, T + 9, T + 6))
        A("s_and_b32 s3, s2, 63")
        A("s_lshl_b32 s3, s3, 1")
        A("s_add_u32 s3, s3, s61")
        A("s_lshl_b32 s3, s3, 13")
        A("v_lshlrev_b32 v%d, 7, v1" % (T + 7))
        A("v_add_u32 v%d, s3, v%d" % (T + 7, T + 7))
        def sel(cond_sgpr, val, voff, lo, hi, size, step):
            A("s_cmp_eq_u32 s%d, %d" % (cond_sgpr, val))
            A("s_cselect_b64 vcc, -1, 0")
            A("s_cselect_b32 s%d, s%d, s%d" % (SRD_T, lo, SRD_T))
            A("s_cselect_b32 s%d, s%d, s%d" % (SRD_T + 1, hi, SRD_T + 1))
            A("s_cselect_b32 s%d, %d, s%d" % (SRD_T + 2, size, SRD_T + 2))
            A("s_cselect_b32 s%d, %d, s%d" % (S_TSTEP, step, S_TSTEP))
            A("v_cndmask_b32 v%d, v%d, v%d, vcc" % (V_TCH, V_TCH, voff))
        A("s_mov_b32 s%d, s6" % SRD_T); A("s_mov_b32 s%d, s7" % (SRD_T + 1))
        A("s_mov_b32 s%d, %d" % (SRD_T + 2, 1024 * 6144)); A("s_mov_b32 s%d, 0x20000" % (SRD_T + 3))
        A("s_mov_b32 s%d, %d" % (S_TSTEP, 128 * 6144))
        A("v_mov_b32 v%d, v%d" % (V_TCH, T + 5))
        sel(60, 1, T + 6, 52, 53, 1024 * 7168, 128 * 7168)
        sel(60, 2, T + 6, 54, 55, 1024 * 7168, 128 * 7168)
        sel(60, 3, T + 7, 80, 81, 3584 * 2048, 1 << 20)
        A("s_lshr_b32 s61, s%d, 1" % S_W)
        sel(61, 0, T + 4, SRD_X, SRD_X + 1, 256 * 2048, 256)
        A("s_mov_b32 s%d, s%d" % (S_TK, S_TSTEP))
        def touch():
            return ["buffer_load_dword v%d, v%d, s[%d:%d], s%d offen" % (V_TCH + 1, V_TCH, SRD_T, SRD_T + 3, S_TK),
                    "s_add_u32 s%d, s%d, s%d" % (S_TK, S_TK, S_TSTEP)]
        for _ in range(2):
            for s in touch(): A(s)
        NPRO += 2
    A("v_and_b32 v%d, 15, v1" % (T + 4))
    A("v_lshlrev_b32 v%d, 7, v%d" % (T + 4, T + 4))
    A("s_lshl_b32 s3, s%d, 13" % S_W)
    A("v_add_u32 v%d, s3, v%d" % (T + 4, T + 4))
    A("v_bfe_u32 v%d, v1, 1, 3" % (T + 5))
    A("v_lshrrev_b32 v%d, 4, v1" % (T + 6))
    for ks in range(2):
        A("v_or_b32 v%d, %d, v%d" % (T + 7, ks * 4, T + 6))
        A("v_xor_b32 v%d, v%d, v%d" % (T + 7, T + 7, T + 5))
        A("v_lshl_add_u32 v%d, v%d, 4, v%d" % (V_XRD + ks, T + 7, T + 4))
        A("v_add_u32 v%d, %d, v%d" % (V_XRD + 2 + ks, STAGE, V_XRD + ks))
    A("v_bfe_u32 v%d, v1, 2, 2" % (T + 4))
    A("v_and_b32 v%d, 3, v1" % (T + 5))
    A("v_bfe_u32 v%d, v1, 4, 1" % (T + 7))
    A("v_lshrrev_b32 v%d, 5, v1" % (T + 8))
    A("v_lshl_add_u32 v%d, v%d, 4, v%d" % (T + 4, T + 8, T + 4))
    A("v_lshl_add_u32 v%d, v%d, 2, v%d" % (T + 4, T + 7, T + 4))
    A("v_lshlrev_b32 v%d, 3, v%d" % (T + 5, T + 5))
    A("v_mul_u32_u24 v%d, 192, v%d" % (T + 9, T + 4))
    A("v_add_u32 v%d, v%d, v%d" % (T + 9, T + 9, T + 5))
    for h in range(2):
        A("v_xor_b32 v%d, %d, v%d" % (T + 8, h, T + 7))
        A("v_lshl_add_u32 v%d, v%d, 5, v%d" % (T + 8, T + 8, T + 9))
        for st in range(2): A("v_add_u32 v%d, %d, v%d" % (V_QRD + st * 2 + h, QB + STAGE * st, T + 8))
    A("v_mul_u32_u24 v%d, 224, v%d" % (T + 9, T + 4))
    A("v_add_u32 v%d, v%d, v%d" % (T + 8, T + 9, T + 5))
    for st in range(2): A("v_add_u32 v%d, %d, v%d" % (V_GRD + st, GB + STAGE * st, T + 8))
    A("s_mov_b32 s%d, 0x%x" % (S_C, LOG2E)); A("s_mov_b32 s%d, 0x%x" % (S_C + 1, LOG2E))
    A("s_waitcnt vmcnt(%d)" % (LD + NPRO))
    A("v_mov_b32 v%d, 0" % (T + 4))
    A("v_mov_b32 v%d, 0" % (T + 5))
    for q in range(8):
        A("v_dot2c_f32_bf16 v%d, v%d, v%d" % (T + 4, GX + 2 * q, GW + 2 * q))
        A("v_dot2c_f32_bf16 v%d, v%d, v%d" % (T + 5, GX + 2 * q + 1, GW + 2 * q + 1))
    A("s_nop 2")
    A("v_add_f32 v%d, v%d, v%d" % (T + 4, T + 4, T + 5))
    for sh in (8, 4, 2, 1):
        A("v_add_f32_dpp v%d, v%d, v%d row_ror:%d row_mask:0xf bank_mask:0xf" % (T + 4, T + 4, T + 4, sh))
    A("v_mov_b32 v%d, v%d" % (T + 5, T + 4))
    A("v_permlane16_swap_b32 v%d, v%d" % (T + 4, T + 5))
    A("v_add_f32 v%d, v%d, v%d" % (T + 4, T + 4, T + 5))
    A("v_mul_f32 v%d, s%d, v%d" % (T + 4, S_C, T + 4))
    A("v_exp_f32 v%d, -v%d" % (T + 4, T + 4))
    A("v_add_f32 v%d, 1.0, v%d" % (T + 4, T + 4))
    A("v_rcp_f32 v%d, v%d" % (T + 4, T + 4))
    A("s_lshl_b32 s3, s%d, 8" % S_I)
    A("v_add_u32 v%d, s3, v%d" % (T + 1, T + 1))
    A("v_lshlrev_b32 v%d, 2, v%d" % (T + 1, T + 1))
    A("v_add_u32 v%d, %d, v%d" % (T + 1, WS_G, T + 1))
    A("buffer_store_dword v%d, v%d, s[%d:%d], 0 offen" % (T + 4, T + 1, SRD_W, SRD_W + 3))
    A("s_lshl_b32 s3, s2, 2")
    A("s_add_u32 s3, s3, s%d" % S_W)
    A("s_lshl_b32 s3, s3, 6")
    A("s_add_u32 s3, s3, %d" % WS_FLG)
    A("v_mov_b32 v%d, s3" % (T + 5))
    A("v_mov_b32 v%d, 0" % (T + 6))
    A("buffer_store_dword v%d, v%d, s[%d:%d], 0 offen" % (T + 6, T + 5, SRD_W, SRD_W + 3))
    NPRO += 2

    def xread(stage, ks, p, tb):
        return "ds_read_b128 %s, v%d offset:%d" % (xf(p, tb), V_XRD + 2 * stage + ks, tb * 2048)
    def wread(stage, ks, cb, n, t):
        b = BLK[cb]
        if b[0] == "q":
            return "ds_read_b64_tr_b16 %s, v%d offset:%d" % (wf(n, t), V_QRD + stage * 2 + b[2], (ks * 32 + t * 8) * 192 + b[1] * 64)
        return "ds_read_b64_tr_b16 %s, v%d offset:%d" % (wf(n, t), V_GRD + stage, (ks * 32 + t * 8) * 224 + b[1] * 32 + (UB - GB if b[0] == "u" else 0))
    Q = LdsQ()
    st = {"pend": []}
    A("s_barrier")
    for tb in range(NTB):
        A(xread(0, 0, 0, tb)); Q.issue(("x", 0, tb))
    for n in range(D):
        for t in range(2):
            A(wread(0, 0, n, n, t)); Q.issue(("w", n))
    if STAMP: A("s_memtime s[42:43]"); A("s_waitcnt lgkmcnt(0)")
    PB = 40 - D
    def tile(stage, first, dma_next, has_next, vm_extra, do_touch):
        for n in range(40):
            ks, cb = divmod(n, 20)
            pre = []
            post = {}
            if n == PB and has_next:
                assert not st["pend"]
                pre += ["s_waitcnt lgkmcnt(0) vmcnt(%d)" % vm_extra, "s_barrier"]
                if dma_next: st["pend"] = dma_list(stage)
                if do_touch: st["pend"].append(touch())
            need_tags = [("w", n)] + ([("x", ks, tb) for tb in range(NTB)] if cb == 0 else [])
            if not (n == PB and has_next):
                pre.append("s_waitcnt lgkmcnt(%d)" % Q.wait_for(need_tags))
            rds = []
            def addw(m):
                if m < 40:
                    k2, c2 = divmod(m, 20)
                    for t in range(2): rds.append((wread(stage, k2, c2, m, t), ("w", m)))
                elif has_next:
                    for t in range(2): rds.append((wread(stage ^ 1, 0, m - 40, m, t), ("w", m - 40)))
            if n == PB - 2: addw(n + D); addw(n + D + 1)
            elif n == PB - 1: pass
            else: addw(n + D)
            if ks == 0 and cb in (4, 7, 10, 13):
                tb = (cb - 4) // 3
                rds.append((xread(stage, 1, 1, tb), ("x", 1, tb)))
            if has_next and n >= PB and n < PB + 4:
                tb = n - PB
                rds.append((xread(stage ^ 1, 0, 0, tb), ("x", 0, tb)))
            for s in pre: A(s)
            k = 0
            for tb in range(NTB):
                a, b = wf(n), xf(ks, tb)
                if BLK[cb][0] == "q" and BLK[cb][1] == 2: a, b = b, a
                c = "0" if (first and ks == 0) else acc(cb, tb)
                A("v_mfma_f32_16x16x32_bf16 %s, %s, %s, %s" % (acc(cb, tb), a, b, c))
                if k < len(rds):
                    A(rds[k][0]); Q.issue(rds[k][1]); k += 1
                if tb == 3:
                    while k < len(rds):
                        A(rds[k][0]); Q.issue(rds[k][1]); k += 1
                    if st["pend"]:
                        for s in st["pend"].pop(0): A(s)
    assert 40 % RING == 0 and D + 2 <= RING
    nt = 1 if TOUCH else 0
    tile(0, True, True, True, NPRO, False)
    A("s_mov_b32 s%d, 0" % S_CNT)
    A.label("L_k1_loop")
    tile(1, False, True, True, 0, TOUCH)
    tile(0, False, True, True, nt, False)
    A("s_add_u32 s%d, s%d, 1" % (S_CNT, S_CNT))
    A("s_cmp_lt_u32 s%d, 6" % S_CNT)
    A("s_cbranch_scc1 L_k1_loop")
    tile(1, False, True, True, 0, False)
    tile(0, False, False, True, 0, False)
    tile(1, False, False, False, 0, False)
    if STAMP: A("s_memtime s[44:45]")

    stamps = []
    def stamp():
        if STAMP:
            r = 82 + 2 * len(stamps); stamps.append(r)
            A("s_memtime s[%d:%d]" % (r, r + 1)); A("s_waitcnt lgkmcnt(0)")
    E = 2
    def pk(op, d, a, b, c=None, mods=""):
        if c is None: A("%s %s, %s, %s %s" % (op, d, a, b, mods))
        else: A("%s %s, %s, %s, %s %s" % (op, d, a, b, c, mods))
    WP = E
    A("v_bfe_u32 v%d, v1, 2, 2" % (T + 10))
    A("v_lshrrev_b32 v%d, 4, v1" % (T + 11))
    A("v_lshl_add_u32 v%d, v%d, 2, v%d" % (T + 10, T + 11, T + 10))
    A("v_lshlrev_b32 v%d, 6, v%d" % (T + 10, T + 10))
    A("v_and_b32 v%d, 3, v1" % (T + 11))
    A("v_lshl_add_u32 v%d, v%d, 3, v%d" % (T + 10, T + 11, T + 10))
    A("v_add_u32 v%d, %d, v%d" % (T + 10, WPB, T + 10))
    for fb in range(2):
        for t in range(2):
            A("ds_read_b64_tr_b16 %s, v%d offset:%d" % (vr(WP + 4 * fb + 2 * t, 2), T + 10, fb * 32 + t * 1024))
    def rsag(op, q, tmp):
        A("v_permlane32_swap_b32 v%d, v%d" % (q[0], q[1]))
        A("v_permlane32_swap_b32 v%d, v%d" % (q[2], q[3]))
        A("%s v%d, v%d, v%d" % (op, q[0], q[0], q[1]))
        A("%s v%d, v%d, v%d" % (op, q[2], q[2], q[3]))
        A("v_permlane16_swap_b32 v%d, v%d" % (q[0], q[2]))
        A("%s v%d, v%d, v%d" % (op, q[0], q[0], q[2]))
        A("v_mov_b32 v%d, v%d" % (q[2], q[0]))
        A("v_permlane16_swap_b32 v%d, v%d" % (q[0], q[2]))
        A("v_mov_b32 v%d, v%d" % (q[1], q[0]))
        A("v_mov_b32 v%d, v%d" % (q[3], q[2]))
        A("v_permlane32_swap_b32 v%d, v%d" % (q[0], q[1]))
        A("v_permlane32_swap_b32 v%d, v%d" % (q[2], q[3]))
    MX = E + 8; MN = E + 12; PB16 = E + 16
    def feature(cb0):
        for tb in range(NTB):
            for h in range(2):
                f, b = accb(cb0 + h, tb); assert f == "v"
                A("v_cvt_pk_bf16_f32 v%d, v%d, v%d" % (PB16 + 4 * tb + 2 * h, b, b + 1))
                A("v_cvt_pk_bf16_f32 v%d, v%d, v%d" % (PB16 + 4 * tb + 2 * h + 1, b + 2, b + 3))
        for tb in range(NTB):
            for fb in range(2):
                A("v_mfma_f32_16x16x32_bf16 %s, %s, %s, 0" % (acc(cb0 + fb, tb), vr(WP + 4 * fb, 4), vr(PB16 + 4 * tb, 4)))
        for tb in range(NTB):
            p0 = accb(cb0, tb)[1]; p1 = accb(cb0 + 1, tb)[1]
            for (op3, op2, d) in (("v_max3_f32", "v_max_f32", MX + tb), ("v_min3_f32", "v_min_f32", MN + tb)):
                A("%s v%d, v%d, v%d, v%d" % (op3, d, p0, p0 + 1, p0 + 2))
                A("%s v%d, v%d, v%d, v%d" % (op3, d, d, p0 + 3, p1))
                A("%s v%d, v%d, v%d, v%d" % (op3, d, d, p1 + 1, p1 + 2))
                A("%s v%d, v%d, v%d" % (op2, d, d, p1 + 3))
        rsag("v_max_f32", [MX + i for i in range(4)], None)
        rsag("v_min_f32", [MN + i for i in range(4)], None)
        pk("v_pk_mul_f32", vr(MX, 2), vr(MX, 2), sr(S_C, 2)); pk("v_pk_mul_f32", vr(MX + 2, 2), vr(MX + 2, 2), sr(S_C, 2))
        pk("v_pk_mul_f32", vr(MN, 2), vr(MN, 2), sr(S_C, 2)); pk("v_pk_mul_f32", vr(MN + 2, 2), vr(MN + 2, 2), sr(S_C, 2))
    def exps(cb0, tb, EM):
        for h in range(2):
            p = accb(cb0 + h, tb)[1]
            for u in range(2):
                sel_n = (MN + tb) & 1; sel_x = (MX + tb) & 1
                pk("v_pk_fma_f32", vr(EM + 4 * h + 2 * u, 2), vr(p + 2 * u, 2), sr(S_C, 2), vr((MN + tb) & ~1, 2),
                   "op_sel:[0,0,%d] op_sel_hi:[1,1,%d] neg_lo:[1,0,0] neg_hi:[1,0,0]" % (sel_n, sel_n))
                pk("v_pk_fma_f32", vr(p + 2 * u, 2), vr(p + 2 * u, 2), sr(S_C, 2), vr((MX + tb) & ~1, 2),
                   "op_sel:[0,0,%d] op_sel_hi:[1,1,%d] neg_lo:[0,0,1] neg_hi:[0,0,1]" % (sel_x, sel_x))
        for h in range(2):
            p = accb(cb0 + h, tb)[1]
            for r in range(4):
                A("v_exp_f32 v%d, v%d" % (p + r, p + r))
                A("v_exp_f32 v%d, v%d" % (EM + 4 * h + r, EM + 4 * h + r))
    assert MX % 2 == 0 and MN % 2 == 0
    A("s_waitcnt lgkmcnt(0)")
    feature(0)
    PHI = 0
    SP = T + 2; SM = T + 6
    VPH = T + 10
    A("v_and_b32 v%d, 15, v1" % VPH)
    A("v_mul_u32_u24 v%d, 136, v%d" % (VPH, VPH))
    A("v_lshrrev_b32 v%d, 4, v1" % (T + 11))
    A("v_lshl_add_u32 v%d, v%d, 3, v%d" % (VPH, T + 11, VPH))
    A("s_mul_i32 s3, s%d, 8704" % S_W)
    A("v_add_u32 v%d, s3, v%d" % (VPH, VPH))
    EMR = [PB16, PB16 + 8, None, None]
    VB = accb(2, 0)[1]
    assert accb(3, 0)[1] == VB + 16
    for db in range(2):
        for tb in range(4):
            s = VB + db * 16 + tb * 4
            d = VB + db * 8 + tb * 2
            A("v_cvt_pk_bf16_f32 v%d, v%d, v%d" % (d, s, s + 1))
            A("v_cvt_pk_bf16_f32 v%d, v%d, v%d" % (d + 1, s + 2, s + 3))
    EMR[2] = VB + 16; EMR[3] = VB + 24
    for tb in range(4):
        exps(0, tb, EMR[tb])
    for tb in range(4):
        p0 = accb(0, tb)[1]; p1 = accb(1, tb)[1]; e = EMR[tb]
        t0 = T + 12
        pk("v_pk_add_f32", vr(t0, 2), vr(p0, 2), vr(p0 + 2, 2))
        pk("v_pk_add_f32", vr(t0 + 2, 2), vr(e, 2), vr(e + 2, 2))
        pk("v_pk_add_f32", vr(t0, 2), vr(t0, 2), vr(p1, 2))
        pk("v_pk_add_f32", vr(t0 + 2, 2), vr(t0 + 2, 2), vr(e + 4, 2))
        pk("v_pk_add_f32", vr(t0, 2), vr(t0, 2), vr(p1 + 2, 2))
        pk("v_pk_add_f32", vr(t0 + 2, 2), vr(t0 + 2, 2), vr(e + 6, 2))
        A("v_add_f32 v%d, v%d, v%d" % (SP + tb, t0, t0 + 1))
        A("v_add_f32 v%d, v%d, v%d" % (SM + tb, t0 + 2, t0 + 3))
    rsag("v_add_f32", [SP + i for i in range(4)], None)
    rsag("v_add_f32", [SM + i for i in range(4)], None)
    for i in range(8): A("v_rcp_f32 v%d, v%d" % (SP + i, SP + i))
    assert SP % 2 == 0 and SM % 2 == 0
    for tb in range(4):
        srcs = [(accb(0, tb)[1], SP), (accb(1, tb)[1], SP), (EMR[tb], SM), (EMR[tb] + 4, SM)]
        for q, (p, sc) in enumerate(srcs):
            sl = (sc + tb) & 1
            for u in range(2):
                pk("v_pk_mul_f32", vr(p + 2 * u, 2), vr(p + 2 * u, 2), vr((sc + tb) & ~1, 2), None, "op_sel:[0,%d] op_sel_hi:[1,%d]" % (sl, sl))
        for q, (p, sc) in enumerate(srcs):
            A("v_cvt_pk_bf16_f32 v%d, v%d, v%d" % (p, p, p + 1))
            A("v_cvt_pk_bf16_f32 v%d, v%d, v%d" % (p + 1, p + 2, p + 3))
        for q, (p, sc) in enumerate(srcs):
            A("ds_write_b64 v%d, %s offset:%d" % (VPH, vr(p, 2), tb * 16 * 136 + q * 32))
    stamp()
    VPR = T + 11
    A("v_bfe_u32 v%d, v1, 2, 2" % VPR)
    A("v_lshrrev_b32 v%d, 4, v1" % (T + 12))
    A("v_lshl_add_u32 v%d, v%d, 2, v%d" % (VPR, T + 12, VPR))
    A("v_mul_u32_u24 v%d, 136, v%d" % (VPR, VPR))
    A("v_and_b32 v%d, 3, v1" % (T + 12))
    A("v_lshl_add_u32 v%d, v%d, 3, v%d" % (VPR, T + 12, VPR))
    A("v_add_u32 v%d, s3, v%d" % (VPR, VPR))
    A("s_waitcnt lgkmcnt(0)")
    for fblk in range(4):
        for ks in range(2):
            for t in range(2):
                A("ds_read_b64_tr_b16 %s, v%d offset:%d" % (ar(8 * fblk + 4 * ks + 2 * t, 2), VPR, (32 * ks + 16 * t) * 136 + fblk * 32))
    A("v_mov_b32 v%d, 0x3f803f80" % (T + 13))
    for fblk in range(4):
        A("v_cmp_eq_u32 vcc, %d, v%d" % (fblk, T + 12))
        for r in range(4):
            A("v_cndmask_b32 v%d, 0, v%d, vcc" % (PB16 + 4 * fblk + r, T + 13))
    KV = accb(0, 0)[1]
    ZB = VB + 16
    for fblk in range(4):
        A("s_waitcnt lgkmcnt(%d)" % (12 - 4 * fblk))
        for ks in range(2):
            for db in range(2):
                d = vr(KV + 8 * fblk + 4 * db, 4)
                A("v_mfma_f32_16x16x32_bf16 %s, %s, %s, %s" % (d, ar(8 * fblk + 4 * ks, 4), vr(VB + db * 8 + ks * 4, 4), "0" if ks == 0 else d))
            A("v_mfma_f32_16x16x32_bf16 %s, %s, %s, %s" % (vr(ZB, 4), ar(8 * fblk + 4 * ks, 4), vr(PB16 + 4 * fblk, 4), "0" if (ks == 0 and fblk == 0) else vr(ZB, 4)))
    RED = 36864
    VRD = T + 12
    A("s_mul_i32 s3, s%d, 9216" % S_W)
    A("s_add_u32 s3, s3, %d" % RED)
    A("v_lshl_add_u32 v%d, v1, 4, s3" % VRD)
    for b in range(8):
        A("ds_write_b128 v%d, %s offset:%d" % (VRD, vr(KV + 4 * b, 4), b * 1024))
    A("ds_write_b128 v%d, %s offset:%d" % (VRD, vr(ZB, 4), 8 * 1024))
    A("s_waitcnt lgkmcnt(0)")
    A("s_barrier")
    A("s_lshl_b32 s3, s%d, 11" % S_W)
    A("s_add_u32 s3, s3, %d" % RED)
    A("v_lshl_add_u32 v%d, v1, 4, s3" % VRD)
    A("v_lshlrev_b32 v%d, 4, v1" % (T + 13))
    A("v_add_u32 v%d, %d, v%d" % (T + 15, RED, T + 13))
    for w in range(4):
        A("ds_read_b128 %s, v%d offset:%d" % (vr(KV + 8 * w, 4), VRD, w * 9216))
        A("ds_read_b128 %s, v%d offset:%d" % (vr(KV + 8 * w + 4, 4), VRD, w * 9216 + 1024))
        A("ds_read_b128 %s, v%d offset:%d" % (vr(VB + 4 * w, 4), T + 15, w * 9216 + 8192))
    A("s_waitcnt lgkmcnt(0)")
    for w in range(1, 4):
        for u in range(4): pk("v_pk_add_f32", vr(KV + 2 * u, 2), vr(KV + 2 * u, 2), vr(KV + 8 * w + 2 * u, 2))
        for u in range(2): pk("v_pk_add_f32", vr(VB + 2 * u, 2), vr(VB + 2 * u, 2), vr(VB + 4 * w + 2 * u, 2))
    S_KVB = 60
    A("s_lshl_b32 s3, s%d, 3" % S_J)
    A("s_mul_i32 s%d, s3, 9216" % S_KVB)
    A("s_add_u32 s%d, s%d, %d" % (S_KVB, S_KVB, WS_KVP))
    A("s_mul_i32 s3, s%d, 9216" % S_I)
    A("s_add_u32 s61, s%d, s3" % S_KVB)
    A("s_lshl_b32 s3, s%d, 11" % S_W)
    A("v_add_u32 v%d, s3, v%d" % (VRD, T + 13))
    A("buffer_store_dwordx4 %s, v%d, s[%d:%d], s61 offen sc1" % (vr(KV, 4), VRD, SRD_W, SRD_W + 3))
    A("buffer_store_dwordx4 %s, v%d, s[%d:%d], s61 offen offset:1024 sc1" % (vr(KV + 4, 4), VRD, SRD_W, SRD_W + 3))
    A("s_cmp_eq_u32 s%d, 0" % S_W)
    A("s_cbranch_scc0 L_k1_noz")
    A("s_add_u32 s3, s61, 8192")
    A("buffer_store_dwordx4 %s, v%d, s[%d:%d], s3 offen sc1" % (vr(VB, 4), T + 13, SRD_W, SRD_W + 3))
    A.label("L_k1_noz")
    stamp()
    feature(4)
    QE = VB
    A("s_waitcnt vmcnt(0)")
    A("s_lshl_b32 s3, s%d, 2" % S_J)
    A("v_mov_b32 v%d, s3" % (T + 14))
    A("v_mov_b32 v%d, 1" % (T + 15))
    A("s_mov_b64 exec, 1")
    A("global_atomic_add v%d, v%d, s[%d:%d] sc1" % (T + 14, T + 15, S_DBG, S_DBG + 1))
    A("s_mov_b64 exec, -1")
    for half in range(2):
        for tb in (2 * half, 2 * half + 1):
            exps(4, tb, PB16 + 8 * (tb & 1))
        for tb in (2 * half, 2 * half + 1):
            e = PB16 + 8 * (tb & 1)
            for h in range(2):
                p = accb(4 + h, tb)[1]
                A("v_cvt_pk_bf16_f32 v%d, v%d, v%d" % (QE + 8 * tb + 2 * h, p, p + 1))
                A("v_cvt_pk_bf16_f32 v%d, v%d, v%d" % (QE + 8 * tb + 2 * h + 1, p + 2, p + 3))
                A("v_cvt_pk_bf16_f32 v%d, v%d, v%d" % (QE + 8 * tb + 4 + 2 * h, e + 4 * h, e + 4 * h + 1))
                A("v_cvt_pk_bf16_f32 v%d, v%d, v%d" % (QE + 8 * tb + 4 + 2 * h + 1, e + 4 * h + 2, e + 4 * h + 3))
    stamp()
    VH = T + 14
    VS = T + 11
    A("v_and_b32 v%d, 15, v1" % VH)
    A("v_lshlrev_b32 v%d, 4, v%d" % (VH, VH))
    A("v_lshrrev_b32 v%d, 5, v1" % (T + 15))
    A("v_lshl_add_u32 v%d, v%d, 8, v%d" % (VH, T + 15, VH))
    A("v_bfe_u32 v%d, v1, 4, 1" % (T + 15))
    A("v_mul_u32_u24 v%d, %d, v%d" % (VS, MBS, T + 15))
    A("v_add_u32 v%d, v%d, v%d" % (VS, VS, VH))
    A("v_lshl_add_u32 v%d, v%d, 9, v%d" % (VH, T + 15, VH))
    A("s_lshl_b32 s3, s%d, 4" % S_I)
    A("s_lshl_b32 s62, s%d, 2" % S_W)
    A("s_add_u32 s62, s62, s3")
    A("s_mul_i32 s62, s62, %d" % MBS)
    A("s_mul_i32 s3, s%d, 7" % S_J)
    A("s_add_u32 s3, s3, 1")
    A("s_lshr_b32 s3, s3, 1")
    A("s_lshl_b32 s3, s3, 10")
    A("s_add_u32 s63, s62, s3")
    for tb in range(1, 4): A("s_add_u32 s%d, s63, %d" % (63 + tb, tb * MBS))
    A("s_add_u32 s67, s63, 3072")
    A("s_sub_u32 s3, s63, 512")
    A("s_bitcmp1_b32 s%d, 0" % S_J)
    A("s_cselect_b32 s67, s3, s67")
    A("s_add_u32 s76, s67, %d" % (2 * MBS))
    FREEV = [accb(0, 0)[1] + 4 * i for i in range(8)] + [accb(4, 0)[1] + 4 * i for i in range(8)]
    def glu(fb, fi):
        gs, us = [], []
        for tb in range(4):
            out = []
            for cb in (6 + 2 * fb, 7 + 2 * fb):
                f, b = accb(cb, tb)
                if f == "a":
                    d = FREEV[fi]; fi += 1
                    for r in range(4): A("v_accvgpr_read_b32 v%d, a%d" % (d + r, b + r))
                    b = d
                out.append(b)
            gs.append(out[0]); us.append(out[1])
        for tb in range(4):
            for u in range(2): pk("v_pk_mul_f32", vr(gs[tb] + 2 * u, 2), vr(gs[tb] + 2 * u, 2), sr(S_C, 2))
        for tb in range(4):
            for r in range(4): A("v_exp_f32 v%d, -v%d" % (gs[tb] + r, gs[tb] + r))
        for tb in range(4):
            for u in range(2): pk("v_pk_add_f32", vr(gs[tb] + 2 * u, 2), vr(gs[tb] + 2 * u, 2), "1.0", None, "op_sel_hi:[1,0]")
        for tb in range(4):
            for r in range(4): A("v_rcp_f32 v%d, v%d" % (gs[tb] + r, gs[tb] + r))
        for tb in range(4):
            for u in range(2): pk("v_pk_mul_f32", vr(gs[tb] + 2 * u, 2), vr(gs[tb] + 2 * u, 2), vr(us[tb] + 2 * u, 2))
        return gs, us
    def packswap(dst, a, b):
        for (d, x) in ((dst, a), (dst + 2, b)):
            A("v_cvt_pk_bf16_f32 v%d, v%d, v%d" % (d, x, x + 1))
            A("v_cvt_pk_bf16_f32 v%d, v%d, v%d" % (d + 1, x + 2, x + 3))
    def doswap(d):
        A("v_permlane16_swap_b32 v%d, v%d" % (d, d + 2))
        A("v_permlane16_swap_b32 v%d, v%d" % (d + 1, d + 3))
    def glu_pair(p, dst=None):
        g0, u0 = glu(2 * p, 0)
        g1, u1 = glu(2 * p + 1, 8)
        D4 = dst if dst is not None else u0
        for tb in range(4): packswap(D4[tb], g0[tb], g1[tb])
        for tb in range(4): doswap(D4[tb])
        return ["buffer_store_dwordx4 %s, v%d, s[%d:%d], s%d offen offset:%d" % (vr(D4[tb], 4), VH, SRD_W, SRD_W + 3, 63 + tb, p * 1024) for tb in range(4)]
    st0 = glu_pair(0, [PB16 + 4 * i for i in range(4)])
    st1 = glu_pair(1, [FREEV[i] for i in range(4)])
    stamp()
    A("s_lshl_b32 s3, s%d, 2" % S_J)
    A("v_mov_b32 v%d, s3" % (T + 15))
    A("s_mov_b32 s%d, 0x40000" % S_CNT)
    A.label("L_k1_poll")
    A("global_load_dword v%d, v%d, s[%d:%d] sc1" % (T + 12, T + 15, S_DBG, S_DBG + 1))
    A("s_waitcnt vmcnt(0)")
    A("v_readfirstlane_b32 s3, v%d" % (T + 12))
    A("s_cmp_ge_u32 s3, 32")
    A("s_cbranch_scc1 L_k1_ready")
    A("s_sleep 2")
    A("s_sub_u32 s%d, s%d, 1" % (S_CNT, S_CNT))
    A("s_cbranch_scc0 L_k1_poll")
    A.label("L_k1_ready")
    stamp()
    A("s_lshr_b32 s3, s%d, 1" % S_W)
    A("s_lshl_b32 s3, s3, 12")
    A("s_and_b32 s61, s%d, 1" % S_W)
    A("s_lshl_b32 s61, s61, 10")
    A("s_add_u32 s3, s3, s61")
    A("v_add_u32 v%d, s3, v%d" % (T + 12, T + 13))
    LB = accb(6, 0)[1]
    assert accb(12, 3)[0] == "v" and accb(12, 3)[1] == LB + 108
    A("s_mov_b32 s61, s%d" % S_KVB)
    for i in range(8):
        A("buffer_load_dwordx4 %s, v%d, s[%d:%d], s61 offen sc1" % (vr(LB + 12 * i, 4), T + 12, SRD_W, SRD_W + 3))
        A("buffer_load_dwordx4 %s, v%d, s[%d:%d], s61 offen offset:2048 sc1" % (vr(LB + 12 * i + 4, 4), T + 12, SRD_W, SRD_W + 3))
        A("s_add_u32 s3, s61, 8192")
        A("buffer_load_dwordx4 %s, v%d, s[%d:%d], s3 offen sc1" % (vr(LB + 12 * i + 8, 4), T + 13, SRD_W, SRD_W + 3))
        A("s_add_u32 s61, s61, 9216")
    for x in st0 + st1: A(x)
    A("s_nop 1")
    for x in glu_pair(2): A(x)
    g6, u6 = glu(6, 8)
    for tp in range(2): packswap(u6[2 * tp], g6[2 * tp], g6[2 * tp + 1])
    for tp in range(2): doswap(u6[2 * tp])
    for tp in range(2):
        A("buffer_store_dwordx4 %s, v%d, s[%d:%d], s%d offen" % (vr(u6[2 * tp], 4), VS, SRD_W, SRD_W + 3, 67 if tp == 0 else 76))
    stamp()
    A("s_waitcnt vmcnt(14)")
    stamp()
    for i in range(1, 8):
        for u in range(6): pk("v_pk_add_f32", vr(LB + 2 * u, 2), vr(LB + 2 * u, 2), vr(LB + 12 * i + 2 * u, 2))
    AF = LB + 12
    for h in range(2):
        A("v_cvt_pk_bf16_f32 v%d, v%d, v%d" % (AF + 2 * h, LB + 4 * h, LB + 4 * h + 1))
        A("v_cvt_pk_bf16_f32 v%d, v%d, v%d" % (AF + 2 * h + 1, LB + 4 * h + 2, LB + 4 * h + 3))
    A("s_lshl_b32 s3, s%d, 10" % S_W)
    A("v_add_u32 v%d, s3, v%d" % (T + 12, T + 13))
    A("ds_write_b128 v%d, %s" % (T + 12, vr(AF, 4)))
    ZQ = LB + 16
    AUX = LB + 32
    for fblk in range(4):
        for r in range(4):
            A("v_mov_b32_dpp v%d, v%d quad_perm:[%d,%d,%d,%d] row_mask:0xf bank_mask:0xf" % (ZQ + 4 * fblk + r, LB + 8 + r, fblk, fblk, fblk, fblk))
    for fblk in range(4):
        A("v_cvt_pk_bf16_f32 v%d, v%d, v%d" % (AUX + 2 * fblk, ZQ + 4 * fblk, ZQ + 4 * fblk + 1))
        A("v_cvt_pk_bf16_f32 v%d, v%d, v%d" % (AUX + 2 * fblk + 1, ZQ + 4 * fblk + 2, ZQ + 4 * fblk + 3))
    A("v_and_b32 v%d, 3, v1" % ZQ)
    A("v_mov_b32 v%d, 0x3f803f80" % (ZQ + 1))
    A("v_cmp_eq_u32 vcc, 1, v%d" % ZQ)
    A("v_cndmask_b32 v%d, 0, v%d, vcc" % (ZQ + 1, ZQ + 1))
    A("v_cmp_eq_u32 vcc, 0, v%d" % ZQ)
    for r in range(8): A("v_cndmask_b32 v%d, v%d, v%d, vcc" % (AUX + r, ZQ + 1, AUX + r))
    A("s_waitcnt lgkmcnt(0)")
    A("s_barrier")
    KF = LB + 40
    for q in range(4):
        A("ds_read_b128 %s, v%d offset:%d" % (vr(KF + 4 * q, 4), T + 13, q * 1024))
    A("s_waitcnt lgkmcnt(0)")
    NB = LB + 56
    VO = VH
    A("s_add_u32 s3, s%d, 112" % S_J)
    A("s_lshl_b32 s3, s3, 10")
    A("s_add_u32 s63, s62, s3")
    A("s_mov_b32 s64, 0x358637bd")
    for half in range(2):
        for tb in (2 * half, 2 * half + 1):
            n = NB + 24 * (tb & 1)
            for s in range(2):
                A("v_mfma_f32_16x16x32_bf16 %s, %s, %s, 0" % (vr(n + 16 + 4 * s, 4), vr(AUX + 4 * s, 4), vr(QE + 8 * tb + 4 * s, 4)))
                for db in range(2):
                    A("v_mfma_f32_16x16x32_bf16 %s, %s, %s, 0" % (vr(n + 8 * s + 4 * db, 4), vr(KF + 8 * s + 4 * db, 4), vr(QE + 8 * tb + 4 * s, 4)))
        for tb in (2 * half, 2 * half + 1):
            n = NB + 24 * (tb & 1)
            A("v_rcp_f32 v%d, v%d" % (n + 17, n + 17))
            A("v_rcp_f32 v%d, v%d" % (n + 21, n + 21))
        for tb in (2 * half, 2 * half + 1):
            n = NB + 24 * (tb & 1)
            A("v_fma_f32 v%d, v%d, v%d, s64" % (n + 18, n + 16, n + 17))
            A("v_fma_f32 v%d, v%d, v%d, v%d" % (n + 18, n + 20, n + 21, n + 18))
        for tb in (2 * half, 2 * half + 1):
            n = NB + 24 * (tb & 1)
            A("v_rcp_f32 v%d, v%d" % (n + 18, n + 18))
        for tb in (2 * half, 2 * half + 1):
            n = NB + 24 * (tb & 1)
            A("v_mul_f32 v%d, v%d, v%d" % (n + 16, n + 17, n + 18))
            A("v_mul_f32 v%d, v%d, v%d" % (n + 20, n + 21, n + 18))
        for tb in (2 * half, 2 * half + 1):
            n = NB + 24 * (tb & 1)
            for u in range(4):
                pk("v_pk_mul_f32", vr(n + 2 * u, 2), vr(n + 2 * u, 2), vr(n + 16, 2), None, "op_sel_hi:[1,0]")
            for u in range(4):
                pk("v_pk_fma_f32", vr(n + 2 * u, 2), vr(n + 8 + 2 * u, 2), vr(n + 20, 2), vr(n + 2 * u, 2), "op_sel_hi:[1,0,1]")
            for u in range(4):
                A("v_cvt_pk_bf16_f32 v%d, v%d, v%d" % (n + 8 + u, n + 2 * u, n + 2 * u + 1))
        for tb in (2 * half, 2 * half + 1):
            n = NB + 24 * (tb & 1)
            A("v_permlane16_swap_b32 v%d, v%d" % (n + 8, n + 10))
            A("v_permlane16_swap_b32 v%d, v%d" % (n + 9, n + 11))
        for tb in (2 * half, 2 * half + 1):
            n = NB + 24 * (tb & 1)
            A("buffer_store_dwordx4 %s, v%d, s[%d:%d], s63 offen" % (vr(n + 8, 4), VO, SRD_W, SRD_W + 3))
            A("s_add_u32 s63, s63, %d" % MBS)
    stamp()
    if STAMP:
        A("s_waitcnt vmcnt(0)")
        A("s_memtime s[50:51]"); A("s_memrealtime s[48:49]")
        A("s_waitcnt lgkmcnt(0)")
        A("s_cmp_eq_u32 s%d, 0" % S_W); A("s_cbranch_scc0 L_k1_end")
        A("s_cmp_eq_u32 s2, %d" % (STAMP - 1)); A("s_cbranch_scc0 L_k1_end")
        A("s_add_u32 s56, s56, 128"); A("s_addc_u32 s57, s57, 0")
        stamp_out(A, S_DBG, [(42, 40), (44, 40), (50, 40), (48, 46)] + [(r, 44) for r in stamps], T)
    A.label("L_k1_end")
    A("s_endpgm")
    return name, LDS

def gen_k2(A):
    name = "k2_kernel"
    kernel_open(A, name)
    NS = 4; STAGE = 32768; WB = 16384
    LDS = NS * STAGE
    S_MT, S_NT, S_KH, S_W, S_CNT, S_AK, S_WK, S_KT = 24, 25, 26, 27, 28, 29, 30, 31
    S_M0 = 32
    SRD_A, SRD_B, SRD_W, SRD_O = 8, 12, 16, 20
    S_B2 = 60
    V_DMA, V_XRD, V_WRD = 2, 10, 14
    T = 24
    V_ACC = 64
    V_FR = 192
    def acc(s, cb, tb): return vr(V_ACC + 64 * s + 4 * (cb * 4 + tb), 4)
    def xf(p, tb): return vr(V_FR + 32 * p + 4 * tb, 4)
    def wf(p, cb, half=None):
        b = V_FR + 32 * p + 16 + 4 * cb
        return vr(b, 4) if half is None else vr(b + 2 * half, 2)
    A("s_cmp_ge_u32 s2, 256")
    A("s_cbranch_scc1 L_k2_end")
    A("s_load_dwordx2 s[4:5], s[0:1], 24")
    A("s_load_dwordx2 s[6:7], s[0:1], 56")
    A("s_load_dwordx2 s[52:53], s[0:1], 72")
    A("s_load_dwordx4 s[56:59], s[0:1], 80")
    if STAMP:
        A("s_memtime s[40:41]"); A("s_memrealtime s[46:47]")
    A("v_lshrrev_b32 v1, 6, v0")
    A("s_and_b32 s%d, s2, 1" % S_KH)
    A("v_readfirstlane_b32 s%d, v1" % S_W)
    A("s_lshr_b32 s3, s2, 3")
    A("s_and_b32 s%d, s3, 7" % S_MT)
    A("s_lshr_b32 s%d, s3, 3" % S_NT)
    A("s_bfe_u32 s3, s2, 0x10001")
    A("s_lshl_b32 s3, s3, 3")
    A("s_add_u32 s%d, s%d, s3" % (S_MT, S_MT))
    A("s_bfe_u32 s3, s2, 0x10002")
    A("s_lshl_b32 s3, s3, 2")
    A("s_add_u32 s%d, s%d, s3" % (S_NT, S_NT))
    A("v_and_b32 v1, 63, v0")
    A("v_lshlrev_b32 v%d, 4, v1" % T)
    A("s_mul_i32 s3, s%d, %d" % (S_W, 2 * MBS))
    A("v_add_u32 v%d, s3, v%d" % (V_DMA, T))
    A("v_add_u32 v%d, %d, v%d" % (V_DMA + 2, MBS - 2048, V_DMA))
    A("v_lshrrev_b32 v%d, 4, v1" % T)
    A("v_and_b32 v%d, 15, v1" % (T + 1))
    A("v_lshlrev_b32 v%d, 1, v%d" % (T + 2, T))
    A("v_xor_b32 v%d, v%d, v%d" % (T + 1, T + 1, T + 2))
    A("s_lshl_b32 s3, s%d, 4" % S_W)
    A("v_add_u32 v%d, s3, v%d" % (T, T))
    A("v_lshlrev_b32 v%d, 11, v%d" % (T, T))
    A("v_lshl_add_u32 v%d, v%d, 4, v%d" % (T, T + 1, T))
    A("v_xor_b32 v%d, 128, v%d" % (T + 1, T))
    for n in range(4):
        A("v_add_u32 v%d, %d, v%d" % (V_DMA + 4 + n, n * 4 * 2048 - 1024 * n, T + (n >> 1)))
    A("s_lshl_b32 s%d, s%d, 12" % (S_M0, S_W))
    A("s_add_u32 s%d, s%d, %d" % (S_M0 + 1, S_M0, WB))
    A("s_mov_b32 s%d, 0" % S_AK); A("s_mov_b32 s%d, 0" % S_WK); A("s_mov_b32 s%d, 0" % S_KT)
    A("s_waitcnt lgkmcnt(0)")
    A("s_mul_i32 s3, s%d, %d" % (S_MT, 8 * MBS))
    A("s_mul_i32 s62, s%d, %d" % (S_KH, 72 * 1024))
    A("s_add_u32 s3, s3, s62")
    A("s_add_u32 s%d, s58, s3" % SRD_A); A("s_addc_u32 s%d, s59, 0" % (SRD_A + 1))
    A("s_sub_u32 s%d, %d, s3" % (SRD_A + 2, 128 * MBS)); A("s_mov_b32 s%d, 0x20000" % (SRD_A + 3))
    A("s_mul_i32 s3, s%d, %d" % (S_KH, 2304 * 2048))
    A("s_lshl_b32 s62, s%d, 8" % S_NT)
    A("s_add_u32 s3, s3, s62")
    A("s_add_u32 s%d, s6, s3" % SRD_B); A("s_addc_u32 s%d, s7, 0" % (SRD_B + 1))
    A("s_sub_u32 s%d, %d, s3" % (SRD_B + 2, 3584 * 2048)); A("s_mov_b32 s%d, 0x20000" % (SRD_B + 3))
    A("s_add_u32 s63, s6, %d" % (1280 * 2048)); A("s_addc_u32 s64, s7, 0")
    A("s_cmp_eq_u32 s%d, 1" % S_KH)
    A("s_cselect_b32 s63, s4, s63"); A("s_cselect_b32 s64, s5, s64")
    A("s_add_u32 s%d, s63, s62" % S_B2); A("s_addc_u32 s%d, s64, 0" % (S_B2 + 1))
    A("s_sub_u32 s62, %d, s62" % (1024 * 2048))
    def dma_list(stage):
        L = []
        for n in range(8):
            g = []
            if n % 4 == 0:
                g.append("s_add_u32 m0, s%d, %d" % (S_M0 + n // 4, STAGE * stage) if stage else "s_mov_b32 m0, s%d" % (S_M0 + n // 4))
            sd, so = (SRD_A, S_AK) if n < 4 else (SRD_B, S_WK)
            g.append("buffer_load_dwordx4 v%d, s[%d:%d], s%d offen offset:%d lds" % (V_DMA + (n & 2 if n < 4 else n), sd, sd + 3, so, 1024 * (n & 3)))
            L.append(g)
        L[-1] += ["s_add_u32 s%d, s%d, 2048" % (S_AK, S_AK),
                  "s_add_u32 s%d, s%d, %d" % (S_WK, S_WK, 64 * 2048),
                  "s_add_u32 s%d, s%d, 1" % (S_KT, S_KT),
                  "s_cmp_eq_u32 s%d, 20" % S_KT,
                  "s_cselect_b32 s%d, s%d, s%d" % (SRD_B, S_B2, SRD_B),
                  "s_cselect_b32 s%d, s%d, s%d" % (SRD_B + 1, S_B2 + 1, SRD_B + 1),
                  "s_cselect_b32 s%d, s62, s%d" % (SRD_B + 2, SRD_B + 2),
                  "s_cselect_b32 s%d, 0, s%d" % (S_WK, S_WK)]
        return L
    for st in range(NS):
        for g in dma_list(st):
            for s in g: A(s)
    A("s_mov_b32 s%d, s58" % SRD_W); A("s_mov_b32 s%d, s59" % (SRD_W + 1))
    A("s_mov_b32 s%d, %d" % (SRD_W + 2, WS_SIZE)); A("s_mov_b32 s%d, 0x20000" % (SRD_W + 3))
    A("s_mov_b32 s%d, s52" % SRD_O); A("s_mov_b32 s%d, s53" % (SRD_O + 1))
    A("s_mov_b32 s%d, %d" % (SRD_O + 2, 2048 * 2048)); A("s_mov_b32 s%d, 0x20000" % (SRD_O + 3))
    S_WM, S_WN = 64, 65
    A("s_lshr_b32 s%d, s%d, 1" % (S_WM, S_W)); A("s_and_b32 s%d, s%d, 1" % (S_WN, S_W))
    VG = 40
    A("s_lshl_b32 s66, s%d, 7" % S_MT)
    A("s_lshl_b32 s3, s%d, 6" % S_WM)
    A("s_add_u32 s66, s66, s3")
    A("v_and_b32 v%d, 15, v1" % T)
    A("v_add_u32 v%d, s66, v%d" % (T + 4, T))
    A("v_lshlrev_b32 v%d, 2, v%d" % (T + 5, T + 4))
    A("v_add_u32 v%d, %d, v%d" % (T + 5, WS_G, T + 5))
    for tb in range(4):
        A("buffer_load_dword v%d, v%d, s[%d:%d], 0 offen offset:%d" % (VG + tb, T + 5, SRD_W, SRD_W + 3, 64 * tb))
    NPRO = 4
    A("s_lshl_b32 s3, s%d, 13" % S_WM)
    A("v_lshl_add_u32 v%d, v1, 4, s3" % V_XRD)
    A("v_add_u32 v%d, %d, v%d" % (V_XRD + 1, 2 * STAGE, V_XRD))
    A("v_lshrrev_b32 v%d, 4, v1" % (T + 2))
    A("v_bfe_u32 v%d, v1, 2, 2" % T)
    A("v_lshl_add_u32 v%d, v%d, 3, v%d" % (T + 1, T + 2, T))
    A("v_lshlrev_b32 v%d, 8, v%d" % (T + 1, T + 1))
    A("v_and_b32 v%d, 3, v1" % (T + 3))
    A("v_lshl_add_u32 v%d, v%d, 3, v%d" % (T + 1, T + 3, T + 1))
    A("v_add_u32 v%d, %d, v%d" % (T + 1, WB, T + 1))
    A("v_bfe_u32 v%d, v1, 4, 1" % (T + 3))
    A("v_lshl_add_u32 v%d, v%d, 2, v%d" % (T, T + 3, T))
    A("s_lshl_b32 s3, s%d, 2" % S_WN)
    for cb in range(4):
        A("s_add_u32 s67, s3, %d" % cb)
        A("v_xor_b32 v%d, s67, v%d" % (T + 3, T))
        A("v_lshl_add_u32 v%d, v%d, 5, v%d" % (V_WRD + cb, T + 3, T + 1))
        A("v_add_u32 v%d, %d, v%d" % (V_WRD + 4 + cb, 2 * STAGE, V_WRD + cb))
    def reads(stage, ks, p):
        R = []
        so = (stage & 1) * STAGE; gq = stage >> 1
        def xr(tb): return "ds_read_b128 %s, v%d offset:%d" % (xf(p, tb), V_XRD + gq, so + tb * 2048 + ks * 1024)
        def wr(cb, t): return "ds_read_b64_tr_b16 %s, v%d offset:%d" % (wf(p, cb, t), V_WRD + 4 * gq + cb, so + (ks * 32 + 4 * t) * 256)
        R += [xr(0), wr(0, 0), wr(0, 1), xr(1), xr(2), xr(3)]
        for cb in range(1, 4): R += [wr(cb, 0), wr(cb, 1)]
        return R
    A("s_waitcnt vmcnt(%d)" % (8 * (NS - 1) + NPRO))
    A("s_barrier")
    for s in reads(0, 0, 0): A(s)
    if STAMP: A("s_memtime s[42:43]")
    st = {"pend": []}
    def tile(stage, aset, first, dma_next, has_next, vm):
        for ks in range(2):
            fills = {}
            rd = reads(stage, 1, 1) if ks == 0 else (reads((stage + 1) % NS, 0, 0) if has_next else [])
            pre = ["s_waitcnt lgkmcnt(0)"]
            if ks == 1:
                assert not st["pend"]
                if has_next: pre = ["s_waitcnt lgkmcnt(0) vmcnt(%d)" % vm, "s_barrier"]
                if dma_next: st["pend"] = dma_list(stage)
            fills[-1] = pre
            for n, r in enumerate(rd): fills.setdefault(n, []).append(r)
            for g in range(16):
                if st["pend"] and g % 4 == 3 - 0:
                    fills.setdefault(g, []).extend(st["pend"].pop(0))
            M = []
            for cb in range(4):
                for tb in range(4):
                    c = "0" if (first and ks == 0) else acc(aset, cb, tb)
                    M.append("v_mfma_f32_16x16x32_bf16 %s, %s, %s, %s" % (acc(aset, cb, tb), wf(ks, cb), xf(ks, tb), c))
            interleave(A, M, fills)
    VM = 8 * (NS - 2)
    tile(0, 0, True, True, True, VM + NPRO)
    for t in range(1, 4): tile(t, 0, False, True, True, VM + (NPRO if t < NS - 1 else 0))
    A("s_mov_b32 s%d, 0" % S_CNT)
    A.label("L_k2_loop1")
    for t in range(4): tile(t, 0, False, True, True, VM)
    A("s_add_u32 s%d, s%d, 1" % (S_CNT, S_CNT))
    A("s_cmp_lt_u32 s%d, 4" % S_CNT)
    A("s_cbranch_scc1 L_k2_loop1")
    tile(0, 1, True, True, True, VM)
    for t in range(1, 4): tile(t, 1, False, True, True, VM)
    A("s_mov_b32 s%d, 0" % S_CNT)
    A.label("L_k2_loop2")
    for t in range(4): tile(t, 1, False, True, True, VM)
    A("s_add_u32 s%d, s%d, 1" % (S_CNT, S_CNT))
    A("s_cmp_lt_u32 s%d, 2" % S_CNT)
    A("s_cbranch_scc1 L_k2_loop2")
    for t in range(4):
        tile(t, 1, False, False, t < 3, 8 * max(0, 2 - t))
    if STAMP: A("s_memtime s[44:45]")
    C1 = 44; C2 = 48
    A("s_cmp_eq_u32 s%d, 1" % S_KH)
    A("s_cselect_b64 vcc, -1, 0")
    for tb in range(4):
        A("v_sub_f32 v%d, 1.0, v%d" % (C1 + tb, VG + tb))
        A("v_cndmask_b32 v%d, v%d, v%d, vcc" % (C2 + tb, C1 + tb, VG + tb))
    def scale(tb):
        for cb in range(4):
            a0 = V_ACC + 4 * (cb * 4 + tb); a1 = a0 + 64
            sl = tb & 1
            for u in range(2):
                A("v_pk_mul_f32 %s, %s, %s op_sel:[0,%d] op_sel_hi:[1,%d]" % (vr(a0 + 2 * u, 2), vr(a0 + 2 * u, 2), vr(C1 + (tb & ~1), 2), sl, sl))
            for u in range(2):
                A("v_pk_fma_f32 %s, %s, %s, %s op_sel:[0,%d,0] op_sel_hi:[1,%d,1]" % (vr(a0 + 2 * u, 2), vr(a1 + 2 * u, 2), vr(C2 + (tb & ~1), 2), vr(a0 + 2 * u, 2), sl, sl))
    A("s_lshl_b32 s3, s%d, 3" % S_MT)
    A("s_add_u32 s3, s3, s%d" % S_NT)
    A("s_lshl_b32 s3, s3, 1")
    A("s_add_u32 s68, s3, s%d" % S_KH)
    A("s_xor_b32 s69, s68, 1")
    for r in (68, 69):
        A("s_lshl_b32 s%d, s%d, 2" % (r, r))
        A("s_add_u32 s%d, s%d, s%d" % (r, r, S_W))
        A("s_lshl_b32 s%d, s%d, 6" % (r + 2, r))
        A("s_add_u32 s%d, s%d, %d" % (r + 2, r + 2, WS_FLG))
        A("s_lshl_b32 s%d, s%d, 13" % (r, r))
        A("s_add_u32 s%d, s%d, %d" % (r, r, WS_XCH))
    VL = T
    A("v_lshlrev_b32 v%d, 4, v1" % VL)
    A("v_add_u32 v%d, 4096, v%d" % (VL + 1, VL))
    RB = V_FR
    def finish(send, keep):
        for tb in send: scale(tb)
        q = 0
        for tb in send:
            for cb in range(4):
                A("buffer_store_dwordx4 %s, v%d, s[%d:%d], s68 offen offset:%d sc1" % (acc(0, cb, tb), VL + (q >> 2), SRD_W, SRD_W + 3, (q & 3) * 1024))
                q += 1
        for tb in keep: scale(tb)
        A("s_waitcnt vmcnt(0)")
        A("v_mov_b32 v%d, 1" % (T + 2))
        A("v_mov_b32 v%d, 0" % (T + 3))
        A("s_mov_b64 exec, 1")
        A("buffer_store_dword v%d, v%d, s[%d:%d], s70 offen sc1" % (T + 2, T + 3, SRD_W, SRD_W + 3))
        A("s_mov_b64 exec, -1")
        lp = A.newlabel("L_k2_poll"); lr = A.newlabel("L_k2_rdy")
        A("s_mov_b32 s%d, 0x40000" % S_CNT)
        A.label(lp)
        A("buffer_load_dword v%d, v%d, s[%d:%d], s71 offen sc1" % (T + 2, T + 3, SRD_W, SRD_W + 3))
        A("s_waitcnt vmcnt(0)")
        A("v_readfirstlane_b32 s3, v%d" % (T + 2))
        A("s_cmp_eq_u32 s3, 1")
        A("s_cbranch_scc1 %s" % lr)
        A("s_sleep 1")
        A("s_sub_u32 s%d, s%d, 1" % (S_CNT, S_CNT))
        A("s_cbranch_scc0 %s" % lp)
        A.label(lr)
        for q in range(8):
            A("buffer_load_dwordx4 %s, v%d, s[%d:%d], s69 offen offset:%d sc1" % (vr(RB + 4 * q, 4), VL + (q >> 2), SRD_W, SRD_W + 3, (q & 3) * 1024))
        VO = T + 6
        A("v_lshlrev_b32 v%d, 11, v%d" % (VO, T + 4))
        A("v_bfe_u32 v%d, v1, 4, 1" % (T + 7))
        A("v_lshl_add_u32 v%d, v%d, 5, v%d" % (VO, T + 7, VO))
        A("v_lshrrev_b32 v%d, 5, v1" % (T + 7))
        A("v_lshl_add_u32 v%d, v%d, 4, v%d" % (VO, T + 7, VO))
        A("s_lshl_b32 s72, s%d, 8" % S_NT)
        A("s_lshl_b32 s3, s%d, 7" % S_WN)
        A("s_add_u32 s72, s72, s3")
        A("s_add_u32 s72, s72, %d" % (keep[0] * 32768))
        q = 0
        for ti, tb in enumerate(keep):
            A("s_waitcnt vmcnt(%d)" % (4 if ti == 0 else 2))
            for cb in range(4):
                a0 = V_ACC + 4 * (cb * 4 + tb)
                for u in range(2):
                    A("v_pk_add_f32 %s, %s, %s" % (vr(a0 + 2 * u, 2), vr(a0 + 2 * u, 2), vr(RB + 4 * q + 2 * u, 2)))
                q += 1
            for cp in range(2):
                d = V_ACC + 64 + 8 * ti + 4 * cp
                for h in range(2):
                    a0 = V_ACC + 4 * ((2 * cp + h) * 4 + tb)
                    A("v_cvt_pk_bf16_f32 v%d, v%d, v%d" % (d + 2 * h, a0, a0 + 1))
                    A("v_cvt_pk_bf16_f32 v%d, v%d, v%d" % (d + 2 * h + 1, a0 + 2, a0 + 3))
            for cp in range(2):
                d = V_ACC + 64 + 8 * ti + 4 * cp
                A("v_permlane16_swap_b32 v%d, v%d" % (d, d + 2))
                A("v_permlane16_swap_b32 v%d, v%d" % (d + 1, d + 3))
            for cp in range(2):
                d = V_ACC + 64 + 8 * ti + 4 * cp
                A("buffer_store_dwordx4 %s, v%d, s[%d:%d], s72 offen offset:%d" % (vr(d, 4), VO, SRD_O, SRD_O + 3, cp * 64))
            if ti == 0: A("s_add_u32 s72, s72, 32768")
    A("s_cmp_eq_u32 s%d, 1" % S_KH)
    A("s_cbranch_scc1 L_k2_kh1")
    finish([2, 3], [0, 1])
    A("s_branch L_k2_fin")
    A.label("L_k2_kh1")
    finish([0, 1], [2, 3])
    A.label("L_k2_fin")
    if STAMP:
        A("s_waitcnt vmcnt(0)")
        A("s_memtime s[50:51]"); A("s_memrealtime s[48:49]")
        A("s_waitcnt lgkmcnt(0)")
        A("s_cmp_eq_u32 s%d, 0" % S_W); A("s_cbranch_scc0 L_k2_end")
        A("s_cmp_eq_u32 s2, 0"); A("s_cbranch_scc0 L_k2_end")
        A("s_add_u32 s56, s56, 128"); A("s_addc_u32 s57, s57, 0")
        stamp_out(A, 56, [(42, 40), (44, 40), (50, 40), (48, 46)], T)
    A.label("L_k2_end")
    A("s_endpgm")
    return name, LDS

A = Asm()
n1, l1 = gen_k1(A)
n2, l2 = gen_k2(A)
hdr = ""
if ONLY != 2: hdr += "; @launch kernel=%s grid=(256,1,1) block=(256,1,1) lds=%d\n" % (n1, l1)
if ONLY != 1: hdr += "; @launch kernel=%s grid=(256,1,1) block=(256,1,1) lds=%d\n" % (n2, l2)
hdr += '.amdgcn_target "amdgcn-amd-amdhsa--gfx950"\n.text\n'
txt = hdr + A.text() + '.section .rodata,"a"\n' + kernel_desc(n1, 512, 256) + kernel_desc(n2, 256, 256)
open(OUT, "w").write(txt)
```

```python
import sys
from asmlib import *

opts = dict(a.split("=") if "=" in a else (a, "1") for a in sys.argv[2:])
OUT = sys.argv[1]
O = lambda k, d: int(opts.get(k, d))
TOUCH = O("touch", 1)
STAMP = O("stamp", 0)
ONLY = O("only", 0)
HSC1 = O("hsc1", 0)
K2MAP = O("k2map", 0)
NH = O("nh", 32)
K2NODMA = O("k2nodma", 0); K2NOMFMA = O("k2nomfma", 0); K2NOLDS = O("k2nolds", 0); K2SEL = opts.get("k2sel", "aw")

MBS = 144 * 1024
WS_G = 0x1200000
WS_KVP = 0x1210000
WS_FLG = 0x1480000
WS_FLGH = 0x1494000
WS_FLGO = 0x1498000
WS_FLG1 = 0x1490000
WS_STAMP = 0x14A0000
WS_XCH = 0x1500000
WS_SIZE = WS_XCH + 128 * 65536
LOG2E = 0x3FB8AA3B
SC = " sc1"
INV = O("inv", 0)
DSC = " sc1" if O("dsc1", 1) else ""

class Cnt:
    def __init__(self, cap): self.n = 0; self.tag = {}; self.cap = cap
    def issue(self, tag=None, k=1):
        self.n += k
        if tag is not None: self.tag[tag] = self.n
    def wait_for(self, tags):
        last = max(self.tag[t] for t in tags)
        return min(self.n - last, self.cap)

class Stamper:
    def __init__(self, A, kidx): self.A = A; self.regs = []; self.k = kidx
    def start(self):
        if STAMP:
            self.A("s_memrealtime s[78:79]"); self.A("s_memtime s[80:81]")
    off = False
    def __call__(self, wait=True):
        if STAMP and not self.off:
            r = 82 + len(self.regs); assert r <= 99; self.regs.append(r)
            self.A("s_memtime s[100:101]")
            self.A("s_waitcnt lgkmcnt(0)")
            self.A("s_mov_b32 s%d, s100" % r)
    def real(self):
        if STAMP and not self.off:
            r = 82 + len(self.regs); assert r <= 99; self.regs.append(-r)
            self.A("s_memrealtime s[100:101]")
            self.A("s_waitcnt lgkmcnt(0)")
            self.A("s_mov_b32 s%d, s100" % r)
    def finish(self, swave, srd, T, endlabel):
        if not STAMP: return
        A = self.A
        A("s_waitcnt vmcnt(0)")
        A("s_memtime s[4:5]"); A("s_memrealtime s[6:7]")
        A("s_waitcnt lgkmcnt(0)")
        A("s_cmp_eq_u32 s%d, 0" % swave); A("s_cbranch_scc0 %s" % endlabel)
        A("s_lshl_b32 s3, s2, 7")
        A("s_add_u32 s3, s3, %d" % WS_STAMP)
        A("v_mov_b32 v%d, 0" % (T + 1))
        items = [(78, None), (6, None), (4, 80)] + [(abs(r), 80 if r > 0 else 78) for r in self.regs]
        for q, (s, b) in enumerate(items):
            if b is None: A("v_mov_b32 v%d, s%d" % (T, s))
            else:
                A("s_sub_u32 s5, s%d, s%d" % (s, b)); A("v_mov_b32 v%d, s5" % T)
            A("buffer_store_dword v%d, v%d, s[%d:%d], s3 offen offset:%d" % (T, T + 1, srd, srd + 3, 4 * q))

def mk_srd(A, b, lo, hi, addsgpr, size):
    if addsgpr is None:
        A("s_mov_b32 s%d, s%d" % (b, lo)); A("s_mov_b32 s%d, s%d" % (b + 1, hi))
        A("s_mov_b32 s%d, %d" % (b + 2, size))
    else:
        A("s_add_u32 s%d, s%d, s%d" % (b, lo, addsgpr)); A("s_addc_u32 s%d, s%d, 0" % (b + 1, hi))
        A("s_sub_u32 s%d, %d, s%d" % (b + 2, size, addsgpr))
    A("s_mov_b32 s%d, 0x20000" % (b + 3))


def k2ids(A, mt, nt, kh, xf):
    A("s_and_b32 s%d, s2, 1" % kh)
    A("s_bfe_u32 s%d, s2, 0x30003" % mt)
    A("s_bfe_u32 s3, s2, 0x10001")
    A("s_lshl_b32 s3, s3, 3")
    A("s_add_u32 s%d, s%d, s3" % (mt, mt))
    A("s_lshr_b32 s%d, s2, 6" % nt)
    A("s_bfe_u32 s3, s2, 0x10002")
    A("s_lshl_b32 s3, s3, 2")
    A("s_add_u32 s%d, s%d, s3" % (nt, nt))
    A("s_lshl_b32 s3, s%d, 3" % mt)
    A("s_add_u32 s3, s3, s%d" % nt)
    A("s_lshl_b32 s3, s3, 2")
    A("s_add_u32 s3, s3, s26")
    A("s_lshl_b32 s%d, s3, 6" % xf)
    A("s_add_u32 s%d, s%d, %d" % (xf, xf, WS_FLG))

def make_k2(A, stamp):
    NS = 4; STAGE = 16384; AB = 65536
    HH = NH - 16
    NF = 56 - HH
    assert HH % 4 == 0 and HH >= 8
    S_MT, S_NT, S_KH, S_XF = 52, 53, 54, 55
    S_W, S_CNT, S_AK, S_WK, S_KT, S_SW, S_N1, S_PA = 26, 27, 28, 29, 30, 31, 34, 35
    S_M0 = 32
    SRD_A, SRD_B, SRD_O, SRD_W, SRD_D = 8, 12, 16, 20, 48
    S_B2 = 72
    V_DMA, V_XRD, V_WRD = 2, 10, 14
    T = 24
    V_ACC = 64; V_FR = 192
    VG = 48; C1 = 52; VL = T + 8
    S_WM, S_WN = 42, 43
    def acc(s, cb, tb): return vr(V_ACC + 64 * s + 4 * (cb * 4 + tb), 4)
    def xf(p, tb): return ar(32 * p + 4 * tb, 4)
    def wf(p, cb, half=None):
        b = 32 * p + 16 + 4 * cb
        return ar(b, 4) if half is None else ar(b + 2 * half, 2)
    def m0set(i, stage):
        return "s_add_u32 m0, s%d, %d" % (S_M0 + i, STAGE * stage) if stage else "s_mov_b32 m0, s%d" % (S_M0 + i)
    def lda(n): return "buffer_load_dwordx4 v%d, s[%d:%d], s%d offen offset:%d%s lds" % (V_DMA + (n & 2), SRD_A, SRD_A + 3, S_AK, 1024 * n, DSC)
    def ldw(n): return "buffer_load_dwordx4 v%d, s[%d:%d], s%d offen offset:%d lds" % (V_DMA + 4 + n, SRD_B, SRD_B + 3, S_WK, 1024 * n)
    def dma_list(stage):
        L = [[m0set(0, stage), lda(0)], [lda(1)], [lda(2)], [lda(3)], [m0set(1, stage), ldw(0)], [ldw(1)], [ldw(2)], [ldw(3)]]
        L[-1] += ["s_add_u32 s%d, s%d, 2048" % (S_AK, S_AK),
                  "s_add_u32 s%d, s%d, %d" % (S_WK, S_WK, 64 * 2048),
                  "s_add_u32 s%d, s%d, 1" % (S_KT, S_KT),
                  "s_cmp_eq_u32 s%d, s%d" % (S_KT, S_SW),
                  "s_cselect_b32 s%d, s%d, s%d" % (SRD_B, S_B2, SRD_B),
                  "s_cselect_b32 s%d, s%d, s%d" % (SRD_B + 1, S_B2 + 1, SRD_B + 1),
                  "s_cselect_b32 s%d, s%d, s%d" % (SRD_B + 2, S_B2 + 2, SRD_B + 2),
                  "s_cselect_b32 s%d, 0, s%d" % (S_WK, S_WK),
                  "s_cselect_b32 s%d, %d, s%d" % (S_AK, 112 * 1024, S_AK)]
        return L
    def ptrs():
        A("s_load_dwordx2 s[70:71], s[0:1], 72")
    def wotouch():
        B = Asm()
        mk_srd(B, 72, 4, 5, None, 1024 * 2048)
        B("s_lshr_b32 s3, s2, 3")
        B("s_lshl_b32 s3, s3, 2")
        B("s_add_u32 s3, s3, s%d" % S_W)
        B("s_lshl_b32 s3, s3, 14")
        B("s_bfe_u32 s6, s2, 0x10002")
        B("s_lshl_b32 s6, s6, 10")
        B("s_add_u32 s3, s3, s6")
        B("v_lshrrev_b32 v32, 3, v1")
        B("v_lshlrev_b32 v32, 11, v32")
        B("v_and_b32 v33, 7, v1")
        B("v_lshl_add_u32 v32, v33, 7, v32")
        B("buffer_load_dword v33, v32, s[72:75], s3 offen")
        return [B.lines[i:i + 3] for i in range(0, len(B.lines), 3)]
    def wsetup():
        B = Asm()
        k2ids(B, S_MT, S_NT, S_KH, S_XF)
        B("v_lshrrev_b32 v12, 4, v1")
        B("v_and_b32 v13, 15, v1")
        B("v_lshlrev_b32 v14, 1, v12")
        B("v_xor_b32 v13, v13, v14")
        B("s_lshl_b32 s3, s%d, 4" % S_W)
        B("v_add_u32 v12, s3, v12")
        B("v_lshlrev_b32 v12, 11, v12")
        B("v_lshl_add_u32 v12, v13, 4, v12")
        B("v_xor_b32 v13, 128, v12")
        for n in range(4):
            B("v_add_u32 v%d, %d, v%d" % (V_DMA + 4 + n, n * 4 * 2048 - 1024 * n, 12 + (n >> 1)))
        B("s_lshl_b32 s%d, s%d, 12" % (S_M0 + 1, S_W))
        B("s_add_u32 s%d, s%d, %d" % (S_M0, S_M0 + 1, AB))
        B("s_mul_i32 s3, s%d, %d" % (S_KH, HH * 64 * 2048))
        B("s_lshl_b32 s6, s%d, 8" % S_NT)
        B("s_add_u32 s3, s3, s6")
        B("s_add_u32 s%d, s40, s3\ns_addc_u32 s%d, s41, 0" % (SRD_B, SRD_B + 1))
        B("s_sub_u32 s%d, %d, s3" % (SRD_B + 2, 3584 * 2048))
        B("s_mov_b32 s%d, 0" % S_WK)
        L = []
        i = 0
        while i < len(B.lines):
            n = 3 if "s_addc" not in "".join(B.lines[i + 3:i + 4]) else 4
            L.append(B.lines[i:i + n]); i += n
        return L
    def wdma():
        L = []
        for st in range(NS):
            for n in range(4):
                g = ([m0set(1, st)] if n == 0 else []) + [ldw(n)]
                if n == 3: g.append("s_add_u32 s%d, s%d, %d" % (S_WK, S_WK, 64 * 2048))
                L.append(g)
        return L
    def rest():
        A("s_mov_b32 s47, %d" % (WS_FLGO - WS_FLGH))
        A("s_lshl_b32 s6, s%d, 8" % S_NT)
        A("s_add_u32 s%d, s4, s6" % S_B2); A("s_addc_u32 s%d, s5, 0" % (S_B2 + 1))
        A("s_sub_u32 s%d, %d, s6" % (S_B2 + 2, 1024 * 2048))
        A("v_lshlrev_b32 v%d, 4, v1" % VL)
        A("s_mul_i32 s3, s%d, %d" % (S_W, 2 * MBS))
        A("v_add_u32 v%d, s3, v%d" % (V_DMA, VL))
        A("v_add_u32 v%d, %d, v%d" % (V_DMA + 2, MBS - 2048, V_DMA))
        A("s_mov_b32 s%d, 0" % S_AK); A("s_mov_b32 s%d, %d" % (S_KT, NS))
        A("s_cmp_eq_u32 s%d, 0" % S_KH)
        A("s_cselect_b32 s%d, %d, -1" % (S_SW, HH))
        A("s_cselect_b32 s%d, %d, %d" % (S_N1, HH // 4 - 1, NF // 4 - 2))
        A("s_cselect_b32 s%d, %d, -1" % (S_PA, HH // 4 - 2))
        jh = (64 * HH - 1) // 112; jf = 64 * HH // 112
        mh = (1 << (2 * jh + 2)) - 1; mf = ((1 << 64) - 1) ^ ((1 << (2 * jf)) - 1)
        ih = ((1 << 64) - 1) ^ mh; if_ = ((1 << 64) - 1) ^ mf
        A("s_mov_b32 s66, 0x%x" % (if_ & 0xffffffff)); A("s_mov_b32 s67, 0x%x" % (if_ >> 32))
        A("s_cselect_b32 s66, 0x%x, s66" % (ih & 0xffffffff)); A("s_cselect_b32 s67, 0x%x, s67" % (ih >> 32))
        A("s_mul_i32 s3, s%d, %d" % (S_MT, 8 * MBS))
        A("s_mul_i32 s6, s%d, %d" % (S_KH, HH * 2048))
        A("s_add_u32 s3, s3, s6")
        mk_srd(A, SRD_A, 58, 59, 3, 128 * MBS)
        mk_srd(A, SRD_O, 70, 71, None, 2048 * 2048)
        A("s_lshr_b32 s%d, s%d, 1" % (S_WM, S_W)); A("s_and_b32 s%d, s%d, 1" % (S_WN, S_W))
        A("s_lshl_b32 s6, s%d, 7" % S_MT)
        A("s_lshl_b32 s3, s%d, 6" % S_WM)
        A("s_add_u32 s6, s6, s3")
        A("v_and_b32 v%d, 15, v1" % T)
        A("v_add_u32 v%d, s6, v%d" % (T + 4, T))
        A("v_lshlrev_b32 v%d, 2, v%d" % (T + 5, T + 4))
        A("v_add_u32 v%d, %d, v%d" % (T + 5, WS_G, T + 5))
        A("s_lshl_b32 s3, s%d, 13" % S_WM)
        A("s_add_u32 s3, s3, %d" % AB)
        A("v_add_u32 v%d, s3, v%d" % (V_XRD, VL))
        A("v_lshrrev_b32 v%d, 4, v1" % (T + 2))
        A("v_bfe_u32 v%d, v1, 2, 2" % T)
        A("v_lshl_add_u32 v%d, v%d, 3, v%d" % (T + 1, T + 2, T))
        A("v_lshlrev_b32 v%d, 8, v%d" % (T + 1, T + 1))
        A("v_and_b32 v%d, 3, v1" % (T + 3))
        A("v_lshl_add_u32 v%d, v%d, 3, v%d" % (T + 1, T + 3, T + 1))
        A("v_bfe_u32 v%d, v1, 4, 1" % (T + 3))
        A("v_lshl_add_u32 v%d, v%d, 2, v%d" % (T, T + 3, T))
        A("s_lshl_b32 s3, s%d, 2" % S_WN)
        for cb in range(4):
            A("s_add_u32 s6, s3, %d" % cb)
            A("v_xor_b32 v%d, s6, v%d" % (T + 3, T))
            A("v_lshl_add_u32 v%d, v%d, 5, v%d" % (V_WRD + cb, T + 3, T + 1))
        A("v_mov_b32 v%d, 0" % (T + 9))
        A("v_lshlrev_b32 v%d, 2, v1" % (T + 10))
        A("s_lshl_b32 s76, s%d, 8" % S_MT)
        A("s_add_u32 s76, s76, %d" % WS_FLGH)
    def xbases():
        A("s_sub_u32 s3, s%d, %d" % (S_XF, WS_FLG))
        A("s_lshl_b32 s3, s3, 8")
        A("s_add_u32 s60, s3, %d" % WS_XCH)
        for q in range(1, 4): A("s_add_u32 s%d, s60, %d" % (60 + q, 4096 * q))
    def pollflags(lab, items):
        A("s_mov_b32 s37, 0x40000")
        A.label(lab)
        for q, (sd, so, va, ex, ig) in enumerate(items):
            A("buffer_load_dword v%d, v%d, s[%d:%d], %s offen sc1" % (T + 11 + q, va, sd, sd + 3, so))
        A("s_waitcnt vmcnt(0)")
        for q, (sd, so, va, ex, ig) in enumerate(items):
            A("v_cmp_eq_u32 %s, %s, v%d" % ("vcc" if q == 0 else "s[6:7]", ex, T + 11 + q))
            A("s_nop 0")
            if ig: A("s_or_b64 vcc, vcc, %s" % ig); assert q == 0
            if q: A("s_and_b64 vcc, vcc, s[6:7]")
        A("s_cmp_eq_u64 vcc, -1")
        A("s_cbranch_scc1 %s_ok" % lab)
        A("s_sub_u32 s37, s37, 1")
        A("s_cbranch_scc0 %s" % lab)
        A.label(lab + "_ok")
        if INV: A("buffer_inv sc1")
    def reads(stage, ks, p):
        R = []
        so = stage * STAGE
        def xr(tb): return "ds_read_b128 %s, v%d offset:%d" % (xf(p, tb), V_XRD, so + tb * 2048 + ks * 1024)
        def wr(cb, t): return "ds_read_b64_tr_b16 %s, v%d offset:%d" % (wf(p, cb, t), V_WRD + cb, so + (ks * 32 + 4 * t) * 256)
        R += [xr(0), wr(0, 0), wr(0, 1), xr(1), xr(2), xr(3)]
        for cb in range(1, 4): R += [wr(cb, 0), wr(cb, 1)]
        return R
    st = {"pend": []}
    VM = Cnt(63)
    def isvm(x): return x.startswith(("buffer_load", "buffer_store"))
    def tile(stage, aset, first, dma_next, has_next, vm, hook=None, tidx=None):
        for ks in range(2):
            rd = reads(stage, 1, 1) if ks == 0 else (reads((stage + 1) % NS, 0, 0) if has_next else [])
            pre = ["s_waitcnt lgkmcnt(0)"]
            if ks == 1:
                assert not st["pend"]
                if has_next:
                    n = vm if isinstance(vm, int) else VM.wait_for(vm)
                    pre = ["s_waitcnt lgkmcnt(0) vmcnt(%d)" % n, "s_barrier"]
            for s in pre: A(s)
            if ks == 1:
                if hook: hook()
                if dma_next:
                    d = dma_list(stage)
                    if tidx is not None: d[-1] = d[-1] + [("tag", ("D", tidx + NS))]
                    st["pend"] = st["pend"] + d
            g = 0
            for cb in range(4):
                for tb in range(4):
                    c = "0" if (first and ks == 0) else acc(aset, cb, tb)
                    A("v_mfma_f32_16x16x32_bf16 %s, %s, %s, %s" % (acc(aset, cb, tb), wf(ks, cb), xf(ks, tb), c))
                    if g < len(rd): A(rd[g])
                    left = (16 - g) + (16 if ks == 1 else 0)
                    if st["pend"] and (g % 4 == 3 or len(st["pend"]) * 4 > left + 3):
                        k = 1 + (len(st["pend"]) > left)
                        for _ in range(k):
                            if not st["pend"]: break
                            for x in st["pend"].pop(0):
                                if isinstance(x, tuple): VM.tag[x[1]] = VM.n
                                else:
                                    A(x)
                                    if isvm(x): VM.issue()
                    g += 1
    def main(kvloads, ophase, flago):
        A("v_and_b32 v%d, 124, v%d" % (T + 14, T + 10))
        A("s_mov_b32 s46, 0x01010101")
        pollflags("L_k2_hpoll", [(SRD_W, "s76", T + 10, "1", "s[66:67]"), (SRD_D, "0", T + 10, "s46", None)])
        stamp(); stamp.real()
        def adma(stg):
            L = [[m0set(0, stg), lda(0)], [lda(1)], [lda(2)], [lda(3), "s_add_u32 s%d, s%d, 2048" % (S_AK, S_AK), ("tag", ("D", stg))]]
            return L
        for stg in range(2):
            for g in adma(stg):
                for x in g:
                    if isinstance(x, tuple): VM.tag[x[1]] = VM.n
                    else:
                        A(x)
                        if isvm(x): VM.issue()
        A("s_add_u32 s76, s76, s47")
        A("s_waitcnt vmcnt(4)")
        A("s_barrier")
        for s in reads(0, 0, 0): A(s)
        stamp(); stamp.real()
        VMN = 16
        kvpoll = "buffer_load_dword v%d, v%d, s[%d:%d], s44 offen sc1" % (T + 11, T + 14, SRD_W, SRD_W + 3)
        st["pend"] = adma(2) + adma(3) + [["buffer_load_dword v%d, v%d, s[%d:%d], 0 offen offset:%d sc1" % (VG + tb, T + 5, SRD_W, SRD_W + 3, 64 * tb)] for tb in range(4)]
        tile(0, 0, True, True, True, [("D", 1)], None, 0)
        st["pend"].append([kvpoll, ("tag", "kvp")])
        tile(1, 0, False, True, True, [("D", 2)], None, 1)
        def kvhook():
            A("s_mov_b32 s37, 0x40000")
            A.label("L_k2_kvpoll")
            A("v_cmp_eq_u32 vcc, 1, v%d" % (T + 11))
            A("s_nop 0")
            A("s_cmp_eq_u64 vcc, -1")
            A("s_cbranch_scc1 L_k2_kvok")
            A(kvpoll)
            A("s_sub_u32 s37, s37, 1")
            A("s_waitcnt vmcnt(0)")
            A("s_cbranch_scc0 L_k2_kvpoll")
            A.label("L_k2_kvok")
            st["pend"] = kvloads()
            st["pend"][-1] = st["pend"][-1] + [("tag", "kvl")]
        tile(2, 0, False, True, True, [("D", 3)], None, 2)
        tile(3, 0, False, True, True, [("D", 4), "kvp"], kvhook, 3)
        tile(0, 0, False, True, True, [("D", 5)], None, 4)
        tile(1, 0, False, True, True, [("D", 6)], None, 5)
        tile(2, 0, False, True, True, [("D", 7), "kvl"], None, 6)
        ophase(); VM.issue("o", 4)
        stamp()
        tile(3, 0, False, True, True, [("D", 8)], None, 7)
        A("s_mov_b32 s%d, 1" % S_CNT)
        A.label("L_k2_loop1")
        A("s_cmp_eq_u32 s%d, s%d" % (S_CNT, S_PA))
        A("s_cbranch_scc0 L_k2_nop")
        pollflags("L_k2_opoll", [(SRD_W, "s76", T + 10, "1", None)])
        A.label("L_k2_nop")
        def fhook():
            A("s_cmp_eq_u32 s%d, 1" % S_CNT)
            A("s_cbranch_scc0 L_k2_nof")
            flago()
            A.label("L_k2_nof")
        for t in range(4): tile(t, 0, False, True, True, VMN, fhook if t == 1 else None)
        A("s_add_u32 s%d, s%d, 1" % (S_CNT, S_CNT))
        A("s_cmp_lt_u32 s%d, s%d" % (S_CNT, S_N1))
        A("s_cbranch_scc1 L_k2_loop1")
        saved = list(st["pend"])
        xbases()
        A("s_cmp_eq_u32 s%d, 1" % S_KH)
        A("s_cbranch_scc1 L_k2_fin")
        tile(0, 1, True, True, True, VMN)
        for t in range(1, 4): tile(t, 1, False, True, True, VMN)
        A("s_mov_b32 s%d, 0" % S_CNT)
        A.label("L_k2_loop2")
        for t in range(4): tile(t, 1, False, True, True, VMN)
        A("s_add_u32 s%d, s%d, 1" % (S_CNT, S_CNT))
        A("s_cmp_lt_u32 s%d, 2" % S_CNT)
        A("s_cbranch_scc1 L_k2_loop2")
        for t in range(4):
            tile(t, 1, False, False, t < 3, 8 * max(0, 2 - t))
        stamp(); stamp.real()
        for tb in range(4): A("v_sub_f32 v%d, 1.0, v%d" % (C1 + tb, VG + tb))
        for cb in range(4):
            for tb in range(4):
                a0 = V_ACC + 4 * (cb * 4 + tb); a1 = a0 + 64; sl = tb & 1
                for u in range(2):
                    A("v_pk_mul_f32 %s, %s, %s op_sel:[0,%d] op_sel_hi:[1,%d]" % (vr(a0 + 2 * u, 2), vr(a0 + 2 * u, 2), vr(C1 + (tb & ~1), 2), sl, sl))
                for u in range(2):
                    A("v_pk_fma_f32 %s, %s, %s, %s op_sel:[0,%d,0] op_sel_hi:[1,%d,1]" % (vr(a0 + 2 * u, 2), vr(a1 + 2 * u, 2), vr(VG + (tb & ~1), 2), vr(a0 + 2 * u, 2), sl, sl))
            for tb in range(4):
                A("buffer_store_dwordx4 %s, v%d, s[%d:%d], s%d offen offset:%d sc1" % (acc(0, cb, tb), VL, SRD_W, SRD_W + 3, 60 + cb, tb * 1024))
        A("s_waitcnt vmcnt(0)")
        A("v_mov_b32 v%d, 1" % (T + 2))
        A("s_mov_b64 exec, 1")
        A("buffer_store_dword v%d, v%d, s[%d:%d], s%d offen sc1" % (T + 2, T + 9, SRD_W, SRD_W + 3, S_XF))
        A("s_mov_b64 exec, -1")
        A("s_branch L_k2_out")
        A.label("L_k2_fin")
        st["pend"] = saved
        if STAMP == 1: stamp.regs = stamp.regs[:-2]
        pollld = "buffer_load_dword v%d, v%d, s[%d:%d], s%d offen sc1" % (T + 2, T + 9, SRD_W, SRD_W + 3, S_XF)
        st["pend"].append([pollld])
        tile(0, 0, False, False, True, 16 + 1)
        tile(1, 0, False, False, True, 8 + 1)
        def pollhook():
            lp = "L_k2_poll"; lr = "L_k2_rdy"
            A("s_mov_b32 s%d, 0x40000" % S_CNT)
            A.label(lp)
            A("v_readfirstlane_b32 s3, v%d" % (T + 2))
            A("s_cmp_eq_u32 s3, 1")
            A("s_cbranch_scc1 %s" % lr)
            A(pollld)
            A("s_sub_u32 s%d, s%d, 1" % (S_CNT, S_CNT))
            A("s_waitcnt vmcnt(0)")
            A("s_cbranch_scc0 %s" % lp)
            A.label(lr)
            st["pend"] = [["buffer_load_dwordx4 %s, v%d, s[%d:%d], s%d offen offset:%d sc1" % (acc(1, cb, tb), VL, SRD_W, SRD_W + 3, 60 + cb, tb * 1024)]
                          for tb in range(4) for cb in range(4)]
        tile(2, 0, False, False, True, 0, pollhook)
        tile(3, 0, False, False, False, 0)
        assert not st["pend"]
        stamp(); stamp.real()
        for tb in range(4): A("v_sub_f32 v%d, 1.0, v%d" % (C1 + tb, VG + tb))
        VO = T + 6
        A("v_lshlrev_b32 v%d, 11, v%d" % (VO, T + 4))
        A("v_bfe_u32 v%d, v1, 4, 1" % (T + 7))
        A("v_lshl_add_u32 v%d, v%d, 5, v%d" % (VO, T + 7, VO))
        A("v_lshrrev_b32 v%d, 5, v1" % (T + 7))
        A("v_lshl_add_u32 v%d, v%d, 4, v%d" % (VO, T + 7, VO))
        A("s_lshl_b32 s72, s%d, 8" % S_NT)
        A("s_lshl_b32 s3, s%d, 7" % S_WN)
        A("s_add_u32 s72, s72, s3")
        for tb in range(4):
            sl = tb & 1
            A("s_waitcnt vmcnt(%d)" % (12 - 4 * tb + 2 * tb))
            for cb in range(4):
                a0 = V_ACC + 4 * (cb * 4 + tb); a1 = a0 + 64
                for u in range(2):
                    A("v_pk_fma_f32 %s, %s, %s, %s op_sel:[0,%d,0] op_sel_hi:[1,%d,1]" % (vr(a0 + 2 * u, 2), vr(a0 + 2 * u, 2), vr(C1 + (tb & ~1), 2), vr(a1 + 2 * u, 2), sl, sl))
            for cp in range(2):
                d = V_FR + 8 * tb + 4 * cp
                for h in range(2):
                    a0 = V_ACC + 4 * ((2 * cp + h) * 4 + tb)
                    A("v_cvt_pk_bf16_f32 v%d, v%d, v%d" % (d + 2 * h, a0, a0 + 1))
                    A("v_cvt_pk_bf16_f32 v%d, v%d, v%d" % (d + 2 * h + 1, a0 + 2, a0 + 3))
            for cp in range(2):
                d = V_FR + 8 * tb + 4 * cp
                A("v_permlane16_swap_b32 v%d, v%d" % (d, d + 2))
                A("v_permlane16_swap_b32 v%d, v%d" % (d + 1, d + 3))
            for cp in range(2):
                d = V_FR + 8 * tb + 4 * cp
                A("buffer_store_dwordx4 %s, v%d, s[%d:%d], s72 offen offset:%d" % (vr(d, 4), VO, SRD_O, SRD_O + 3, cp * 64))
            A("s_add_u32 s72, s72, 32768")
        A.label("L_k2_out")
    return {"wsetup": wsetup, "wdma": wdma, "rest": rest, "main": main, "wotouch": wotouch, "ptrs": ptrs}

def gen_k1(A):
    name = "gated_mix__linear_kernel_hedgehog__glu_gated_glu__prompt_kernel"
    kernel_open(A, name)
    BK = 64
    XB = 0; QB = 32768; GB = QB + 64 * 192; UB = GB + 64 * 224 + 128
    STAGE = (UB + 64 * 224 + 255) // 256 * 256
    WPB = 151552
    SCR = 114688
    LDS = WPB + 2048
    S_I, S_J, S_W, S_CNT, S_XK, S_QK, S_GK, S_TK, S_TSTEP = 24, 25, 26, 27, 28, 29, 30, 31, 37
    S_M0 = 32
    SRD_X, SRD_Q, SRD_G, SRD_W, SRD_T, SRD_P, SRD_D = 8, 12, 16, 20, 68, 72, 48
    S_C = 38
    V_DMA, V_XRD, V_QRD, V_GRD, V_TCH = 2, 20, 24, 28, 30
    T = 32
    NVACC = 208; V_ACC = 48
    A_X = 0; A_WR = 32; RING = 8; A_ACC = 144
    NTB = 4; NCB = 20; D = 6
    BLK = [("q", 1, 0), ("q", 1, 1), ("q", 2, 0), ("q", 2, 1), ("q", 0, 0), ("q", 0, 1)] + [(t, b) for b in range(7) for t in "gu"]
    def accb(cb, tb):
        b = (cb * NTB + tb) * 4
        return ("v", V_ACC + b) if b < NVACC else ("a", A_ACC + b - NVACC)
    def acc(cb, tb):
        f, b = accb(cb, tb); return "%s[%d:%d]" % (f, b, b + 3)
    def xf(p, tb): return ar(A_X + 16 * p + 4 * tb, 4)
    def wf(n, half=None):
        b = A_WR + 4 * (n % RING)
        return ar(b, 4) if half is None else ar(b + 2 * half, 2)
    stamp = Stamper(A, 0)
    VM = Cnt(63)
    K2 = make_k2(A, stamp)

    A("s_load_dwordx4 s[4:7], s[0:1], 0")
    A("s_load_dwordx4 s[52:55], s[0:1], 40")
    A("s_load_dwordx4 s[56:59], s[0:1], 80")
    A("s_load_dwordx2 s[66:67], s[0:1], 16")
    A("s_load_dwordx4 s[40:43], s[0:1], 56")
    A("s_cmp_ge_u32 s2, 256")
    A("s_cbranch_scc1 L_k1_end")
    stamp.start()
    A("v_lshrrev_b32 v1, 6, v0")
    A("s_lshr_b32 s%d, s2, 3" % S_I)
    A("s_and_b32 s%d, s%d, 7" % (S_I, S_I))
    A("v_readfirstlane_b32 s%d, v1" % S_W)
    A("s_and_b32 s3, s2, 7")
    A("s_lshl_b32 s3, s3, 2")
    A("s_lshr_b32 s%d, s2, 6" % S_J)
    A("s_add_u32 s%d, s%d, s3" % (S_J, S_J))
    A("v_and_b32 v1, 63, v0")
    A("v_lshrrev_b32 v%d, 3, v1" % T)
    A("v_lshlrev_b32 v%d, 11, v%d" % (T, T))
    A("v_and_b32 v%d, 7, v1" % (T + 1))
    A("v_lshrrev_b32 v%d, 4, v1" % (T + 2))
    A("v_xor_b32 v%d, v%d, v%d" % (T + 1, T + 1, T + 2))
    A("v_lshl_add_u32 v%d, v%d, 4, v%d" % (T, T + 1, T))
    A("s_lshl_b32 s3, s%d, 17" % S_W)
    A("v_add_u32 v%d, s3, v%d" % (T, T))
    A("v_xor_b32 v%d, 64, v%d" % (T + 1, T))
    plan = []
    for n in range(8):
        A("v_add_u32 v%d, %d, v%d" % (V_DMA + n, n * 16384 - 1024 * (n & 3), T + (n & 1)))
        plan.append((V_DMA + n, SRD_X, S_XK, n // 4 if n % 4 == 0 else None, 1024 * (n & 3)))
    for q in range(3): plan.append((V_DMA + 8 + q, SRD_Q, S_QK, 2 if q == 0 else None, 1024 * q))
    for g in range(7): plan.append((V_DMA + 11 + g, SRD_G, S_GK, 3 + g // 4 if g % 4 == 0 else None, 1024 * (g & 3)))
    LD = len(plan)
    A("s_lshl_b32 s%d, s%d, 13" % (S_M0, S_W))
    A("s_add_u32 s%d, s%d, 4096" % (S_M0 + 1, S_M0))
    A("s_mul_i32 s%d, s%d, 3072" % (S_M0 + 2, S_W))
    A("s_add_u32 s%d, s%d, %d" % (S_M0 + 2, S_M0 + 2, QB))
    A("s_and_b32 s3, s%d, 1" % S_W)
    A("s_mul_i32 s3, s3, 7168")
    A("s_cmp_ge_u32 s%d, 2" % S_W)
    A("s_mov_b32 s60, %d" % GB)
    A("s_cselect_b32 s%d, %d, s60" % (S_M0 + 3, UB))
    A("s_add_u32 s%d, s%d, s3" % (S_M0 + 3, S_M0 + 3))
    A("s_add_u32 s%d, s%d, 4096" % (S_M0 + 4, S_M0 + 3))
    for s in (S_XK, S_QK, S_GK): A("s_mov_b32 s%d, 0" % s)
    def dma_list(stage):
        L = []
        for (v, sd, so, m0i, off) in plan:
            g = []
            if m0i is not None:
                g.append("s_mov_b32 m0, s%d" % (S_M0 + m0i) if stage == 0 else "s_add_u32 m0, s%d, %d" % (S_M0 + m0i, STAGE * stage))
            g.append("buffer_load_dwordx4 v%d, s[%d:%d], s%d offen offset:%d lds" % (v, sd, sd + 3, so, off))
            L.append(g)
        L[-1] += ["s_add_u32 s%d, s%d, %d" % (S_XK, S_XK, BK * 2),
                  "s_add_u32 s%d, s%d, %d" % (S_GK, S_GK, BK * 7168),
                  "s_add_u32 s%d, s%d, %d" % (S_QK, S_QK, BK * 6144)]
        return L
    def emit(groups):
        for g in groups:
            for s in g: A(s)
            VM.issue()
    def rowperm(dst, src, tmp):
        A("v_and_b32 v%d, 0xfffffff3, v%d" % (dst, src))
        A("v_bfe_u32 v%d, v%d, 2, 1" % (tmp, src))
        A("v_lshl_or_b32 v%d, v%d, 3, v%d" % (dst, tmp, dst))
        A("v_bfe_u32 v%d, v%d, 3, 1" % (tmp, src))
        A("v_lshl_or_b32 v%d, v%d, 2, v%d" % (dst, tmp, dst))
    NEARLY = O("nearly", 2); NLATE = O("nlate", 1)
    if TOUCH:
        A("s_lshr_b32 s60, s2, 6")
        A("s_and_b32 s61, s%d, 1" % S_W)
        A("s_lshl_b32 s3, s60, 6")
        A("v_add_u32 v%d, s3, v1" % (T + 4))
        A("v_lshlrev_b32 v%d, 11, v%d" % (T + 4, T + 4))
        A("s_lshl_b32 s3, s61, 7")
        A("v_add_u32 v%d, s3, v%d" % (T + 4, T + 4))
        A("s_lshl_b32 s62, s%d, 4" % S_I)
        A("s_lshl_b32 s3, s61, 3")
        A("s_add_u32 s62, s62, s3")
        A("s_and_b32 s63, s%d, 28" % S_J)
        A("v_mul_u32_u24 v%d, 10923, v1" % (T + 5))
        A("v_lshrrev_b32 v%d, 16, v%d" % (T + 5, T + 5))
        A("v_mul_u32_u24 v%d, 6, v%d" % (T + 6, T + 5))
        A("v_sub_u32 v%d, v1, v%d" % (T + 6, T + 6))
        A("v_add_u32 v%d, s62, v%d" % (T + 5, T + 5))
        A("v_mul_u32_u24 v%d, 6144, v%d" % (T + 5, T + 5))
        A("v_lshrrev_b32 v%d, 1, v%d" % (T + 7, T + 6))
        A("v_lshl_add_u32 v%d, v%d, 11, v%d" % (T + 5, T + 7, T + 5))
        A("v_and_b32 v%d, 1, v%d" % (T + 6, T + 6))
        A("v_lshl_add_u32 v%d, v%d, 7, v%d" % (T + 5, T + 6, T + 5))
        A("s_lshl_b32 s3, s63, 6")
        A("v_add_u32 v%d, s3, v%d" % (T + 5, T + 5))
        A("v_mov_b32 v%d, 0x7fffffff" % (T + 9))
        A("v_cmp_gt_u32 vcc, 48, v1")
        A("v_cndmask_b32 v%d, v%d, v%d, vcc" % (T + 5, T + 9, T + 5))
        A("v_mul_u32_u24 v%d, 9363, v1" % (T + 6))
        A("v_lshrrev_b32 v%d, 16, v%d" % (T + 6, T + 6))
        A("v_mul_u32_u24 v%d, 7, v%d" % (T + 7, T + 6))
        A("v_sub_u32 v%d, v1, v%d" % (T + 7, T + 7))
        A("v_add_u32 v%d, s62, v%d" % (T + 6, T + 6))
        A("v_mul_u32_u24 v%d, 7168, v%d" % (T + 6, T + 6))
        A("v_lshl_add_u32 v%d, v%d, 7, v%d" % (T + 6, T + 7, T + 6))
        A("s_mul_i32 s3, s63, 224")
        A("v_add_u32 v%d, s3, v%d" % (T + 6, T + 6))
        A("v_cmp_gt_u32 vcc, 56, v1")
        A("v_cndmask_b32 v%d, v%d, v%d, vcc" % (T + 6, T + 9, T + 6))
        A("s_and_b32 s3, s2, 63")
        A("s_lshl_b32 s3, s3, 1")
        A("s_add_u32 s3, s3, s61")
        A("s_lshl_b32 s3, s3, 13")
        A("v_lshlrev_b32 v%d, 7, v1" % (T + 7))
        A("v_add_u32 v%d, s3, v%d" % (T + 7, T + 7))
    A("s_waitcnt lgkmcnt(0)")
    A("s_lshl_b32 s64, s%d, 19" % S_I)
    mk_srd(A, SRD_X, 4, 5, 64, 2048 * 2048)
    if TOUCH:
        def sel(cond_sgpr, val, voff, lo, hi, size, step, start):
            A("s_cmp_eq_u32 s%d, %d" % (cond_sgpr, val))
            A("s_cselect_b64 vcc, -1, 0")
            A("s_cselect_b32 s%d, s%d, s%d" % (SRD_T, lo, SRD_T))
            A("s_cselect_b32 s%d, s%d, s%d" % (SRD_T + 1, hi, SRD_T + 1))
            A("s_cselect_b32 s%d, %d, s%d" % (SRD_T + 2, size, SRD_T + 2))
            A("s_cselect_b32 s%d, %d, s%d" % (S_TSTEP, step, S_TSTEP))
            A("s_cselect_b32 s%d, %d, s%d" % (S_TK, start, S_TK))
            A("v_cndmask_b32 v%d, v%d, v%d, vcc" % (V_TCH, V_TCH, voff))
        A("s_mov_b32 s%d, s6" % SRD_T); A("s_mov_b32 s%d, s7" % (SRD_T + 1))
        A("s_mov_b32 s%d, %d" % (SRD_T + 2, 1024 * 6144)); A("s_mov_b32 s%d, 0x20000" % (SRD_T + 3))
        A("s_mov_b32 s%d, %d" % (S_TSTEP, 128 * 6144))
        A("s_mov_b32 s%d, %d" % (S_TK, 0 if NEARLY else 128 * 6144))
        A("v_mov_b32 v%d, v%d" % (V_TCH, T + 5))
        sel(60, 1, T + 6, 52, 53, 1024 * 7168, 128 * 7168, 0 if NEARLY else 128 * 7168)
        sel(60, 2, T + 6, 54, 55, 1024 * 7168, 128 * 7168, 0 if NEARLY else 128 * 7168)
        sel(60, 3, T + 7, 40, 41, 3584 * 2048, 1 << 20, (1 << 32) - (NEARLY << 20) if NEARLY else 0)
        A("s_lshr_b32 s61, s%d, 1" % S_W)
        sel(61, 0, T + 4, SRD_X, SRD_X + 1, 256 * 2048, 256, 0 if NEARLY else 256)
        def touch():
            return ["buffer_load_dword v%d, v%d, s[%d:%d], s%d offen" % (V_TCH + 1, V_TCH, SRD_T, SRD_T + 3, S_TK),
                    "s_add_u32 s%d, s%d, s%d" % (S_TK, S_TK, S_TSTEP)]
        emit([touch() for _ in range(NEARLY)])
    D0 = dma_list(0)
    emit(D0[0:8])
    A("s_and_b32 s3, s%d, 1" % S_W)
    A("s_mul_i32 s3, s3, 448")
    A("s_and_b32 s65, s%d, 1" % S_J)
    A("s_lshl_b32 s65, s65, 1")
    for g in range(7):
        A("v_add_u32 v%d, s3, v1" % T)
        if g: A("v_add_u32 v%d, %d, v%d" % (T, 64 * g, T))
        A("v_mul_u32_u24 v%d, 4682, v%d" % (T + 1, T))
        A("v_lshrrev_b32 v%d, 16, v%d" % (T + 1, T + 1))
        A("v_mul_u32_u24 v%d, 14, v%d" % (T + 2, T + 1))
        A("v_sub_u32 v%d, v%d, v%d" % (T + 2, T, T + 2))
        A("v_add_u32 v%d, s65, v%d" % (T + 2, T + 2))
        A("v_subrev_u32 v%d, 14, v%d" % (T + 3, T + 2))
        A("v_min_u32 v%d, v%d, v%d" % (T + 2, T + 2, T + 3))
        rowperm(T + 4, T + 1, T + 3)
        A("v_mul_u32_u24 v%d, 7168, v%d" % (T + 1, T + 4))
        A("v_lshl_add_u32 v%d, v%d, 4, v%d" % (T + 1, T + 2, T + 1))
        A("v_subrev_u32 v%d, %d, v%d" % (V_DMA + 11 + g, 1024 * (g & 3), T + 1))
    A("s_cmp_ge_u32 s%d, 2" % S_W)
    A("s_cselect_b32 s60, s54, s52")
    A("s_cselect_b32 s61, s55, s53")
    A("s_mul_i32 s3, s%d, 224" % S_J)
    mk_srd(A, SRD_G, 60, 61, 3, 1024 * 7168)
    emit([g[:2] if len(g) > 2 and not g[0].startswith("buffer") else g[:1] if g[0].startswith("buffer") else g for g in D0[11:18]])
    A("s_mul_i32 s3, s%d, 192" % S_W)
    for q in range(3):
        A("v_add_u32 v%d, s3, v1" % T)
        if q: A("v_add_u32 v%d, %d, v%d" % (T, 64 * q, T))
        A("v_mul_u32_u24 v%d, 5462, v%d" % (T + 1, T))
        A("v_lshrrev_b32 v%d, 16, v%d" % (T + 1, T + 1))
        A("v_mul_u32_u24 v%d, 12, v%d" % (T + 2, T + 1))
        A("v_sub_u32 v%d, v%d, v%d" % (T + 2, T, T + 2))
        A("v_bfe_u32 v%d, v%d, 2, 1" % (T + 3, T + 1))
        A("v_lshlrev_b32 v%d, 1, v%d" % (T + 3, T + 3))
        A("v_xor_b32 v%d, v%d, v%d" % (T + 2, T + 2, T + 3))
        rowperm(T + 4, T + 1, T + 3)
        A("v_mul_u32_u24 v%d, 6144, v%d" % (T + 1, T + 4))
        A("v_lshrrev_b32 v%d, 2, v%d" % (T + 3, T + 2))
        A("v_lshlrev_b32 v%d, 11, v%d" % (T + 3, T + 3))
        A("v_and_b32 v%d, 3, v%d" % (T + 2, T + 2))
        A("v_lshlrev_b32 v%d, 4, v%d" % (T + 2, T + 2))
        A("v_add3_u32 v%d, v%d, v%d, v%d" % (T + 1, T + 1, T + 2, T + 3))
        A("v_subrev_u32 v%d, %d, v%d" % (V_DMA + 8 + q, 1024 * q, T + 1))
    A("s_lshl_b32 s3, s%d, 6" % S_J)
    mk_srd(A, SRD_Q, 6, 7, 3, 1024 * 6144)
    emit(D0[8:11])
    for s in D0[17][1:]: A(s)
    mk_srd(A, SRD_W, 58, 59, None, WS_SIZE)
    S_F1 = 44
    A("s_lshl_b32 s%d, s%d, 7" % (S_F1, S_J))
    A("s_add_u32 s%d, s%d, %d" % (S_F1, S_F1, WS_FLG1))
    A("s_lshl_b32 s3, s%d, 2" % S_I)
    A("s_add_u32 s3, s3, s%d" % S_W)
    A("s_lshl_b32 s45, s3, 2")
    A("s_lshr_b32 s3, s3, 1")
    A("s_lshl_b32 s3, s3, 5")
    A("s_add_u32 s3, s3, s%d" % S_J)
    A("s_lshl_b32 s3, s3, 1")
    A("s_and_b32 s60, s%d, 1" % S_W)
    A("s_add_u32 s3, s3, s60")
    A("s_lshl_b32 s3, s3, 2")
    A("s_add_u32 s77, s3, %d" % WS_FLGH)
    k2ids(A, 61, 62, 63, 64)
    A("s_add_u32 s3, s%d, s45" % S_F1)
    A("v_mov_b32 v%d, s3" % T)
    A("v_writelane_b32 v%d, s77, 1" % T)
    A("s_add_u32 s3, s77, %d" % (WS_FLGO - WS_FLGH))
    A("v_writelane_b32 v%d, s3, 2" % T)
    A("s_cmp_eq_u32 s%d, 0" % 63)
    A("s_cselect_b32 s3, s%d, s77" % 64)
    A("v_writelane_b32 v%d, s3, 3" % T)
    A("v_mov_b32 v%d, 0" % (T + 1))
    A("buffer_store_dword v%d, v%d, s[%d:%d], 0 offen sc1" % (T + 1, T, SRD_W, SRD_W + 3)); VM.issue()
    mk_srd(A, SRD_P, 42, 43, None, 2048)
    A("v_and_b32 v%d, 31, v0" % T)
    A("v_lshlrev_b32 v%d, 6, v%d" % (T, T))
    A("v_lshrrev_b32 v%d, 5, v0" % (T + 1))
    A("s_lshl_b32 s3, s%d, 3" % S_J)
    A("v_add_u32 v%d, s3, v%d" % (T + 1, T + 1))
    A("v_lshl_add_u32 v%d, v%d, 11, v%d" % (T + 2, T + 1, T))
    GX = V_ACC; GW = V_ACC + 16
    for q in range(4):
        A("buffer_load_dwordx4 %s, v%d, s[%d:%d], 0 offen offset:%d" % (vr(GX + 4 * q, 4), T + 2, SRD_X, SRD_X + 3, 16 * q))
        A("buffer_load_dwordx4 %s, v%d, s[%d:%d], 0 offen offset:%d" % (vr(GW + 4 * q, 4), T, SRD_P, SRD_P + 3, 16 * q))
        VM.issue("g", 2)
    EARLY = O("early", 0)
    D1 = dma_list(1)
    emit(D1[:EARLY])
    A("s_lshl_b32 s3, s%d, 11" % S_J)
    mk_srd(A, SRD_P, 66, 67, 3, 65536)
    A("s_and_b32 s3, s%d, 1" % S_W)
    A("s_lshl_b32 s47, s3, 10")
    A("v_lshl_add_u32 v%d, v1, 4, s47" % (T + 3))
    late = D1[EARLY:] + [["s_add_u32 m0, s47, %d" % WPB, "buffer_load_dwordx4 v%d, s[%d:%d], 0 offen lds" % (T + 3, SRD_P, SRD_P + 3)]]
    mk_srd(A, SRD_D, 56, 57, None, 256)
    if TOUCH: late += [touch() for _ in range(NLATE)]
    A("s_load_dwordx2 s[4:5], s[0:1], 24")
    A("v_and_b32 v%d, 15, v1" % (T + 4))
    A("v_lshlrev_b32 v%d, 7, v%d" % (T + 4, T + 4))
    A("s_lshl_b32 s3, s%d, 13" % S_W)
    A("v_add_u32 v%d, s3, v%d" % (T + 4, T + 4))
    A("v_bfe_u32 v%d, v1, 1, 3" % (T + 5))
    A("v_lshrrev_b32 v%d, 4, v1" % (T + 6))
    for ks in range(2):
        A("v_or_b32 v%d, %d, v%d" % (T + 7, ks * 4, T + 6))
        A("v_xor_b32 v%d, v%d, v%d" % (T + 7, T + 7, T + 5))
        A("v_lshl_add_u32 v%d, v%d, 4, v%d" % (V_XRD + ks, T + 7, T + 4))
        A("v_add_u32 v%d, %d, v%d" % (V_XRD + 2 + ks, STAGE, V_XRD + ks))
    A("v_bfe_u32 v%d, v1, 2, 2" % (T + 4))
    A("v_and_b32 v%d, 3, v1" % (T + 5))
    A("v_bfe_u32 v%d, v1, 4, 1" % (T + 7))
    A("v_lshrrev_b32 v%d, 5, v1" % (T + 8))
    A("v_lshl_add_u32 v%d, v%d, 4, v%d" % (T + 4, T + 8, T + 4))
    A("v_lshl_add_u32 v%d, v%d, 2, v%d" % (T + 4, T + 7, T + 4))
    A("v_lshlrev_b32 v%d, 3, v%d" % (T + 5, T + 5))
    A("v_mul_u32_u24 v%d, 192, v%d" % (T + 9, T + 4))
    A("v_add_u32 v%d, v%d, v%d" % (T + 9, T + 9, T + 5))
    for h in range(2):
        A("v_xor_b32 v%d, %d, v%d" % (T + 8, h, T + 7))
        A("v_lshl_add_u32 v%d, v%d, 5, v%d" % (T + 8, T + 8, T + 9))
        for st in range(2): A("v_add_u32 v%d, %d, v%d" % (V_QRD + st * 2 + h, QB + STAGE * st, T + 8))
    A("v_mul_u32_u24 v%d, 224, v%d" % (T + 9, T + 4))
    A("v_add_u32 v%d, v%d, v%d" % (T + 8, T + 9, T + 5))
    for st in range(2): A("v_add_u32 v%d, %d, v%d" % (V_GRD + st, GB + STAGE * st, T + 8))
    A("s_mov_b32 s%d, 0x%x" % (S_C, LOG2E)); A("s_mov_b32 s%d, 0x%x" % (S_C + 1, LOG2E))
    stamp(False)
    A("s_waitcnt vmcnt(%d) lgkmcnt(0)" % VM.wait_for(["g"]))
    A("s_barrier")
    def xread(stage, ks, p, tb):
        return "ds_read_b128 %s, v%d offset:%d" % (xf(p, tb), V_XRD + 2 * stage + ks, tb * 2048)
    def wread(stage, ks, cb, n, t):
        b = BLK[cb]
        if b[0] == "q":
            return "ds_read_b64_tr_b16 %s, v%d offset:%d" % (wf(n, t), V_QRD + stage * 2 + b[2], (ks * 32 + t * 8) * 192 + b[1] * 64)
        return "ds_read_b64_tr_b16 %s, v%d offset:%d" % (wf(n, t), V_GRD + stage, (ks * 32 + t * 8) * 224 + b[1] * 32 + (UB - GB if b[0] == "u" else 0))
    Q = Cnt(15)
    for tb in range(NTB):
        A(xread(0, 0, 0, tb)); Q.issue(("x", 0, tb))
    for n in range(D):
        for t in range(2):
            A(wread(0, 0, n, n, t)); Q.issue(("w", n))
    A("v_mov_b32 v%d, 0" % (T + 4))
    A("v_mov_b32 v%d, 0" % (T + 5))
    for q in range(8):
        A("v_dot2c_f32_bf16 v%d, v%d, v%d" % (T + 4, GX + 2 * q, GW + 2 * q))
        A("v_dot2c_f32_bf16 v%d, v%d, v%d" % (T + 5, GX + 2 * q + 1, GW + 2 * q + 1))
    A("s_nop 2")
    A("v_add_f32 v%d, v%d, v%d" % (T + 4, T + 4, T + 5))
    for sh in (8, 4, 2, 1):
        A("v_add_f32_dpp v%d, v%d, v%d row_ror:%d row_mask:0xf bank_mask:0xf" % (T + 4, T + 4, T + 4, sh))
    A("v_mov_b32 v%d, v%d" % (T + 5, T + 4))
    A("v_permlane16_swap_b32 v%d, v%d" % (T + 4, T + 5))
    A("v_add_f32 v%d, v%d, v%d" % (T + 4, T + 4, T + 5))
    A("v_mul_f32 v%d, s%d, v%d" % (T + 4, S_C, T + 4))
    A("v_exp_f32 v%d, -v%d" % (T + 4, T + 4))
    A("v_add_f32 v%d, 1.0, v%d" % (T + 4, T + 4))
    A("v_rcp_f32 v%d, v%d" % (T + 4, T + 4))
    A("s_lshl_b32 s3, s%d, 8" % S_I)
    A("v_add_u32 v%d, s3, v%d" % (T + 1, T + 1))
    A("v_lshlrev_b32 v%d, 2, v%d" % (T + 1, T + 1))
    A("v_add_u32 v%d, %d, v%d" % (T + 1, WS_G, T + 1))
    A("buffer_store_dword v%d, v%d, s[%d:%d], 0 offen sc1" % (T + 4, T + 1, SRD_W, SRD_W + 3)); VM.issue()
    A("s_lshl_b32 s3, s%d, 3" % S_J)
    A("s_add_u32 s3, s3, s%d" % S_I)
    A("s_cmp_eq_u32 s%d, 0" % S_W)
    A("s_cselect_b32 s3, s3, 0x1000")
    A("v_mov_b32 v%d, s3" % (T + 5))
    A("v_mov_b32 v%d, 1" % (T + 6))
    bytest = "buffer_store_byte v%d, v%d, s[%d:%d], 0 offen sc1" % (T + 6, T + 5, SRD_D, SRD_D + 3)
    NPRO = 1 + (NLATE if TOUCH else 0)
    if STAMP: stamp(); stamp.real()

    st = {"pend": late}
    PB = 40 - D
    def tile(stage, first, dma_next, has_next, vm_extra, do_touch, extra=None, after=None):
        if extra: st["pend"] = st["pend"] + extra
        for n in range(40):
            ks, cb = divmod(n, 20)
            pre = []
            if n == PB and has_next:
                assert not st["pend"]
                pre += ["s_waitcnt lgkmcnt(0) vmcnt(%d)" % vm_extra, "s_barrier"]
                if first: pre.append(bytest)
                if dma_next: st["pend"] = dma_list(stage)
                if do_touch: st["pend"].append(touch())
                if after: st["pend"] = st["pend"] + after
            need_tags = [("w", n)] + ([("x", ks, tb) for tb in range(NTB)] if cb == 0 else [])
            if not (n == PB and has_next):
                pre.append("s_waitcnt lgkmcnt(%d)" % Q.wait_for(need_tags))
            rds = []
            def addw(m):
                if m < 40:
                    k2, c2 = divmod(m, 20)
                    for t in range(2): rds.append((wread(stage, k2, c2, m, t), ("w", m)))
                elif has_next:
                    for t in range(2): rds.append((wread(stage ^ 1, 0, m - 40, m, t), ("w", m - 40)))
            if n == PB - 2: addw(n + D); addw(n + D + 1)
            elif n == PB - 1: pass
            else: addw(n + D)
            if ks == 0 and cb in (4, 7, 10, 13):
                tb = (cb - 4) // 3
                rds.append((xread(stage, 1, 1, tb), ("x", 1, tb)))
            if has_next and n >= PB and n < PB + 4:
                tb = n - PB
                rds.append((xread(stage ^ 1, 0, 0, tb), ("x", 0, tb)))
            for s in pre: A(s)
            k = 0
            for tb in range(NTB):
                a, b = wf(n), xf(ks, tb)
                if BLK[cb][0] == "q" and BLK[cb][1] == 2: a, b = b, a
                c = "0" if (first and ks == 0) else acc(cb, tb)
                A("v_mfma_f32_16x16x32_bf16 %s, %s, %s, %s" % (acc(cb, tb), a, b, c))
                if k < len(rds):
                    A(rds[k][0]); Q.issue(rds[k][1]); k += 1
                if tb == 3:
                    while k < len(rds):
                        A(rds[k][0]); Q.issue(rds[k][1]); k += 1
                    if st["pend"]:
                        for s in st["pend"].pop(0): A(s)
    assert 40 % RING == 0 and D + 2 <= RING
    nt = 1 if TOUCH else 0
    tile(0, True, True, True, NPRO, False)
    A("s_mov_b32 s%d, 0" % S_CNT)
    A.label("L_k1_loop")
    if STAMP == 2:
        A("s_memtime s[100:101]"); A("s_waitcnt lgkmcnt(0)"); A("s_sub_u32 s100, s100, s80")
        A("s_mov_b32 m0, s%d" % S_CNT); A("s_nop 0"); A("v_writelane_b32 v47, s100, m0")
        A("s_add_u32 m0, s%d, 0" % (S_M0 + 1))
    tile(1, False, True, True, 0, TOUCH)
    tile(0, False, True, True, nt, False)
    A("s_add_u32 s%d, s%d, 1" % (S_CNT, S_CNT))
    A("s_cmp_lt_u32 s%d, 6" % S_CNT)
    A("s_cbranch_scc1 L_k1_loop")
    if STAMP == 2:
        for q in range(6):
            r = 82 + len(stamp.regs); stamp.regs.append(r)
            A("v_readlane_b32 s%d, v47, %d" % (r, q)); A("s_nop 1"); A("s_add_u32 s%d, s%d, s80" % (r, r))
        stamp()
        stamp.off = True
    tile(1, False, True, True, 2, False, [touch()] + K2["wotouch"]())
    tile(0, False, False, True, 0, False, K2["wsetup"](), K2["wdma"]())
    tile(1, False, False, False, 0, False)
    stamp(); stamp.real()

    K2["ptrs"]()
    E = 2
    def pk(op, d, a, b, c=None, mods=""):
        if c is None: A("%s %s, %s, %s %s" % (op, d, a, b, mods))
        else: A("%s %s, %s, %s, %s %s" % (op, d, a, b, c, mods))
    def rsag2(op, qa, opb, qb):
        seqs = []
        for (o, q) in ((op, qa), (opb, qb)):
            seqs.append([
                "v_permlane32_swap_b32 v%d, v%d" % (q[0], q[1]),
                "v_permlane32_swap_b32 v%d, v%d" % (q[2], q[3]),
                "%s v%d, v%d, v%d" % (o, q[0], q[0], q[1]),
                "%s v%d, v%d, v%d" % (o, q[2], q[2], q[3]),
                "v_permlane16_swap_b32 v%d, v%d" % (q[0], q[2]),
                "%s v%d, v%d, v%d" % (o, q[0], q[0], q[2]),
                "v_mov_b32 v%d, v%d" % (q[2], q[0]),
                "v_permlane16_swap_b32 v%d, v%d" % (q[0], q[2]),
                "v_mov_b32 v%d, v%d" % (q[1], q[0]),
                "v_mov_b32 v%d, v%d" % (q[3], q[2]),
                "v_permlane32_swap_b32 v%d, v%d" % (q[0], q[1]),
                "v_permlane32_swap_b32 v%d, v%d" % (q[2], q[3])])
        for x, y in zip(*seqs):
            A(x); A(y)
    MX = E + 8; MN = E + 12; PB16 = E + 16; WP = 240
    def feature(cb0):
        for tb in range(NTB):
            for h in range(2):
                f, b = accb(cb0 + h, tb); assert f == "v"
                A("v_cvt_pk_bf16_f32 v%d, v%d, v%d" % (PB16 + 4 * tb + 2 * h, b, b + 1))
                A("v_cvt_pk_bf16_f32 v%d, v%d, v%d" % (PB16 + 4 * tb + 2 * h + 1, b + 2, b + 3))
        for tb in range(NTB):
            for fb in range(2):
                A("v_mfma_f32_16x16x32_bf16 %s, %s, %s, 0" % (acc(cb0 + fb, tb), vr(WP + 4 * fb, 4), vr(PB16 + 4 * tb, 4)))
    def feature2(cb0):
        for tb in range(NTB):
            p0 = accb(cb0, tb)[1]; p1 = accb(cb0 + 1, tb)[1]
            for step in range(4):
                for (op3, op2, d) in (("v_max3_f32", "v_max_f32", MX + tb), ("v_min3_f32", "v_min_f32", MN + tb)):
                    if step == 0: A("%s v%d, v%d, v%d, v%d" % (op3, d, p0, p0 + 1, p0 + 2))
                    if step == 1: A("%s v%d, v%d, v%d, v%d" % (op3, d, d, p0 + 3, p1))
                    if step == 2: A("%s v%d, v%d, v%d, v%d" % (op3, d, d, p1 + 1, p1 + 2))
                    if step == 3: A("%s v%d, v%d, v%d" % (op2, d, d, p1 + 3))
        rsag2("v_max_f32", [MX + i for i in range(4)], "v_min_f32", [MN + i for i in range(4)])
        for b in (MX, MX + 2, MN, MN + 2): pk("v_pk_mul_f32", vr(b, 2), vr(b, 2), sr(S_C, 2))
    def exps(cb0, tb, EM):
        for h in range(2):
            p = accb(cb0 + h, tb)[1]
            for u in range(2):
                sel_n = (MN + tb) & 1; sel_x = (MX + tb) & 1
                pk("v_pk_fma_f32", vr(EM + 4 * h + 2 * u, 2), vr(p + 2 * u, 2), sr(S_C, 2), vr((MN + tb) & ~1, 2),
                   "op_sel:[0,0,%d] op_sel_hi:[1,1,%d] neg_lo:[1,0,0] neg_hi:[1,0,0]" % (sel_n, sel_n))
                pk("v_pk_fma_f32", vr(p + 2 * u, 2), vr(p + 2 * u, 2), sr(S_C, 2), vr((MX + tb) & ~1, 2),
                   "op_sel:[0,0,%d] op_sel_hi:[1,1,%d] neg_lo:[0,0,1] neg_hi:[0,0,1]" % (sel_x, sel_x))
        for h in range(2):
            p = accb(cb0 + h, tb)[1]
            for r in range(4):
                A("v_exp_f32 v%d, v%d" % (p + r, p + r))
                A("v_exp_f32 v%d, v%d" % (EM + 4 * h + r, EM + 4 * h + r))
    assert MX % 2 == 0 and MN % 2 == 0
    VH = T + 14
    VS = T + 15
    A("v_and_b32 v%d, 15, v1" % VH)
    A("v_lshlrev_b32 v%d, 4, v%d" % (VH, VH))
    A("v_lshrrev_b32 v%d, 5, v1" % (T + 13))
    A("v_lshl_add_u32 v%d, v%d, 8, v%d" % (VH, T + 13, VH))
    A("v_bfe_u32 v%d, v1, 4, 1" % (T + 13))
    A("v_mul_u32_u24 v%d, %d, v%d" % (VS, MBS, T + 13))
    A("v_add_u32 v%d, v%d, v%d" % (VS, VS, VH))
    A("v_lshl_add_u32 v%d, v%d, 9, v%d" % (VH, T + 13, VH))
    A("s_lshl_b32 s3, s%d, 4" % S_I)
    A("s_lshl_b32 s62, s%d, 2" % S_W)
    A("s_add_u32 s62, s62, s3")
    A("s_mul_i32 s62, s62, %d" % MBS)
    A("s_mul_i32 s3, s%d, 7" % S_J)
    A("s_add_u32 s3, s3, 1")
    A("s_lshr_b32 s3, s3, 1")
    A("s_lshl_b32 s3, s3, 10")
    A("s_add_u32 s63, s62, s3")
    for tb in range(1, 4): A("s_add_u32 s%d, s63, %d" % (63 + tb, tb * MBS))
    A("s_add_u32 s67, s63, 3072")
    A("s_sub_u32 s3, s63, 512")
    A("s_bitcmp1_b32 s%d, 0" % S_J)
    A("s_cselect_b32 s67, s3, s67")
    A("s_add_u32 s76, s67, %d" % (2 * MBS))
    FREEV = [accb(6, 0)[1] + 4 * i for i in range(16)]
    def glu(fb, fi):
        gs, us = [], []
        for tb in range(4):
            out = []
            for cb in (6 + 2 * fb, 7 + 2 * fb):
                f, b = accb(cb, tb)
                if f == "a":
                    d = FREEV[fi]; fi += 1
                    for r in range(4): A("v_accvgpr_read_b32 v%d, a%d" % (d + r, b + r))
                    b = d
                out.append(b)
            gs.append(out[0]); us.append(out[1])
        for tb in range(4):
            for u in range(2): pk("v_pk_mul_f32", vr(gs[tb] + 2 * u, 2), vr(gs[tb] + 2 * u, 2), sr(S_C, 2))
        for tb in range(4):
            for r in range(4): A("v_exp_f32 v%d, -v%d" % (gs[tb] + r, gs[tb] + r))
        for tb in range(4):
            for u in range(2): pk("v_pk_add_f32", vr(gs[tb] + 2 * u, 2), vr(gs[tb] + 2 * u, 2), "1.0", None, "op_sel_hi:[1,0]")
        for tb in range(4):
            for r in range(4): A("v_rcp_f32 v%d, v%d" % (gs[tb] + r, gs[tb] + r))
        for tb in range(4):
            for u in range(2): pk("v_pk_mul_f32", vr(gs[tb] + 2 * u, 2), vr(gs[tb] + 2 * u, 2), vr(us[tb] + 2 * u, 2))
        return gs, us
    def packswap(dst, a, b):
        for (d, x) in ((dst, a), (dst + 2, b)):
            A("v_cvt_pk_bf16_f32 v%d, v%d, v%d" % (d, x, x + 1))
            A("v_cvt_pk_bf16_f32 v%d, v%d, v%d" % (d + 1, x + 2, x + 3))
    def doswap(d):
        A("v_permlane16_swap_b32 v%d, v%d" % (d, d + 2))
        A("v_permlane16_swap_b32 v%d, v%d" % (d + 1, d + 3))
    def glu_pair(p, D4):
        g0, u0 = glu(2 * p, 0)
        g1, u1 = glu(2 * p + 1, 8)
        for tb in range(4): packswap(D4[tb], g0[tb], g1[tb])
        for tb in range(4): doswap(D4[tb])
        return ["buffer_store_dwordx4 %s, v%d, s[%d:%d], s%d offen offset:%d%s" % (vr(D4[tb], 4), VH, SRD_W, SRD_W + 3, 63 + tb, p * 1024, SC) for tb in range(4)]
    def spread(fn, stores, every):
        start = len(A.lines)
        r = fn()
        body = A.lines[start:]; del A.lines[start:]
        k = 0
        for n, ln in enumerate(body):
            if n % every == 0 and k < len(stores):
                A(stores[k]); k += 1
            A.lines.append(ln)
        for x in stores[k:]: A(x)
        return r
    PKA = [PB16 + 4 * i for i in range(4)]
    PKB = [accb(10, 0)[1] + 4 * i for i in range(4)]
    st0 = glu_pair(0, PKA)
    PK1 = [accb(11, 0)[1] + 4 * i for i in range(4)]
    st1 = spread(lambda: glu_pair(1, PK1), st0, 30)
    st2 = spread(lambda: glu_pair(2, PKA), st1, 40)
    def last():
        g6, u6 = glu(6, 0)
        for tp in range(2): packswap(PKB[tp], g6[2 * tp], g6[2 * tp + 1])
        for tp in range(2): doswap(PKB[tp])
    spread(last, st2, 25)
    for tp in range(2):
        A("buffer_store_dwordx4 %s, v%d, s[%d:%d], s%d offen%s" % (vr(PKB[tp], 4), VS, SRD_W, SRD_W + 3, 67 if tp == 0 else 76, SC))
    stamp()
    WP = 240
    A("v_bfe_u32 v%d, v1, 2, 2" % (T + 10))
    A("v_lshrrev_b32 v%d, 4, v1" % (T + 11))
    A("v_lshl_add_u32 v%d, v%d, 2, v%d" % (T + 10, T + 11, T + 10))
    A("v_lshlrev_b32 v%d, 6, v%d" % (T + 10, T + 10))
    A("v_and_b32 v%d, 3, v1" % (T + 11))
    A("v_lshl_add_u32 v%d, v%d, 3, v%d" % (T + 10, T + 11, T + 10))
    A("v_add_u32 v%d, %d, v%d" % (T + 10, WPB, T + 10))
    for fb in range(2):
        for t in range(2):
            A("ds_read_b64_tr_b16 %s, v%d offset:%d" % (vr(WP + 4 * fb + 2 * t, 2), T + 10, fb * 32 + t * 1024))
    def setflag(vaddr, vone, saddr, soff):
        A("v_mov_b32 v%d, s%d" % (vaddr, saddr))
        A("v_mov_b32 v%d, 1" % vone)
        A("s_mov_b64 exec, 1")
        A("buffer_store_dword v%d, v%d, s[%d:%d], %s offen sc1" % (vone, vaddr, SRD_W, SRD_W + 3, soff))
        A("s_mov_b64 exec, -1")
    HPOS = O("hpos", 1)
    def hflag():
        A("s_waitcnt vmcnt(0)")
        setflag(22, 23, 77, "0") if 0 else setflag(250, 251, 77, "0")
    A("s_waitcnt lgkmcnt(0)")
    A("s_barrier")
    feature(0)
    SP = T + 2; SM = T + 6
    VPH = T + 10
    VB = accb(2, 0)[1]
    assert accb(3, 0)[1] == VB + 16
    for db in range(2):
        for tb in range(4):
            s = VB + db * 16 + tb * 4
            d = VB + db * 8 + tb * 2
            A("v_cvt_pk_bf16_f32 v%d, v%d, v%d" % (d, s, s + 1))
            A("v_cvt_pk_bf16_f32 v%d, v%d, v%d" % (d + 1, s + 2, s + 3))
    feature2(0)
    A("v_and_b32 v%d, 15, v1" % VPH)
    A("v_mul_u32_u24 v%d, 136, v%d" % (VPH, VPH))
    A("v_lshrrev_b32 v%d, 4, v1" % (T + 11))
    A("v_lshl_add_u32 v%d, v%d, 3, v%d" % (VPH, T + 11, VPH))
    A("s_mul_i32 s61, s%d, 9216" % S_W)
    A("s_add_u32 s61, s61, %d" % SCR)
    A("v_add_u32 v%d, s61, v%d" % (VPH, VPH))
    EMR = [PB16, PB16 + 8, VB + 16, VB + 24]
    for tb in range(4):
        exps(0, tb, EMR[tb])
    if HPOS == 0: hflag()
    t0 = FREEV[0]
    for tb in range(4):
        p0 = accb(0, tb)[1]; p1 = accb(1, tb)[1]; e = EMR[tb]
        pk("v_pk_add_f32", vr(t0, 2), vr(p0, 2), vr(p0 + 2, 2))
        pk("v_pk_add_f32", vr(t0 + 2, 2), vr(e, 2), vr(e + 2, 2))
        pk("v_pk_add_f32", vr(t0, 2), vr(t0, 2), vr(p1, 2))
        pk("v_pk_add_f32", vr(t0 + 2, 2), vr(t0 + 2, 2), vr(e + 4, 2))
        pk("v_pk_add_f32", vr(t0, 2), vr(t0, 2), vr(p1 + 2, 2))
        pk("v_pk_add_f32", vr(t0 + 2, 2), vr(t0 + 2, 2), vr(e + 6, 2))
        A("v_add_f32 v%d, v%d, v%d" % (SP + tb, t0, t0 + 1))
        A("v_add_f32 v%d, v%d, v%d" % (SM + tb, t0 + 2, t0 + 3))
    rsag2("v_add_f32", [SP + i for i in range(4)], "v_add_f32", [SM + i for i in range(4)])
    for i in range(8): A("v_rcp_f32 v%d, v%d" % (SP + i, SP + i))
    assert SP % 2 == 0 and SM % 2 == 0
    VPR = T + 11
    A("v_bfe_u32 v%d, v1, 2, 2" % VPR)
    A("v_lshrrev_b32 v%d, 4, v1" % (T + 12))
    A("v_lshl_add_u32 v%d, v%d, 2, v%d" % (VPR, T + 12, VPR))
    A("v_mul_u32_u24 v%d, 136, v%d" % (VPR, VPR))
    A("v_and_b32 v%d, 3, v1" % (T + 12))
    A("v_lshl_add_u32 v%d, v%d, 3, v%d" % (VPR, T + 12, VPR))
    A("v_add_u32 v%d, s61, v%d" % (VPR, VPR))
    for tb in range(4):
        srcs = [(accb(0, tb)[1], SP), (accb(1, tb)[1], SP), (EMR[tb], SM), (EMR[tb] + 4, SM)]
        for q, (p, sc) in enumerate(srcs):
            sl = (sc + tb) & 1
            for u in range(2):
                pk("v_pk_mul_f32", vr(p + 2 * u, 2), vr(p + 2 * u, 2), vr((sc + tb) & ~1, 2), None, "op_sel:[0,%d] op_sel_hi:[1,%d]" % (sl, sl))
        for q, (p, sc) in enumerate(srcs):
            A("v_cvt_pk_bf16_f32 v%d, v%d, v%d" % (p, p, p + 1))
            A("v_cvt_pk_bf16_f32 v%d, v%d, v%d" % (p + 1, p + 2, p + 3))
        for q, (p, sc) in enumerate(srcs):
            A("ds_write_b64 v%d, %s offset:%d" % (VPH, vr(p, 2), tb * 16 * 136 + q * 32))
    if HPOS == 1: hflag()
    stamp()
    A("s_waitcnt lgkmcnt(0)")
    for fblk in range(4):
        for ks in range(2):
            for t in range(2):
                A("ds_read_b64_tr_b16 %s, v%d offset:%d" % (ar(8 * fblk + 4 * ks + 2 * t, 2), VPR, (32 * ks + 16 * t) * 136 + fblk * 32))
    A("v_mov_b32 v%d, 0x3f803f80" % (T + 13))
    for fblk in range(4):
        A("v_cmp_eq_u32 vcc, %d, v%d" % (fblk, T + 12))
        for r in range(4):
            A("v_cndmask_b32 v%d, 0, v%d, vcc" % (PB16 + 4 * fblk + r, T + 13))
    KV = accb(0, 0)[1]
    ZB = VB + 16
    for fblk in range(4):
        A("s_waitcnt lgkmcnt(%d)" % (12 - 4 * fblk))
        for ks in range(2):
            for db in range(2):
                d = vr(KV + 8 * fblk + 4 * db, 4)
                A("v_mfma_f32_16x16x32_bf16 %s, %s, %s, %s" % (d, ar(8 * fblk + 4 * ks, 4), vr(VB + db * 8 + ks * 4, 4), "0" if ks == 0 else d))
            A("v_mfma_f32_16x16x32_bf16 %s, %s, %s, %s" % (vr(ZB, 4), ar(8 * fblk + 4 * ks, 4), vr(PB16 + 4 * fblk, 4), "0" if (ks == 0 and fblk == 0) else vr(ZB, 4)))
    VRD = T + 12
    A("v_lshl_add_u32 v%d, v1, 4, s61" % VRD)
    for b in range(8):
        A("ds_write_b128 v%d, %s offset:%d" % (VRD, vr(KV + 4 * b, 4), b * 1024))
    A("ds_write_b128 v%d, %s offset:%d" % (VRD, vr(ZB, 4), 8 * 1024))
    feature(4)
    def setflag_unused(vaddr, vone, saddr, soff):
        A("v_mov_b32 v%d, s%d" % (vaddr, saddr))
        A("v_mov_b32 v%d, 1" % vone)
        A("s_mov_b64 exec, 1")
        A("buffer_store_dword v%d, v%d, s[%d:%d], %s offen sc1" % (vone, vaddr, SRD_W, SRD_W + 3, soff))
        A("s_mov_b64 exec, -1")
    if HPOS == 2: hflag()
    A("s_lshl_b32 s3, s%d, 11" % S_W)
    A("s_add_u32 s3, s3, %d" % SCR)
    A("v_lshl_add_u32 v%d, v1, 4, s3" % VRD)
    A("v_lshlrev_b32 v%d, 4, v1" % (T + 13))
    A("v_add_u32 v%d, %d, v%d" % (T + 15, SCR, T + 13))
    A("s_waitcnt lgkmcnt(0)")
    A("s_barrier")
    for w in range(4):
        A("ds_read_b128 %s, v%d offset:%d" % (vr(KV + 8 * w, 4), VRD, w * 9216))
        A("ds_read_b128 %s, v%d offset:%d" % (vr(KV + 8 * w + 4, 4), VRD, w * 9216 + 1024))
        A("ds_read_b128 %s, v%d offset:%d" % (vr(VB + 4 * w, 4), T + 15, w * 9216 + 8192))
    VZ = T + 10
    A("v_lshrrev_b32 v%d, 4, v1" % VZ)
    A("v_and_b32 v%d, 3, v1" % (T + 11))
    A("v_lshl_add_u32 v%d, v%d, 2, v%d" % (VZ, VZ, T + 11))
    A("v_lshlrev_b32 v%d, 4, v%d" % (VZ, VZ))
    S_KVB = 60
    A("s_lshl_b32 s3, s%d, 3" % S_J)
    A("s_mul_i32 s%d, s3, 9216" % S_KVB)
    A("s_add_u32 s%d, s%d, %d" % (S_KVB, S_KVB, WS_KVP))
    A("s_mul_i32 s3, s%d, 9216" % S_I)
    A("s_add_u32 s61, s%d, s3" % S_KVB)
    A("s_lshl_b32 s3, s%d, 11" % S_W)
    A("v_add_u32 v%d, s3, v%d" % (VRD, T + 13))
    A("s_waitcnt lgkmcnt(0)")
    for w in range(1, 4):
        for u in range(4): pk("v_pk_add_f32", vr(KV + 2 * u, 2), vr(KV + 2 * u, 2), vr(KV + 8 * w + 2 * u, 2))
        for u in range(2): pk("v_pk_add_f32", vr(VB + 2 * u, 2), vr(VB + 2 * u, 2), vr(VB + 4 * w + 2 * u, 2))
    A("buffer_store_dwordx4 %s, v%d, s[%d:%d], s61 offen sc1" % (vr(KV, 4), VRD, SRD_W, SRD_W + 3))
    A("buffer_store_dwordx4 %s, v%d, s[%d:%d], s61 offen offset:1024 sc1" % (vr(KV + 4, 4), VRD, SRD_W, SRD_W + 3))
    A("s_cmp_eq_u32 s%d, 0" % S_W)
    A("s_cbranch_scc0 L_k1_noz")
    A("s_add_u32 s3, s61, 8192")
    A("buffer_store_dwordx4 %s, v%d, s[%d:%d], s3 offen sc1" % (vr(VB, 4), VZ, SRD_W, SRD_W + 3))
    A("s_nop 1")
    A.label("L_k1_noz")
    stamp()
    feature2(4)
    QE = 128 + 16
    for half in range(2):
        for tb in (2 * half, 2 * half + 1):
            exps(4, tb, PB16 + 8 * (tb & 1))
        for tb in (2 * half, 2 * half + 1):
            e = PB16 + 8 * (tb & 1)
            for h in range(2):
                p = accb(4 + h, tb)[1]
                A("v_cvt_pk_bf16_f32 v%d, v%d, v%d" % (QE + 8 * tb + 2 * h, p, p + 1))
                A("v_cvt_pk_bf16_f32 v%d, v%d, v%d" % (QE + 8 * tb + 2 * h + 1, p + 2, p + 3))
                A("v_cvt_pk_bf16_f32 v%d, v%d, v%d" % (QE + 8 * tb + 4 + 2 * h, e + 4 * h, e + 4 * h + 1))
                A("v_cvt_pk_bf16_f32 v%d, v%d, v%d" % (QE + 8 * tb + 4 + 2 * h + 1, e + 4 * h + 2, e + 4 * h + 3))
        if half == 0:
            A("s_waitcnt vmcnt(0)")
            setflag(T + 8, T + 9, 45, "s%d" % S_F1)
    K2["rest"]()
    stamp()
    def lb(i, q):
        r = 12 * i + 4 * q
        return 176 + r if r < 80 else 128 + r - 80
    def kvloads():
        A("s_lshr_b32 s3, s%d, 1" % S_W)
        A("s_lshl_b32 s3, s3, 12")
        A("s_and_b32 s61, s%d, 1" % S_W)
        A("s_lshl_b32 s61, s61, 10")
        A("s_add_u32 s3, s3, s61")
        A("v_add_u32 v%d, s3, v%d" % (T + 12, T + 13))
        A("v_add_u32 v%d, 8192, v%d" % (VZ, VZ))
        L = []
        for i in range(8):
            L.append(["buffer_load_dwordx4 %s, v%d, s[%d:%d], s%d offen sc1" % (vr(lb(i, 0), 4), T + 12, SRD_W, SRD_W + 3, S_KVB)])
            L.append(["buffer_load_dwordx4 %s, v%d, s[%d:%d], s%d offen offset:2048 sc1" % (vr(lb(i, 1), 4), T + 12, SRD_W, SRD_W + 3, S_KVB)])
            L.append(["buffer_load_dwordx4 %s, v%d, s[%d:%d], s%d offen sc1" % (vr(lb(i, 2), 4), VZ, SRD_W, SRD_W + 3, S_KVB),
                      "s_add_u32 s%d, s%d, 9216" % (S_KVB, S_KVB)])
        return L
    def ophase():
        LB = 176
        for i in range(1, 8):
            for q in range(3):
                for u in range(2): pk("v_pk_add_f32", vr(LB + 4 * q + 2 * u, 2), vr(LB + 4 * q + 2 * u, 2), vr(lb(i, q) + 2 * u, 2))
        AF = LB + 12
        for h in range(2):
            A("v_cvt_pk_bf16_f32 v%d, v%d, v%d" % (AF + 2 * h, LB + 4 * h, LB + 4 * h + 1))
            A("v_cvt_pk_bf16_f32 v%d, v%d, v%d" % (AF + 2 * h + 1, LB + 4 * h + 2, LB + 4 * h + 3))
        A("s_lshl_b32 s3, s%d, 10" % S_W)
        A("v_add_u32 v%d, 131072, v%d" % (T + 13, T + 13))
        A("v_add_u32 v%d, s3, v%d" % (T + 12, T + 13))
        A("ds_write_b128 v%d, %s" % (T + 12, vr(AF, 4)))
        ZQ = LB + 16
        KF = LB + 56; AUX = LB + 72
        for fblk in range(4):
            for r in range(4):
                A("v_mov_b32_dpp v%d, v%d quad_perm:[%d,%d,%d,%d] row_mask:0xf bank_mask:0xf" % (ZQ + 4 * fblk + r, LB + 8 + r, fblk, fblk, fblk, fblk))
        A("s_waitcnt lgkmcnt(0)")
        A("s_barrier")
        for q in range(4):
            A("ds_read_b128 %s, v%d offset:%d" % (vr(KF + 4 * q, 4), T + 13, q * 1024))
        for fblk in range(4):
            A("v_cvt_pk_bf16_f32 v%d, v%d, v%d" % (AUX + 2 * fblk, ZQ + 4 * fblk, ZQ + 4 * fblk + 1))
            A("v_cvt_pk_bf16_f32 v%d, v%d, v%d" % (AUX + 2 * fblk + 1, ZQ + 4 * fblk + 2, ZQ + 4 * fblk + 3))
        A("v_and_b32 v%d, 3, v1" % ZQ)
        A("v_mov_b32 v%d, 0x3f803f80" % (ZQ + 1))
        A("v_cmp_eq_u32 vcc, 1, v%d" % ZQ)
        A("v_cndmask_b32 v%d, 0, v%d, vcc" % (ZQ + 1, ZQ + 1))
        A("v_cmp_eq_u32 vcc, 0, v%d" % ZQ)
        for r in range(8): A("v_cndmask_b32 v%d, v%d, v%d, vcc" % (AUX + r, ZQ + 1, AUX + r))
        A("s_add_u32 s3, s%d, 112" % S_J)
        A("s_lshl_b32 s3, s3, 10")
        A("s_add_u32 s63, s62, s3")
        A("s_mov_b32 s64, 0x358637bd")
        A("s_waitcnt lgkmcnt(0)")
        NN = [LB, LB + 16, LB + 32, 128]; NA = [LB + 48, 56, 22 + 0, 0]
        NA = [LB + 48, 56, None, None]
        for rnd in range(2):
            tbs = (2 * rnd, 2 * rnd + 1)
            ns = [(NN[tb], NA[tb & 1]) for tb in tbs]
            for tb, (n, x) in zip(tbs, ns):
                for s in range(2):
                    A("v_mfma_f32_16x16x32_bf16 %s, %s, %s, 0" % (vr(x + 4 * s, 4), vr(AUX + 4 * s, 4), vr(QE + 8 * tb + 4 * s, 4)))
            for tb, (n, x) in zip(tbs, ns):
                for s in range(2):
                    for db in range(2):
                        A("v_mfma_f32_16x16x32_bf16 %s, %s, %s, 0" % (vr(n + 8 * s + 4 * db, 4), vr(KF + 8 * s + 4 * db, 4), vr(QE + 8 * tb + 4 * s, 4)))
            for n, x in ns:
                A("v_rcp_f32 v%d, v%d" % (x + 1, x + 1))
                A("v_rcp_f32 v%d, v%d" % (x + 5, x + 5))
            for n, x in ns: A("v_fma_f32 v%d, v%d, v%d, s64" % (x + 2, x, x + 1))
            for n, x in ns: A("v_fma_f32 v%d, v%d, v%d, v%d" % (x + 2, x + 4, x + 5, x + 2))
            for n, x in ns: A("v_rcp_f32 v%d, v%d" % (x + 2, x + 2))
            for n, x in ns:
                A("v_mul_f32 v%d, v%d, v%d" % (x, x + 1, x + 2))
                A("v_mul_f32 v%d, v%d, v%d" % (x + 4, x + 5, x + 2))
            for n, x in ns:
                for u in range(4):
                    pk("v_pk_mul_f32", vr(n + 2 * u, 2), vr(n + 2 * u, 2), vr(x, 2), None, "op_sel_hi:[1,0]")
                for u in range(4):
                    pk("v_pk_fma_f32", vr(n + 2 * u, 2), vr(n + 8 + 2 * u, 2), vr(x + 4, 2), vr(n + 2 * u, 2), "op_sel_hi:[1,0,1]")
                for u in range(4):
                    A("v_cvt_pk_bf16_f32 v%d, v%d, v%d" % (n + 8 + u, n + 2 * u, n + 2 * u + 1))
            for n, x in ns: doswap(n + 8)
            for n, x in ns:
                A("buffer_store_dwordx4 %s, v%d, s[%d:%d], s63 offen%s" % (vr(n + 8, 4), VH, SRD_W, SRD_W + 3, SC))
                A("s_add_u32 s63, s63, %d" % MBS)
    K2["main"](kvloads, ophase, lambda: setflag(T + 8, T + 9, 77, "s47"))
    stamp.finish(S_W, SRD_W, 24, "L_k1_end")
    A.label("L_k1_end")
    A("s_endpgm")
    return name, LDS

A = Asm()
n1, l1 = gen_k1(A)
hdr = ""
hdr += "; @launch grid=(256,1,1) block=(256,1,1) lds=%d\n" % l1
hdr += '.amdgcn_target "amdgcn-amd-amdhsa--gfx950"\n.text\n'
txt = hdr + A.text() + '.section .rodata,"a"\n' + kernel_desc(n1, 512, 256)
open(OUT, "w").write(txt)
```

```python
import sys
from asmlib import *

opts = dict(a.split("=") if "=" in a else (a, "1") for a in sys.argv[2:])
OUT = sys.argv[1]
O = lambda k, d: int(opts.get(k, d))
TOUCH = O("touch", 1)
STAMP = O("stamp", 0)
ONLY = O("only", 0)
HSC1 = O("hsc1", 0)
K2MAP = O("k2map", 0)
NH = O("nh", 32)
K2NODMA = O("k2nodma", 0); K2NOMFMA = O("k2nomfma", 0); K2NOLDS = O("k2nolds", 0); K2SEL = opts.get("k2sel", "aw")

MBS = 144 * 1024
WS_G = 0x1200000
WS_KVP = 0x1210000
WS_FLG = 0x1480000
WS_FLGH = 0x1494000
WS_FLGO = 0x1498000
WS_FLG1 = 0x1490000
WS_STAMP = 0x14A0000
WS_XCH = 0x1500000
WS_SIZE = WS_XCH + 128 * 65536
LOG2E = 0x3FB8AA3B
SC = " sc1"
INV = O("inv", 0)
DSC = " sc1" if O("dsc1", 1) else ""

class Cnt:
    def __init__(self, cap): self.n = 0; self.tag = {}; self.cap = cap
    def issue(self, tag=None, k=1):
        self.n += k
        if tag is not None: self.tag[tag] = self.n
    def wait_for(self, tags):
        last = max(self.tag[t] for t in tags)
        return min(self.n - last, self.cap)

class Stamper:
    def __init__(self, A, kidx): self.A = A; self.regs = []; self.k = kidx
    def start(self):
        if STAMP:
            self.A("s_memrealtime s[78:79]"); self.A("s_memtime s[80:81]")
    off = False
    def __call__(self, wait=True):
        if STAMP and not self.off:
            r = 82 + len(self.regs); assert r <= 99; self.regs.append(r)
            self.A("s_memtime s[100:101]")
            self.A("s_waitcnt lgkmcnt(0)")
            self.A("s_mov_b32 s%d, s100" % r)
    def real(self):
        if STAMP and not self.off:
            r = 82 + len(self.regs); assert r <= 99; self.regs.append(-r)
            self.A("s_memrealtime s[100:101]")
            self.A("s_waitcnt lgkmcnt(0)")
            self.A("s_mov_b32 s%d, s100" % r)
    def finish(self, swave, srd, T, endlabel):
        if not STAMP: return
        A = self.A
        A("s_waitcnt vmcnt(0)")
        A("s_memtime s[4:5]"); A("s_memrealtime s[6:7]")
        A("s_waitcnt lgkmcnt(0)")
        A("s_cmp_eq_u32 s%d, 0" % swave); A("s_cbranch_scc0 %s" % endlabel)
        A("s_lshl_b32 s3, s2, 7")
        A("s_add_u32 s3, s3, %d" % WS_STAMP)
        A("v_mov_b32 v%d, 0" % (T + 1))
        items = [(78, None), (6, None), (4, 80)] + [(abs(r), 80 if r > 0 else 78) for r in self.regs]
        for q, (s, b) in enumerate(items):
            if b is None: A("v_mov_b32 v%d, s%d" % (T, s))
            else:
                A("s_sub_u32 s5, s%d, s%d" % (s, b)); A("v_mov_b32 v%d, s5" % T)
            A("buffer_store_dword v%d, v%d, s[%d:%d], s3 offen offset:%d" % (T, T + 1, srd, srd + 3, 4 * q))

def mk_srd(A, b, lo, hi, addsgpr, size):
    if addsgpr is None:
        A("s_mov_b32 s%d, s%d" % (b, lo)); A("s_mov_b32 s%d, s%d" % (b + 1, hi))
        A("s_mov_b32 s%d, %d" % (b + 2, size))
    else:
        A("s_add_u32 s%d, s%d, s%d" % (b, lo, addsgpr)); A("s_addc_u32 s%d, s%d, 0" % (b + 1, hi))
        A("s_sub_u32 s%d, %d, s%d" % (b + 2, size, addsgpr))
    A("s_mov_b32 s%d, 0x20000" % (b + 3))


def k2ids(A, mt, nt, kh, xf):
    A("s_and_b32 s%d, s2, 1" % kh)
    A("s_bfe_u32 s%d, s2, 0x30003" % mt)
    A("s_bfe_u32 s3, s2, 0x10001")
    A("s_lshl_b32 s3, s3, 3")
    A("s_add_u32 s%d, s%d, s3" % (mt, mt))
    A("s_lshr_b32 s%d, s2, 6" % nt)
    A("s_bfe_u32 s3, s2, 0x10002")
    A("s_lshl_b32 s3, s3, 2")
    A("s_add_u32 s%d, s%d, s3" % (nt, nt))
    A("s_lshl_b32 s3, s%d, 3" % mt)
    A("s_add_u32 s3, s3, s%d" % nt)
    A("s_lshl_b32 s3, s3, 2")
    A("s_add_u32 s3, s3, s26")
    A("s_lshl_b32 s%d, s3, 6" % xf)
    A("s_add_u32 s%d, s%d, %d" % (xf, xf, WS_FLG))

def make_k2(A, stamp):
    NS = 4; STAGE = 16384; AB = 65536
    HH = NH - 16
    NF = 56 - HH
    assert HH % 4 == 0 and HH >= 8
    S_MT, S_NT, S_KH, S_XF = 52, 53, 54, 55
    S_W, S_CNT, S_AK, S_WK, S_KT, S_SW, S_N1, S_PA = 26, 27, 28, 29, 30, 31, 34, 35
    S_M0 = 32
    SRD_A, SRD_B, SRD_O, SRD_W, SRD_D = 8, 12, 16, 20, 48
    S_B2 = 72
    V_DMA, V_XRD, V_WRD = 2, 10, 14
    T = 24
    V_ACC = 64; V_FR = 192
    VG = 48; C1 = 52; VL = T + 8
    S_WM, S_WN = 42, 43
    def acc(s, cb, tb): return vr(V_ACC + 64 * s + 4 * (cb * 4 + tb), 4)
    def xf(p, tb): return ar(32 * p + 4 * tb, 4)
    def wf(p, cb, half=None):
        b = 32 * p + 16 + 4 * cb
        return ar(b, 4) if half is None else ar(b + 2 * half, 2)
    def m0set(i, stage):
        return "s_add_u32 m0, s%d, %d" % (S_M0 + i, STAGE * stage) if stage else "s_mov_b32 m0, s%d" % (S_M0 + i)
    def lda(n): return "buffer_load_dwordx4 v%d, s[%d:%d], s%d offen offset:%d%s lds" % (V_DMA + (n & 2), SRD_A, SRD_A + 3, S_AK, 1024 * n, DSC)
    def ldw(n): return "buffer_load_dwordx4 v%d, s[%d:%d], s%d offen offset:%d lds" % (V_DMA + 4 + n, SRD_B, SRD_B + 3, S_WK, 1024 * n)
    def dma_list(stage):
        L = [[m0set(0, stage), lda(0)], [lda(1)], [lda(2)], [lda(3)], [m0set(1, stage), ldw(0)], [ldw(1)], [ldw(2)], [ldw(3)]]
        L[-1] += ["s_add_u32 s%d, s%d, 2048" % (S_AK, S_AK),
                  "s_add_u32 s%d, s%d, %d" % (S_WK, S_WK, 64 * 2048),
                  "s_add_u32 s%d, s%d, 1" % (S_KT, S_KT),
                  "s_cmp_eq_u32 s%d, s%d" % (S_KT, S_SW),
                  "s_cselect_b32 s%d, s%d, s%d" % (SRD_B, S_B2, SRD_B),
                  "s_cselect_b32 s%d, s%d, s%d" % (SRD_B + 1, S_B2 + 1, SRD_B + 1),
                  "s_cselect_b32 s%d, s%d, s%d" % (SRD_B + 2, S_B2 + 2, SRD_B + 2),
                  "s_cselect_b32 s%d, 0, s%d" % (S_WK, S_WK),
                  "s_cselect_b32 s%d, %d, s%d" % (S_AK, 112 * 1024, S_AK)]
        return L
    def ptrs():
        A("s_load_dwordx2 s[70:71], s[0:1], 72")
    def wotouch():
        B = Asm()
        mk_srd(B, 72, 4, 5, None, 1024 * 2048)
        B("s_lshr_b32 s3, s2, 3")
        B("s_lshl_b32 s3, s3, 2")
        B("s_add_u32 s3, s3, s%d" % S_W)
        B("s_lshl_b32 s3, s3, 14")
        B("s_bfe_u32 s6, s2, 0x10002")
        B("s_lshl_b32 s6, s6, 10")
        B("s_add_u32 s3, s3, s6")
        B("v_lshrrev_b32 v32, 3, v1")
        B("v_lshlrev_b32 v32, 11, v32")
        B("v_and_b32 v33, 7, v1")
        B("v_lshl_add_u32 v32, v33, 7, v32")
        B("buffer_load_dword v33, v32, s[72:75], s3 offen")
        return [B.lines[i:i + 3] for i in range(0, len(B.lines), 3)]
    def wsetup():
        B = Asm()
        k2ids(B, S_MT, S_NT, S_KH, S_XF)
        B("v_lshrrev_b32 v12, 4, v1")
        B("v_and_b32 v13, 15, v1")
        B("v_lshlrev_b32 v14, 1, v12")
        B("v_xor_b32 v13, v13, v14")
        B("s_lshl_b32 s3, s%d, 4" % S_W)
        B("v_add_u32 v12, s3, v12")
        B("v_lshlrev_b32 v12, 11, v12")
        B("v_lshl_add_u32 v12, v13, 4, v12")
        B("v_xor_b32 v13, 128, v12")
        for n in range(4):
            B("v_add_u32 v%d, %d, v%d" % (V_DMA + 4 + n, n * 4 * 2048 - 1024 * n, 12 + (n >> 1)))
        B("s_lshl_b32 s%d, s%d, 12" % (S_M0 + 1, S_W))
        B("s_add_u32 s%d, s%d, %d" % (S_M0, S_M0 + 1, AB))
        B("s_mul_i32 s3, s%d, %d" % (S_KH, HH * 64 * 2048))
        B("s_lshl_b32 s6, s%d, 8" % S_NT)
        B("s_add_u32 s3, s3, s6")
        B("s_add_u32 s%d, s40, s3\ns_addc_u32 s%d, s41, 0" % (SRD_B, SRD_B + 1))
        B("s_sub_u32 s%d, %d, s3" % (SRD_B + 2, 3584 * 2048))
        B("s_mov_b32 s%d, 0" % S_WK)
        L = []
        i = 0
        while i < len(B.lines):
            n = 3 if "s_addc" not in "".join(B.lines[i + 3:i + 4]) else 4
            L.append(B.lines[i:i + n]); i += n
        return L
    def wdma():
        L = []
        for st in range(NS):
            for n in range(4):
                g = ([m0set(1, st)] if n == 0 else []) + [ldw(n)]
                if n == 3: g.append("s_add_u32 s%d, s%d, %d" % (S_WK, S_WK, 64 * 2048))
                L.append(g)
        return L
    def rest():
        A("s_mov_b32 s47, %d" % (WS_FLGO - WS_FLGH))
        A("s_lshl_b32 s6, s%d, 8" % S_NT)
        A("s_add_u32 s%d, s4, s6" % S_B2); A("s_addc_u32 s%d, s5, 0" % (S_B2 + 1))
        A("s_sub_u32 s%d, %d, s6" % (S_B2 + 2, 1024 * 2048))
        A("v_lshlrev_b32 v%d, 4, v1" % VL)
        A("s_mul_i32 s3, s%d, %d" % (S_W, 2 * MBS))
        A("v_add_u32 v%d, s3, v%d" % (V_DMA, VL))
        A("v_add_u32 v%d, %d, v%d" % (V_DMA + 2, MBS - 2048, V_DMA))
        A("s_mov_b32 s%d, 0" % S_AK); A("s_mov_b32 s%d, %d" % (S_KT, NS))
        A("s_cmp_eq_u32 s%d, 0" % S_KH)
        A("s_cselect_b32 s%d, %d, -1" % (S_SW, HH))
        A("s_cselect_b32 s%d, %d, %d" % (S_N1, HH // 4 - 1, NF // 4 - 2))
        A("s_cselect_b32 s%d, %d, -1" % (S_PA, HH // 4 - 2))
        jh = (64 * HH - 1) // 112; jf = 64 * HH // 112
        mh = (1 << (2 * jh + 2)) - 1; mf = ((1 << 64) - 1) ^ ((1 << (2 * jf)) - 1)
        ih = ((1 << 64) - 1) ^ mh; if_ = ((1 << 64) - 1) ^ mf
        A("s_mov_b32 s66, 0x%x" % (if_ & 0xffffffff)); A("s_mov_b32 s67, 0x%x" % (if_ >> 32))
        A("s_cselect_b32 s66, 0x%x, s66" % (ih & 0xffffffff)); A("s_cselect_b32 s67, 0x%x, s67" % (ih >> 32))
        A("s_mul_i32 s3, s%d, %d" % (S_MT, 8 * MBS))
        A("s_mul_i32 s6, s%d, %d" % (S_KH, HH * 2048))
        A("s_add_u32 s3, s3, s6")
        mk_srd(A, SRD_A, 58, 59, 3, 128 * MBS)
        mk_srd(A, SRD_O, 70, 71, None, 2048 * 2048)
        A("s_lshr_b32 s%d, s%d, 1" % (S_WM, S_W)); A("s_and_b32 s%d, s%d, 1" % (S_WN, S_W))
        A("s_lshl_b32 s6, s%d, 7" % S_MT)
        A("s_lshl_b32 s3, s%d, 6" % S_WM)
        A("s_add_u32 s6, s6, s3")
        A("v_and_b32 v%d, 15, v1" % T)
        A("v_add_u32 v%d, s6, v%d" % (T + 4, T))
        A("v_lshlrev_b32 v%d, 2, v%d" % (T + 5, T + 4))
        A("v_add_u32 v%d, %d, v%d" % (T + 5, WS_G, T + 5))
        A("s_lshl_b32 s3, s%d, 13" % S_WM)
        A("s_add_u32 s3, s3, %d" % AB)
        A("v_add_u32 v%d, s3, v%d" % (V_XRD, VL))
        A("v_lshrrev_b32 v%d, 4, v1" % (T + 2))
        A("v_bfe_u32 v%d, v1, 2, 2" % T)
        A("v_lshl_add_u32 v%d, v%d, 3, v%d" % (T + 1, T + 2, T))
        A("v_lshlrev_b32 v%d, 8, v%d" % (T + 1, T + 1))
        A("v_and_b32 v%d, 3, v1" % (T + 3))
        A("v_lshl_add_u32 v%d, v%d, 3, v%d" % (T + 1, T + 3, T + 1))
        A("v_bfe_u32 v%d, v1, 4, 1" % (T + 3))
        A("v_lshl_add_u32 v%d, v%d, 2, v%d" % (T, T + 3, T))
        A("s_lshl_b32 s3, s%d, 2" % S_WN)
        for cb in range(4):
            A("s_add_u32 s6, s3, %d" % cb)
            A("v_xor_b32 v%d, s6, v%d" % (T + 3, T))
            A("v_lshl_add_u32 v%d, v%d, 5, v%d" % (V_WRD + cb, T + 3, T + 1))
        A("v_mov_b32 v%d, 0" % (T + 9))
        A("v_lshlrev_b32 v%d, 2, v1" % (T + 10))
        A("s_lshl_b32 s76, s%d, 8" % S_MT)
        A("s_add_u32 s76, s76, %d" % WS_FLGH)
    def xbases():
        A("s_sub_u32 s3, s%d, %d" % (S_XF, WS_FLG))
        A("s_lshl_b32 s3, s3, 8")
        A("s_add_u32 s60, s3, %d" % WS_XCH)
        for q in range(1, 4): A("s_add_u32 s%d, s60, %d" % (60 + q, 4096 * q))
    def pollflags(lab, items):
        A("s_mov_b32 s37, 0x40000")
        A.label(lab)
        for q, (sd, so, va, ex, ig) in enumerate(items):
            A("buffer_load_dword v%d, v%d, s[%d:%d], %s offen sc1" % (T + 11 + q, va, sd, sd + 3, so))
        A("s_waitcnt vmcnt(0)")
        for q, (sd, so, va, ex, ig) in enumerate(items):
            A("v_cmp_eq_u32 %s, %s, v%d" % ("vcc" if q == 0 else "s[6:7]", ex, T + 11 + q))
            A("s_nop 0")
            if ig: A("s_or_b64 vcc, vcc, %s" % ig); assert q == 0
            if q: A("s_and_b64 vcc, vcc, s[6:7]")
        A("s_cmp_eq_u64 vcc, -1")
        A("s_cbranch_scc1 %s_ok" % lab)
        A("s_sub_u32 s37, s37, 1")
        A("s_cbranch_scc0 %s" % lab)
        A.label(lab + "_ok")
        if INV: A("buffer_inv sc1")
    def reads(stage, ks, p):
        R = []
        so = stage * STAGE
        def xr(tb): return "ds_read_b128 %s, v%d offset:%d" % (xf(p, tb), V_XRD, so + tb * 2048 + ks * 1024)
        def wr(cb, t): return "ds_read_b64_tr_b16 %s, v%d offset:%d" % (wf(p, cb, t), V_WRD + cb, so + (ks * 32 + 4 * t) * 256)
        R += [xr(0), wr(0, 0), wr(0, 1), xr(1), xr(2), xr(3)]
        for cb in range(1, 4): R += [wr(cb, 0), wr(cb, 1)]
        return R
    st = {"pend": []}
    VM = Cnt(63)
    def isvm(x): return x.startswith(("buffer_load", "buffer_store"))
    def tile(stage, aset, first, dma_next, has_next, vm, hook=None, tidx=None):
        for ks in range(2):
            rd = reads(stage, 1, 1) if ks == 0 else (reads((stage + 1) % NS, 0, 0) if has_next else [])
            pre = ["s_waitcnt lgkmcnt(0)"]
            if ks == 1:
                assert not st["pend"]
                if has_next:
                    n = vm if isinstance(vm, int) else VM.wait_for(vm)
                    pre = ["s_waitcnt lgkmcnt(0) vmcnt(%d)" % n, "s_barrier"]
            for s in pre: A(s)
            if ks == 1:
                if hook: hook()
                if dma_next:
                    d = dma_list(stage)
                    if tidx is not None: d[-1] = d[-1] + [("tag", ("D", tidx + NS))]
                    st["pend"] = st["pend"] + d
            g = 0
            for cb in range(4):
                for tb in range(4):
                    c = "0" if (first and ks == 0) else acc(aset, cb, tb)
                    A("v_mfma_f32_16x16x32_bf16 %s, %s, %s, %s" % (acc(aset, cb, tb), wf(ks, cb), xf(ks, tb), c))
                    if g < len(rd): A(rd[g])
                    left = (16 - g) + (16 if ks == 1 else 0)
                    if st["pend"] and (g % 4 == 3 or len(st["pend"]) * 4 > left + 3):
                        k = 1 + (len(st["pend"]) > left)
                        for _ in range(k):
                            if not st["pend"]: break
                            for x in st["pend"].pop(0):
                                if isinstance(x, tuple): VM.tag[x[1]] = VM.n
                                else:
                                    A(x)
                                    if isvm(x): VM.issue()
                    g += 1
    def main(kvloads, ophase, flago):
        A("v_and_b32 v%d, 124, v%d" % (T + 14, T + 10))
        A("s_mov_b32 s46, 0x01010101")
        pollflags("L_k2_hpoll", [(SRD_W, "s76", T + 10, "1", "s[66:67]"), (SRD_D, "0", T + 10, "s46", None)])
        stamp(); stamp.real()
        def adma(stg):
            L = [[m0set(0, stg), lda(0)], [lda(1)], [lda(2)], [lda(3), "s_add_u32 s%d, s%d, 2048" % (S_AK, S_AK), ("tag", ("D", stg))]]
            return L
        for stg in range(2):
            for g in adma(stg):
                for x in g:
                    if isinstance(x, tuple): VM.tag[x[1]] = VM.n
                    else:
                        A(x)
                        if isvm(x): VM.issue()
        A("s_add_u32 s76, s76, s47")
        A("s_waitcnt vmcnt(4)")
        A("s_barrier")
        for s in reads(0, 0, 0): A(s)
        stamp(); stamp.real()
        VMN = 16
        kvpoll = "buffer_load_dword v%d, v%d, s[%d:%d], s44 offen sc1" % (T + 11, T + 14, SRD_W, SRD_W + 3)
        st["pend"] = adma(2) + adma(3) + [["buffer_load_dword v%d, v%d, s[%d:%d], 0 offen offset:%d sc1" % (VG + tb, T + 5, SRD_W, SRD_W + 3, 64 * tb)] for tb in range(4)]
        tile(0, 0, True, True, True, [("D", 1)], None, 0)
        st["pend"].append([kvpoll, ("tag", "kvp")])
        tile(1, 0, False, True, True, [("D", 2)], None, 1)
        def kvhook():
            A("s_mov_b32 s37, 0x40000")
            A.label("L_k2_kvpoll")
            A("v_cmp_eq_u32 vcc, 1, v%d" % (T + 11))
            A("s_nop 0")
            A("s_cmp_eq_u64 vcc, -1")
            A("s_cbranch_scc1 L_k2_kvok")
            A(kvpoll)
            A("s_sub_u32 s37, s37, 1")
            A("s_waitcnt vmcnt(0)")
            A("s_cbranch_scc0 L_k2_kvpoll")
            A.label("L_k2_kvok")
            st["pend"] = kvloads()
            st["pend"][-1] = st["pend"][-1] + [("tag", "kvl")]
        tile(2, 0, False, True, True, [("D", 3)], None, 2)
        tile(3, 0, False, True, True, [("D", 4), "kvp"], kvhook, 3)
        tile(0, 0, False, True, True, [("D", 5)], None, 4)
        tile(1, 0, False, True, True, [("D", 6)], None, 5)
        tile(2, 0, False, True, True, [("D", 7), "kvl"], None, 6)
        ophase(); VM.issue("o", 4)
        stamp()
        tile(3, 0, False, True, True, [("D", 8)], None, 7)
        A("s_mov_b32 s%d, 1" % S_CNT)
        A.label("L_k2_loop1")
        A("s_cmp_eq_u32 s%d, s%d" % (S_CNT, S_PA))
        A("s_cbranch_scc0 L_k2_nop")
        pollflags("L_k2_opoll", [(SRD_W, "s76", T + 10, "1", None)])
        A.label("L_k2_nop")
        def fhook():
            A("s_cmp_eq_u32 s%d, 1" % S_CNT)
            A("s_cbranch_scc0 L_k2_nof")
            flago()
            A.label("L_k2_nof")
        for t in range(4): tile(t, 0, False, True, True, VMN, fhook if t == 1 else None)
        A("s_add_u32 s%d, s%d, 1" % (S_CNT, S_CNT))
        A("s_cmp_lt_u32 s%d, s%d" % (S_CNT, S_N1))
        A("s_cbranch_scc1 L_k2_loop1")
        saved = list(st["pend"])
        xbases()
        A("s_cmp_eq_u32 s%d, 1" % S_KH)
        A("s_cbranch_scc1 L_k2_fin")
        tile(0, 1, True, True, True, VMN)
        for t in range(1, 4): tile(t, 1, False, True, True, VMN)
        A("s_mov_b32 s%d, 0" % S_CNT)
        A.label("L_k2_loop2")
        for t in range(4): tile(t, 1, False, True, True, VMN)
        A("s_add_u32 s%d, s%d, 1" % (S_CNT, S_CNT))
        A("s_cmp_lt_u32 s%d, 2" % S_CNT)
        A("s_cbranch_scc1 L_k2_loop2")
        for t in range(4):
            tile(t, 1, False, False, t < 3, 8 * max(0, 2 - t))
        stamp(); stamp.real()
        for tb in range(4): A("v_sub_f32 v%d, 1.0, v%d" % (C1 + tb, VG + tb))
        for cb in range(4):
            for tb in range(4):
                a0 = V_ACC + 4 * (cb * 4 + tb); a1 = a0 + 64; sl = tb & 1
                for u in range(2):
                    A("v_pk_mul_f32 %s, %s, %s op_sel:[0,%d] op_sel_hi:[1,%d]" % (vr(a0 + 2 * u, 2), vr(a0 + 2 * u, 2), vr(C1 + (tb & ~1), 2), sl, sl))
                for u in range(2):
                    A("v_pk_fma_f32 %s, %s, %s, %s op_sel:[0,%d,0] op_sel_hi:[1,%d,1]" % (vr(a0 + 2 * u, 2), vr(a1 + 2 * u, 2), vr(VG + (tb & ~1), 2), vr(a0 + 2 * u, 2), sl, sl))
            for tb in range(4):
                A("buffer_store_dwordx4 %s, v%d, s[%d:%d], s%d offen offset:%d sc1" % (acc(0, cb, tb), VL, SRD_W, SRD_W + 3, 60 + cb, tb * 1024))
        A("s_waitcnt vmcnt(0)")
        A("v_mov_b32 v%d, 1" % (T + 2))
        A("s_mov_b64 exec, 1")
        A("buffer_store_dword v%d, v%d, s[%d:%d], s%d offen sc1" % (T + 2, T + 9, SRD_W, SRD_W + 3, S_XF))
        A("s_mov_b64 exec, -1")
        A("s_branch L_k2_out")
        A.label("L_k2_fin")
        st["pend"] = saved
        if STAMP == 1: stamp.regs = stamp.regs[:-2]
        pollld = "buffer_load_dword v%d, v%d, s[%d:%d], s%d offen sc1" % (T + 2, T + 9, SRD_W, SRD_W + 3, S_XF)
        st["pend"].append([pollld])
        tile(0, 0, False, False, True, 16 + 1)
        tile(1, 0, False, False, True, 8 + 1)
        def pollhook():
            lp = "L_k2_poll"; lr = "L_k2_rdy"
            A("s_mov_b32 s%d, 0x40000" % S_CNT)
            A.label(lp)
            A("v_readfirstlane_b32 s3, v%d" % (T + 2))
            A("s_cmp_eq_u32 s3, 1")
            A("s_cbranch_scc1 %s" % lr)
            A(pollld)
            A("s_sub_u32 s%d, s%d, 1" % (S_CNT, S_CNT))
            A("s_waitcnt vmcnt(0)")
            A("s_cbranch_scc0 %s" % lp)
            A.label(lr)
            st["pend"] = [["buffer_load_dwordx4 %s, v%d, s[%d:%d], s%d offen offset:%d sc1" % (acc(1, cb, tb), VL, SRD_W, SRD_W + 3, 60 + cb, tb * 1024)]
                          for tb in range(4) for cb in range(4)]
        tile(2, 0, False, False, True, 0, pollhook)
        tile(3, 0, False, False, False, 0)
        assert not st["pend"]
        stamp(); stamp.real()
        for tb in range(4): A("v_sub_f32 v%d, 1.0, v%d" % (C1 + tb, VG + tb))
        VO = T + 6
        A("v_lshlrev_b32 v%d, 11, v%d" % (VO, T + 4))
        A("v_bfe_u32 v%d, v1, 4, 1" % (T + 7))
        A("v_lshl_add_u32 v%d, v%d, 5, v%d" % (VO, T + 7, VO))
        A("v_lshrrev_b32 v%d, 5, v1" % (T + 7))
        A("v_lshl_add_u32 v%d, v%d, 4, v%d" % (VO, T + 7, VO))
        A("s_lshl_b32 s72, s%d, 8" % S_NT)
        A("s_lshl_b32 s3, s%d, 7" % S_WN)
        A("s_add_u32 s72, s72, s3")
        for tb in range(4):
            sl = tb & 1
            A("s_waitcnt vmcnt(%d)" % (12 - 4 * tb + 2 * tb))
            for cb in range(4):
                a0 = V_ACC + 4 * (cb * 4 + tb); a1 = a0 + 64
                for u in range(2):
                    A("v_pk_fma_f32 %s, %s, %s, %s op_sel:[0,%d,0] op_sel_hi:[1,%d,1]" % (vr(a0 + 2 * u, 2), vr(a0 + 2 * u, 2), vr(C1 + (tb & ~1), 2), vr(a1 + 2 * u, 2), sl, sl))
            for cp in range(2):
                d = V_FR + 8 * tb + 4 * cp
                for h in range(2):
                    a0 = V_ACC + 4 * ((2 * cp + h) * 4 + tb)
                    A("v_cvt_pk_bf16_f32 v%d, v%d, v%d" % (d + 2 * h, a0, a0 + 1))
                    A("v_cvt_pk_bf16_f32 v%d, v%d, v%d" % (d + 2 * h + 1, a0 + 2, a0 + 3))
            for cp in range(2):
                d = V_FR + 8 * tb + 4 * cp
                A("v_permlane16_swap_b32 v%d, v%d" % (d, d + 2))
                A("v_permlane16_swap_b32 v%d, v%d" % (d + 1, d + 3))
            for cp in range(2):
                d = V_FR + 8 * tb + 4 * cp
                A("buffer_store_dwordx4 %s, v%d, s[%d:%d], s72 offen offset:%d" % (vr(d, 4), VO, SRD_O, SRD_O + 3, cp * 64))
            A("s_add_u32 s72, s72, 32768")
        A.label("L_k2_out")
    return {"wsetup": wsetup, "wdma": wdma, "rest": rest, "main": main, "wotouch": wotouch, "ptrs": ptrs}

def gen_k1(A):
    name = "gated_mix__linear_kernel_hedgehog__glu_gated_glu__prompt_kernel"
    kernel_open(A, name)
    BK = 64
    XB = 0; QB = 32768; GB = QB + 64 * 192; UB = GB + 64 * 224 + 128
    STAGE = (UB + 64 * 224 + 255) // 256 * 256
    WPB = 151552
    SCR = 114688
    LDS = WPB + 2048
    S_I, S_J, S_W, S_CNT, S_XK, S_QK, S_GK, S_TK, S_TSTEP = 24, 25, 26, 27, 28, 29, 30, 31, 37
    S_M0 = 32
    SRD_X, SRD_Q, SRD_G, SRD_W, SRD_T, SRD_P, SRD_D = 8, 12, 16, 20, 68, 72, 48
    S_C = 38
    V_DMA, V_XRD, V_QRD, V_GRD, V_TCH = 2, 20, 24, 28, 30
    T = 32
    NVACC = 208; V_ACC = 48
    A_X = 0; A_WR = 32; RING = 8; A_ACC = 144
    NTB = 4; NCB = 20; D = 6
    BLK = [("q", 1, 0), ("q", 1, 1), ("q", 2, 0), ("q", 2, 1), ("q", 0, 0), ("q", 0, 1)] + [(t, b) for b in range(7) for t in "gu"]
    def accb(cb, tb):
        b = (cb * NTB + tb) * 4
        return ("v", V_ACC + b) if b < NVACC else ("a", A_ACC + b - NVACC)
    def acc(cb, tb):
        f, b = accb(cb, tb); return "%s[%d:%d]" % (f, b, b + 3)
    def xf(p, tb): return ar(A_X + 16 * p + 4 * tb, 4)
    def wf(n, half=None):
        b = A_WR + 4 * (n % RING)
        return ar(b, 4) if half is None else ar(b + 2 * half, 2)
    stamp = Stamper(A, 0)
    VM = Cnt(63)
    K2 = make_k2(A, stamp)

    A("s_load_dwordx4 s[4:7], s[0:1], 0")
    A("s_load_dwordx4 s[52:55], s[0:1], 40")
    A("s_load_dwordx4 s[56:59], s[0:1], 80")
    A("s_load_dwordx2 s[66:67], s[0:1], 16")
    A("s_load_dwordx4 s[40:43], s[0:1], 56")
    A("s_cmp_ge_u32 s2, 256")
    A("s_cbranch_scc1 L_k1_end")
    stamp.start()
    if O("ctouch", 1):
        A("s_getpc_b64 s[72:73]")
        A.label("L_pc")
        A("s_mov_b32 s74, L_code_end-L_pc")
        A("s_mov_b32 s75, 0x20000")
        A("s_and_b32 s73, s73, 0xffff")
        A("v_lshrrev_b32 v%d, 6, v0" % T)
        A("v_lshlrev_b32 v%d, 9, v%d" % (T, T))
        A("v_and_b32 v%d, 63, v0" % (T + 1))
        A("v_lshl_add_u32 v%d, v%d, 7, v%d" % (T, T + 1, T))
        A("s_lshr_b32 s3, s2, 3")
        A("s_lshl_b32 s3, s3, 11")
        A("v_cmp_gt_u32 vcc, 4, v%d" % (T + 1))
        A("v_mov_b32 v%d, 0x7fffffff" % (T + 2))
        A("v_cndmask_b32 v%d, v%d, v%d, vcc" % (T, T + 2, T))
        A("buffer_load_dword v%d, v%d, s[72:75], s3 offen" % (V_TCH + 1, T)); VM.issue()
    A("v_lshrrev_b32 v1, 6, v0")
    A("s_lshr_b32 s%d, s2, 3" % S_I)
    A("s_and_b32 s%d, s%d, 7" % (S_I, S_I))
    A("v_readfirstlane_b32 s%d, v1" % S_W)
    A("s_and_b32 s3, s2, 7")
    A("s_lshl_b32 s3, s3, 2")
    A("s_lshr_b32 s%d, s2, 6" % S_J)
    A("s_add_u32 s%d, s%d, s3" % (S_J, S_J))
    A("v_and_b32 v1, 63, v0")
    A("v_lshrrev_b32 v%d, 3, v1" % T)
    A("v_lshlrev_b32 v%d, 11, v%d" % (T, T))
    A("v_and_b32 v%d, 7, v1" % (T + 1))
    A("v_lshrrev_b32 v%d, 4, v1" % (T + 2))
    A("v_xor_b32 v%d, v%d, v%d" % (T + 1, T + 1, T + 2))
    A("v_lshl_add_u32 v%d, v%d, 4, v%d" % (T, T + 1, T))
    A("s_lshl_b32 s3, s%d, 17" % S_W)
    A("v_add_u32 v%d, s3, v%d" % (T, T))
    A("v_xor_b32 v%d, 64, v%d" % (T + 1, T))
    plan = []
    for n in range(8):
        A("v_add_u32 v%d, %d, v%d" % (V_DMA + n, n * 16384 - 1024 * (n & 3), T + (n & 1)))
        plan.append((V_DMA + n, SRD_X, S_XK, n // 4 if n % 4 == 0 else None, 1024 * (n & 3)))
    for q in range(3): plan.append((V_DMA + 8 + q, SRD_Q, S_QK, 2 if q == 0 else None, 1024 * q))
    for g in range(7): plan.append((V_DMA + 11 + g, SRD_G, S_GK, 3 + g // 4 if g % 4 == 0 else None, 1024 * (g & 3)))
    LD = len(plan)
    A("s_lshl_b32 s%d, s%d, 13" % (S_M0, S_W))
    A("s_add_u32 s%d, s%d, 4096" % (S_M0 + 1, S_M0))
    A("s_mul_i32 s%d, s%d, 3072" % (S_M0 + 2, S_W))
    A("s_add_u32 s%d, s%d, %d" % (S_M0 + 2, S_M0 + 2, QB))
    A("s_and_b32 s3, s%d, 1" % S_W)
    A("s_mul_i32 s3, s3, 7168")
    A("s_cmp_ge_u32 s%d, 2" % S_W)
    A("s_mov_b32 s60, %d" % GB)
    A("s_cselect_b32 s%d, %d, s60" % (S_M0 + 3, UB))
    A("s_add_u32 s%d, s%d, s3" % (S_M0 + 3, S_M0 + 3))
    A("s_add_u32 s%d, s%d, 4096" % (S_M0 + 4, S_M0 + 3))
    for s in (S_XK, S_QK, S_GK): A("s_mov_b32 s%d, 0" % s)
    def dma_list(stage):
        L = []
        for (v, sd, so, m0i, off) in plan:
            g = []
            if m0i is not None:
                g.append("s_mov_b32 m0, s%d" % (S_M0 + m0i) if stage == 0 else "s_add_u32 m0, s%d, %d" % (S_M0 + m0i, STAGE * stage))
            g.append("buffer_load_dwordx4 v%d, s[%d:%d], s%d offen offset:%d lds" % (v, sd, sd + 3, so, off))
            L.append(g)
        L[-1] += ["s_add_u32 s%d, s%d, %d" % (S_XK, S_XK, BK * 2),
                  "s_add_u32 s%d, s%d, %d" % (S_GK, S_GK, BK * 7168),
                  "s_add_u32 s%d, s%d, %d" % (S_QK, S_QK, BK * 6144)]
        return L
    def emit(groups):
        for g in groups:
            for s in g: A(s)
            VM.issue()
    def rowperm(dst, src, tmp):
        A("v_and_b32 v%d, 0xfffffff3, v%d" % (dst, src))
        A("v_bfe_u32 v%d, v%d, 2, 1" % (tmp, src))
        A("v_lshl_or_b32 v%d, v%d, 3, v%d" % (dst, tmp, dst))
        A("v_bfe_u32 v%d, v%d, 3, 1" % (tmp, src))
        A("v_lshl_or_b32 v%d, v%d, 2, v%d" % (dst, tmp, dst))
    NEARLY = O("nearly", 2); NLATE = O("nlate", 1)
    if TOUCH:
        A("s_lshr_b32 s60, s2, 6")
        A("s_and_b32 s61, s%d, 1" % S_W)
        A("s_lshl_b32 s3, s60, 6")
        A("v_add_u32 v%d, s3, v1" % (T + 4))
        A("v_lshlrev_b32 v%d, 11, v%d" % (T + 4, T + 4))
        A("s_lshl_b32 s3, s61, 7")
        A("v_add_u32 v%d, s3, v%d" % (T + 4, T + 4))
        A("s_lshl_b32 s62, s%d, 4" % S_I)
        A("s_lshl_b32 s3, s61, 3")
        A("s_add_u32 s62, s62, s3")
        A("s_and_b32 s63, s%d, 28" % S_J)
        A("v_mul_u32_u24 v%d, 10923, v1" % (T + 5))
        A("v_lshrrev_b32 v%d, 16, v%d" % (T + 5, T + 5))
        A("v_mul_u32_u24 v%d, 6, v%d" % (T + 6, T + 5))
        A("v_sub_u32 v%d, v1, v%d" % (T + 6, T + 6))
        A("v_add_u32 v%d, s62, v%d" % (T + 5, T + 5))
        A("v_mul_u32_u24 v%d, 6144, v%d" % (T + 5, T + 5))
        A("v_lshrrev_b32 v%d, 1, v%d" % (T + 7, T + 6))
        A("v_lshl_add_u32 v%d, v%d, 11, v%d" % (T + 5, T + 7, T + 5))
        A("v_and_b32 v%d, 1, v%d" % (T + 6, T + 6))
        A("v_lshl_add_u32 v%d, v%d, 7, v%d" % (T + 5, T + 6, T + 5))
        A("s_lshl_b32 s3, s63, 6")
        A("v_add_u32 v%d, s3, v%d" % (T + 5, T + 5))
        A("v_mov_b32 v%d, 0x7fffffff" % (T + 9))
        A("v_cmp_gt_u32 vcc, 48, v1")
        A("v_cndmask_b32 v%d, v%d, v%d, vcc" % (T + 5, T + 9, T + 5))
        A("v_mul_u32_u24 v%d, 9363, v1" % (T + 6))
        A("v_lshrrev_b32 v%d, 16, v%d" % (T + 6, T + 6))
        A("v_mul_u32_u24 v%d, 7, v%d" % (T + 7, T + 6))
        A("v_sub_u32 v%d, v1, v%d" % (T + 7, T + 7))
        A("v_add_u32 v%d, s62, v%d" % (T + 6, T + 6))
        A("v_mul_u32_u24 v%d, 7168, v%d" % (T + 6, T + 6))
        A("v_lshl_add_u32 v%d, v%d, 7, v%d" % (T + 6, T + 7, T + 6))
        A("s_mul_i32 s3, s63, 224")
        A("v_add_u32 v%d, s3, v%d" % (T + 6, T + 6))
        A("v_cmp_gt_u32 vcc, 56, v1")
        A("v_cndmask_b32 v%d, v%d, v%d, vcc" % (T + 6, T + 9, T + 6))
        A("s_and_b32 s3, s2, 63")
        A("s_lshl_b32 s3, s3, 1")
        A("s_add_u32 s3, s3, s61")
        A("s_lshl_b32 s3, s3, 13")
        A("v_lshlrev_b32 v%d, 7, v1" % (T + 7))
        A("v_add_u32 v%d, s3, v%d" % (T + 7, T + 7))
    A("s_waitcnt lgkmcnt(0)")
    A("s_lshl_b32 s64, s%d, 19" % S_I)
    mk_srd(A, SRD_X, 4, 5, 64, 2048 * 2048)
    if TOUCH:
        def sel(cond_sgpr, val, voff, lo, hi, size, step, start):
            A("s_cmp_eq_u32 s%d, %d" % (cond_sgpr, val))
            A("s_cselect_b64 vcc, -1, 0")
            A("s_cselect_b32 s%d, s%d, s%d" % (SRD_T, lo, SRD_T))
            A("s_cselect_b32 s%d, s%d, s%d" % (SRD_T + 1, hi, SRD_T + 1))
            A("s_cselect_b32 s%d, %d, s%d" % (SRD_T + 2, size, SRD_T + 2))
            A("s_cselect_b32 s%d, %d, s%d" % (S_TSTEP, step, S_TSTEP))
            A("s_cselect_b32 s%d, %d, s%d" % (S_TK, start, S_TK))
            A("v_cndmask_b32 v%d, v%d, v%d, vcc" % (V_TCH, V_TCH, voff))
        A("s_mov_b32 s%d, s6" % SRD_T); A("s_mov_b32 s%d, s7" % (SRD_T + 1))
        A("s_mov_b32 s%d, %d" % (SRD_T + 2, 1024 * 6144)); A("s_mov_b32 s%d, 0x20000" % (SRD_T + 3))
        A("s_mov_b32 s%d, %d" % (S_TSTEP, 128 * 6144))
        A("s_mov_b32 s%d, %d" % (S_TK, 0 if NEARLY else 128 * 6144))
        A("v_mov_b32 v%d, v%d" % (V_TCH, T + 5))
        sel(60, 1, T + 6, 52, 53, 1024 * 7168, 128 * 7168, 0 if NEARLY else 128 * 7168)
        sel(60, 2, T + 6, 54, 55, 1024 * 7168, 128 * 7168, 0 if NEARLY else 128 * 7168)
        sel(60, 3, T + 7, 40, 41, 3584 * 2048, 1 << 20, (1 << 32) - (NEARLY << 20) if NEARLY else 0)
        A("s_lshr_b32 s61, s%d, 1" % S_W)
        sel(61, 0, T + 4, SRD_X, SRD_X + 1, 256 * 2048, 256, 0 if NEARLY else 256)
        def touch():
            return ["buffer_load_dword v%d, v%d, s[%d:%d], s%d offen" % (V_TCH + 1, V_TCH, SRD_T, SRD_T + 3, S_TK),
                    "s_add_u32 s%d, s%d, s%d" % (S_TK, S_TK, S_TSTEP)]
        emit([touch() for _ in range(NEARLY)])
    D0 = dma_list(0)
    emit(D0[0:8])
    A("s_and_b32 s3, s%d, 1" % S_W)
    A("s_mul_i32 s3, s3, 448")
    A("s_and_b32 s65, s%d, 1" % S_J)
    A("s_lshl_b32 s65, s65, 1")
    for g in range(7):
        A("v_add_u32 v%d, s3, v1" % T)
        if g: A("v_add_u32 v%d, %d, v%d" % (T, 64 * g, T))
        A("v_mul_u32_u24 v%d, 4682, v%d" % (T + 1, T))
        A("v_lshrrev_b32 v%d, 16, v%d" % (T + 1, T + 1))
        A("v_mul_u32_u24 v%d, 14, v%d" % (T + 2, T + 1))
        A("v_sub_u32 v%d, v%d, v%d" % (T + 2, T, T + 2))
        A("v_add_u32 v%d, s65, v%d" % (T + 2, T + 2))
        A("v_subrev_u32 v%d, 14, v%d" % (T + 3, T + 2))
        A("v_min_u32 v%d, v%d, v%d" % (T + 2, T + 2, T + 3))
        rowperm(T + 4, T + 1, T + 3)
        A("v_mul_u32_u24 v%d, 7168, v%d" % (T + 1, T + 4))
        A("v_lshl_add_u32 v%d, v%d, 4, v%d" % (T + 1, T + 2, T + 1))
        A("v_subrev_u32 v%d, %d, v%d" % (V_DMA + 11 + g, 1024 * (g & 3), T + 1))
    A("s_cmp_ge_u32 s%d, 2" % S_W)
    A("s_cselect_b32 s60, s54, s52")
    A("s_cselect_b32 s61, s55, s53")
    A("s_mul_i32 s3, s%d, 224" % S_J)
    mk_srd(A, SRD_G, 60, 61, 3, 1024 * 7168)
    emit([g[:2] if len(g) > 2 and not g[0].startswith("buffer") else g[:1] if g[0].startswith("buffer") else g for g in D0[11:18]])
    A("s_mul_i32 s3, s%d, 192" % S_W)
    for q in range(3):
        A("v_add_u32 v%d, s3, v1" % T)
        if q: A("v_add_u32 v%d, %d, v%d" % (T, 64 * q, T))
        A("v_mul_u32_u24 v%d, 5462, v%d" % (T + 1, T))
        A("v_lshrrev_b32 v%d, 16, v%d" % (T + 1, T + 1))
        A("v_mul_u32_u24 v%d, 12, v%d" % (T + 2, T + 1))
        A("v_sub_u32 v%d, v%d, v%d" % (T + 2, T, T + 2))
        A("v_bfe_u32 v%d, v%d, 2, 1" % (T + 3, T + 1))
        A("v_lshlrev_b32 v%d, 1, v%d" % (T + 3, T + 3))
        A("v_xor_b32 v%d, v%d, v%d" % (T + 2, T + 2, T + 3))
        rowperm(T + 4, T + 1, T + 3)
        A("v_mul_u32_u24 v%d, 6144, v%d" % (T + 1, T + 4))
        A("v_lshrrev_b32 v%d, 2, v%d" % (T + 3, T + 2))
        A("v_lshlrev_b32 v%d, 11, v%d" % (T + 3, T + 3))
        A("v_and_b32 v%d, 3, v%d" % (T + 2, T + 2))
        A("v_lshlrev_b32 v%d, 4, v%d" % (T + 2, T + 2))
        A("v_add3_u32 v%d, v%d, v%d, v%d" % (T + 1, T + 1, T + 2, T + 3))
        A("v_subrev_u32 v%d, %d, v%d" % (V_DMA + 8 + q, 1024 * q, T + 1))
    A("s_lshl_b32 s3, s%d, 6" % S_J)
    mk_srd(A, SRD_Q, 6, 7, 3, 1024 * 6144)
    emit(D0[8:11])
    for s in D0[17][1:]: A(s)
    mk_srd(A, SRD_W, 58, 59, None, WS_SIZE)
    S_F1 = 44
    A("s_lshl_b32 s%d, s%d, 7" % (S_F1, S_J))
    A("s_add_u32 s%d, s%d, %d" % (S_F1, S_F1, WS_FLG1))
    A("s_lshl_b32 s3, s%d, 2" % S_I)
    A("s_add_u32 s3, s3, s%d" % S_W)
    A("s_lshl_b32 s45, s3, 2")
    A("s_lshr_b32 s3, s3, 1")
    A("s_lshl_b32 s3, s3, 5")
    A("s_add_u32 s3, s3, s%d" % S_J)
    A("s_lshl_b32 s3, s3, 1")
    A("s_and_b32 s60, s%d, 1" % S_W)
    A("s_add_u32 s3, s3, s60")
    A("s_lshl_b32 s3, s3, 2")
    A("s_add_u32 s77, s3, %d" % WS_FLGH)
    k2ids(A, 61, 62, 63, 64)
    A("s_add_u32 s3, s%d, s45" % S_F1)
    A("v_mov_b32 v%d, s3" % T)
    A("v_writelane_b32 v%d, s77, 1" % T)
    A("s_add_u32 s3, s77, %d" % (WS_FLGO - WS_FLGH))
    A("v_writelane_b32 v%d, s3, 2" % T)
    A("s_cmp_eq_u32 s%d, 0" % 63)
    A("s_cselect_b32 s3, s%d, s77" % 64)
    A("v_writelane_b32 v%d, s3, 3" % T)
    A("v_mov_b32 v%d, 0" % (T + 1))
    A("buffer_store_dword v%d, v%d, s[%d:%d], 0 offen sc1" % (T + 1, T, SRD_W, SRD_W + 3)); VM.issue()
    mk_srd(A, SRD_P, 42, 43, None, 2048)
    A("v_and_b32 v%d, 31, v0" % T)
    A("v_lshlrev_b32 v%d, 6, v%d" % (T, T))
    A("v_lshrrev_b32 v%d, 5, v0" % (T + 1))
    A("s_lshl_b32 s3, s%d, 3" % S_J)
    A("v_add_u32 v%d, s3, v%d" % (T + 1, T + 1))
    A("v_lshl_add_u32 v%d, v%d, 11, v%d" % (T + 2, T + 1, T))
    GX = V_ACC; GW = V_ACC + 16
    for q in range(4):
        A("buffer_load_dwordx4 %s, v%d, s[%d:%d], 0 offen offset:%d" % (vr(GX + 4 * q, 4), T + 2, SRD_X, SRD_X + 3, 16 * q))
        A("buffer_load_dwordx4 %s, v%d, s[%d:%d], 0 offen offset:%d" % (vr(GW + 4 * q, 4), T, SRD_P, SRD_P + 3, 16 * q))
        VM.issue("g", 2)
    EARLY = O("early", 0)
    D1 = dma_list(1)
    emit(D1[:EARLY])
    A("s_lshl_b32 s3, s%d, 11" % S_J)
    mk_srd(A, SRD_P, 66, 67, 3, 65536)
    A("s_and_b32 s3, s%d, 1" % S_W)
    A("s_lshl_b32 s47, s3, 10")
    A("v_lshl_add_u32 v%d, v1, 4, s47" % (T + 3))
    late = D1[EARLY:] + [["s_add_u32 m0, s47, %d" % WPB, "buffer_load_dwordx4 v%d, s[%d:%d], 0 offen lds" % (T + 3, SRD_P, SRD_P + 3)]]
    mk_srd(A, SRD_D, 56, 57, None, 256)
    if TOUCH: late += [touch() for _ in range(NLATE)]
    A("s_load_dwordx2 s[4:5], s[0:1], 24")
    A("v_and_b32 v%d, 15, v1" % (T + 4))
    A("v_lshlrev_b32 v%d, 7, v%d" % (T + 4, T + 4))
    A("s_lshl_b32 s3, s%d, 13" % S_W)
    A("v_add_u32 v%d, s3, v%d" % (T + 4, T + 4))
    A("v_bfe_u32 v%d, v1, 1, 3" % (T + 5))
    A("v_lshrrev_b32 v%d, 4, v1" % (T + 6))
    for ks in range(2):
        A("v_or_b32 v%d, %d, v%d" % (T + 7, ks * 4, T + 6))
        A("v_xor_b32 v%d, v%d, v%d" % (T + 7, T + 7, T + 5))
        A("v_lshl_add_u32 v%d, v%d, 4, v%d" % (V_XRD + ks, T + 7, T + 4))
        A("v_add_u32 v%d, %d, v%d" % (V_XRD + 2 + ks, STAGE, V_XRD + ks))
    A("v_bfe_u32 v%d, v1, 2, 2" % (T + 4))
    A("v_and_b32 v%d, 3, v1" % (T + 5))
    A("v_bfe_u32 v%d, v1, 4, 1" % (T + 7))
    A("v_lshrrev_b32 v%d, 5, v1" % (T + 8))
    A("v_lshl_add_u32 v%d, v%d, 4, v%d" % (T + 4, T + 8, T + 4))
    A("v_lshl_add_u32 v%d, v%d, 2, v%d" % (T + 4, T + 7, T + 4))
    A("v_lshlrev_b32 v%d, 3, v%d" % (T + 5, T + 5))
    A("v_mul_u32_u24 v%d, 192, v%d" % (T + 9, T + 4))
    A("v_add_u32 v%d, v%d, v%d" % (T + 9, T + 9, T + 5))
    for h in range(2):
        A("v_xor_b32 v%d, %d, v%d" % (T + 8, h, T + 7))
        A("v_lshl_add_u32 v%d, v%d, 5, v%d" % (T + 8, T + 8, T + 9))
        for st in range(2): A("v_add_u32 v%d, %d, v%d" % (V_QRD + st * 2 + h, QB + STAGE * st, T + 8))
    A("v_mul_u32_u24 v%d, 224, v%d" % (T + 9, T + 4))
    A("v_add_u32 v%d, v%d, v%d" % (T + 8, T + 9, T + 5))
    for st in range(2): A("v_add_u32 v%d, %d, v%d" % (V_GRD + st, GB + STAGE * st, T + 8))
    A("s_mov_b32 s%d, 0x%x" % (S_C, LOG2E)); A("s_mov_b32 s%d, 0x%x" % (S_C + 1, LOG2E))
    stamp(False)
    A("s_waitcnt vmcnt(%d) lgkmcnt(0)" % VM.wait_for(["g"]))
    A("s_barrier")
    def xread(stage, ks, p, tb):
        return "ds_read_b128 %s, v%d offset:%d" % (xf(p, tb), V_XRD + 2 * stage + ks, tb * 2048)
    def wread(stage, ks, cb, n, t):
        b = BLK[cb]
        if b[0] == "q":
            return "ds_read_b64_tr_b16 %s, v%d offset:%d" % (wf(n, t), V_QRD + stage * 2 + b[2], (ks * 32 + t * 8) * 192 + b[1] * 64)
        return "ds_read_b64_tr_b16 %s, v%d offset:%d" % (wf(n, t), V_GRD + stage, (ks * 32 + t * 8) * 224 + b[1] * 32 + (UB - GB if b[0] == "u" else 0))
    Q = Cnt(15)
    for tb in range(NTB):
        A(xread(0, 0, 0, tb)); Q.issue(("x", 0, tb))
    for n in range(D):
        for t in range(2):
            A(wread(0, 0, n, n, t)); Q.issue(("w", n))
    A("v_mov_b32 v%d, 0" % (T + 4))
    A("v_mov_b32 v%d, 0" % (T + 5))
    for q in range(8):
        A("v_dot2c_f32_bf16 v%d, v%d, v%d" % (T + 4, GX + 2 * q, GW + 2 * q))
        A("v_dot2c_f32_bf16 v%d, v%d, v%d" % (T + 5, GX + 2 * q + 1, GW + 2 * q + 1))
    A("s_nop 2")
    A("v_add_f32 v%d, v%d, v%d" % (T + 4, T + 4, T + 5))
    for sh in (8, 4, 2, 1):
        A("v_add_f32_dpp v%d, v%d, v%d row_ror:%d row_mask:0xf bank_mask:0xf" % (T + 4, T + 4, T + 4, sh))
    A("v_mov_b32 v%d, v%d" % (T + 5, T + 4))
    A("v_permlane16_swap_b32 v%d, v%d" % (T + 4, T + 5))
    A("v_add_f32 v%d, v%d, v%d" % (T + 4, T + 4, T + 5))
    A("v_mul_f32 v%d, s%d, v%d" % (T + 4, S_C, T + 4))
    A("v_exp_f32 v%d, -v%d" % (T + 4, T + 4))
    A("v_add_f32 v%d, 1.0, v%d" % (T + 4, T + 4))
    A("v_rcp_f32 v%d, v%d" % (T + 4, T + 4))
    A("s_lshl_b32 s3, s%d, 8" % S_I)
    A("v_add_u32 v%d, s3, v%d" % (T + 1, T + 1))
    A("v_lshlrev_b32 v%d, 2, v%d" % (T + 1, T + 1))
    A("v_add_u32 v%d, %d, v%d" % (T + 1, WS_G, T + 1))
    A("buffer_store_dword v%d, v%d, s[%d:%d], 0 offen sc1" % (T + 4, T + 1, SRD_W, SRD_W + 3)); VM.issue()
    A("s_lshl_b32 s3, s%d, 3" % S_J)
    A("s_add_u32 s3, s3, s%d" % S_I)
    A("s_cmp_eq_u32 s%d, 0" % S_W)
    A("s_cselect_b32 s3, s3, 0x1000")
    A("v_mov_b32 v%d, s3" % (T + 5))
    A("v_mov_b32 v%d, 1" % (T + 6))
    bytest = "buffer_store_byte v%d, v%d, s[%d:%d], 0 offen sc1" % (T + 6, T + 5, SRD_D, SRD_D + 3)
    NPRO = 1 + (NLATE if TOUCH else 0)
    if STAMP: stamp(); stamp.real()

    st = {"pend": late}
    PB = 40 - D
    def tile(stage, first, dma_next, has_next, vm_extra, do_touch, extra=None, after=None):
        if extra: st["pend"] = st["pend"] + extra
        for n in range(40):
            ks, cb = divmod(n, 20)
            pre = []
            if n == PB and has_next:
                assert not st["pend"]
                pre += ["s_waitcnt lgkmcnt(0) vmcnt(%d)" % vm_extra, "s_barrier"]
                if first: pre.append(bytest)
                if dma_next: st["pend"] = dma_list(stage)
                if do_touch: st["pend"].append(touch())
                if after: st["pend"] = st["pend"] + after
            need_tags = [("w", n)] + ([("x", ks, tb) for tb in range(NTB)] if cb == 0 else [])
            if not (n == PB and has_next):
                pre.append("s_waitcnt lgkmcnt(%d)" % Q.wait_for(need_tags))
            rds = []
            def addw(m):
                if m < 40:
                    k2, c2 = divmod(m, 20)
                    for t in range(2): rds.append((wread(stage, k2, c2, m, t), ("w", m)))
                elif has_next:
                    for t in range(2): rds.append((wread(stage ^ 1, 0, m - 40, m, t), ("w", m - 40)))
            if n == PB - 2: addw(n + D); addw(n + D + 1)
            elif n == PB - 1: pass
            else: addw(n + D)
            if ks == 0 and cb in (4, 7, 10, 13):
                tb = (cb - 4) // 3
                rds.append((xread(stage, 1, 1, tb), ("x", 1, tb)))
            if has_next and n >= PB and n < PB + 4:
                tb = n - PB
                rds.append((xread(stage ^ 1, 0, 0, tb), ("x", 0, tb)))
            for s in pre: A(s)
            k = 0
            for tb in range(NTB):
                a, b = wf(n), xf(ks, tb)
                if BLK[cb][0] == "q" and BLK[cb][1] == 2: a, b = b, a
                c = "0" if (first and ks == 0) else acc(cb, tb)
                A("v_mfma_f32_16x16x32_bf16 %s, %s, %s, %s" % (acc(cb, tb), a, b, c))
                if k < len(rds):
                    A(rds[k][0]); Q.issue(rds[k][1]); k += 1
                if tb == 3:
                    while k < len(rds):
                        A(rds[k][0]); Q.issue(rds[k][1]); k += 1
                    if st["pend"]:
                        for s in st["pend"].pop(0): A(s)
    assert 40 % RING == 0 and D + 2 <= RING
    nt = 1 if TOUCH else 0
    tile(0, True, True, True, NPRO, False)
    A("s_mov_b32 s%d, 0" % S_CNT)
    A.label("L_k1_loop")
    if STAMP == 2:
        A("s_memtime s[100:101]"); A("s_waitcnt lgkmcnt(0)"); A("s_sub_u32 s100, s100, s80")
        A("s_mov_b32 m0, s%d" % S_CNT); A("s_nop 0"); A("v_writelane_b32 v47, s100, m0")
        A("s_add_u32 m0, s%d, 0" % (S_M0 + 1))
    tile(1, False, True, True, 0, TOUCH)
    tile(0, False, True, True, nt, False)
    A("s_add_u32 s%d, s%d, 1" % (S_CNT, S_CNT))
    A("s_cmp_lt_u32 s%d, 6" % S_CNT)
    A("s_cbranch_scc1 L_k1_loop")
    if STAMP == 2:
        for q in range(6):
            r = 82 + len(stamp.regs); stamp.regs.append(r)
            A("v_readlane_b32 s%d, v47, %d" % (r, q)); A("s_nop 1"); A("s_add_u32 s%d, s%d, s80" % (r, r))
        stamp()
        stamp.off = True
    tile(1, False, True, True, 2, False, [touch()] + K2["wotouch"]())
    tile(0, False, False, True, 0, False, K2["wsetup"](), K2["wdma"]())
    tile(1, False, False, False, 0, False)
    stamp(); stamp.real()

    K2["ptrs"]()
    E = 2
    def pk(op, d, a, b, c=None, mods=""):
        if c is None: A("%s %s, %s, %s %s" % (op, d, a, b, mods))
        else: A("%s %s, %s, %s, %s %s" % (op, d, a, b, c, mods))
    def rsag2(op, qa, opb, qb):
        seqs = []
        for (o, q) in ((op, qa), (opb, qb)):
            seqs.append([
                "v_permlane32_swap_b32 v%d, v%d" % (q[0], q[1]),
                "v_permlane32_swap_b32 v%d, v%d" % (q[2], q[3]),
                "%s v%d, v%d, v%d" % (o, q[0], q[0], q[1]),
                "%s v%d, v%d, v%d" % (o, q[2], q[2], q[3]),
                "v_permlane16_swap_b32 v%d, v%d" % (q[0], q[2]),
                "%s v%d, v%d, v%d" % (o, q[0], q[0], q[2]),
                "v_mov_b32 v%d, v%d" % (q[2], q[0]),
                "v_permlane16_swap_b32 v%d, v%d" % (q[0], q[2]),
                "v_mov_b32 v%d, v%d" % (q[1], q[0]),
                "v_mov_b32 v%d, v%d" % (q[3], q[2]),
                "v_permlane32_swap_b32 v%d, v%d" % (q[0], q[1]),
                "v_permlane32_swap_b32 v%d, v%d" % (q[2], q[3])])
        for x, y in zip(*seqs):
            A(x); A(y)
    MX = E + 8; MN = E + 12; PB16 = E + 16; WP = 240
    def feature(cb0):
        for tb in range(NTB):
            for h in range(2):
                f, b = accb(cb0 + h, tb); assert f == "v"
                A("v_cvt_pk_bf16_f32 v%d, v%d, v%d" % (PB16 + 4 * tb + 2 * h, b, b + 1))
                A("v_cvt_pk_bf16_f32 v%d, v%d, v%d" % (PB16 + 4 * tb + 2 * h + 1, b + 2, b + 3))
        for tb in range(NTB):
            for fb in range(2):
                A("v_mfma_f32_16x16x32_bf16 %s, %s, %s, 0" % (acc(cb0 + fb, tb), vr(WP + 4 * fb, 4), vr(PB16 + 4 * tb, 4)))
    def feature2(cb0):
        for tb in range(NTB):
            p0 = accb(cb0, tb)[1]; p1 = accb(cb0 + 1, tb)[1]
            for step in range(4):
                for (op3, op2, d) in (("v_max3_f32", "v_max_f32", MX + tb), ("v_min3_f32", "v_min_f32", MN + tb)):
                    if step == 0: A("%s v%d, v%d, v%d, v%d" % (op3, d, p0, p0 + 1, p0 + 2))
                    if step == 1: A("%s v%d, v%d, v%d, v%d" % (op3, d, d, p0 + 3, p1))
                    if step == 2: A("%s v%d, v%d, v%d, v%d" % (op3, d, d, p1 + 1, p1 + 2))
                    if step == 3: A("%s v%d, v%d, v%d" % (op2, d, d, p1 + 3))
        rsag2("v_max_f32", [MX + i for i in range(4)], "v_min_f32", [MN + i for i in range(4)])
        for b in (MX, MX + 2, MN, MN + 2): pk("v_pk_mul_f32", vr(b, 2), vr(b, 2), sr(S_C, 2))
    def exps(cb0, tb, EM):
        for h in range(2):
            p = accb(cb0 + h, tb)[1]
            for u in range(2):
                sel_n = (MN + tb) & 1; sel_x = (MX + tb) & 1
                pk("v_pk_fma_f32", vr(EM + 4 * h + 2 * u, 2), vr(p + 2 * u, 2), sr(S_C, 2), vr((MN + tb) & ~1, 2),
                   "op_sel:[0,0,%d] op_sel_hi:[1,1,%d] neg_lo:[1,0,0] neg_hi:[1,0,0]" % (sel_n, sel_n))
                pk("v_pk_fma_f32", vr(p + 2 * u, 2), vr(p + 2 * u, 2), sr(S_C, 2), vr((MX + tb) & ~1, 2),
                   "op_sel:[0,0,%d] op_sel_hi:[1,1,%d] neg_lo:[0,0,1] neg_hi:[0,0,1]" % (sel_x, sel_x))
        for h in range(2):
            p = accb(cb0 + h, tb)[1]
            for r in range(4):
                A("v_exp_f32 v%d, v%d" % (p + r, p + r))
                A("v_exp_f32 v%d, v%d" % (EM + 4 * h + r, EM + 4 * h + r))
    assert MX % 2 == 0 and MN % 2 == 0
    VH = T + 14
    VS = T + 15
    A("v_and_b32 v%d, 15, v1" % VH)
    A("v_lshlrev_b32 v%d, 4, v%d" % (VH, VH))
    A("v_lshrrev_b32 v%d, 5, v1" % (T + 13))
    A("v_lshl_add_u32 v%d, v%d, 8, v%d" % (VH, T + 13, VH))
    A("v_bfe_u32 v%d, v1, 4, 1" % (T + 13))
    A("v_mul_u32_u24 v%d, %d, v%d" % (VS, MBS, T + 13))
    A("v_add_u32 v%d, v%d, v%d" % (VS, VS, VH))
    A("v_lshl_add_u32 v%d, v%d, 9, v%d" % (VH, T + 13, VH))
    A("s_lshl_b32 s3, s%d, 4" % S_I)
    A("s_lshl_b32 s62, s%d, 2" % S_W)
    A("s_add_u32 s62, s62, s3")
    A("s_mul_i32 s62, s62, %d" % MBS)
    A("s_mul_i32 s3, s%d, 7" % S_J)
    A("s_add_u32 s3, s3, 1")
    A("s_lshr_b32 s3, s3, 1")
    A("s_lshl_b32 s3, s3, 10")
    A("s_add_u32 s63, s62, s3")
    for tb in range(1, 4): A("s_add_u32 s%d, s63, %d" % (63 + tb, tb * MBS))
    A("s_add_u32 s67, s63, 3072")
    A("s_sub_u32 s3, s63, 512")
    A("s_bitcmp1_b32 s%d, 0" % S_J)
    A("s_cselect_b32 s67, s3, s67")
    A("s_add_u32 s76, s67, %d" % (2 * MBS))
    FREEV = [accb(6, 0)[1] + 4 * i for i in range(16)]
    def glu(fb, fi):
        gs, us = [], []
        for tb in range(4):
            out = []
            for cb in (6 + 2 * fb, 7 + 2 * fb):
                f, b = accb(cb, tb)
                if f == "a":
                    d = FREEV[fi]; fi += 1
                    for r in range(4): A("v_accvgpr_read_b32 v%d, a%d" % (d + r, b + r))
                    b = d
                out.append(b)
            gs.append(out[0]); us.append(out[1])
        for tb in range(4):
            for u in range(2): pk("v_pk_mul_f32", vr(gs[tb] + 2 * u, 2), vr(gs[tb] + 2 * u, 2), sr(S_C, 2))
        for tb in range(4):
            for r in range(4): A("v_exp_f32 v%d, -v%d" % (gs[tb] + r, gs[tb] + r))
        for tb in range(4):
            for u in range(2): pk("v_pk_add_f32", vr(gs[tb] + 2 * u, 2), vr(gs[tb] + 2 * u, 2), "1.0", None, "op_sel_hi:[1,0]")
        for tb in range(4):
            for r in range(4): A("v_rcp_f32 v%d, v%d" % (gs[tb] + r, gs[tb] + r))
        for tb in range(4):
            for u in range(2): pk("v_pk_mul_f32", vr(gs[tb] + 2 * u, 2), vr(gs[tb] + 2 * u, 2), vr(us[tb] + 2 * u, 2))
        return gs, us
    def packswap(dst, a, b):
        for (d, x) in ((dst, a), (dst + 2, b)):
            A("v_cvt_pk_bf16_f32 v%d, v%d, v%d" % (d, x, x + 1))
            A("v_cvt_pk_bf16_f32 v%d, v%d, v%d" % (d + 1, x + 2, x + 3))
    def doswap(d):
        A("v_permlane16_swap_b32 v%d, v%d" % (d, d + 2))
        A("v_permlane16_swap_b32 v%d, v%d" % (d + 1, d + 3))
    def glu_pair(p, D4):
        g0, u0 = glu(2 * p, 0)
        g1, u1 = glu(2 * p + 1, 8)
        for tb in range(4): packswap(D4[tb], g0[tb], g1[tb])
        for tb in range(4): doswap(D4[tb])
        return ["buffer_store_dwordx4 %s, v%d, s[%d:%d], s%d offen offset:%d%s" % (vr(D4[tb], 4), VH, SRD_W, SRD_W + 3, 63 + tb, p * 1024, SC) for tb in range(4)]
    def spread(fn, stores, every):
        start = len(A.lines)
        r = fn()
        body = A.lines[start:]; del A.lines[start:]
        k = 0
        for n, ln in enumerate(body):
            if n % every == 0 and k < len(stores):
                A(stores[k]); k += 1
            A.lines.append(ln)
        for x in stores[k:]: A(x)
        return r
    PKA = [PB16 + 4 * i for i in range(4)]
    PKB = [accb(10, 0)[1] + 4 * i for i in range(4)]
    st0 = glu_pair(0, PKA)
    PK1 = [accb(11, 0)[1] + 4 * i for i in range(4)]
    st1 = spread(lambda: glu_pair(1, PK1), st0, 30)
    st2 = spread(lambda: glu_pair(2, PKA), st1, 40)
    def last():
        g6, u6 = glu(6, 0)
        for tp in range(2): packswap(PKB[tp], g6[2 * tp], g6[2 * tp + 1])
        for tp in range(2): doswap(PKB[tp])
    spread(last, st2, 25)
    for tp in range(2):
        A("buffer_store_dwordx4 %s, v%d, s[%d:%d], s%d offen%s" % (vr(PKB[tp], 4), VS, SRD_W, SRD_W + 3, 67 if tp == 0 else 76, SC))
    stamp()
    WP = 240
    A("v_bfe_u32 v%d, v1, 2, 2" % (T + 10))
    A("v_lshrrev_b32 v%d, 4, v1" % (T + 11))
    A("v_lshl_add_u32 v%d, v%d, 2, v%d" % (T + 10, T + 11, T + 10))
    A("v_lshlrev_b32 v%d, 6, v%d" % (T + 10, T + 10))
    A("v_and_b32 v%d, 3, v1" % (T + 11))
    A("v_lshl_add_u32 v%d, v%d, 3, v%d" % (T + 10, T + 11, T + 10))
    A("v_add_u32 v%d, %d, v%d" % (T + 10, WPB, T + 10))
    for fb in range(2):
        for t in range(2):
            A("ds_read_b64_tr_b16 %s, v%d offset:%d" % (vr(WP + 4 * fb + 2 * t, 2), T + 10, fb * 32 + t * 1024))
    def setflag(vaddr, vone, saddr, soff):
        A("v_mov_b32 v%d, s%d" % (vaddr, saddr))
        A("v_mov_b32 v%d, 1" % vone)
        A("s_mov_b64 exec, 1")
        A("buffer_store_dword v%d, v%d, s[%d:%d], %s offen sc1" % (vone, vaddr, SRD_W, SRD_W + 3, soff))
        A("s_mov_b64 exec, -1")
    HPOS = O("hpos", 1)
    def hflag():
        A("s_waitcnt vmcnt(0)")
        setflag(22, 23, 77, "0") if 0 else setflag(250, 251, 77, "0")
    A("s_waitcnt lgkmcnt(0)")
    A("s_barrier")
    feature(0)
    SP = T + 2; SM = T + 6
    VPH = T + 10
    VB = accb(2, 0)[1]
    assert accb(3, 0)[1] == VB + 16
    for db in range(2):
        for tb in range(4):
            s = VB + db * 16 + tb * 4
            d = VB + db * 8 + tb * 2
            A("v_cvt_pk_bf16_f32 v%d, v%d, v%d" % (d, s, s + 1))
            A("v_cvt_pk_bf16_f32 v%d, v%d, v%d" % (d + 1, s + 2, s + 3))
    feature2(0)
    A("v_and_b32 v%d, 15, v1" % VPH)
    A("v_mul_u32_u24 v%d, 136, v%d" % (VPH, VPH))
    A("v_lshrrev_b32 v%d, 4, v1" % (T + 11))
    A("v_lshl_add_u32 v%d, v%d, 3, v%d" % (VPH, T + 11, VPH))
    A("s_mul_i32 s61, s%d, 9216" % S_W)
    A("s_add_u32 s61, s61, %d" % SCR)
    A("v_add_u32 v%d, s61, v%d" % (VPH, VPH))
    EMR = [PB16, PB16 + 8, VB + 16, VB + 24]
    for tb in range(4):
        exps(0, tb, EMR[tb])
    if HPOS == 0: hflag()
    t0 = FREEV[0]
    for tb in range(4):
        p0 = accb(0, tb)[1]; p1 = accb(1, tb)[1]; e = EMR[tb]
        pk("v_pk_add_f32", vr(t0, 2), vr(p0, 2), vr(p0 + 2, 2))
        pk("v_pk_add_f32", vr(t0 + 2, 2), vr(e, 2), vr(e + 2, 2))
        pk("v_pk_add_f32", vr(t0, 2), vr(t0, 2), vr(p1, 2))
        pk("v_pk_add_f32", vr(t0 + 2, 2), vr(t0 + 2, 2), vr(e + 4, 2))
        pk("v_pk_add_f32", vr(t0, 2), vr(t0, 2), vr(p1 + 2, 2))
        pk("v_pk_add_f32", vr(t0 + 2, 2), vr(t0 + 2, 2), vr(e + 6, 2))
        A("v_add_f32 v%d, v%d, v%d" % (SP + tb, t0, t0 + 1))
        A("v_add_f32 v%d, v%d, v%d" % (SM + tb, t0 + 2, t0 + 3))
    rsag2("v_add_f32", [SP + i for i in range(4)], "v_add_f32", [SM + i for i in range(4)])
    for i in range(8): A("v_rcp_f32 v%d, v%d" % (SP + i, SP + i))
    assert SP % 2 == 0 and SM % 2 == 0
    VPR = T + 11
    A("v_bfe_u32 v%d, v1, 2, 2" % VPR)
    A("v_lshrrev_b32 v%d, 4, v1" % (T + 12))
    A("v_lshl_add_u32 v%d, v%d, 2, v%d" % (VPR, T + 12, VPR))
    A("v_mul_u32_u24 v%d, 136, v%d" % (VPR, VPR))
    A("v_and_b32 v%d, 3, v1" % (T + 12))
    A("v_lshl_add_u32 v%d, v%d, 3, v%d" % (VPR, T + 12, VPR))
    A("v_add_u32 v%d, s61, v%d" % (VPR, VPR))
    for tb in range(4):
        srcs = [(accb(0, tb)[1], SP), (accb(1, tb)[1], SP), (EMR[tb], SM), (EMR[tb] + 4, SM)]
        for q, (p, sc) in enumerate(srcs):
            sl = (sc + tb) & 1
            for u in range(2):
                pk("v_pk_mul_f32", vr(p + 2 * u, 2), vr(p + 2 * u, 2), vr((sc + tb) & ~1, 2), None, "op_sel:[0,%d] op_sel_hi:[1,%d]" % (sl, sl))
        for q, (p, sc) in enumerate(srcs):
            A("v_cvt_pk_bf16_f32 v%d, v%d, v%d" % (p, p, p + 1))
            A("v_cvt_pk_bf16_f32 v%d, v%d, v%d" % (p + 1, p + 2, p + 3))
        for q, (p, sc) in enumerate(srcs):
            A("ds_write_b64 v%d, %s offset:%d" % (VPH, vr(p, 2), tb * 16 * 136 + q * 32))
    if HPOS == 1: hflag()
    stamp()
    A("s_waitcnt lgkmcnt(0)")
    for fblk in range(4):
        for ks in range(2):
            for t in range(2):
                A("ds_read_b64_tr_b16 %s, v%d offset:%d" % (ar(8 * fblk + 4 * ks + 2 * t, 2), VPR, (32 * ks + 16 * t) * 136 + fblk * 32))
    A("v_mov_b32 v%d, 0x3f803f80" % (T + 13))
    for fblk in range(4):
        A("v_cmp_eq_u32 vcc, %d, v%d" % (fblk, T + 12))
        for r in range(4):
            A("v_cndmask_b32 v%d, 0, v%d, vcc" % (PB16 + 4 * fblk + r, T + 13))
    KV = accb(0, 0)[1]
    ZB = VB + 16
    for fblk in range(4):
        A("s_waitcnt lgkmcnt(%d)" % (12 - 4 * fblk))
        for ks in range(2):
            for db in range(2):
                d = vr(KV + 8 * fblk + 4 * db, 4)
                A("v_mfma_f32_16x16x32_bf16 %s, %s, %s, %s" % (d, ar(8 * fblk + 4 * ks, 4), vr(VB + db * 8 + ks * 4, 4), "0" if ks == 0 else d))
            A("v_mfma_f32_16x16x32_bf16 %s, %s, %s, %s" % (vr(ZB, 4), ar(8 * fblk + 4 * ks, 4), vr(PB16 + 4 * fblk, 4), "0" if (ks == 0 and fblk == 0) else vr(ZB, 4)))
    VRD = T + 12
    A("v_lshl_add_u32 v%d, v1, 4, s61" % VRD)
    for b in range(8):
        A("ds_write_b128 v%d, %s offset:%d" % (VRD, vr(KV + 4 * b, 4), b * 1024))
    A("ds_write_b128 v%d, %s offset:%d" % (VRD, vr(ZB, 4), 8 * 1024))
    feature(4)
    def setflag_unused(vaddr, vone, saddr, soff):
        A("v_mov_b32 v%d, s%d" % (vaddr, saddr))
        A("v_mov_b32 v%d, 1" % vone)
        A("s_mov_b64 exec, 1")
        A("buffer_store_dword v%d, v%d, s[%d:%d], %s offen sc1" % (vone, vaddr, SRD_W, SRD_W + 3, soff))
        A("s_mov_b64 exec, -1")
    if HPOS == 2: hflag()
    A("s_lshl_b32 s3, s%d, 11" % S_W)
    A("s_add_u32 s3, s3, %d" % SCR)
    A("v_lshl_add_u32 v%d, v1, 4, s3" % VRD)
    A("v_lshlrev_b32 v%d, 4, v1" % (T + 13))
    A("v_add_u32 v%d, %d, v%d" % (T + 15, SCR, T + 13))
    A("s_waitcnt lgkmcnt(0)")
    A("s_barrier")
    for w in range(4):
        A("ds_read_b128 %s, v%d offset:%d" % (vr(KV + 8 * w, 4), VRD, w * 9216))
        A("ds_read_b128 %s, v%d offset:%d" % (vr(KV + 8 * w + 4, 4), VRD, w * 9216 + 1024))
        A("ds_read_b128 %s, v%d offset:%d" % (vr(VB + 4 * w, 4), T + 15, w * 9216 + 8192))
    VZ = T + 10
    A("v_lshrrev_b32 v%d, 4, v1" % VZ)
    A("v_and_b32 v%d, 3, v1" % (T + 11))
    A("v_lshl_add_u32 v%d, v%d, 2, v%d" % (VZ, VZ, T + 11))
    A("v_lshlrev_b32 v%d, 4, v%d" % (VZ, VZ))
    S_KVB = 60
    A("s_lshl_b32 s3, s%d, 3" % S_J)
    A("s_mul_i32 s%d, s3, 9216" % S_KVB)
    A("s_add_u32 s%d, s%d, %d" % (S_KVB, S_KVB, WS_KVP))
    A("s_mul_i32 s3, s%d, 9216" % S_I)
    A("s_add_u32 s61, s%d, s3" % S_KVB)
    A("s_lshl_b32 s3, s%d, 11" % S_W)
    A("v_add_u32 v%d, s3, v%d" % (VRD, T + 13))
    A("s_waitcnt lgkmcnt(0)")
    for w in range(1, 4):
        for u in range(4): pk("v_pk_add_f32", vr(KV + 2 * u, 2), vr(KV + 2 * u, 2), vr(KV + 8 * w + 2 * u, 2))
        for u in range(2): pk("v_pk_add_f32", vr(VB + 2 * u, 2), vr(VB + 2 * u, 2), vr(VB + 4 * w + 2 * u, 2))
    A("buffer_store_dwordx4 %s, v%d, s[%d:%d], s61 offen sc1" % (vr(KV, 4), VRD, SRD_W, SRD_W + 3))
    A("buffer_store_dwordx4 %s, v%d, s[%d:%d], s61 offen offset:1024 sc1" % (vr(KV + 4, 4), VRD, SRD_W, SRD_W + 3))
    A("s_cmp_eq_u32 s%d, 0" % S_W)
    A("s_cbranch_scc0 L_k1_noz")
    A("s_add_u32 s3, s61, 8192")
    A("buffer_store_dwordx4 %s, v%d, s[%d:%d], s3 offen sc1" % (vr(VB, 4), VZ, SRD_W, SRD_W + 3))
    A("s_nop 1")
    A.label("L_k1_noz")
    stamp()
    feature2(4)
    QE = 128 + 16
    for half in range(2):
        for tb in (2 * half, 2 * half + 1):
            exps(4, tb, PB16 + 8 * (tb & 1))
        for tb in (2 * half, 2 * half + 1):
            e = PB16 + 8 * (tb & 1)
            for h in range(2):
                p = accb(4 + h, tb)[1]
                A("v_cvt_pk_bf16_f32 v%d, v%d, v%d" % (QE + 8 * tb + 2 * h, p, p + 1))
                A("v_cvt_pk_bf16_f32 v%d, v%d, v%d" % (QE + 8 * tb + 2 * h + 1, p + 2, p + 3))
                A("v_cvt_pk_bf16_f32 v%d, v%d, v%d" % (QE + 8 * tb + 4 + 2 * h, e + 4 * h, e + 4 * h + 1))
                A("v_cvt_pk_bf16_f32 v%d, v%d, v%d" % (QE + 8 * tb + 4 + 2 * h + 1, e + 4 * h + 2, e + 4 * h + 3))
        if half == 0:
            A("s_waitcnt vmcnt(0)")
            setflag(T + 8, T + 9, 45, "s%d" % S_F1)
    K2["rest"]()
    stamp()
    def lb(i, q):
        r = 12 * i + 4 * q
        return 176 + r if r < 80 else 128 + r - 80
    def kvloads():
        A("s_lshr_b32 s3, s%d, 1" % S_W)
        A("s_lshl_b32 s3, s3, 12")
        A("s_and_b32 s61, s%d, 1" % S_W)
        A("s_lshl_b32 s61, s61, 10")
        A("s_add_u32 s3, s3, s61")
        A("v_add_u32 v%d, s3, v%d" % (T + 12, T + 13))
        A("v_add_u32 v%d, 8192, v%d" % (VZ, VZ))
        L = []
        for i in range(8):
            L.append(["buffer_load_dwordx4 %s, v%d, s[%d:%d], s%d offen sc1" % (vr(lb(i, 0), 4), T + 12, SRD_W, SRD_W + 3, S_KVB)])
            L.append(["buffer_load_dwordx4 %s, v%d, s[%d:%d], s%d offen offset:2048 sc1" % (vr(lb(i, 1), 4), T + 12, SRD_W, SRD_W + 3, S_KVB)])
            L.append(["buffer_load_dwordx4 %s, v%d, s[%d:%d], s%d offen sc1" % (vr(lb(i, 2), 4), VZ, SRD_W, SRD_W + 3, S_KVB),
                      "s_add_u32 s%d, s%d, 9216" % (S_KVB, S_KVB)])
        return L
    def ophase():
        LB = 176
        for i in range(1, 8):
            for q in range(3):
                for u in range(2): pk("v_pk_add_f32", vr(LB + 4 * q + 2 * u, 2), vr(LB + 4 * q + 2 * u, 2), vr(lb(i, q) + 2 * u, 2))
        AF = LB + 12
        for h in range(2):
            A("v_cvt_pk_bf16_f32 v%d, v%d, v%d" % (AF + 2 * h, LB + 4 * h, LB + 4 * h + 1))
            A("v_cvt_pk_bf16_f32 v%d, v%d, v%d" % (AF + 2 * h + 1, LB + 4 * h + 2, LB + 4 * h + 3))
        A("s_lshl_b32 s3, s%d, 10" % S_W)
        A("v_add_u32 v%d, 131072, v%d" % (T + 13, T + 13))
        A("v_add_u32 v%d, s3, v%d" % (T + 12, T + 13))
        A("ds_write_b128 v%d, %s" % (T + 12, vr(AF, 4)))
        ZQ = LB + 16
        KF = LB + 56; AUX = LB + 72
        for fblk in range(4):
            for r in range(4):
                A("v_mov_b32_dpp v%d, v%d quad_perm:[%d,%d,%d,%d] row_mask:0xf bank_mask:0xf" % (ZQ + 4 * fblk + r, LB + 8 + r, fblk, fblk, fblk, fblk))
        A("s_waitcnt lgkmcnt(0)")
        A("s_barrier")
        for q in range(4):
            A("ds_read_b128 %s, v%d offset:%d" % (vr(KF + 4 * q, 4), T + 13, q * 1024))
        for fblk in range(4):
            A("v_cvt_pk_bf16_f32 v%d, v%d, v%d" % (AUX + 2 * fblk, ZQ + 4 * fblk, ZQ + 4 * fblk + 1))
            A("v_cvt_pk_bf16_f32 v%d, v%d, v%d" % (AUX + 2 * fblk + 1, ZQ + 4 * fblk + 2, ZQ + 4 * fblk + 3))
        A("v_and_b32 v%d, 3, v1" % ZQ)
        A("v_mov_b32 v%d, 0x3f803f80" % (ZQ + 1))
        A("v_cmp_eq_u32 vcc, 1, v%d" % ZQ)
        A("v_cndmask_b32 v%d, 0, v%d, vcc" % (ZQ + 1, ZQ + 1))
        A("v_cmp_eq_u32 vcc, 0, v%d" % ZQ)
        for r in range(8): A("v_cndmask_b32 v%d, v%d, v%d, vcc" % (AUX + r, ZQ + 1, AUX + r))
        A("s_add_u32 s3, s%d, 112" % S_J)
        A("s_lshl_b32 s3, s3, 10")
        A("s_add_u32 s63, s62, s3")
        A("s_mov_b32 s64, 0x358637bd")
        A("s_waitcnt lgkmcnt(0)")
        NN = [LB, LB + 16, LB + 32, 128]; NA = [LB + 48, 56, 22 + 0, 0]
        NA = [LB + 48, 56, None, None]
        for rnd in range(2):
            tbs = (2 * rnd, 2 * rnd + 1)
            ns = [(NN[tb], NA[tb & 1]) for tb in tbs]
            for tb, (n, x) in zip(tbs, ns):
                for s in range(2):
                    A("v_mfma_f32_16x16x32_bf16 %s, %s, %s, 0" % (vr(x + 4 * s, 4), vr(AUX + 4 * s, 4), vr(QE + 8 * tb + 4 * s, 4)))
            for tb, (n, x) in zip(tbs, ns):
                for s in range(2):
                    for db in range(2):
                        A("v_mfma_f32_16x16x32_bf16 %s, %s, %s, 0" % (vr(n + 8 * s + 4 * db, 4), vr(KF + 8 * s + 4 * db, 4), vr(QE + 8 * tb + 4 * s, 4)))
            for n, x in ns:
                A("v_rcp_f32 v%d, v%d" % (x + 1, x + 1))
                A("v_rcp_f32 v%d, v%d" % (x + 5, x + 5))
            for n, x in ns: A("v_fma_f32 v%d, v%d, v%d, s64" % (x + 2, x, x + 1))
            for n, x in ns: A("v_fma_f32 v%d, v%d, v%d, v%d" % (x + 2, x + 4, x + 5, x + 2))
            for n, x in ns: A("v_rcp_f32 v%d, v%d" % (x + 2, x + 2))
            for n, x in ns:
                A("v_mul_f32 v%d, v%d, v%d" % (x, x + 1, x + 2))
                A("v_mul_f32 v%d, v%d, v%d" % (x + 4, x + 5, x + 2))
            for n, x in ns:
                for u in range(4):
                    pk("v_pk_mul_f32", vr(n + 2 * u, 2), vr(n + 2 * u, 2), vr(x, 2), None, "op_sel_hi:[1,0]")
                for u in range(4):
                    pk("v_pk_fma_f32", vr(n + 2 * u, 2), vr(n + 8 + 2 * u, 2), vr(x + 4, 2), vr(n + 2 * u, 2), "op_sel_hi:[1,0,1]")
                for u in range(4):
                    A("v_cvt_pk_bf16_f32 v%d, v%d, v%d" % (n + 8 + u, n + 2 * u, n + 2 * u + 1))
            for n, x in ns: doswap(n + 8)
            for n, x in ns:
                A("buffer_store_dwordx4 %s, v%d, s[%d:%d], s63 offen%s" % (vr(n + 8, 4), VH, SRD_W, SRD_W + 3, SC))
                A("s_add_u32 s63, s63, %d" % MBS)
    K2["main"](kvloads, ophase, lambda: setflag(T + 8, T + 9, 77, "s47"))
    stamp.finish(S_W, SRD_W, 24, "L_k1_end")
    A.label("L_k1_end")
    A("s_endpgm")
    A.label("L_code_end")
    return name, LDS

A = Asm()
n1, l1 = gen_k1(A)
hdr = ""
hdr += "; @launch grid=(256,1,1) block=(256,1,1) lds=%d\n" % l1
hdr += '.amdgcn_target "amdgcn-amd-amdhsa--gfx950"\n.text\n'
txt = hdr + A.text() + '.section .rodata,"a"\n' + kernel_desc(n1, 512, 256)
open(OUT, "w").write(txt)
```

```python
import sys
from asmlib import *

opts = dict(a.split("=") if "=" in a else (a, "1") for a in sys.argv[2:])
OUT = sys.argv[1]
O = lambda k, d: int(opts.get(k, d))
TOUCH = O("touch", 1)
STAMP = O("stamp", 0)
ONLY = O("only", 0)
HSC1 = O("hsc1", 0)
K2MAP = O("k2map", 0)
NH = O("nh", 32)
K2NODMA = O("k2nodma", 0); K2NOMFMA = O("k2nomfma", 0); K2NOLDS = O("k2nolds", 0); K2SEL = opts.get("k2sel", "aw")

MBS = 144 * 1024
WS_G = 0x1200000
WS_KVP = 0x1210000
WS_FLG = 0x1480000
WS_FLGH = 0x1494000
WS_FLGO = 0x1498000
WS_FLG1 = 0x1490000
WS_STAMP = 0x14A0000
WS_XCH = 0x1500000
WS_SIZE = WS_XCH + 128 * 65536
LOG2E = 0x3FB8AA3B
SC = " sc1"
INV = O("inv", 0)
DSC = " sc1" if O("dsc1", 1) else ""

class Cnt:
    def __init__(self, cap): self.n = 0; self.tag = {}; self.cap = cap
    def issue(self, tag=None, k=1):
        self.n += k
        if tag is not None: self.tag[tag] = self.n
    def wait_for(self, tags):
        last = max(self.tag[t] for t in tags)
        return min(self.n - last, self.cap)

class Stamper:
    def __init__(self, A, kidx): self.A = A; self.regs = []; self.k = kidx
    def start(self):
        if STAMP:
            self.A("s_memrealtime s[78:79]"); self.A("s_memtime s[80:81]")
    off = False
    def __call__(self, wait=True):
        if STAMP and not self.off:
            r = 82 + len(self.regs); assert r <= 99; self.regs.append(r)
            self.A("s_memtime s[100:101]")
            self.A("s_waitcnt lgkmcnt(0)")
            self.A("s_mov_b32 s%d, s100" % r)
    def real(self):
        if STAMP and not self.off:
            r = 82 + len(self.regs); assert r <= 99; self.regs.append(-r)
            self.A("s_memrealtime s[100:101]")
            self.A("s_waitcnt lgkmcnt(0)")
            self.A("s_mov_b32 s%d, s100" % r)
    def finish(self, swave, srd, T, endlabel):
        if not STAMP: return
        A = self.A
        A("s_waitcnt vmcnt(0)")
        A("s_memtime s[4:5]"); A("s_memrealtime s[6:7]")
        A("s_waitcnt lgkmcnt(0)")
        A("s_cmp_eq_u32 s%d, 0" % swave); A("s_cbranch_scc0 %s" % endlabel)
        A("s_lshl_b32 s3, s2, 7")
        A("s_add_u32 s3, s3, %d" % WS_STAMP)
        A("v_mov_b32 v%d, 0" % (T + 1))
        items = [(78, None), (6, None), (4, 80)] + [(abs(r), 80 if r > 0 else 78) for r in self.regs]
        if O("dbgstamp", 0):
            A("s_cmp_eq_u32 s2, %d" % O("dbgstamp", 0)); A("s_cbranch_scc0 %s" % endlabel)
            A("s_mov_b32 s3, 0"); srd = 48
            items = [(6, 78), (4, 80)] + items[3:17]
        for q, (s, b) in enumerate(items):
            if b is None: A("v_mov_b32 v%d, s%d" % (T, s))
            else:
                A("s_sub_u32 s5, s%d, s%d" % (s, b)); A("v_mov_b32 v%d, s5" % T)
            A("buffer_store_dword v%d, v%d, s[%d:%d], s3 offen offset:%d" % (T, T + 1, srd, srd + 3, 4 * q))

def mk_srd(A, b, lo, hi, addsgpr, size):
    if addsgpr is None:
        A("s_mov_b32 s%d, s%d" % (b, lo)); A("s_mov_b32 s%d, s%d" % (b + 1, hi))
        A("s_mov_b32 s%d, %d" % (b + 2, size))
    else:
        A("s_add_u32 s%d, s%d, s%d" % (b, lo, addsgpr)); A("s_addc_u32 s%d, s%d, 0" % (b + 1, hi))
        A("s_sub_u32 s%d, %d, s%d" % (b + 2, size, addsgpr))
    A("s_mov_b32 s%d, 0x20000" % (b + 3))


def k2ids(A, mt, nt, kh, xf):
    A("s_and_b32 s%d, s2, 1" % kh)
    A("s_bfe_u32 s%d, s2, 0x30003" % mt)
    A("s_bfe_u32 s3, s2, 0x10001")
    A("s_lshl_b32 s3, s3, 3")
    A("s_add_u32 s%d, s%d, s3" % (mt, mt))
    A("s_lshr_b32 s%d, s2, 6" % nt)
    A("s_bfe_u32 s3, s2, 0x10002")
    A("s_lshl_b32 s3, s3, 2")
    A("s_add_u32 s%d, s%d, s3" % (nt, nt))
    A("s_lshl_b32 s3, s%d, 3" % mt)
    A("s_add_u32 s3, s3, s%d" % nt)
    A("s_lshl_b32 s3, s3, 2")
    A("s_add_u32 s3, s3, s26")
    A("s_lshl_b32 s%d, s3, 6" % xf)
    A("s_add_u32 s%d, s%d, %d" % (xf, xf, WS_FLG))

def make_k2(A, stamp):
    NS = 4; STAGE = 16384; AB = 65536
    HH = NH - 16
    NF = 56 - HH
    assert HH % 4 == 0 and HH >= 8
    S_MT, S_NT, S_KH, S_XF = 52, 53, 54, 55
    S_W, S_CNT, S_AK, S_WK, S_KT, S_SW, S_N1, S_PA = 26, 27, 28, 29, 30, 31, 34, 35
    S_M0 = 32
    SRD_A, SRD_B, SRD_O, SRD_W, SRD_D = 8, 12, 16, 20, 48
    S_B2 = 72
    V_DMA, V_XRD, V_WRD = 2, 10, 14
    T = 24
    V_ACC = 64; V_FR = 192
    VG = 48; C1 = 52; VL = T + 8
    S_WM, S_WN = 42, 43
    def acc(s, cb, tb): return vr(V_ACC + 64 * s + 4 * (cb * 4 + tb), 4)
    def xf(p, tb): return ar(32 * p + 4 * tb, 4)
    def wf(p, cb, half=None):
        b = 32 * p + 16 + 4 * cb
        return ar(b, 4) if half is None else ar(b + 2 * half, 2)
    def m0set(i, stage):
        return "s_add_u32 m0, s%d, %d" % (S_M0 + i, STAGE * stage) if stage else "s_mov_b32 m0, s%d" % (S_M0 + i)
    def lda(n): return "buffer_load_dwordx4 v%d, s[%d:%d], s%d offen offset:%d%s lds" % (V_DMA + (n & 2), SRD_A, SRD_A + 3, S_AK, 1024 * n, DSC)
    def ldw(n): return "buffer_load_dwordx4 v%d, s[%d:%d], s%d offen offset:%d lds" % (V_DMA + 4 + n, SRD_B, SRD_B + 3, S_WK, 1024 * n)
    def dma_list(stage):
        L = [[m0set(0, stage), lda(0)], [lda(1)], [lda(2)], [lda(3)], [m0set(1, stage), ldw(0)], [ldw(1)], [ldw(2)], [ldw(3)]]
        L[-1] += ["s_add_u32 s%d, s%d, 2048" % (S_AK, S_AK),
                  "s_add_u32 s%d, s%d, %d" % (S_WK, S_WK, 64 * 2048),
                  "s_add_u32 s%d, s%d, 1" % (S_KT, S_KT),
                  "s_cmp_eq_u32 s%d, s%d" % (S_KT, S_SW),
                  "s_cselect_b32 s%d, s%d, s%d" % (SRD_B, S_B2, SRD_B),
                  "s_cselect_b32 s%d, s%d, s%d" % (SRD_B + 1, S_B2 + 1, SRD_B + 1),
                  "s_cselect_b32 s%d, s%d, s%d" % (SRD_B + 2, S_B2 + 2, SRD_B + 2),
                  "s_cselect_b32 s%d, 0, s%d" % (S_WK, S_WK),
                  "s_cselect_b32 s%d, %d, s%d" % (S_AK, 112 * 1024, S_AK)]
        return L
    def ptrs():
        A("s_load_dwordx2 s[70:71], s[0:1], 72")
    def wotouch():
        B = Asm()
        mk_srd(B, 72, 4, 5, None, 1024 * 2048)
        B("s_lshr_b32 s3, s2, 3")
        B("s_lshl_b32 s3, s3, 2")
        B("s_add_u32 s3, s3, s%d" % S_W)
        B("s_lshl_b32 s3, s3, 14")
        B("s_bfe_u32 s6, s2, 0x10002")
        B("s_lshl_b32 s6, s6, 10")
        B("s_add_u32 s3, s3, s6")
        B("v_lshrrev_b32 v32, 3, v1")
        B("v_lshlrev_b32 v32, 11, v32")
        B("v_and_b32 v33, 7, v1")
        B("v_lshl_add_u32 v32, v33, 7, v32")
        B("buffer_load_dword v33, v32, s[72:75], s3 offen")
        return [B.lines[i:i + 3] for i in range(0, len(B.lines), 3)]
    def wsetup():
        B = Asm()
        k2ids(B, S_MT, S_NT, S_KH, S_XF)
        B("v_lshrrev_b32 v12, 4, v1")
        B("v_and_b32 v13, 15, v1")
        B("v_lshlrev_b32 v14, 1, v12")
        B("v_xor_b32 v13, v13, v14")
        B("s_lshl_b32 s3, s%d, 4" % S_W)
        B("v_add_u32 v12, s3, v12")
        B("v_lshlrev_b32 v12, 11, v12")
        B("v_lshl_add_u32 v12, v13, 4, v12")
        B("v_xor_b32 v13, 128, v12")
        for n in range(4):
            B("v_add_u32 v%d, %d, v%d" % (V_DMA + 4 + n, n * 4 * 2048 - 1024 * n, 12 + (n >> 1)))
        B("s_lshl_b32 s%d, s%d, 12" % (S_M0 + 1, S_W))
        B("s_add_u32 s%d, s%d, %d" % (S_M0, S_M0 + 1, AB))
        B("s_mul_i32 s3, s%d, %d" % (S_KH, HH * 64 * 2048))
        B("s_lshl_b32 s6, s%d, 8" % S_NT)
        B("s_add_u32 s3, s3, s6")
        B("s_add_u32 s%d, s40, s3\ns_addc_u32 s%d, s41, 0" % (SRD_B, SRD_B + 1))
        B("s_sub_u32 s%d, %d, s3" % (SRD_B + 2, 3584 * 2048))
        B("s_mov_b32 s%d, 0" % S_WK)
        L = []
        i = 0
        while i < len(B.lines):
            n = 3 if "s_addc" not in "".join(B.lines[i + 3:i + 4]) else 4
            L.append(B.lines[i:i + n]); i += n
        return L
    def wdma():
        L = []
        for st in range(NS):
            for n in range(4):
                g = ([m0set(1, st)] if n == 0 else []) + [ldw(n)]
                if n == 3: g.append("s_add_u32 s%d, s%d, %d" % (S_WK, S_WK, 64 * 2048))
                L.append(g)
        return L
    def rest():
        A("s_mov_b32 s47, %d" % (WS_FLGO - WS_FLGH))
        A("s_lshl_b32 s6, s%d, 8" % S_NT)
        A("s_add_u32 s%d, s4, s6" % S_B2); A("s_addc_u32 s%d, s5, 0" % (S_B2 + 1))
        A("s_sub_u32 s%d, %d, s6" % (S_B2 + 2, 1024 * 2048))
        A("v_lshlrev_b32 v%d, 4, v1" % VL)
        A("s_mul_i32 s3, s%d, %d" % (S_W, 2 * MBS))
        A("v_add_u32 v%d, s3, v%d" % (V_DMA, VL))
        A("v_add_u32 v%d, %d, v%d" % (V_DMA + 2, MBS - 2048, V_DMA))
        A("s_mov_b32 s%d, 0" % S_AK); A("s_mov_b32 s%d, %d" % (S_KT, NS))
        A("s_cmp_eq_u32 s%d, 0" % S_KH)
        A("s_cselect_b32 s%d, %d, -1" % (S_SW, HH))
        A("s_cselect_b32 s%d, %d, %d" % (S_N1, HH // 4 - 1, NF // 4 - 2))
        A("s_cselect_b32 s%d, %d, -1" % (S_PA, HH // 4 - 2))
        jh = (64 * HH - 1) // 112; jf = 64 * HH // 112
        mh = (1 << (2 * jh + 2)) - 1; mf = ((1 << 64) - 1) ^ ((1 << (2 * jf)) - 1)
        ih = ((1 << 64) - 1) ^ mh; if_ = ((1 << 64) - 1) ^ mf
        A("s_mov_b32 s66, 0x%x" % (if_ & 0xffffffff)); A("s_mov_b32 s67, 0x%x" % (if_ >> 32))
        A("s_cselect_b32 s66, 0x%x, s66" % (ih & 0xffffffff)); A("s_cselect_b32 s67, 0x%x, s67" % (ih >> 32))
        A("s_mul_i32 s3, s%d, %d" % (S_MT, 8 * MBS))
        A("s_mul_i32 s6, s%d, %d" % (S_KH, HH * 2048))
        A("s_add_u32 s3, s3, s6")
        mk_srd(A, SRD_A, 58, 59, 3, 128 * MBS)
        mk_srd(A, SRD_O, 70, 71, None, 2048 * 2048)
        A("s_lshr_b32 s%d, s%d, 1" % (S_WM, S_W)); A("s_and_b32 s%d, s%d, 1" % (S_WN, S_W))
        A("s_lshl_b32 s6, s%d, 7" % S_MT)
        A("s_lshl_b32 s3, s%d, 6" % S_WM)
        A("s_add_u32 s6, s6, s3")
        A("v_and_b32 v%d, 15, v1" % T)
        A("v_add_u32 v%d, s6, v%d" % (T + 4, T))
        A("v_lshlrev_b32 v%d, 2, v%d" % (T + 5, T + 4))
        A("v_add_u32 v%d, %d, v%d" % (T + 5, WS_G, T + 5))
        A("s_lshl_b32 s3, s%d, 13" % S_WM)
        A("s_add_u32 s3, s3, %d" % AB)
        A("v_add_u32 v%d, s3, v%d" % (V_XRD, VL))
        A("v_lshrrev_b32 v%d, 4, v1" % (T + 2))
        A("v_bfe_u32 v%d, v1, 2, 2" % T)
        A("v_lshl_add_u32 v%d, v%d, 3, v%d" % (T + 1, T + 2, T))
        A("v_lshlrev_b32 v%d, 8, v%d" % (T + 1, T + 1))
        A("v_and_b32 v%d, 3, v1" % (T + 3))
        A("v_lshl_add_u32 v%d, v%d, 3, v%d" % (T + 1, T + 3, T + 1))
        A("v_bfe_u32 v%d, v1, 4, 1" % (T + 3))
        A("v_lshl_add_u32 v%d, v%d, 2, v%d" % (T, T + 3, T))
        A("s_lshl_b32 s3, s%d, 2" % S_WN)
        for cb in range(4):
            A("s_add_u32 s6, s3, %d" % cb)
            A("v_xor_b32 v%d, s6, v%d" % (T + 3, T))
            A("v_lshl_add_u32 v%d, v%d, 5, v%d" % (V_WRD + cb, T + 3, T + 1))
        A("v_mov_b32 v%d, 0" % (T + 9))
        A("v_lshlrev_b32 v%d, 2, v1" % (T + 10))
        A("s_lshl_b32 s76, s%d, 8" % S_MT)
        A("s_add_u32 s76, s76, %d" % WS_FLGH)
    def xbases():
        A("s_sub_u32 s3, s%d, %d" % (S_XF, WS_FLG))
        A("s_lshl_b32 s3, s3, 8")
        A("s_add_u32 s60, s3, %d" % WS_XCH)
        for q in range(1, 4): A("s_add_u32 s%d, s60, %d" % (60 + q, 4096 * q))
    def pollflags(lab, items):
        A("s_mov_b32 s37, 0x40000")
        A.label(lab)
        for q, (sd, so, va, ex, ig) in enumerate(items):
            A("buffer_load_dword v%d, v%d, s[%d:%d], %s offen sc1" % (T + 11 + q, va, sd, sd + 3, so))
        A("s_waitcnt vmcnt(0)")
        for q, (sd, so, va, ex, ig) in enumerate(items):
            A("v_cmp_eq_u32 %s, %s, v%d" % ("vcc" if q == 0 else "s[6:7]", ex, T + 11 + q))
            A("s_nop 0")
            if ig: A("s_or_b64 vcc, vcc, %s" % ig); assert q == 0
            if q: A("s_and_b64 vcc, vcc, s[6:7]")
        A("s_cmp_eq_u64 vcc, -1")
        A("s_cbranch_scc1 %s_ok" % lab)
        A("s_sub_u32 s37, s37, 1")
        A("s_cbranch_scc0 %s" % lab)
        A.label(lab + "_ok")
        if INV: A("buffer_inv sc1")
    def reads(stage, ks, p):
        R = []
        so = stage * STAGE
        def xr(tb): return "ds_read_b128 %s, v%d offset:%d" % (xf(p, tb), V_XRD, so + tb * 2048 + ks * 1024)
        def wr(cb, t): return "ds_read_b64_tr_b16 %s, v%d offset:%d" % (wf(p, cb, t), V_WRD + cb, so + (ks * 32 + 4 * t) * 256)
        R += [xr(0), wr(0, 0), wr(0, 1), xr(1), xr(2), xr(3)]
        for cb in range(1, 4): R += [wr(cb, 0), wr(cb, 1)]
        return R
    st = {"pend": []}
    VM = Cnt(63)
    def isvm(x): return x.startswith(("buffer_load", "buffer_store"))
    def tile(stage, aset, first, dma_next, has_next, vm, hook=None, tidx=None):
        for ks in range(2):
            rd = reads(stage, 1, 1) if ks == 0 else (reads((stage + 1) % NS, 0, 0) if has_next else [])
            pre = ["s_waitcnt lgkmcnt(0)"]
            if ks == 1:
                assert not st["pend"]
                if has_next:
                    n = vm if isinstance(vm, int) else VM.wait_for(vm)
                    pre = ["s_waitcnt lgkmcnt(0) vmcnt(%d)" % n, "s_barrier"]
            for s in pre: A(s)
            if ks == 1:
                if hook: hook()
                if dma_next:
                    d = dma_list(stage)
                    if tidx is not None: d[-1] = d[-1] + [("tag", ("D", tidx + NS))]
                    st["pend"] = st["pend"] + d
            g = 0
            for cb in range(4):
                for tb in range(4):
                    c = "0" if (first and ks == 0) else acc(aset, cb, tb)
                    A("v_mfma_f32_16x16x32_bf16 %s, %s, %s, %s" % (acc(aset, cb, tb), wf(ks, cb), xf(ks, tb), c))
                    if g < len(rd): A(rd[g])
                    left = (16 - g) + (16 if ks == 1 else 0)
                    if st["pend"] and (g % 4 == 3 or len(st["pend"]) * 4 > left + 3):
                        k = 1 + (len(st["pend"]) > left)
                        for _ in range(k):
                            if not st["pend"]: break
                            for x in st["pend"].pop(0):
                                if isinstance(x, tuple): VM.tag[x[1]] = VM.n
                                else:
                                    A(x)
                                    if isvm(x): VM.issue()
                    g += 1
    def main(kvloads, ophase, flago):
        A("v_and_b32 v%d, 124, v%d" % (T + 14, T + 10))
        A("s_mov_b32 s46, 0x01010101")
        pollflags("L_k2_hpoll", [(SRD_W, "s76", T + 10, "1", "s[66:67]"), (SRD_D, "0", T + 10, "s46", None)])
        stamp(); stamp.real()
        def adma(stg):
            L = [[m0set(0, stg), lda(0)], [lda(1)], [lda(2)], [lda(3), "s_add_u32 s%d, s%d, 2048" % (S_AK, S_AK), ("tag", ("D", stg))]]
            return L
        for stg in range(2):
            for g in adma(stg):
                for x in g:
                    if isinstance(x, tuple): VM.tag[x[1]] = VM.n
                    else:
                        A(x)
                        if isvm(x): VM.issue()
        A("s_add_u32 s76, s76, s47")
        A("s_waitcnt vmcnt(4)")
        A("s_barrier")
        for s in reads(0, 0, 0): A(s)
        stamp(); stamp.real()
        VMN = 16
        kvpoll = "buffer_load_dword v%d, v%d, s[%d:%d], s44 offen sc1" % (T + 11, T + 14, SRD_W, SRD_W + 3)
        st["pend"] = adma(2) + adma(3) + [["buffer_load_dword v%d, v%d, s[%d:%d], 0 offen offset:%d sc1" % (VG + tb, T + 5, SRD_W, SRD_W + 3, 64 * tb)] for tb in range(4)]
        tile(0, 0, True, True, True, [("D", 1)], None, 0)
        st["pend"].append([kvpoll, ("tag", "kvp")])
        tile(1, 0, False, True, True, [("D", 2)], None, 1)
        def kvhook():
            A("s_mov_b32 s37, 0x40000")
            A.label("L_k2_kvpoll")
            A("v_cmp_eq_u32 vcc, 1, v%d" % (T + 11))
            A("s_nop 0")
            A("s_cmp_eq_u64 vcc, -1")
            A("s_cbranch_scc1 L_k2_kvok")
            A(kvpoll)
            A("s_sub_u32 s37, s37, 1")
            A("s_waitcnt vmcnt(0)")
            A("s_cbranch_scc0 L_k2_kvpoll")
            A.label("L_k2_kvok")
            st["pend"] = kvloads()
            st["pend"][-1] = st["pend"][-1] + [("tag", "kvl")]
        tile(2, 0, False, True, True, [("D", 3)], None, 2)
        tile(3, 0, False, True, True, [("D", 4), "kvp"], kvhook, 3)
        tile(0, 0, False, True, True, [("D", 5)], None, 4)
        tile(1, 0, False, True, True, [("D", 6)], None, 5)
        tile(2, 0, False, True, True, [("D", 7), "kvl"], None, 6)
        ophase(); VM.issue("o", 4)
        stamp()
        tile(3, 0, False, True, True, [("D", 8)], None, 7)
        A("s_mov_b32 s%d, 1" % S_CNT)
        A.label("L_k2_loop1")
        A("s_cmp_eq_u32 s%d, s%d" % (S_CNT, S_PA))
        A("s_cbranch_scc0 L_k2_nop")
        pollflags("L_k2_opoll", [(SRD_W, "s76", T + 10, "1", None)])
        A.label("L_k2_nop")
        def fhook():
            A("s_cmp_eq_u32 s%d, 1" % S_CNT)
            A("s_cbranch_scc0 L_k2_nof")
            flago()
            A.label("L_k2_nof")
        for t in range(4): tile(t, 0, False, True, True, VMN, fhook if t == 1 else None)
        A("s_add_u32 s%d, s%d, 1" % (S_CNT, S_CNT))
        A("s_cmp_lt_u32 s%d, s%d" % (S_CNT, S_N1))
        A("s_cbranch_scc1 L_k2_loop1")
        saved = list(st["pend"])
        xbases()
        A("s_cmp_eq_u32 s%d, 1" % S_KH)
        A("s_cbranch_scc1 L_k2_fin")
        tile(0, 1, True, True, True, VMN)
        for t in range(1, 4): tile(t, 1, False, True, True, VMN)
        A("s_mov_b32 s%d, 0" % S_CNT)
        A.label("L_k2_loop2")
        for t in range(4): tile(t, 1, False, True, True, VMN)
        A("s_add_u32 s%d, s%d, 1" % (S_CNT, S_CNT))
        A("s_cmp_lt_u32 s%d, 2" % S_CNT)
        A("s_cbranch_scc1 L_k2_loop2")
        for t in range(4):
            tile(t, 1, False, False, t < 3, 8 * max(0, 2 - t))
        stamp(); stamp.real()
        for tb in range(4): A("v_sub_f32 v%d, 1.0, v%d" % (C1 + tb, VG + tb))
        for cb in range(4):
            for tb in range(4):
                a0 = V_ACC + 4 * (cb * 4 + tb); a1 = a0 + 64; sl = tb & 1
                for u in range(2):
                    A("v_pk_mul_f32 %s, %s, %s op_sel:[0,%d] op_sel_hi:[1,%d]" % (vr(a0 + 2 * u, 2), vr(a0 + 2 * u, 2), vr(C1 + (tb & ~1), 2), sl, sl))
                for u in range(2):
                    A("v_pk_fma_f32 %s, %s, %s, %s op_sel:[0,%d,0] op_sel_hi:[1,%d,1]" % (vr(a0 + 2 * u, 2), vr(a1 + 2 * u, 2), vr(VG + (tb & ~1), 2), vr(a0 + 2 * u, 2), sl, sl))
            for tb in range(4):
                A("buffer_store_dwordx4 %s, v%d, s[%d:%d], s%d offen offset:%d sc1" % (acc(0, cb, tb), VL, SRD_W, SRD_W + 3, 60 + cb, tb * 1024))
        A("s_waitcnt vmcnt(0)")
        A("v_mov_b32 v%d, 1" % (T + 2))
        A("s_mov_b64 exec, 1")
        A("buffer_store_dword v%d, v%d, s[%d:%d], s%d offen sc1" % (T + 2, T + 9, SRD_W, SRD_W + 3, S_XF))
        A("s_mov_b64 exec, -1")
        A("s_branch L_k2_out")
        A.label("L_k2_fin")
        st["pend"] = saved
        if STAMP == 1: stamp.regs = stamp.regs[:-2]
        pollld = "buffer_load_dword v%d, v%d, s[%d:%d], s%d offen sc1" % (T + 2, T + 9, SRD_W, SRD_W + 3, S_XF)
        st["pend"].append([pollld])
        tile(0, 0, False, False, True, 16 + 1)
        tile(1, 0, False, False, True, 8 + 1)
        def pollhook():
            lp = "L_k2_poll"; lr = "L_k2_rdy"
            A("s_mov_b32 s%d, 0x40000" % S_CNT)
            A.label(lp)
            A("v_readfirstlane_b32 s3, v%d" % (T + 2))
            A("s_cmp_eq_u32 s3, 1")
            A("s_cbranch_scc1 %s" % lr)
            A(pollld)
            A("s_sub_u32 s%d, s%d, 1" % (S_CNT, S_CNT))
            A("s_waitcnt vmcnt(0)")
            A("s_cbranch_scc0 %s" % lp)
            A.label(lr)
            st["pend"] = [["buffer_load_dwordx4 %s, v%d, s[%d:%d], s%d offen offset:%d sc1" % (acc(1, cb, tb), VL, SRD_W, SRD_W + 3, 60 + cb, tb * 1024)]
                          for tb in range(4) for cb in range(4)]
        tile(2, 0, False, False, True, 0, pollhook)
        tile(3, 0, False, False, False, 0)
        assert not st["pend"]
        stamp(); stamp.real()
        for tb in range(4): A("v_sub_f32 v%d, 1.0, v%d" % (C1 + tb, VG + tb))
        VO = T + 6
        A("v_lshlrev_b32 v%d, 11, v%d" % (VO, T + 4))
        A("v_bfe_u32 v%d, v1, 4, 1" % (T + 7))
        A("v_lshl_add_u32 v%d, v%d, 5, v%d" % (VO, T + 7, VO))
        A("v_lshrrev_b32 v%d, 5, v1" % (T + 7))
        A("v_lshl_add_u32 v%d, v%d, 4, v%d" % (VO, T + 7, VO))
        A("s_lshl_b32 s72, s%d, 8" % S_NT)
        A("s_lshl_b32 s3, s%d, 7" % S_WN)
        A("s_add_u32 s72, s72, s3")
        for tb in range(4):
            sl = tb & 1
            A("s_waitcnt vmcnt(%d)" % (12 - 4 * tb + 2 * tb))
            for cb in range(4):
                a0 = V_ACC + 4 * (cb * 4 + tb); a1 = a0 + 64
                for u in range(2):
                    A("v_pk_fma_f32 %s, %s, %s, %s op_sel:[0,%d,0] op_sel_hi:[1,%d,1]" % (vr(a0 + 2 * u, 2), vr(a0 + 2 * u, 2), vr(C1 + (tb & ~1), 2), vr(a1 + 2 * u, 2), sl, sl))
            for cp in range(2):
                d = V_FR + 8 * tb + 4 * cp
                for h in range(2):
                    a0 = V_ACC + 4 * ((2 * cp + h) * 4 + tb)
                    A("v_cvt_pk_bf16_f32 v%d, v%d, v%d" % (d + 2 * h, a0, a0 + 1))
                    A("v_cvt_pk_bf16_f32 v%d, v%d, v%d" % (d + 2 * h + 1, a0 + 2, a0 + 3))
            for cp in range(2):
                d = V_FR + 8 * tb + 4 * cp
                A("v_permlane16_swap_b32 v%d, v%d" % (d, d + 2))
                A("v_permlane16_swap_b32 v%d, v%d" % (d + 1, d + 3))
            for cp in range(2):
                d = V_FR + 8 * tb + 4 * cp
                A("buffer_store_dwordx4 %s, v%d, s[%d:%d], s72 offen offset:%d" % (vr(d, 4), VO, SRD_O, SRD_O + 3, cp * 64))
            A("s_add_u32 s72, s72, 32768")
        A.label("L_k2_out")
    return {"wsetup": wsetup, "wdma": wdma, "rest": rest, "main": main, "wotouch": wotouch, "ptrs": ptrs}

def gen_k1(A):
    name = "gated_mix__linear_kernel_hedgehog__glu_gated_glu__prompt_kernel"
    kernel_open(A, name)
    BK = 64
    XB = 0; QB = 32768; GB = QB + 64 * 192; UB = GB + 64 * 224 + 128
    STAGE = (UB + 64 * 224 + 255) // 256 * 256
    WPB = 151552
    SCR = 114688
    LDS = WPB + 2048
    S_I, S_J, S_W, S_CNT, S_XK, S_QK, S_GK, S_TK, S_TSTEP = 24, 25, 26, 27, 28, 29, 30, 31, 37
    S_M0 = 32
    SRD_X, SRD_Q, SRD_G, SRD_W, SRD_T, SRD_P, SRD_D = 8, 12, 16, 20, 68, 72, 48
    S_C = 38
    V_DMA, V_XRD, V_QRD, V_GRD, V_TCH = 2, 20, 24, 28, 30
    T = 32
    NVACC = 208; V_ACC = 48
    A_X = 0; A_WR = 32; RING = 8; A_ACC = 144
    NTB = 4; NCB = 20; D = 6
    BLK = [("q", 1, 0), ("q", 1, 1), ("q", 2, 0), ("q", 2, 1), ("q", 0, 0), ("q", 0, 1)] + [(t, b) for b in range(7) for t in "gu"]
    def accb(cb, tb):
        b = (cb * NTB + tb) * 4
        return ("v", V_ACC + b) if b < NVACC else ("a", A_ACC + b - NVACC)
    def acc(cb, tb):
        f, b = accb(cb, tb); return "%s[%d:%d]" % (f, b, b + 3)
    def xf(p, tb): return ar(A_X + 16 * p + 4 * tb, 4)
    def wf(n, half=None):
        b = A_WR + 4 * (n % RING)
        return ar(b, 4) if half is None else ar(b + 2 * half, 2)
    stamp = Stamper(A, 0)
    VM = Cnt(63)
    K2 = make_k2(A, stamp)

    A("s_load_dwordx4 s[4:7], s[0:1], 0")
    A("s_load_dwordx4 s[52:55], s[0:1], 40")
    A("s_load_dwordx4 s[56:59], s[0:1], 80")
    A("s_load_dwordx2 s[66:67], s[0:1], 16")
    A("s_load_dwordx4 s[40:43], s[0:1], 56")
    A("s_cmp_ge_u32 s2, 256")
    A("s_cbranch_scc1 L_k1_end")
    stamp.start()
    if O("ctouch", 1):
        A("s_getpc_b64 s[72:73]")
        A.label("L_pc")
        A("s_mov_b32 s74, L_code_end-L_pc")
        A("s_mov_b32 s75, 0x20000")
        A("s_and_b32 s73, s73, 0xffff")
        A("v_lshrrev_b32 v%d, 6, v0" % T)
        A("v_lshlrev_b32 v%d, 9, v%d" % (T, T))
        A("v_and_b32 v%d, 63, v0" % (T + 1))
        A("v_lshl_add_u32 v%d, v%d, 7, v%d" % (T, T + 1, T))
        A("s_lshr_b32 s3, s2, 3")
        A("s_lshl_b32 s3, s3, 11")
        A("v_cmp_gt_u32 vcc, 4, v%d" % (T + 1))
        A("v_mov_b32 v%d, 0x7fffffff" % (T + 2))
        A("v_cndmask_b32 v%d, v%d, v%d, vcc" % (T, T + 2, T))
        A("buffer_load_dword v%d, v%d, s[72:75], s3 offen" % (V_TCH + 1, T)); VM.issue()
    A("v_lshrrev_b32 v1, 6, v0")
    A("s_lshr_b32 s%d, s2, 3" % S_I)
    A("s_and_b32 s%d, s%d, 7" % (S_I, S_I))
    A("v_readfirstlane_b32 s%d, v1" % S_W)
    A("s_and_b32 s3, s2, 7")
    A("s_lshl_b32 s3, s3, 2")
    A("s_lshr_b32 s%d, s2, 6" % S_J)
    A("s_add_u32 s%d, s%d, s3" % (S_J, S_J))
    A("v_and_b32 v1, 63, v0")
    A("v_lshrrev_b32 v%d, 3, v1" % T)
    A("v_lshlrev_b32 v%d, 11, v%d" % (T, T))
    A("v_and_b32 v%d, 7, v1" % (T + 1))
    A("v_lshrrev_b32 v%d, 4, v1" % (T + 2))
    A("v_xor_b32 v%d, v%d, v%d" % (T + 1, T + 1, T + 2))
    A("v_lshl_add_u32 v%d, v%d, 4, v%d" % (T, T + 1, T))
    A("s_lshl_b32 s3, s%d, 17" % S_W)
    A("v_add_u32 v%d, s3, v%d" % (T, T))
    A("v_xor_b32 v%d, 64, v%d" % (T + 1, T))
    plan = []
    for n in range(8):
        A("v_add_u32 v%d, %d, v%d" % (V_DMA + n, n * 16384 - 1024 * (n & 3), T + (n & 1)))
        plan.append((V_DMA + n, SRD_X, S_XK, n // 4 if n % 4 == 0 else None, 1024 * (n & 3)))
    for q in range(3): plan.append((V_DMA + 8 + q, SRD_Q, S_QK, 2 if q == 0 else None, 1024 * q))
    for g in range(7): plan.append((V_DMA + 11 + g, SRD_G, S_GK, 3 + g // 4 if g % 4 == 0 else None, 1024 * (g & 3)))
    LD = len(plan)
    A("s_lshl_b32 s%d, s%d, 13" % (S_M0, S_W))
    A("s_add_u32 s%d, s%d, 4096" % (S_M0 + 1, S_M0))
    A("s_mul_i32 s%d, s%d, 3072" % (S_M0 + 2, S_W))
    A("s_add_u32 s%d, s%d, %d" % (S_M0 + 2, S_M0 + 2, QB))
    A("s_and_b32 s3, s%d, 1" % S_W)
    A("s_mul_i32 s3, s3, 7168")
    A("s_cmp_ge_u32 s%d, 2" % S_W)
    A("s_mov_b32 s60, %d" % GB)
    A("s_cselect_b32 s%d, %d, s60" % (S_M0 + 3, UB))
    A("s_add_u32 s%d, s%d, s3" % (S_M0 + 3, S_M0 + 3))
    A("s_add_u32 s%d, s%d, 4096" % (S_M0 + 4, S_M0 + 3))
    for s in (S_XK, S_QK, S_GK): A("s_mov_b32 s%d, 0" % s)
    def dma_list(stage):
        L = []
        for (v, sd, so, m0i, off) in plan:
            g = []
            if m0i is not None:
                g.append("s_mov_b32 m0, s%d" % (S_M0 + m0i) if stage == 0 else "s_add_u32 m0, s%d, %d" % (S_M0 + m0i, STAGE * stage))
            g.append("buffer_load_dwordx4 v%d, s[%d:%d], s%d offen offset:%d lds" % (v, sd, sd + 3, so, off))
            L.append(g)
        L[-1] += ["s_add_u32 s%d, s%d, %d" % (S_XK, S_XK, BK * 2),
                  "s_add_u32 s%d, s%d, %d" % (S_GK, S_GK, BK * 7168),
                  "s_add_u32 s%d, s%d, %d" % (S_QK, S_QK, BK * 6144)]
        return L
    def emit(groups):
        for g in groups:
            for s in g: A(s)
            VM.issue()
    def rowperm(dst, src, tmp):
        A("v_and_b32 v%d, 0xfffffff3, v%d" % (dst, src))
        A("v_bfe_u32 v%d, v%d, 2, 1" % (tmp, src))
        A("v_lshl_or_b32 v%d, v%d, 3, v%d" % (dst, tmp, dst))
        A("v_bfe_u32 v%d, v%d, 3, 1" % (tmp, src))
        A("v_lshl_or_b32 v%d, v%d, 2, v%d" % (dst, tmp, dst))
    NEARLY = O("nearly", 2); NLATE = O("nlate", 1)
    if TOUCH:
        A("s_lshr_b32 s60, s2, 6")
        A("s_and_b32 s61, s%d, 1" % S_W)
        A("s_lshl_b32 s3, s60, 6")
        A("v_add_u32 v%d, s3, v1" % (T + 4))
        A("v_lshlrev_b32 v%d, 11, v%d" % (T + 4, T + 4))
        A("s_lshl_b32 s3, s61, 7")
        A("v_add_u32 v%d, s3, v%d" % (T + 4, T + 4))
        A("s_lshl_b32 s62, s%d, 4" % S_I)
        A("s_lshl_b32 s3, s61, 3")
        A("s_add_u32 s62, s62, s3")
        A("s_and_b32 s63, s%d, 28" % S_J)
        A("v_mul_u32_u24 v%d, 10923, v1" % (T + 5))
        A("v_lshrrev_b32 v%d, 16, v%d" % (T + 5, T + 5))
        A("v_mul_u32_u24 v%d, 6, v%d" % (T + 6, T + 5))
        A("v_sub_u32 v%d, v1, v%d" % (T + 6, T + 6))
        A("v_add_u32 v%d, s62, v%d" % (T + 5, T + 5))
        A("v_mul_u32_u24 v%d, 6144, v%d" % (T + 5, T + 5))
        A("v_lshrrev_b32 v%d, 1, v%d" % (T + 7, T + 6))
        A("v_lshl_add_u32 v%d, v%d, 11, v%d" % (T + 5, T + 7, T + 5))
        A("v_and_b32 v%d, 1, v%d" % (T + 6, T + 6))
        A("v_lshl_add_u32 v%d, v%d, 7, v%d" % (T + 5, T + 6, T + 5))
        A("s_lshl_b32 s3, s63, 6")
        A("v_add_u32 v%d, s3, v%d" % (T + 5, T + 5))
        A("v_mov_b32 v%d, 0x7fffffff" % (T + 9))
        A("v_cmp_gt_u32 vcc, 48, v1")
        A("v_cndmask_b32 v%d, v%d, v%d, vcc" % (T + 5, T + 9, T + 5))
        A("v_mul_u32_u24 v%d, 9363, v1" % (T + 6))
        A("v_lshrrev_b32 v%d, 16, v%d" % (T + 6, T + 6))
        A("v_mul_u32_u24 v%d, 7, v%d" % (T + 7, T + 6))
        A("v_sub_u32 v%d, v1, v%d" % (T + 7, T + 7))
        A("v_add_u32 v%d, s62, v%d" % (T + 6, T + 6))
        A("v_mul_u32_u24 v%d, 7168, v%d" % (T + 6, T + 6))
        A("v_lshl_add_u32 v%d, v%d, 7, v%d" % (T + 6, T + 7, T + 6))
        A("s_mul_i32 s3, s63, 224")
        A("v_add_u32 v%d, s3, v%d" % (T + 6, T + 6))
        A("v_cmp_gt_u32 vcc, 56, v1")
        A("v_cndmask_b32 v%d, v%d, v%d, vcc" % (T + 6, T + 9, T + 6))
        A("s_and_b32 s3, s2, 63")
        A("s_lshl_b32 s3, s3, 1")
        A("s_add_u32 s3, s3, s61")
        A("s_lshl_b32 s3, s3, 13")
        A("v_lshlrev_b32 v%d, 7, v1" % (T + 7))
        A("v_add_u32 v%d, s3, v%d" % (T + 7, T + 7))
    A("s_waitcnt lgkmcnt(0)")
    A("s_lshl_b32 s64, s%d, 19" % S_I)
    mk_srd(A, SRD_X, 4, 5, 64, 2048 * 2048)
    if TOUCH:
        def sel(cond_sgpr, val, voff, lo, hi, size, step, start):
            A("s_cmp_eq_u32 s%d, %d" % (cond_sgpr, val))
            A("s_cselect_b64 vcc, -1, 0")
            A("s_cselect_b32 s%d, s%d, s%d" % (SRD_T, lo, SRD_T))
            A("s_cselect_b32 s%d, s%d, s%d" % (SRD_T + 1, hi, SRD_T + 1))
            A("s_cselect_b32 s%d, %d, s%d" % (SRD_T + 2, size, SRD_T + 2))
            A("s_cselect_b32 s%d, %d, s%d" % (S_TSTEP, step, S_TSTEP))
            A("s_cselect_b32 s%d, %d, s%d" % (S_TK, start, S_TK))
            A("v_cndmask_b32 v%d, v%d, v%d, vcc" % (V_TCH, V_TCH, voff))
        A("s_mov_b32 s%d, s6" % SRD_T); A("s_mov_b32 s%d, s7" % (SRD_T + 1))
        A("s_mov_b32 s%d, %d" % (SRD_T + 2, 1024 * 6144)); A("s_mov_b32 s%d, 0x20000" % (SRD_T + 3))
        A("s_mov_b32 s%d, %d" % (S_TSTEP, 128 * 6144))
        A("s_mov_b32 s%d, %d" % (S_TK, 0 if NEARLY else 128 * 6144))
        A("v_mov_b32 v%d, v%d" % (V_TCH, T + 5))
        sel(60, 1, T + 6, 52, 53, 1024 * 7168, 128 * 7168, 0 if NEARLY else 128 * 7168)
        sel(60, 2, T + 6, 54, 55, 1024 * 7168, 128 * 7168, 0 if NEARLY else 128 * 7168)
        sel(60, 3, T + 7, 40, 41, 3584 * 2048, 1 << 20, (1 << 32) - (NEARLY << 20) if NEARLY else 0)
        A("s_lshr_b32 s61, s%d, 1" % S_W)
        sel(61, 0, T + 4, SRD_X, SRD_X + 1, 256 * 2048, 256, 0 if NEARLY else 256)
        def touch():
            return ["buffer_load_dword v%d, v%d, s[%d:%d], s%d offen" % (V_TCH + 1, V_TCH, SRD_T, SRD_T + 3, S_TK),
                    "s_add_u32 s%d, s%d, s%d" % (S_TK, S_TK, S_TSTEP)]
        emit([touch() for _ in range(NEARLY)])
    D0 = dma_list(0)
    emit(D0[0:8])
    A("s_and_b32 s3, s%d, 1" % S_W)
    A("s_mul_i32 s3, s3, 448")
    A("s_and_b32 s65, s%d, 1" % S_J)
    A("s_lshl_b32 s65, s65, 1")
    for g in range(7):
        A("v_add_u32 v%d, s3, v1" % T)
        if g: A("v_add_u32 v%d, %d, v%d" % (T, 64 * g, T))
        A("v_mul_u32_u24 v%d, 4682, v%d" % (T + 1, T))
        A("v_lshrrev_b32 v%d, 16, v%d" % (T + 1, T + 1))
        A("v_mul_u32_u24 v%d, 14, v%d" % (T + 2, T + 1))
        A("v_sub_u32 v%d, v%d, v%d" % (T + 2, T, T + 2))
        A("v_add_u32 v%d, s65, v%d" % (T + 2, T + 2))
        A("v_subrev_u32 v%d, 14, v%d" % (T + 3, T + 2))
        A("v_min_u32 v%d, v%d, v%d" % (T + 2, T + 2, T + 3))
        rowperm(T + 4, T + 1, T + 3)
        A("v_mul_u32_u24 v%d, 7168, v%d" % (T + 1, T + 4))
        A("v_lshl_add_u32 v%d, v%d, 4, v%d" % (T + 1, T + 2, T + 1))
        A("v_subrev_u32 v%d, %d, v%d" % (V_DMA + 11 + g, 1024 * (g & 3), T + 1))
    A("s_cmp_ge_u32 s%d, 2" % S_W)
    A("s_cselect_b32 s60, s54, s52")
    A("s_cselect_b32 s61, s55, s53")
    A("s_mul_i32 s3, s%d, 224" % S_J)
    mk_srd(A, SRD_G, 60, 61, 3, 1024 * 7168)
    emit([g[:2] if len(g) > 2 and not g[0].startswith("buffer") else g[:1] if g[0].startswith("buffer") else g for g in D0[11:18]])
    A("s_mul_i32 s3, s%d, 192" % S_W)
    for q in range(3):
        A("v_add_u32 v%d, s3, v1" % T)
        if q: A("v_add_u32 v%d, %d, v%d" % (T, 64 * q, T))
        A("v_mul_u32_u24 v%d, 5462, v%d" % (T + 1, T))
        A("v_lshrrev_b32 v%d, 16, v%d" % (T + 1, T + 1))
        A("v_mul_u32_u24 v%d, 12, v%d" % (T + 2, T + 1))
        A("v_sub_u32 v%d, v%d, v%d" % (T + 2, T, T + 2))
        A("v_bfe_u32 v%d, v%d, 2, 1" % (T + 3, T + 1))
        A("v_lshlrev_b32 v%d, 1, v%d" % (T + 3, T + 3))
        A("v_xor_b32 v%d, v%d, v%d" % (T + 2, T + 2, T + 3))
        rowperm(T + 4, T + 1, T + 3)
        A("v_mul_u32_u24 v%d, 6144, v%d" % (T + 1, T + 4))
        A("v_lshrrev_b32 v%d, 2, v%d" % (T + 3, T + 2))
        A("v_lshlrev_b32 v%d, 11, v%d" % (T + 3, T + 3))
        A("v_and_b32 v%d, 3, v%d" % (T + 2, T + 2))
        A("v_lshlrev_b32 v%d, 4, v%d" % (T + 2, T + 2))
        A("v_add3_u32 v%d, v%d, v%d, v%d" % (T + 1, T + 1, T + 2, T + 3))
        A("v_subrev_u32 v%d, %d, v%d" % (V_DMA + 8 + q, 1024 * q, T + 1))
    A("s_lshl_b32 s3, s%d, 6" % S_J)
    mk_srd(A, SRD_Q, 6, 7, 3, 1024 * 6144)
    emit(D0[8:11])
    for s in D0[17][1:]: A(s)
    mk_srd(A, SRD_W, 58, 59, None, WS_SIZE)
    S_F1 = 44
    A("s_lshl_b32 s%d, s%d, 7" % (S_F1, S_J))
    A("s_add_u32 s%d, s%d, %d" % (S_F1, S_F1, WS_FLG1))
    A("s_lshl_b32 s3, s%d, 2" % S_I)
    A("s_add_u32 s3, s3, s%d" % S_W)
    A("s_lshl_b32 s45, s3, 2")
    A("s_lshr_b32 s3, s3, 1")
    A("s_lshl_b32 s3, s3, 5")
    A("s_add_u32 s3, s3, s%d" % S_J)
    A("s_lshl_b32 s3, s3, 1")
    A("s_and_b32 s60, s%d, 1" % S_W)
    A("s_add_u32 s3, s3, s60")
    A("s_lshl_b32 s3, s3, 2")
    A("s_add_u32 s77, s3, %d" % WS_FLGH)
    k2ids(A, 61, 62, 63, 64)
    A("s_add_u32 s3, s%d, s45" % S_F1)
    A("v_mov_b32 v%d, s3" % T)
    A("v_writelane_b32 v%d, s77, 1" % T)
    A("s_add_u32 s3, s77, %d" % (WS_FLGO - WS_FLGH))
    A("v_writelane_b32 v%d, s3, 2" % T)
    A("s_cmp_eq_u32 s%d, 0" % 63)
    A("s_cselect_b32 s3, s%d, s77" % 64)
    A("v_writelane_b32 v%d, s3, 3" % T)
    A("v_mov_b32 v%d, 0" % (T + 1))
    A("buffer_store_dword v%d, v%d, s[%d:%d], 0 offen sc1" % (T + 1, T, SRD_W, SRD_W + 3)); VM.issue()
    mk_srd(A, SRD_P, 42, 43, None, 2048)
    A("v_and_b32 v%d, 31, v0" % T)
    A("v_lshlrev_b32 v%d, 6, v%d" % (T, T))
    A("v_lshrrev_b32 v%d, 5, v0" % (T + 1))
    A("s_lshl_b32 s3, s%d, 3" % S_J)
    A("v_add_u32 v%d, s3, v%d" % (T + 1, T + 1))
    A("v_lshl_add_u32 v%d, v%d, 11, v%d" % (T + 2, T + 1, T))
    GX = V_ACC; GW = V_ACC + 16
    for q in range(4):
        A("buffer_load_dwordx4 %s, v%d, s[%d:%d], 0 offen offset:%d" % (vr(GX + 4 * q, 4), T + 2, SRD_X, SRD_X + 3, 16 * q))
        A("buffer_load_dwordx4 %s, v%d, s[%d:%d], 0 offen offset:%d" % (vr(GW + 4 * q, 4), T, SRD_P, SRD_P + 3, 16 * q))
        VM.issue("g", 2)
    EARLY = O("early", 0)
    D1 = dma_list(1)
    emit(D1[:EARLY])
    A("s_lshl_b32 s3, s%d, 11" % S_J)
    mk_srd(A, SRD_P, 66, 67, 3, 65536)
    A("s_and_b32 s3, s%d, 1" % S_W)
    A("s_lshl_b32 s47, s3, 10")
    A("v_lshl_add_u32 v%d, v1, 4, s47" % (T + 3))
    late = D1[EARLY:] + [["s_add_u32 m0, s47, %d" % WPB, "buffer_load_dwordx4 v%d, s[%d:%d], 0 offen lds" % (T + 3, SRD_P, SRD_P + 3)]]
    mk_srd(A, SRD_D, 56, 57, None, 256)
    if TOUCH: late += [touch() for _ in range(NLATE)]
    A("s_load_dwordx2 s[4:5], s[0:1], 24")
    A("v_and_b32 v%d, 15, v1" % (T + 4))
    A("v_lshlrev_b32 v%d, 7, v%d" % (T + 4, T + 4))
    A("s_lshl_b32 s3, s%d, 13" % S_W)
    A("v_add_u32 v%d, s3, v%d" % (T + 4, T + 4))
    A("v_bfe_u32 v%d, v1, 1, 3" % (T + 5))
    A("v_lshrrev_b32 v%d, 4, v1" % (T + 6))
    for ks in range(2):
        A("v_or_b32 v%d, %d, v%d" % (T + 7, ks * 4, T + 6))
        A("v_xor_b32 v%d, v%d, v%d" % (T + 7, T + 7, T + 5))
        A("v_lshl_add_u32 v%d, v%d, 4, v%d" % (V_XRD + ks, T + 7, T + 4))
        A("v_add_u32 v%d, %d, v%d" % (V_XRD + 2 + ks, STAGE, V_XRD + ks))
    A("v_bfe_u32 v%d, v1, 2, 2" % (T + 4))
    A("v_and_b32 v%d, 3, v1" % (T + 5))
    A("v_bfe_u32 v%d, v1, 4, 1" % (T + 7))
    A("v_lshrrev_b32 v%d, 5, v1" % (T + 8))
    A("v_lshl_add_u32 v%d, v%d, 4, v%d" % (T + 4, T + 8, T + 4))
    A("v_lshl_add_u32 v%d, v%d, 2, v%d" % (T + 4, T + 7, T + 4))
    A("v_lshlrev_b32 v%d, 3, v%d" % (T + 5, T + 5))
    A("v_mul_u32_u24 v%d, 192, v%d" % (T + 9, T + 4))
    A("v_add_u32 v%d, v%d, v%d" % (T + 9, T + 9, T + 5))
    for h in range(2):
        A("v_xor_b32 v%d, %d, v%d" % (T + 8, h, T + 7))
        A("v_lshl_add_u32 v%d, v%d, 5, v%d" % (T + 8, T + 8, T + 9))
        for st in range(2): A("v_add_u32 v%d, %d, v%d" % (V_QRD + st * 2 + h, QB + STAGE * st, T + 8))
    A("v_mul_u32_u24 v%d, 224, v%d" % (T + 9, T + 4))
    A("v_add_u32 v%d, v%d, v%d" % (T + 8, T + 9, T + 5))
    for st in range(2): A("v_add_u32 v%d, %d, v%d" % (V_GRD + st, GB + STAGE * st, T + 8))
    A("s_mov_b32 s%d, 0x%x" % (S_C, LOG2E)); A("s_mov_b32 s%d, 0x%x" % (S_C + 1, LOG2E))
    stamp(False)
    A("s_waitcnt vmcnt(%d) lgkmcnt(0)" % VM.wait_for(["g"]))
    A("s_barrier")
    def xread(stage, ks, p, tb):
        return "ds_read_b128 %s, v%d offset:%d" % (xf(p, tb), V_XRD + 2 * stage + ks, tb * 2048)
    def wread(stage, ks, cb, n, t):
        b = BLK[cb]
        if b[0] == "q":
            return "ds_read_b64_tr_b16 %s, v%d offset:%d" % (wf(n, t), V_QRD + stage * 2 + b[2], (ks * 32 + t * 8) * 192 + b[1] * 64)
        return "ds_read_b64_tr_b16 %s, v%d offset:%d" % (wf(n, t), V_GRD + stage, (ks * 32 + t * 8) * 224 + b[1] * 32 + (UB - GB if b[0] == "u" else 0))
    Q = Cnt(15)
    for tb in range(NTB):
        A(xread(0, 0, 0, tb)); Q.issue(("x", 0, tb))
    for n in range(D):
        for t in range(2):
            A(wread(0, 0, n, n, t)); Q.issue(("w", n))
    A("v_mov_b32 v%d, 0" % (T + 4))
    A("v_mov_b32 v%d, 0" % (T + 5))
    for q in range(8):
        A("v_dot2c_f32_bf16 v%d, v%d, v%d" % (T + 4, GX + 2 * q, GW + 2 * q))
        A("v_dot2c_f32_bf16 v%d, v%d, v%d" % (T + 5, GX + 2 * q + 1, GW + 2 * q + 1))
    A("s_nop 2")
    A("v_add_f32 v%d, v%d, v%d" % (T + 4, T + 4, T + 5))
    for sh in (8, 4, 2, 1):
        A("v_add_f32_dpp v%d, v%d, v%d row_ror:%d row_mask:0xf bank_mask:0xf" % (T + 4, T + 4, T + 4, sh))
    A("v_mov_b32 v%d, v%d" % (T + 5, T + 4))
    A("v_permlane16_swap_b32 v%d, v%d" % (T + 4, T + 5))
    A("v_add_f32 v%d, v%d, v%d" % (T + 4, T + 4, T + 5))
    A("v_mul_f32 v%d, s%d, v%d" % (T + 4, S_C, T + 4))
    A("v_exp_f32 v%d, -v%d" % (T + 4, T + 4))
    A("v_add_f32 v%d, 1.0, v%d" % (T + 4, T + 4))
    A("v_rcp_f32 v%d, v%d" % (T + 4, T + 4))
    A("s_lshl_b32 s3, s%d, 8" % S_I)
    A("v_add_u32 v%d, s3, v%d" % (T + 1, T + 1))
    A("v_lshlrev_b32 v%d, 2, v%d" % (T + 1, T + 1))
    A("v_add_u32 v%d, %d, v%d" % (T + 1, WS_G, T + 1))
    A("buffer_store_dword v%d, v%d, s[%d:%d], 0 offen sc1" % (T + 4, T + 1, SRD_W, SRD_W + 3)); VM.issue()
    A("s_lshl_b32 s3, s%d, 3" % S_J)
    A("s_add_u32 s3, s3, s%d" % S_I)
    A("s_cmp_eq_u32 s%d, 0" % S_W)
    A("s_cselect_b32 s3, s3, 0x1000")
    A("v_mov_b32 v%d, s3" % (T + 5))
    A("v_mov_b32 v%d, 1" % (T + 6))
    bytest = "buffer_store_byte v%d, v%d, s[%d:%d], 0 offen sc1" % (T + 6, T + 5, SRD_D, SRD_D + 3)
    NPRO = 1 + (NLATE if TOUCH else 0)
    if STAMP: stamp(); stamp.real()

    st = {"pend": late}
    PB = 40 - D
    def tile(stage, first, dma_next, has_next, vm_extra, do_touch, extra=None, after=None):
        if extra: st["pend"] = st["pend"] + extra
        for n in range(40):
            ks, cb = divmod(n, 20)
            pre = []
            if n == PB and has_next:
                assert not st["pend"]
                pre += ["s_waitcnt lgkmcnt(0) vmcnt(%d)" % vm_extra, "s_barrier"]
                if first: pre.append(bytest)
                if dma_next: st["pend"] = dma_list(stage)
                if do_touch: st["pend"].append(touch())
                if after: st["pend"] = st["pend"] + after
            need_tags = [("w", n)] + ([("x", ks, tb) for tb in range(NTB)] if cb == 0 else [])
            if not (n == PB and has_next):
                pre.append("s_waitcnt lgkmcnt(%d)" % Q.wait_for(need_tags))
            rds = []
            def addw(m):
                if m < 40:
                    k2, c2 = divmod(m, 20)
                    for t in range(2): rds.append((wread(stage, k2, c2, m, t), ("w", m)))
                elif has_next:
                    for t in range(2): rds.append((wread(stage ^ 1, 0, m - 40, m, t), ("w", m - 40)))
            if n == PB - 2: addw(n + D); addw(n + D + 1)
            elif n == PB - 1: pass
            else: addw(n + D)
            if ks == 0 and cb in (4, 7, 10, 13):
                tb = (cb - 4) // 3
                rds.append((xread(stage, 1, 1, tb), ("x", 1, tb)))
            if has_next and n >= PB and n < PB + 4:
                tb = n - PB
                rds.append((xread(stage ^ 1, 0, 0, tb), ("x", 0, tb)))
            for s in pre: A(s)
            k = 0
            for tb in range(NTB):
                a, b = wf(n), xf(ks, tb)
                if BLK[cb][0] == "q" and BLK[cb][1] == 2: a, b = b, a
                c = "0" if (first and ks == 0) else acc(cb, tb)
                A("v_mfma_f32_16x16x32_bf16 %s, %s, %s, %s" % (acc(cb, tb), a, b, c))
                if k < len(rds):
                    A(rds[k][0]); Q.issue(rds[k][1]); k += 1
                if tb == 3:
                    while k < len(rds):
                        A(rds[k][0]); Q.issue(rds[k][1]); k += 1
                    if st["pend"]:
                        for s in st["pend"].pop(0): A(s)
    assert 40 % RING == 0 and D + 2 <= RING
    nt = 1 if TOUCH else 0
    tile(0, True, True, True, NPRO, False)
    A("s_mov_b32 s%d, 0" % S_CNT)
    A.label("L_k1_loop")
    if STAMP == 2:
        A("s_memtime s[100:101]"); A("s_waitcnt lgkmcnt(0)"); A("s_sub_u32 s100, s100, s80")
        A("s_mov_b32 m0, s%d" % S_CNT); A("s_nop 0"); A("v_writelane_b32 v47, s100, m0")
        A("s_add_u32 m0, s%d, 0" % (S_M0 + 1))
    tile(1, False, True, True, 0, TOUCH)
    tile(0, False, True, True, nt, False)
    A("s_add_u32 s%d, s%d, 1" % (S_CNT, S_CNT))
    A("s_cmp_lt_u32 s%d, 6" % S_CNT)
    A("s_cbranch_scc1 L_k1_loop")
    if STAMP == 2:
        for q in range(6):
            r = 82 + len(stamp.regs); stamp.regs.append(r)
            A("v_readlane_b32 s%d, v47, %d" % (r, q)); A("s_nop 1"); A("s_add_u32 s%d, s%d, s80" % (r, r))
        stamp()
        stamp.off = True
    tile(1, False, True, True, 2, False, [touch()] + K2["wotouch"]())
    tile(0, False, False, True, 0, False, K2["wsetup"](), K2["wdma"]())
    tile(1, False, False, False, 0, False)
    stamp(); stamp.real()

    K2["ptrs"]()
    E = 2
    def pk(op, d, a, b, c=None, mods=""):
        if c is None: A("%s %s, %s, %s %s" % (op, d, a, b, mods))
        else: A("%s %s, %s, %s, %s %s" % (op, d, a, b, c, mods))
    def rsag2(op, qa, opb, qb):
        seqs = []
        for (o, q) in ((op, qa), (opb, qb)):
            seqs.append([
                "v_permlane32_swap_b32 v%d, v%d" % (q[0], q[1]),
                "v_permlane32_swap_b32 v%d, v%d" % (q[2], q[3]),
                "%s v%d, v%d, v%d" % (o, q[0], q[0], q[1]),
                "%s v%d, v%d, v%d" % (o, q[2], q[2], q[3]),
                "v_permlane16_swap_b32 v%d, v%d" % (q[0], q[2]),
                "%s v%d, v%d, v%d" % (o, q[0], q[0], q[2]),
                "v_mov_b32 v%d, v%d" % (q[2], q[0]),
                "v_permlane16_swap_b32 v%d, v%d" % (q[0], q[2]),
                "v_mov_b32 v%d, v%d" % (q[1], q[0]),
                "v_mov_b32 v%d, v%d" % (q[3], q[2]),
                "v_permlane32_swap_b32 v%d, v%d" % (q[0], q[1]),
                "v_permlane32_swap_b32 v%d, v%d" % (q[2], q[3])])
        for x, y in zip(*seqs):
            A(x); A(y)
    MX = E + 8; MN = E + 12; PB16 = E + 16; WP = 240
    def feature(cb0):
        for tb in range(NTB):
            for h in range(2):
                f, b = accb(cb0 + h, tb); assert f == "v"
                A("v_cvt_pk_bf16_f32 v%d, v%d, v%d" % (PB16 + 4 * tb + 2 * h, b, b + 1))
                A("v_cvt_pk_bf16_f32 v%d, v%d, v%d" % (PB16 + 4 * tb + 2 * h + 1, b + 2, b + 3))
        for tb in range(NTB):
            for fb in range(2):
                A("v_mfma_f32_16x16x32_bf16 %s, %s, %s, 0" % (acc(cb0 + fb, tb), vr(WP + 4 * fb, 4), vr(PB16 + 4 * tb, 4)))
    def feature2(cb0):
        for tb in range(NTB):
            p0 = accb(cb0, tb)[1]; p1 = accb(cb0 + 1, tb)[1]
            for step in range(4):
                for (op3, op2, d) in (("v_max3_f32", "v_max_f32", MX + tb), ("v_min3_f32", "v_min_f32", MN + tb)):
                    if step == 0: A("%s v%d, v%d, v%d, v%d" % (op3, d, p0, p0 + 1, p0 + 2))
                    if step == 1: A("%s v%d, v%d, v%d, v%d" % (op3, d, d, p0 + 3, p1))
                    if step == 2: A("%s v%d, v%d, v%d, v%d" % (op3, d, d, p1 + 1, p1 + 2))
                    if step == 3: A("%s v%d, v%d, v%d" % (op2, d, d, p1 + 3))
        rsag2("v_max_f32", [MX + i for i in range(4)], "v_min_f32", [MN + i for i in range(4)])
        for b in (MX, MX + 2, MN, MN + 2): pk("v_pk_mul_f32", vr(b, 2), vr(b, 2), sr(S_C, 2))
    def exps(cb0, tb, EM):
        for h in range(2):
            p = accb(cb0 + h, tb)[1]
            for u in range(2):
                sel_n = (MN + tb) & 1; sel_x = (MX + tb) & 1
                pk("v_pk_fma_f32", vr(EM + 4 * h + 2 * u, 2), vr(p + 2 * u, 2), sr(S_C, 2), vr((MN + tb) & ~1, 2),
                   "op_sel:[0,0,%d] op_sel_hi:[1,1,%d] neg_lo:[1,0,0] neg_hi:[1,0,0]" % (sel_n, sel_n))
                pk("v_pk_fma_f32", vr(p + 2 * u, 2), vr(p + 2 * u, 2), sr(S_C, 2), vr((MX + tb) & ~1, 2),
                   "op_sel:[0,0,%d] op_sel_hi:[1,1,%d] neg_lo:[0,0,1] neg_hi:[0,0,1]" % (sel_x, sel_x))
        for h in range(2):
            p = accb(cb0 + h, tb)[1]
            for r in range(4):
                A("v_exp_f32 v%d, v%d" % (p + r, p + r))
                A("v_exp_f32 v%d, v%d" % (EM + 4 * h + r, EM + 4 * h + r))
    assert MX % 2 == 0 and MN % 2 == 0
    VH = T + 14
    VS = T + 15
    A("v_and_b32 v%d, 15, v1" % VH)
    A("v_lshlrev_b32 v%d, 4, v%d" % (VH, VH))
    A("v_lshrrev_b32 v%d, 5, v1" % (T + 13))
    A("v_lshl_add_u32 v%d, v%d, 8, v%d" % (VH, T + 13, VH))
    A("v_bfe_u32 v%d, v1, 4, 1" % (T + 13))
    A("v_mul_u32_u24 v%d, %d, v%d" % (VS, MBS, T + 13))
    A("v_add_u32 v%d, v%d, v%d" % (VS, VS, VH))
    A("v_lshl_add_u32 v%d, v%d, 9, v%d" % (VH, T + 13, VH))
    A("s_lshl_b32 s3, s%d, 4" % S_I)
    A("s_lshl_b32 s62, s%d, 2" % S_W)
    A("s_add_u32 s62, s62, s3")
    A("s_mul_i32 s62, s62, %d" % MBS)
    A("s_mul_i32 s3, s%d, 7" % S_J)
    A("s_add_u32 s3, s3, 1")
    A("s_lshr_b32 s3, s3, 1")
    A("s_lshl_b32 s3, s3, 10")
    A("s_add_u32 s63, s62, s3")
    for tb in range(1, 4): A("s_add_u32 s%d, s63, %d" % (63 + tb, tb * MBS))
    A("s_add_u32 s67, s63, 3072")
    A("s_sub_u32 s3, s63, 512")
    A("s_bitcmp1_b32 s%d, 0" % S_J)
    A("s_cselect_b32 s67, s3, s67")
    A("s_add_u32 s76, s67, %d" % (2 * MBS))
    FREEV = [accb(6, 0)[1] + 4 * i for i in range(16)]
    def glu(fb, fi):
        gs, us = [], []
        for tb in range(4):
            out = []
            for cb in (6 + 2 * fb, 7 + 2 * fb):
                f, b = accb(cb, tb)
                if f == "a":
                    d = FREEV[fi]; fi += 1
                    for r in range(4): A("v_accvgpr_read_b32 v%d, a%d" % (d + r, b + r))
                    b = d
                out.append(b)
            gs.append(out[0]); us.append(out[1])
        for tb in range(4):
            for u in range(2): pk("v_pk_mul_f32", vr(gs[tb] + 2 * u, 2), vr(gs[tb] + 2 * u, 2), sr(S_C, 2))
        for tb in range(4):
            for r in range(4): A("v_exp_f32 v%d, -v%d" % (gs[tb] + r, gs[tb] + r))
        for tb in range(4):
            for u in range(2): pk("v_pk_add_f32", vr(gs[tb] + 2 * u, 2), vr(gs[tb] + 2 * u, 2), "1.0", None, "op_sel_hi:[1,0]")
        for tb in range(4):
            for r in range(4): A("v_rcp_f32 v%d, v%d" % (gs[tb] + r, gs[tb] + r))
        for tb in range(4):
            for u in range(2): pk("v_pk_mul_f32", vr(gs[tb] + 2 * u, 2), vr(gs[tb] + 2 * u, 2), vr(us[tb] + 2 * u, 2))
        return gs, us
    def packswap(dst, a, b):
        for (d, x) in ((dst, a), (dst + 2, b)):
            A("v_cvt_pk_bf16_f32 v%d, v%d, v%d" % (d, x, x + 1))
            A("v_cvt_pk_bf16_f32 v%d, v%d, v%d" % (d + 1, x + 2, x + 3))
    def doswap(d):
        A("v_permlane16_swap_b32 v%d, v%d" % (d, d + 2))
        A("v_permlane16_swap_b32 v%d, v%d" % (d + 1, d + 3))
    def glu_pair(p, D4):
        g0, u0 = glu(2 * p, 0)
        g1, u1 = glu(2 * p + 1, 8)
        for tb in range(4): packswap(D4[tb], g0[tb], g1[tb])
        for tb in range(4): doswap(D4[tb])
        return ["buffer_store_dwordx4 %s, v%d, s[%d:%d], s%d offen offset:%d%s" % (vr(D4[tb], 4), VH, SRD_W, SRD_W + 3, 63 + tb, p * 1024, SC) for tb in range(4)]
    def spread(fn, stores, every):
        start = len(A.lines)
        r = fn()
        body = A.lines[start:]; del A.lines[start:]
        k = 0
        for n, ln in enumerate(body):
            if n % every == 0 and k < len(stores):
                A(stores[k]); k += 1
            A.lines.append(ln)
        for x in stores[k:]: A(x)
        return r
    PKA = [PB16 + 4 * i for i in range(4)]
    PKB = [accb(10, 0)[1] + 4 * i for i in range(4)]
    st0 = glu_pair(0, PKA)
    PK1 = [accb(11, 0)[1] + 4 * i for i in range(4)]
    st1 = spread(lambda: glu_pair(1, PK1), st0, 30)
    st2 = spread(lambda: glu_pair(2, PKA), st1, 40)
    def last():
        g6, u6 = glu(6, 0)
        for tp in range(2): packswap(PKB[tp], g6[2 * tp], g6[2 * tp + 1])
        for tp in range(2): doswap(PKB[tp])
    spread(last, st2, 25)
    for tp in range(2):
        A("buffer_store_dwordx4 %s, v%d, s[%d:%d], s%d offen%s" % (vr(PKB[tp], 4), VS, SRD_W, SRD_W + 3, 67 if tp == 0 else 76, SC))
    stamp()
    WP = 240
    A("v_bfe_u32 v%d, v1, 2, 2" % (T + 10))
    A("v_lshrrev_b32 v%d, 4, v1" % (T + 11))
    A("v_lshl_add_u32 v%d, v%d, 2, v%d" % (T + 10, T + 11, T + 10))
    A("v_lshlrev_b32 v%d, 6, v%d" % (T + 10, T + 10))
    A("v_and_b32 v%d, 3, v1" % (T + 11))
    A("v_lshl_add_u32 v%d, v%d, 3, v%d" % (T + 10, T + 11, T + 10))
    A("v_add_u32 v%d, %d, v%d" % (T + 10, WPB, T + 10))
    for fb in range(2):
        for t in range(2):
            A("ds_read_b64_tr_b16 %s, v%d offset:%d" % (vr(WP + 4 * fb + 2 * t, 2), T + 10, fb * 32 + t * 1024))
    def setflag(vaddr, vone, saddr, soff):
        A("v_mov_b32 v%d, s%d" % (vaddr, saddr))
        A("v_mov_b32 v%d, 1" % vone)
        A("s_mov_b64 exec, 1")
        A("buffer_store_dword v%d, v%d, s[%d:%d], %s offen sc1" % (vone, vaddr, SRD_W, SRD_W + 3, soff))
        A("s_mov_b64 exec, -1")
    HPOS = O("hpos", 1)
    def hflag():
        A("s_waitcnt vmcnt(0)")
        setflag(22, 23, 77, "0") if 0 else setflag(250, 251, 77, "0")
    A("s_waitcnt lgkmcnt(0)")
    A("s_barrier")
    feature(0)
    SP = T + 2; SM = T + 6
    VPH = T + 10
    VB = accb(2, 0)[1]
    assert accb(3, 0)[1] == VB + 16
    for db in range(2):
        for tb in range(4):
            s = VB + db * 16 + tb * 4
            d = VB + db * 8 + tb * 2
            A("v_cvt_pk_bf16_f32 v%d, v%d, v%d" % (d, s, s + 1))
            A("v_cvt_pk_bf16_f32 v%d, v%d, v%d" % (d + 1, s + 2, s + 3))
    feature2(0)
    A("v_and_b32 v%d, 15, v1" % VPH)
    A("v_mul_u32_u24 v%d, 136, v%d" % (VPH, VPH))
    A("v_lshrrev_b32 v%d, 4, v1" % (T + 11))
    A("v_lshl_add_u32 v%d, v%d, 3, v%d" % (VPH, T + 11, VPH))
    A("s_mul_i32 s61, s%d, 9216" % S_W)
    A("s_add_u32 s61, s61, %d" % SCR)
    A("v_add_u32 v%d, s61, v%d" % (VPH, VPH))
    EMR = [PB16, PB16 + 8, VB + 16, VB + 24]
    for tb in range(4):
        exps(0, tb, EMR[tb])
    if HPOS == 0: hflag()
    t0 = FREEV[0]
    for tb in range(4):
        p0 = accb(0, tb)[1]; p1 = accb(1, tb)[1]; e = EMR[tb]
        pk("v_pk_add_f32", vr(t0, 2), vr(p0, 2), vr(p0 + 2, 2))
        pk("v_pk_add_f32", vr(t0 + 2, 2), vr(e, 2), vr(e + 2, 2))
        pk("v_pk_add_f32", vr(t0, 2), vr(t0, 2), vr(p1, 2))
        pk("v_pk_add_f32", vr(t0 + 2, 2), vr(t0 + 2, 2), vr(e + 4, 2))
        pk("v_pk_add_f32", vr(t0, 2), vr(t0, 2), vr(p1 + 2, 2))
        pk("v_pk_add_f32", vr(t0 + 2, 2), vr(t0 + 2, 2), vr(e + 6, 2))
        A("v_add_f32 v%d, v%d, v%d" % (SP + tb, t0, t0 + 1))
        A("v_add_f32 v%d, v%d, v%d" % (SM + tb, t0 + 2, t0 + 3))
    rsag2("v_add_f32", [SP + i for i in range(4)], "v_add_f32", [SM + i for i in range(4)])
    for i in range(8): A("v_rcp_f32 v%d, v%d" % (SP + i, SP + i))
    assert SP % 2 == 0 and SM % 2 == 0
    VPR = T + 11
    A("v_bfe_u32 v%d, v1, 2, 2" % VPR)
    A("v_lshrrev_b32 v%d, 4, v1" % (T + 12))
    A("v_lshl_add_u32 v%d, v%d, 2, v%d" % (VPR, T + 12, VPR))
    A("v_mul_u32_u24 v%d, 136, v%d" % (VPR, VPR))
    A("v_and_b32 v%d, 3, v1" % (T + 12))
    A("v_lshl_add_u32 v%d, v%d, 3, v%d" % (VPR, T + 12, VPR))
    A("v_add_u32 v%d, s61, v%d" % (VPR, VPR))
    for tb in range(4):
        srcs = [(accb(0, tb)[1], SP), (accb(1, tb)[1], SP), (EMR[tb], SM), (EMR[tb] + 4, SM)]
        for q, (p, sc) in enumerate(srcs):
            sl = (sc + tb) & 1
            for u in range(2):
                pk("v_pk_mul_f32", vr(p + 2 * u, 2), vr(p + 2 * u, 2), vr((sc + tb) & ~1, 2), None, "op_sel:[0,%d] op_sel_hi:[1,%d]" % (sl, sl))
        for q, (p, sc) in enumerate(srcs):
            A("v_cvt_pk_bf16_f32 v%d, v%d, v%d" % (p, p, p + 1))
            A("v_cvt_pk_bf16_f32 v%d, v%d, v%d" % (p + 1, p + 2, p + 3))
        for q, (p, sc) in enumerate(srcs):
            A("ds_write_b64 v%d, %s offset:%d" % (VPH, vr(p, 2), tb * 16 * 136 + q * 32))
    if HPOS == 1: hflag()
    stamp()
    A("s_waitcnt lgkmcnt(0)")
    for fblk in range(4):
        for ks in range(2):
            for t in range(2):
                A("ds_read_b64_tr_b16 %s, v%d offset:%d" % (ar(8 * fblk + 4 * ks + 2 * t, 2), VPR, (32 * ks + 16 * t) * 136 + fblk * 32))
    A("v_mov_b32 v%d, 0x3f803f80" % (T + 13))
    for fblk in range(4):
        A("v_cmp_eq_u32 vcc, %d, v%d" % (fblk, T + 12))
        for r in range(4):
            A("v_cndmask_b32 v%d, 0, v%d, vcc" % (PB16 + 4 * fblk + r, T + 13))
    KV = accb(0, 0)[1]
    ZB = VB + 16
    for fblk in range(4):
        A("s_waitcnt lgkmcnt(%d)" % (12 - 4 * fblk))
        for ks in range(2):
            for db in range(2):
                d = vr(KV + 8 * fblk + 4 * db, 4)
                A("v_mfma_f32_16x16x32_bf16 %s, %s, %s, %s" % (d, ar(8 * fblk + 4 * ks, 4), vr(VB + db * 8 + ks * 4, 4), "0" if ks == 0 else d))
            A("v_mfma_f32_16x16x32_bf16 %s, %s, %s, %s" % (vr(ZB, 4), ar(8 * fblk + 4 * ks, 4), vr(PB16 + 4 * fblk, 4), "0" if (ks == 0 and fblk == 0) else vr(ZB, 4)))
    VRD = T + 12
    A("v_lshl_add_u32 v%d, v1, 4, s61" % VRD)
    for b in range(8):
        A("ds_write_b128 v%d, %s offset:%d" % (VRD, vr(KV + 4 * b, 4), b * 1024))
    A("ds_write_b128 v%d, %s offset:%d" % (VRD, vr(ZB, 4), 8 * 1024))
    feature(4)
    def setflag_unused(vaddr, vone, saddr, soff):
        A("v_mov_b32 v%d, s%d" % (vaddr, saddr))
        A("v_mov_b32 v%d, 1" % vone)
        A("s_mov_b64 exec, 1")
        A("buffer_store_dword v%d, v%d, s[%d:%d], %s offen sc1" % (vone, vaddr, SRD_W, SRD_W + 3, soff))
        A("s_mov_b64 exec, -1")
    if HPOS == 2: hflag()
    A("s_lshl_b32 s3, s%d, 11" % S_W)
    A("s_add_u32 s3, s3, %d" % SCR)
    A("v_lshl_add_u32 v%d, v1, 4, s3" % VRD)
    A("v_lshlrev_b32 v%d, 4, v1" % (T + 13))
    A("v_add_u32 v%d, %d, v%d" % (T + 15, SCR, T + 13))
    A("s_waitcnt lgkmcnt(0)")
    A("s_barrier")
    for w in range(4):
        A("ds_read_b128 %s, v%d offset:%d" % (vr(KV + 8 * w, 4), VRD, w * 9216))
        A("ds_read_b128 %s, v%d offset:%d" % (vr(KV + 8 * w + 4, 4), VRD, w * 9216 + 1024))
        A("ds_read_b128 %s, v%d offset:%d" % (vr(VB + 4 * w, 4), T + 15, w * 9216 + 8192))
    VZ = T + 10
    A("v_lshrrev_b32 v%d, 4, v1" % VZ)
    A("v_and_b32 v%d, 3, v1" % (T + 11))
    A("v_lshl_add_u32 v%d, v%d, 2, v%d" % (VZ, VZ, T + 11))
    A("v_lshlrev_b32 v%d, 4, v%d" % (VZ, VZ))
    S_KVB = 60
    A("s_lshl_b32 s3, s%d, 3" % S_J)
    A("s_mul_i32 s%d, s3, 9216" % S_KVB)
    A("s_add_u32 s%d, s%d, %d" % (S_KVB, S_KVB, WS_KVP))
    A("s_mul_i32 s3, s%d, 9216" % S_I)
    A("s_add_u32 s61, s%d, s3" % S_KVB)
    A("s_lshl_b32 s3, s%d, 11" % S_W)
    A("v_add_u32 v%d, s3, v%d" % (VRD, T + 13))
    A("s_waitcnt lgkmcnt(0)")
    for w in range(1, 4):
        for u in range(4): pk("v_pk_add_f32", vr(KV + 2 * u, 2), vr(KV + 2 * u, 2), vr(KV + 8 * w + 2 * u, 2))
        for u in range(2): pk("v_pk_add_f32", vr(VB + 2 * u, 2), vr(VB + 2 * u, 2), vr(VB + 4 * w + 2 * u, 2))
    A("buffer_store_dwordx4 %s, v%d, s[%d:%d], s61 offen sc1" % (vr(KV, 4), VRD, SRD_W, SRD_W + 3))
    A("buffer_store_dwordx4 %s, v%d, s[%d:%d], s61 offen offset:1024 sc1" % (vr(KV + 4, 4), VRD, SRD_W, SRD_W + 3))
    A("s_cmp_eq_u32 s%d, 0" % S_W)
    A("s_cbranch_scc0 L_k1_noz")
    A("s_add_u32 s3, s61, 8192")
    A("buffer_store_dwordx4 %s, v%d, s[%d:%d], s3 offen sc1" % (vr(VB, 4), VZ, SRD_W, SRD_W + 3))
    A("s_nop 1")
    A.label("L_k1_noz")
    stamp()
    feature2(4)
    QE = 128 + 16
    for half in range(2):
        for tb in (2 * half, 2 * half + 1):
            exps(4, tb, PB16 + 8 * (tb & 1))
        for tb in (2 * half, 2 * half + 1):
            e = PB16 + 8 * (tb & 1)
            for h in range(2):
                p = accb(4 + h, tb)[1]
                A("v_cvt_pk_bf16_f32 v%d, v%d, v%d" % (QE + 8 * tb + 2 * h, p, p + 1))
                A("v_cvt_pk_bf16_f32 v%d, v%d, v%d" % (QE + 8 * tb + 2 * h + 1, p + 2, p + 3))
                A("v_cvt_pk_bf16_f32 v%d, v%d, v%d" % (QE + 8 * tb + 4 + 2 * h, e + 4 * h, e + 4 * h + 1))
                A("v_cvt_pk_bf16_f32 v%d, v%d, v%d" % (QE + 8 * tb + 4 + 2 * h + 1, e + 4 * h + 2, e + 4 * h + 3))
        if half == 0:
            A("s_waitcnt vmcnt(0)")
            setflag(T + 8, T + 9, 45, "s%d" % S_F1)
    K2["rest"]()
    stamp()
    def lb(i, q):
        r = 12 * i + 4 * q
        return 176 + r if r < 80 else 128 + r - 80
    def kvloads():
        A("s_lshr_b32 s3, s%d, 1" % S_W)
        A("s_lshl_b32 s3, s3, 12")
        A("s_and_b32 s61, s%d, 1" % S_W)
        A("s_lshl_b32 s61, s61, 10")
        A("s_add_u32 s3, s3, s61")
        A("v_add_u32 v%d, s3, v%d" % (T + 12, T + 13))
        A("v_add_u32 v%d, 8192, v%d" % (VZ, VZ))
        L = []
        for i in range(8):
            L.append(["buffer_load_dwordx4 %s, v%d, s[%d:%d], s%d offen sc1" % (vr(lb(i, 0), 4), T + 12, SRD_W, SRD_W + 3, S_KVB)])
            L.append(["buffer_load_dwordx4 %s, v%d, s[%d:%d], s%d offen offset:2048 sc1" % (vr(lb(i, 1), 4), T + 12, SRD_W, SRD_W + 3, S_KVB)])
            L.append(["buffer_load_dwordx4 %s, v%d, s[%d:%d], s%d offen sc1" % (vr(lb(i, 2), 4), VZ, SRD_W, SRD_W + 3, S_KVB),
                      "s_add_u32 s%d, s%d, 9216" % (S_KVB, S_KVB)])
        return L
    def ophase():
        LB = 176
        for i in range(1, 8):
            for q in range(3):
                for u in range(2): pk("v_pk_add_f32", vr(LB + 4 * q + 2 * u, 2), vr(LB + 4 * q + 2 * u, 2), vr(lb(i, q) + 2 * u, 2))
        AF = LB + 12
        for h in range(2):
            A("v_cvt_pk_bf16_f32 v%d, v%d, v%d" % (AF + 2 * h, LB + 4 * h, LB + 4 * h + 1))
            A("v_cvt_pk_bf16_f32 v%d, v%d, v%d" % (AF + 2 * h + 1, LB + 4 * h + 2, LB + 4 * h + 3))
        A("s_lshl_b32 s3, s%d, 10" % S_W)
        A("v_add_u32 v%d, 131072, v%d" % (T + 13, T + 13))
        A("v_add_u32 v%d, s3, v%d" % (T + 12, T + 13))
        A("ds_write_b128 v%d, %s" % (T + 12, vr(AF, 4)))
        ZQ = LB + 16
        KF = LB + 56; AUX = LB + 72
        for fblk in range(4):
            for r in range(4):
                A("v_mov_b32_dpp v%d, v%d quad_perm:[%d,%d,%d,%d] row_mask:0xf bank_mask:0xf" % (ZQ + 4 * fblk + r, LB + 8 + r, fblk, fblk, fblk, fblk))
        A("s_waitcnt lgkmcnt(0)")
        A("s_barrier")
        for q in range(4):
            A("ds_read_b128 %s, v%d offset:%d" % (vr(KF + 4 * q, 4), T + 13, q * 1024))
        for fblk in range(4):
            A("v_cvt_pk_bf16_f32 v%d, v%d, v%d" % (AUX + 2 * fblk, ZQ + 4 * fblk, ZQ + 4 * fblk + 1))
            A("v_cvt_pk_bf16_f32 v%d, v%d, v%d" % (AUX + 2 * fblk + 1, ZQ + 4 * fblk + 2, ZQ + 4 * fblk + 3))
        A("v_and_b32 v%d, 3, v1" % ZQ)
        A("v_mov_b32 v%d, 0x3f803f80" % (ZQ + 1))
        A("v_cmp_eq_u32 vcc, 1, v%d" % ZQ)
        A("v_cndmask_b32 v%d, 0, v%d, vcc" % (ZQ + 1, ZQ + 1))
        A("v_cmp_eq_u32 vcc, 0, v%d" % ZQ)
        for r in range(8): A("v_cndmask_b32 v%d, v%d, v%d, vcc" % (AUX + r, ZQ + 1, AUX + r))
        A("s_add_u32 s3, s%d, 112" % S_J)
        A("s_lshl_b32 s3, s3, 10")
        A("s_add_u32 s63, s62, s3")
        A("s_mov_b32 s64, 0x358637bd")
        A("s_waitcnt lgkmcnt(0)")
        NN = [LB, LB + 16, LB + 32, 128]; NA = [LB + 48, 56, 22 + 0, 0]
        NA = [LB + 48, 56, None, None]
        for rnd in range(2):
            tbs = (2 * rnd, 2 * rnd + 1)
            ns = [(NN[tb], NA[tb & 1]) for tb in tbs]
            for tb, (n, x) in zip(tbs, ns):
                for s in range(2):
                    A("v_mfma_f32_16x16x32_bf16 %s, %s, %s, 0" % (vr(x + 4 * s, 4), vr(AUX + 4 * s, 4), vr(QE + 8 * tb + 4 * s, 4)))
            for tb, (n, x) in zip(tbs, ns):
                for s in range(2):
                    for db in range(2):
                        A("v_mfma_f32_16x16x32_bf16 %s, %s, %s, 0" % (vr(n + 8 * s + 4 * db, 4), vr(KF + 8 * s + 4 * db, 4), vr(QE + 8 * tb + 4 * s, 4)))
            for n, x in ns:
                A("v_rcp_f32 v%d, v%d" % (x + 1, x + 1))
                A("v_rcp_f32 v%d, v%d" % (x + 5, x + 5))
            for n, x in ns: A("v_fma_f32 v%d, v%d, v%d, s64" % (x + 2, x, x + 1))
            for n, x in ns: A("v_fma_f32 v%d, v%d, v%d, v%d" % (x + 2, x + 4, x + 5, x + 2))
            for n, x in ns: A("v_rcp_f32 v%d, v%d" % (x + 2, x + 2))
            for n, x in ns:
                A("v_mul_f32 v%d, v%d, v%d" % (x, x + 1, x + 2))
                A("v_mul_f32 v%d, v%d, v%d" % (x + 4, x + 5, x + 2))
            for n, x in ns:
                for u in range(4):
                    pk("v_pk_mul_f32", vr(n + 2 * u, 2), vr(n + 2 * u, 2), vr(x, 2), None, "op_sel_hi:[1,0]")
                for u in range(4):
                    pk("v_pk_fma_f32", vr(n + 2 * u, 2), vr(n + 8 + 2 * u, 2), vr(x + 4, 2), vr(n + 2 * u, 2), "op_sel_hi:[1,0,1]")
                for u in range(4):
                    A("v_cvt_pk_bf16_f32 v%d, v%d, v%d" % (n + 8 + u, n + 2 * u, n + 2 * u + 1))
            for n, x in ns: doswap(n + 8)
            for n, x in ns:
                A("buffer_store_dwordx4 %s, v%d, s[%d:%d], s63 offen%s" % (vr(n + 8, 4), VH, SRD_W, SRD_W + 3, SC))
                A("s_add_u32 s63, s63, %d" % MBS)
    K2["main"](kvloads, ophase, lambda: setflag(T + 8, T + 9, 77, "s47"))
    stamp.finish(S_W, SRD_W, 24, "L_k1_end")
    A.label("L_k1_end")
    A("s_endpgm")
    A.label("L_code_end")
    return name, LDS

A = Asm()
n1, l1 = gen_k1(A)
hdr = ""
hdr += "; @launch grid=(256,1,1) block=(256,1,1) lds=%d\n" % l1
hdr += '.amdgcn_target "amdgcn-amd-amdhsa--gfx950"\n.text\n'
txt = hdr + A.text() + '.section .rodata,"a"\n' + kernel_desc(n1, 512, 256)
open(OUT, "w").write(txt)
```

```python
import sys
from asmlib import *
from asmlib import TRANS, parse

opts = dict(a.split("=") if "=" in a else (a, "1") for a in sys.argv[2:])
OUT = sys.argv[1]
O = lambda k, d: int(opts.get(k, d))
TOUCH = O("touch", 1)
STAMP = O("stamp", 0)
ONLY = O("only", 0)
HSC1 = O("hsc1", 0)
K2MAP = O("k2map", 0)
NH = O("nh", 32)
K2NODMA = O("k2nodma", 0); K2NOMFMA = O("k2nomfma", 0); K2NOLDS = O("k2nolds", 0); K2SEL = opts.get("k2sel", "aw")

MBS = 144 * 1024
WS_G = 0x1200000
WS_KVP = 0x1210000
WS_FLG = 0x1480000
WS_FLGH = 0x1494000
WS_FLGO = 0x1498000
WS_FLG1 = 0x1490000
WS_STAMP = 0x14A0000
WS_XCH = 0x1500000
WS_SIZE = WS_XCH + 128 * 65536
LOG2E = 0x3FB8AA3B
SC = " sc1"
INV = O("inv", 0)
DSC = " sc1" if O("dsc1", 1) else ""

class Cnt:
    def __init__(self, cap): self.n = 0; self.tag = {}; self.cap = cap
    def issue(self, tag=None, k=1):
        self.n += k
        if tag is not None: self.tag[tag] = self.n
    def wait_for(self, tags):
        last = max(self.tag[t] for t in tags)
        return min(self.n - last, self.cap)

class Stamper:
    def __init__(self, A, kidx): self.A = A; self.regs = []; self.k = kidx
    def start(self):
        if STAMP:
            self.A("s_memrealtime s[78:79]"); self.A("s_memtime s[80:81]")
    off = False
    def __call__(self, wait=True):
        if STAMP and not self.off:
            r = 82 + len(self.regs); assert r <= 99; self.regs.append(r)
            self.A("s_memtime s[100:101]")
            self.A("s_waitcnt lgkmcnt(0)")
            self.A("s_mov_b32 s%d, s100" % r)
    def real(self):
        if STAMP and not self.off:
            r = 82 + len(self.regs); assert r <= 99; self.regs.append(-r)
            self.A("s_memrealtime s[100:101]")
            self.A("s_waitcnt lgkmcnt(0)")
            self.A("s_mov_b32 s%d, s100" % r)
    def finish(self, swave, srd, T, endlabel):
        if not STAMP: return
        A = self.A
        A("s_waitcnt vmcnt(0)")
        A("s_memtime s[4:5]"); A("s_memrealtime s[6:7]")
        A("s_waitcnt lgkmcnt(0)")
        A("s_cmp_eq_u32 s%d, 0" % swave); A("s_cbranch_scc0 %s" % endlabel)
        A("s_lshl_b32 s3, s2, 7")
        A("s_add_u32 s3, s3, %d" % WS_STAMP)
        A("v_mov_b32 v%d, 0" % (T + 1))
        items = [(78, None), (6, None), (4, 80)] + [(abs(r), 80 if r > 0 else 78) for r in self.regs]
        if O("dbgstamp", 0):
            A("s_cmp_eq_u32 s2, %d" % O("dbgstamp", 0)); A("s_cbranch_scc0 %s" % endlabel)
            A("s_mov_b32 s3, 0"); srd = 48
            items = [(6, 78), (4, 80)] + items[3:17]
        for q, (s, b) in enumerate(items):
            if b is None: A("v_mov_b32 v%d, s%d" % (T, s))
            else:
                A("s_sub_u32 s5, s%d, s%d" % (s, b)); A("v_mov_b32 v%d, s5" % T)
            A("buffer_store_dword v%d, v%d, s[%d:%d], s3 offen offset:%d" % (T, T + 1, srd, srd + 3, 4 * q))

def mk_srd(A, b, lo, hi, addsgpr, size):
    if addsgpr is None:
        A("s_mov_b32 s%d, s%d" % (b, lo)); A("s_mov_b32 s%d, s%d" % (b + 1, hi))
        A("s_mov_b32 s%d, %d" % (b + 2, size))
    else:
        A("s_add_u32 s%d, s%d, s%d" % (b, lo, addsgpr)); A("s_addc_u32 s%d, s%d, 0" % (b + 1, hi))
        A("s_sub_u32 s%d, %d, s%d" % (b + 2, size, addsgpr))
    A("s_mov_b32 s%d, 0x20000" % (b + 3))


def k2ids(A, mt, nt, kh, xf):
    A("s_and_b32 s%d, s2, 1" % kh)
    if O("swap", 1): A("s_xor_b32 s%d, s%d, 1" % (kh, kh))
    A("s_bfe_u32 s%d, s2, 0x30003" % mt)
    A("s_bfe_u32 s3, s2, 0x10001")
    A("s_lshl_b32 s3, s3, 3")
    A("s_add_u32 s%d, s%d, s3" % (mt, mt))
    A("s_lshr_b32 s%d, s2, 6" % nt)
    A("s_bfe_u32 s3, s2, 0x10002")
    A("s_lshl_b32 s3, s3, 2")
    A("s_add_u32 s%d, s%d, s3" % (nt, nt))
    A("s_lshl_b32 s3, s%d, 3" % mt)
    A("s_add_u32 s3, s3, s%d" % nt)
    A("s_lshl_b32 s3, s3, 2")
    A("s_add_u32 s3, s3, s26")
    A("s_lshl_b32 s%d, s3, 6" % xf)
    A("s_add_u32 s%d, s%d, %d" % (xf, xf, WS_FLG))

def gen_k1(A):
    name = "gated_mix__linear_kernel_hedgehog__glu_gated_glu__prompt_kernel"
    kernel_open(A, name)
    BK = 64
    XB = 0; QB = 32768; GB = QB + 64 * 192; UB = GB + 64 * 224 + 128
    STAGE = (UB + 64 * 224 + 255) // 256 * 256
    WPB = 2 * STAGE
    SCR = 131072
    LDS = 163840
    S_I, S_J, S_W, S_CNT, S_XK, S_QK, S_GK, S_TK, S_TSTEP = 24, 25, 26, 27, 28, 29, 30, 31, 37
    S_M0 = 32
    SRD_X, SRD_Q, SRD_G, SRD_W, SRD_T, SRD_P, SRD_D = 8, 12, 16, 20, 68, 72, 48
    S_C = 38
    V_DMA, V_XRD, V_QRD, V_GRD, V_TCH = 2, 20, 24, 28, 30
    T = 32
    NVACC = 208; V_ACC = 48
    A_X = 0; A_WR = 32; RING = 8; A_ACC = 144
    NTB = 4; NCB = 20; D = 6
    BLK = [("q", 1, 0), ("q", 1, 1), ("q", 2, 0), ("q", 2, 1), ("q", 0, 0), ("q", 0, 1)] + [(t, b) for b in range(7) for t in "gu"]
    def accb(cb, tb):
        b = (cb * NTB + tb) * 4
        return ("v", V_ACC + b) if b < NVACC else ("a", A_ACC + b - NVACC)
    def acc(cb, tb):
        f, b = accb(cb, tb); return "%s[%d:%d]" % (f, b, b + 3)
    def xf(p, tb): return ar(A_X + 16 * p + 4 * tb, 4)
    def wf(n, half=None):
        b = A_WR + 4 * (n % RING)
        return ar(b, 4) if half is None else ar(b + 2 * half, 2)
    stamp = Stamper(A, 0)
    VM = Cnt(63)

    A("s_load_dwordx4 s[4:7], s[0:1], 0")
    A("s_load_dwordx4 s[52:55], s[0:1], 40")
    A("s_load_dwordx4 s[56:59], s[0:1], 80")
    A("s_load_dwordx2 s[66:67], s[0:1], 16")
    A("s_load_dwordx4 s[40:43], s[0:1], 56")
    A("s_cmp_ge_u32 s2, 256")
    A("s_cbranch_scc1 L_k1_end")
    stamp.start()
    if STAMP == 3: stamp.off = True
    if O("ctouch", 1):
        A("s_getpc_b64 s[72:73]")
        A.label("L_pc")
        A("s_mov_b32 s74, L_code_end-L_pc")
        A("s_mov_b32 s75, 0x20000")
        A("s_and_b32 s73, s73, 0xffff")
        A("v_lshrrev_b32 v%d, 6, v0" % T)
        A("v_lshlrev_b32 v%d, 9, v%d" % (T, T))
        A("v_and_b32 v%d, 63, v0" % (T + 1))
        A("v_lshl_add_u32 v%d, v%d, 7, v%d" % (T, T + 1, T))
        A("s_lshr_b32 s3, s2, 3")
        A("s_lshl_b32 s3, s3, 11")
        A("v_cmp_gt_u32 vcc, 4, v%d" % (T + 1))
        A("v_mov_b32 v%d, 0x7ffffff0" % (T + 2))
        A("v_cndmask_b32 v%d, v%d, v%d, vcc" % (T, T + 2, T))
        A("buffer_load_dword v%d, v%d, s[72:75], s3 offen" % (V_TCH + 1, T)); VM.issue()
    A("v_lshrrev_b32 v1, 6, v0")
    A("s_lshr_b32 s%d, s2, 3" % S_I)
    A("s_and_b32 s%d, s%d, 7" % (S_I, S_I))
    A("v_readfirstlane_b32 s%d, v1" % S_W)
    A("s_and_b32 s3, s2, 7")
    A("s_lshl_b32 s3, s3, 2")
    A("s_lshr_b32 s%d, s2, 6" % S_J)
    A("s_add_u32 s%d, s%d, s3" % (S_J, S_J))
    A("v_and_b32 v1, 63, v0")
    A("v_lshrrev_b32 v%d, 3, v1" % T)
    A("v_lshlrev_b32 v%d, 11, v%d" % (T, T))
    A("v_and_b32 v%d, 7, v1" % (T + 1))
    A("v_lshrrev_b32 v%d, 4, v1" % (T + 2))
    A("v_xor_b32 v%d, v%d, v%d" % (T + 1, T + 1, T + 2))
    A("v_lshl_add_u32 v%d, v%d, 4, v%d" % (T, T + 1, T))
    A("s_lshl_b32 s3, s%d, 17" % S_W)
    A("v_add_u32 v%d, s3, v%d" % (T, T))
    A("v_xor_b32 v%d, 64, v%d" % (T + 1, T))
    plan = []
    for n in range(8):
        A("v_add_u32 v%d, %d, v%d" % (V_DMA + n, n * 16384 - 1024 * (n & 3), T + (n & 1)))
        plan.append((V_DMA + n, SRD_X, S_XK, n // 4 if n % 4 == 0 else None, 1024 * (n & 3)))
    for q in range(3): plan.append((V_DMA + 8 + q, SRD_Q, S_QK, 2 if q == 0 else None, 1024 * q))
    for g in range(7): plan.append((V_DMA + 11 + g, SRD_G, S_GK, 3 + g // 4 if g % 4 == 0 else None, 1024 * (g & 3)))
    LD = len(plan)
    A("s_lshl_b32 s%d, s%d, 13" % (S_M0, S_W))
    A("s_add_u32 s%d, s%d, 4096" % (S_M0 + 1, S_M0))
    A("s_mul_i32 s%d, s%d, 3072" % (S_M0 + 2, S_W))
    A("s_add_u32 s%d, s%d, %d" % (S_M0 + 2, S_M0 + 2, QB))
    A("s_and_b32 s3, s%d, 1" % S_W)
    A("s_mul_i32 s3, s3, 7168")
    A("s_cmp_ge_u32 s%d, 2" % S_W)
    A("s_mov_b32 s60, %d" % GB)
    A("s_cselect_b32 s%d, %d, s60" % (S_M0 + 3, UB))
    A("s_add_u32 s%d, s%d, s3" % (S_M0 + 3, S_M0 + 3))
    A("s_add_u32 s%d, s%d, 4096" % (S_M0 + 4, S_M0 + 3))
    for s in (S_XK, S_QK, S_GK): A("s_mov_b32 s%d, 0" % s)
    def dma_list(stage):
        L = []
        for (v, sd, so, m0i, off) in plan:
            g = []
            if m0i is not None:
                g.append("s_mov_b32 m0, s%d" % (S_M0 + m0i) if stage == 0 else "s_add_u32 m0, s%d, %d" % (S_M0 + m0i, STAGE * stage))
            g.append("buffer_load_dwordx4 v%d, s[%d:%d], s%d offen offset:%d lds" % (v, sd, sd + 3, so, off))
            L.append(g)
        L[-1] += ["s_add_u32 s%d, s%d, %d" % (S_XK, S_XK, BK * 2),
                  "s_add_u32 s%d, s%d, %d" % (S_GK, S_GK, BK * 7168),
                  "s_add_u32 s%d, s%d, %d" % (S_QK, S_QK, BK * 6144)]
        return L
    def emit(groups):
        for g in groups:
            for s in g: A(s)
            VM.issue()
    def rowperm(dst, src, tmp):
        A("v_and_b32 v%d, 0xfffffff3, v%d" % (dst, src))
        A("v_bfe_u32 v%d, v%d, 2, 1" % (tmp, src))
        A("v_lshl_or_b32 v%d, v%d, 3, v%d" % (dst, tmp, dst))
        A("v_bfe_u32 v%d, v%d, 3, 1" % (tmp, src))
        A("v_lshl_or_b32 v%d, v%d, 2, v%d" % (dst, tmp, dst))
    NEARLY = O("nearly", 1); NLATE = O("nlate", 1)
    if TOUCH:
        A("s_lshr_b32 s60, s2, 6")
        A("s_and_b32 s61, s%d, 1" % S_W)
        A("s_lshl_b32 s3, s60, 6")
        A("v_add_u32 v%d, s3, v1" % (T + 4))
        A("v_lshlrev_b32 v%d, 11, v%d" % (T + 4, T + 4))
        A("s_lshl_b32 s3, s61, 7")
        A("v_add_u32 v%d, s3, v%d" % (T + 4, T + 4))
        A("s_lshl_b32 s62, s%d, 4" % S_I)
        A("s_lshl_b32 s3, s61, 3")
        A("s_add_u32 s62, s62, s3")
        A("s_and_b32 s63, s%d, 28" % S_J)
        A("v_mul_u32_u24 v%d, 10923, v1" % (T + 5))
        A("v_lshrrev_b32 v%d, 16, v%d" % (T + 5, T + 5))
        A("v_mul_u32_u24 v%d, 6, v%d" % (T + 6, T + 5))
        A("v_sub_u32 v%d, v1, v%d" % (T + 6, T + 6))
        A("v_add_u32 v%d, s62, v%d" % (T + 5, T + 5))
        A("v_mul_u32_u24 v%d, 6144, v%d" % (T + 5, T + 5))
        A("v_lshrrev_b32 v%d, 1, v%d" % (T + 7, T + 6))
        A("v_lshl_add_u32 v%d, v%d, 11, v%d" % (T + 5, T + 7, T + 5))
        A("v_and_b32 v%d, 1, v%d" % (T + 6, T + 6))
        A("v_lshl_add_u32 v%d, v%d, 7, v%d" % (T + 5, T + 6, T + 5))
        A("s_lshl_b32 s3, s63, 6")
        A("v_add_u32 v%d, s3, v%d" % (T + 5, T + 5))
        A("v_mov_b32 v%d, 0x7ffffff0" % (T + 9))
        A("v_cmp_gt_u32 vcc, 48, v1")
        A("v_cndmask_b32 v%d, v%d, v%d, vcc" % (T + 5, T + 9, T + 5))
        A("v_mul_u32_u24 v%d, 9363, v1" % (T + 6))
        A("v_lshrrev_b32 v%d, 16, v%d" % (T + 6, T + 6))
        A("v_mul_u32_u24 v%d, 7, v%d" % (T + 7, T + 6))
        A("v_sub_u32 v%d, v1, v%d" % (T + 7, T + 7))
        A("v_add_u32 v%d, s62, v%d" % (T + 6, T + 6))
        A("v_mul_u32_u24 v%d, 7168, v%d" % (T + 6, T + 6))
        A("v_lshl_add_u32 v%d, v%d, 7, v%d" % (T + 6, T + 7, T + 6))
        A("s_mul_i32 s3, s63, 224")
        A("v_add_u32 v%d, s3, v%d" % (T + 6, T + 6))
        A("v_cmp_gt_u32 vcc, 56, v1")
        A("v_cndmask_b32 v%d, v%d, v%d, vcc" % (T + 6, T + 9, T + 6))
        A("s_and_b32 s3, s2, 63")
        A("s_lshl_b32 s3, s3, 1")
        A("s_add_u32 s3, s3, s61")
        A("s_lshl_b32 s3, s3, 13")
        A("v_lshlrev_b32 v%d, 7, v1" % (T + 7))
        A("v_add_u32 v%d, s3, v%d" % (T + 7, T + 7))
    A("s_waitcnt lgkmcnt(0)")
    A("s_lshl_b32 s64, s%d, 19" % S_I)
    mk_srd(A, SRD_X, 4, 5, 64, 2048 * 2048)
    if TOUCH:
        def sel(cond_sgpr, val, voff, lo, hi, size, step, start):
            A("s_cmp_eq_u32 s%d, %d" % (cond_sgpr, val))
            A("s_cselect_b64 vcc, -1, 0")
            A("s_cselect_b32 s%d, s%d, s%d" % (SRD_T, lo, SRD_T))
            A("s_cselect_b32 s%d, s%d, s%d" % (SRD_T + 1, hi, SRD_T + 1))
            A("s_cselect_b32 s%d, %d, s%d" % (SRD_T + 2, size, SRD_T + 2))
            A("s_cselect_b32 s%d, %d, s%d" % (S_TSTEP, step, S_TSTEP))
            A("s_cselect_b32 s%d, %d, s%d" % (S_TK, start, S_TK))
            A("v_cndmask_b32 v%d, v%d, v%d, vcc" % (V_TCH, V_TCH, voff))
        A("s_mov_b32 s%d, s6" % SRD_T); A("s_mov_b32 s%d, s7" % (SRD_T + 1))
        A("s_mov_b32 s%d, %d" % (SRD_T + 2, 1024 * 6144)); A("s_mov_b32 s%d, 0x20000" % (SRD_T + 3))
        A("s_mov_b32 s%d, %d" % (S_TSTEP, 128 * 6144))
        A("s_mov_b32 s%d, %d" % (S_TK, 0 if NEARLY else 128 * 6144))
        A("v_mov_b32 v%d, v%d" % (V_TCH, T + 5))
        sel(60, 1, T + 6, 52, 53, 1024 * 7168, 128 * 7168, 0 if NEARLY else 128 * 7168)
        sel(60, 2, T + 6, 54, 55, 1024 * 7168, 128 * 7168, 0 if NEARLY else 128 * 7168)
        sel(60, 3, T + 7, 40, 41, 3584 * 2048, 1 << 20, (1 << 32) - (NEARLY << 20) if NEARLY else 0)
        A("s_lshr_b32 s61, s%d, 1" % S_W)
        sel(61, 0, T + 4, SRD_X, SRD_X + 1, 256 * 2048, 256, 0 if NEARLY else 256)
        def touch():
            return ["buffer_load_dword v%d, v%d, s[%d:%d], s%d offen" % (V_TCH + 1, V_TCH, SRD_T, SRD_T + 3, S_TK),
                    "s_add_u32 s%d, s%d, s%d" % (S_TK, S_TK, S_TSTEP)]
        emit([touch() for _ in range(NEARLY)])
    D0 = dma_list(0)
    emit(D0[0:8])
    A("s_and_b32 s3, s%d, 1" % S_W)
    A("s_mul_i32 s3, s3, 448")
    A("s_and_b32 s65, s%d, 1" % S_J)
    A("s_lshl_b32 s65, s65, 1")
    for g in range(7):
        A("v_add_u32 v%d, s3, v1" % T)
        if g: A("v_add_u32 v%d, %d, v%d" % (T, 64 * g, T))
        A("v_mul_u32_u24 v%d, 4682, v%d" % (T + 1, T))
        A("v_lshrrev_b32 v%d, 16, v%d" % (T + 1, T + 1))
        A("v_mul_u32_u24 v%d, 14, v%d" % (T + 2, T + 1))
        A("v_sub_u32 v%d, v%d, v%d" % (T + 2, T, T + 2))
        A("v_add_u32 v%d, s65, v%d" % (T + 2, T + 2))
        A("v_subrev_u32 v%d, 14, v%d" % (T + 3, T + 2))
        A("v_min_u32 v%d, v%d, v%d" % (T + 2, T + 2, T + 3))
        rowperm(T + 4, T + 1, T + 3)
        A("v_mul_u32_u24 v%d, 7168, v%d" % (T + 1, T + 4))
        A("v_lshl_add_u32 v%d, v%d, 4, v%d" % (T + 1, T + 2, T + 1))
        A("v_subrev_u32 v%d, %d, v%d" % (V_DMA + 11 + g, 1024 * (g & 3), T + 1))
    A("s_cmp_ge_u32 s%d, 2" % S_W)
    A("s_cselect_b32 s60, s54, s52")
    A("s_cselect_b32 s61, s55, s53")
    A("s_mul_i32 s3, s%d, 224" % S_J)
    mk_srd(A, SRD_G, 60, 61, 3, 1024 * 7168)
    emit([g[:2] if len(g) > 2 and not g[0].startswith("buffer") else g[:1] if g[0].startswith("buffer") else g for g in D0[11:18]])
    A("s_mul_i32 s3, s%d, 192" % S_W)
    for q in range(3):
        A("v_add_u32 v%d, s3, v1" % T)
        if q: A("v_add_u32 v%d, %d, v%d" % (T, 64 * q, T))
        A("v_mul_u32_u24 v%d, 5462, v%d" % (T + 1, T))
        A("v_lshrrev_b32 v%d, 16, v%d" % (T + 1, T + 1))
        A("v_mul_u32_u24 v%d, 12, v%d" % (T + 2, T + 1))
        A("v_sub_u32 v%d, v%d, v%d" % (T + 2, T, T + 2))
        A("v_bfe_u32 v%d, v%d, 2, 1" % (T + 3, T + 1))
        A("v_lshlrev_b32 v%d, 1, v%d" % (T + 3, T + 3))
        A("v_xor_b32 v%d, v%d, v%d" % (T + 2, T + 2, T + 3))
        rowperm(T + 4, T + 1, T + 3)
        A("v_mul_u32_u24 v%d, 6144, v%d" % (T + 1, T + 4))
        A("v_lshrrev_b32 v%d, 2, v%d" % (T + 3, T + 2))
        A("v_lshlrev_b32 v%d, 11, v%d" % (T + 3, T + 3))
        A("v_and_b32 v%d, 3, v%d" % (T + 2, T + 2))
        A("v_lshlrev_b32 v%d, 4, v%d" % (T + 2, T + 2))
        A("v_add3_u32 v%d, v%d, v%d, v%d" % (T + 1, T + 1, T + 2, T + 3))
        A("v_subrev_u32 v%d, %d, v%d" % (V_DMA + 8 + q, 1024 * q, T + 1))
    A("s_lshl_b32 s3, s%d, 6" % S_J)
    mk_srd(A, SRD_Q, 6, 7, 3, 1024 * 6144)
    emit(D0[8:11])
    for s in D0[17][1:]: A(s)
    mk_srd(A, SRD_W, 58, 59, None, WS_SIZE)
    S_F1 = 44
    A("s_lshl_b32 s%d, s%d, 7" % (S_F1, S_J))
    A("s_add_u32 s%d, s%d, %d" % (S_F1, S_F1, WS_FLG1))
    A("s_lshl_b32 s3, s%d, 2" % S_I)
    A("s_add_u32 s3, s3, s%d" % S_W)
    A("s_lshl_b32 s45, s3, 2")
    A("s_lshr_b32 s3, s3, 1")
    A("s_lshl_b32 s3, s3, 5")
    A("s_add_u32 s3, s3, s%d" % S_J)
    A("s_lshl_b32 s3, s3, 1")
    A("s_and_b32 s60, s%d, 1" % S_W)
    A("s_add_u32 s3, s3, s60")
    A("s_lshl_b32 s3, s3, 2")
    A("s_add_u32 s77, s3, %d" % WS_FLGH)
    k2ids(A, 61, 62, 63, 64)
    A("s_add_u32 s3, s%d, s45" % S_F1)
    A("v_mov_b32 v%d, s3" % T)
    A("v_writelane_b32 v%d, s77, 1" % T)
    A("s_add_u32 s3, s77, %d" % (WS_FLGO - WS_FLGH))
    A("v_writelane_b32 v%d, s3, 2" % T)
    A("s_cmp_eq_u32 s%d, 0" % 63)
    A("s_cselect_b32 s3, s%d, s77" % 64)
    A("v_writelane_b32 v%d, s3, 3" % T)
    A("v_mov_b32 v%d, 0" % (T + 1))
    A("buffer_store_dword v%d, v%d, s[%d:%d], 0 offen sc1" % (T + 1, T, SRD_W, SRD_W + 3)); VM.issue()
    mk_srd(A, SRD_P, 42, 43, None, 2048)
    A("v_and_b32 v%d, 31, v0" % T)
    A("v_lshlrev_b32 v%d, 6, v%d" % (T, T))
    A("v_lshrrev_b32 v%d, 5, v0" % (T + 1))
    A("s_lshl_b32 s3, s%d, 3" % S_J)
    A("v_add_u32 v%d, s3, v%d" % (T + 1, T + 1))
    A("v_lshl_add_u32 v%d, v%d, 11, v%d" % (T + 2, T + 1, T))
    GX = V_ACC; GW = V_ACC + 16
    for q in range(4):
        A("buffer_load_dwordx4 %s, v%d, s[%d:%d], 0 offen offset:%d" % (vr(GX + 4 * q, 4), T + 2, SRD_X, SRD_X + 3, 16 * q))
        A("buffer_load_dwordx4 %s, v%d, s[%d:%d], 0 offen offset:%d" % (vr(GW + 4 * q, 4), T, SRD_P, SRD_P + 3, 16 * q))
        VM.issue("g", 2)
    EARLY = O("early", 8)
    D1 = dma_list(1)
    emit(D1[:EARLY])
    A("s_lshl_b32 s3, s%d, 11" % S_J)
    mk_srd(A, SRD_P, 66, 67, 3, 65536)
    A("s_and_b32 s3, s%d, 1" % S_W)
    A("s_lshl_b32 s47, s3, 10")
    A("v_lshl_add_u32 v%d, v1, 4, s47" % (T + 3))
    late = D1[EARLY:] + [["s_add_u32 m0, s47, %d" % WPB, "buffer_load_dwordx4 v%d, s[%d:%d], 0 offen lds" % (T + 3, SRD_P, SRD_P + 3)]]
    mk_srd(A, SRD_D, 56, 57, None, 256)
    if TOUCH: late += [touch() for _ in range(NLATE)]
    A("s_load_dwordx2 s[4:5], s[0:1], 24")
    A("s_load_dwordx2 s[56:57], s[0:1], 72")
    A("v_and_b32 v%d, 15, v1" % (T + 4))
    A("v_lshlrev_b32 v%d, 7, v%d" % (T + 4, T + 4))
    A("s_lshl_b32 s3, s%d, 13" % S_W)
    A("v_add_u32 v%d, s3, v%d" % (T + 4, T + 4))
    A("v_bfe_u32 v%d, v1, 1, 3" % (T + 5))
    A("v_lshrrev_b32 v%d, 4, v1" % (T + 6))
    for ks in range(2):
        A("v_or_b32 v%d, %d, v%d" % (T + 7, ks * 4, T + 6))
        A("v_xor_b32 v%d, v%d, v%d" % (T + 7, T + 7, T + 5))
        A("v_lshl_add_u32 v%d, v%d, 4, v%d" % (V_XRD + ks, T + 7, T + 4))
        A("v_add_u32 v%d, %d, v%d" % (V_XRD + 2 + ks, STAGE, V_XRD + ks))
    A("v_bfe_u32 v%d, v1, 2, 2" % (T + 4))
    A("v_and_b32 v%d, 3, v1" % (T + 5))
    A("v_bfe_u32 v%d, v1, 4, 1" % (T + 7))
    A("v_lshrrev_b32 v%d, 5, v1" % (T + 8))
    A("v_lshl_add_u32 v%d, v%d, 4, v%d" % (T + 4, T + 8, T + 4))
    A("v_lshl_add_u32 v%d, v%d, 2, v%d" % (T + 4, T + 7, T + 4))
    A("v_lshlrev_b32 v%d, 3, v%d" % (T + 5, T + 5))
    A("v_mul_u32_u24 v%d, 192, v%d" % (T + 9, T + 4))
    A("v_add_u32 v%d, v%d, v%d" % (T + 9, T + 9, T + 5))
    for h in range(2):
        A("v_xor_b32 v%d, %d, v%d" % (T + 8, h, T + 7))
        A("v_lshl_add_u32 v%d, v%d, 5, v%d" % (T + 8, T + 8, T + 9))
        for st in range(2): A("v_add_u32 v%d, %d, v%d" % (V_QRD + st * 2 + h, QB + STAGE * st, T + 8))
    A("v_mul_u32_u24 v%d, 224, v%d" % (T + 9, T + 4))
    A("v_add_u32 v%d, v%d, v%d" % (T + 8, T + 9, T + 5))
    for st in range(2): A("v_add_u32 v%d, %d, v%d" % (V_GRD + st, GB + STAGE * st, T + 8))
    A("s_mov_b32 s%d, 0x%x" % (S_C, LOG2E)); A("s_mov_b32 s%d, 0x%x" % (S_C + 1, LOG2E))
    stamp(False)
    A("s_waitcnt vmcnt(%d) lgkmcnt(0)" % VM.wait_for(["g"]))
    A("s_barrier")
    def xread(stage, ks, p, tb):
        return "ds_read_b128 %s, v%d offset:%d" % (xf(p, tb), V_XRD + 2 * stage + ks, tb * 2048)
    def wread(stage, ks, cb, n, t):
        b = BLK[cb]
        if b[0] == "q":
            return "ds_read_b64_tr_b16 %s, v%d offset:%d" % (wf(n, t), V_QRD + stage * 2 + b[2], (ks * 32 + t * 8) * 192 + b[1] * 64)
        return "ds_read_b64_tr_b16 %s, v%d offset:%d" % (wf(n, t), V_GRD + stage, (ks * 32 + t * 8) * 224 + b[1] * 32 + (UB - GB if b[0] == "u" else 0))
    Q = Cnt(15)
    for tb in range(NTB):
        A(xread(0, 0, 0, tb)); Q.issue(("x", 0, tb))
    for n in range(D):
        for t in range(2):
            A(wread(0, 0, n, n, t)); Q.issue(("w", n))
    A("v_mov_b32 v%d, 0" % (T + 4))
    A("v_mov_b32 v%d, 0" % (T + 5))
    for q in range(8):
        A("v_dot2c_f32_bf16 v%d, v%d, v%d" % (T + 4, GX + 2 * q, GW + 2 * q))
        A("v_dot2c_f32_bf16 v%d, v%d, v%d" % (T + 5, GX + 2 * q + 1, GW + 2 * q + 1))
    A("s_nop 2")
    A("v_add_f32 v%d, v%d, v%d" % (T + 4, T + 4, T + 5))
    for sh in (8, 4, 2, 1):
        A("v_add_f32_dpp v%d, v%d, v%d row_ror:%d row_mask:0xf bank_mask:0xf" % (T + 4, T + 4, T + 4, sh))
    A("v_mov_b32 v%d, v%d" % (T + 5, T + 4))
    A("v_permlane16_swap_b32 v%d, v%d" % (T + 4, T + 5))
    A("v_add_f32 v%d, v%d, v%d" % (T + 4, T + 4, T + 5))
    A("v_mul_f32 v%d, s%d, v%d" % (T + 4, S_C, T + 4))
    A("v_exp_f32 v%d, -v%d" % (T + 4, T + 4))
    A("v_add_f32 v%d, 1.0, v%d" % (T + 4, T + 4))
    A("v_rcp_f32 v%d, v%d" % (T + 4, T + 4))
    A("s_lshl_b32 s3, s%d, 8" % S_I)
    A("v_add_u32 v%d, s3, v%d" % (T + 1, T + 1))
    A("v_lshlrev_b32 v%d, 2, v%d" % (T + 1, T + 1))
    A("v_add_u32 v%d, %d, v%d" % (T + 1, WS_G, T + 1))
    A("buffer_store_dword v%d, v%d, s[%d:%d], 0 offen sc1" % (T + 4, T + 1, SRD_W, SRD_W + 3)); VM.issue()
    A("s_lshl_b32 s3, s%d, 3" % S_J)
    A("s_add_u32 s3, s3, s%d" % S_I)
    A("s_cmp_eq_u32 s%d, 0" % S_W)
    A("s_cselect_b32 s3, s3, 0x1000")
    A("v_mov_b32 v%d, s3" % (T + 5))
    A("v_mov_b32 v%d, 1" % (T + 6))
    bytest = "buffer_store_byte v%d, v%d, s[%d:%d], 0 offen sc1" % (T + 6, T + 5, SRD_D, SRD_D + 3)
    NPRO = 1 + (NLATE if TOUCH else 0)
    if STAMP: stamp(); stamp.real()


    NS = 4; ST2 = 16384; AB = 65536
    NF1 = 56 - NH
    NPEEL = O("npeel", 20)
    assert NH % 4 == 0 and NH >= NPEEL + 8 and NF1 >= NPEEL + 4
    S_MT, S_NT, S_KH, S_XF = 52, 53, 54, 55
    S_AK, S_WK, S_KT, S_SW, S_N1 = 28, 29, 30, 31, 34
    SRD_A, SRD_B, SRD_O = 8, 12, 16
    S_B2 = 72; S_WM, S_WN = 42, 43; S_HF = 70
    P_DMA, P_XRD, P_WRD, P_TOK, P_GA, P_VL, P_Z0, P_L4 = 2, 10, 11, 15, 16, 17, 18, 19
    def groups(B, n=2):
        L = []; i = 0
        while i < len(B.lines):
            k = n
            while i + k < len(B.lines) and ("s_addc" in B.lines[i + k] or "s_cselect" in B.lines[i + k]): k += 1
            L.append([x.strip() for x in B.lines[i:i + k]]); i += k
        return L
    def m0set(i, stage):
        return "s_add_u32 m0, s%d, %d" % (S_M0 + i, ST2 * stage) if stage else "s_mov_b32 m0, s%d" % (S_M0 + i)
    def lda(n): return "buffer_load_dwordx4 v%d, s[%d:%d], s%d offen offset:%d%s lds" % (P_DMA + (n & 2), SRD_A, SRD_A + 3, S_AK, 1024 * n, DSC)
    def ldw(n): return "buffer_load_dwordx4 v%d, s[%d:%d], s%d offen offset:%d lds" % (P_DMA + 4 + n, SRD_B, SRD_B + 3, S_WK, 1024 * n)
    def wotouch():
        B = Asm()
        mk_srd(B, 72, 4, 5, None, 1024 * 2048)
        B("s_lshr_b32 s3, s2, 3")
        B("s_lshl_b32 s3, s3, 2")
        B("s_add_u32 s3, s3, s%d" % S_W)
        B("s_lshl_b32 s3, s3, 14")
        B("s_bfe_u32 s6, s2, 0x10002")
        B("s_lshl_b32 s6, s6, 10")
        B("s_add_u32 s3, s3, s6")
        B("v_lshrrev_b32 v32, 3, v1")
        B("v_lshlrev_b32 v32, 11, v32")
        B("v_and_b32 v33, 7, v1")
        B("v_lshl_add_u32 v32, v33, 7, v32")
        B("buffer_load_dword v33, v32, s[72:75], s3 offen")
        return groups(B, 3)
    def wsetup():
        B = Asm()
        k2ids(B, S_MT, S_NT, S_KH, S_XF)
        B("v_lshrrev_b32 v32, 4, v1")
        B("v_and_b32 v33, 15, v1")
        B("v_lshlrev_b32 v34, 1, v32")
        B("v_xor_b32 v33, v33, v34")
        B("s_lshl_b32 s3, s%d, 4" % S_W)
        B("v_add_u32 v32, s3, v32")
        B("v_lshlrev_b32 v32, 11, v32")
        B("v_lshl_add_u32 v32, v33, 4, v32")
        B("v_xor_b32 v33, 128, v32")
        for n in range(4):
            B("v_add_u32 v%d, %d, v%d" % (P_DMA + 4 + n, n * 4 * 2048 - 1024 * n, 32 + (n >> 1)))
        B("s_lshl_b32 s%d, s%d, 12" % (S_M0 + 1, S_W))
        B("s_add_u32 s%d, s%d, %d" % (S_M0, S_M0 + 1, AB))
        B("s_mul_i32 s3, s%d, %d" % (S_KH, NH * 64 * 2048))
        B("s_lshl_b32 s6, s%d, 8" % S_NT)
        B("s_add_u32 s3, s3, s6")
        B("s_add_u32 s%d, s40, s3\ns_addc_u32 s%d, s41, 0" % (SRD_B, SRD_B + 1))
        B("s_sub_u32 s%d, %d, s3" % (SRD_B + 2, 3584 * 2048))
        B("s_mov_b32 s%d, 0" % S_WK)
        return groups(B, 3)
    def wdma():
        L = []
        for stg in range(NS):
            for n in range(4):
                g = ([m0set(1, stg)] if n == 0 else []) + [ldw(n)]
                if n == 3: g.append("s_add_u32 s%d, s%d, %d" % (S_WK, S_WK, 64 * 2048))
                L.append(g)
        return L
    def rest():
        B = Asm()
        B("s_mov_b32 s47, %d" % (WS_FLGO - WS_FLGH))
        B("s_lshl_b32 s6, s%d, 8" % S_NT)
        B("s_add_u32 s%d, s4, s6\ns_addc_u32 s%d, s5, 0" % (S_B2, S_B2 + 1))
        B("s_sub_u32 s%d, %d, s6" % (S_B2 + 2, 1024 * 2048))
        B("v_lshlrev_b32 v%d, 4, v1" % P_VL)
        B("s_mul_i32 s3, s%d, %d" % (S_W, 2 * MBS))
        B("v_add_u32 v%d, s3, v%d" % (P_DMA, P_VL))
        B("v_add_u32 v%d, %d, v%d" % (P_DMA + 2, MBS - 2048, P_DMA))
        B("s_mov_b32 s%d, 0" % S_AK); B("s_mov_b32 s%d, %d" % (S_KT, NS))
        jh = (64 * NH - 1) // 112; jf = 64 * NH // 112
        full = (1 << 64) - 1
        ih = full ^ ((1 << (2 * jh + 2)) - 1); if_ = (1 << (2 * jf)) - 1
        B("s_mov_b32 s68, 0x%x" % (if_ & 0xffffffff)); B("s_mov_b32 s69, 0x%x" % (if_ >> 32))
        B("s_cmp_eq_u32 s%d, 0" % S_KH)
        B("s_cselect_b32 s%d, -1, %d" % (S_SW, NF1))
        B("s_cselect_b32 s%d, %d, %d" % (S_N1, (NH - NPEEL - 4) // 4, (NF1 - NPEEL) // 4))
        B("s_cselect_b32 s68, 0x%x, s68" % (ih & 0xffffffff)); B("s_cselect_b32 s69, 0x%x, s69" % (ih >> 32))
        B("s_mul_i32 s3, s%d, %d" % (S_MT, 8 * MBS))
        B("s_mul_i32 s6, s%d, %d" % (S_KH, NH * 2048))
        B("s_add_u32 s3, s3, s6")
        mk_srd(B, SRD_A, 58, 59, 3, 128 * MBS)
        mk_srd(B, SRD_O, 56, 57, None, 2048 * 2048)
        B("s_lshr_b32 s%d, s%d, 1" % (S_WM, S_W)); B("s_and_b32 s%d, s%d, 1" % (S_WN, S_W))
        B("s_lshl_b32 s6, s%d, 7" % S_MT)
        B("s_lshl_b32 s3, s%d, 6" % S_WM)
        B("s_add_u32 s6, s6, s3")
        B("v_and_b32 v32, 15, v1")
        B("v_add_u32 v%d, s6, v32" % P_TOK)
        B("v_lshlrev_b32 v%d, 2, v%d" % (P_GA, P_TOK))
        B("v_add_u32 v%d, %d, v%d" % (P_GA, WS_G, P_GA))
        B("s_lshl_b32 s3, s%d, 13" % S_WM)
        B("s_add_u32 s3, s3, %d" % AB)
        B("v_add_u32 v%d, s3, v%d" % (P_XRD, P_VL))
        B("v_lshrrev_b32 v34, 4, v1")
        B("v_bfe_u32 v32, v1, 2, 2")
        B("v_lshl_add_u32 v33, v34, 3, v32")
        B("v_lshlrev_b32 v33, 8, v33")
        B("v_and_b32 v35, 3, v1")
        B("v_lshl_add_u32 v33, v35, 3, v33")
        B("v_bfe_u32 v35, v1, 4, 1")
        B("v_lshl_add_u32 v32, v35, 2, v32")
        B("s_lshl_b32 s3, s%d, 2" % S_WN)
        for cb in range(4):
            B("s_add_u32 s6, s3, %d" % cb)
            B("v_xor_b32 v35, s6, v32")
            B("v_lshl_add_u32 v%d, v35, 5, v33" % (P_WRD + cb))
        B("v_mov_b32 v%d, 0" % P_Z0)
        B("v_lshlrev_b32 v%d, 2, v1" % P_L4)
        B("s_lshl_b32 s%d, s%d, 8" % (S_HF, S_MT))
        B("s_add_u32 s%d, s%d, %d" % (S_HF, S_HF, WS_FLGH))
        B("s_mov_b32 s46, 0x01010101")
        return groups(B, 3)

    st = {"pend": late}
    PB = 40 - D
    def tile(stage, first, dma_next, has_next, vm_extra, do_touch, extra=None, after=None):
        if extra: st["pend"] = st["pend"] + extra
        for n in range(40):
            ks, cb = divmod(n, 20)
            pre = []
            if n == PB and has_next:
                assert not st["pend"]
                pre += ["s_waitcnt lgkmcnt(0) vmcnt(%d)" % vm_extra, "s_barrier"]
                if first: pre.append(bytest)
                if dma_next: st["pend"] = dma_list(stage)
                if do_touch: st["pend"].append(touch())
                if after: st["pend"] = st["pend"] + after
            need_tags = [("w", n)] + ([("x", ks, tb) for tb in range(NTB)] if cb == 0 else [])
            if not (n == PB and has_next):
                pre.append("s_waitcnt lgkmcnt(%d)" % Q.wait_for(need_tags))
            rds = []
            def addw(m):
                if m < 40:
                    k2, c2 = divmod(m, 20)
                    for t in range(2): rds.append((wread(stage, k2, c2, m, t), ("w", m)))
                elif has_next:
                    for t in range(2): rds.append((wread(stage ^ 1, 0, m - 40, m, t), ("w", m - 40)))
            if n == PB - 2: addw(n + D); addw(n + D + 1)
            elif n == PB - 1: pass
            else: addw(n + D)
            if ks == 0 and cb in (4, 7, 10, 13):
                tb = (cb - 4) // 3
                rds.append((xread(stage, 1, 1, tb), ("x", 1, tb)))
            if has_next and n >= PB and n < PB + 4:
                tb = n - PB
                rds.append((xread(stage ^ 1, 0, 0, tb), ("x", 0, tb)))
            for s in pre: A(s)
            k = 0
            for tb in range(NTB):
                a, b = wf(n), xf(ks, tb)
                if BLK[cb][0] == "q" and BLK[cb][1] == 2: a, b = b, a
                c = "0" if (first and ks == 0) else acc(cb, tb)
                A("v_mfma_f32_16x16x32_bf16 %s, %s, %s, %s" % (acc(cb, tb), a, b, c))
                if k < len(rds):
                    A(rds[k][0]); Q.issue(rds[k][1]); k += 1
                if tb == 3:
                    while k < len(rds):
                        A(rds[k][0]); Q.issue(rds[k][1]); k += 1
                    if st["pend"]:
                        for s in st["pend"].pop(0): A(s)
    assert 40 % RING == 0 and D + 2 <= RING
    nt = 1 if TOUCH else 0
    tile(0, True, True, True, NPRO, False)
    A("s_mov_b32 s%d, 0" % S_CNT)
    A.label("L_k1_loop")
    if STAMP == 2:
        A("s_memtime s[100:101]"); A("s_waitcnt lgkmcnt(0)"); A("s_sub_u32 s100, s100, s80")
        A("s_mov_b32 m0, s%d" % S_CNT); A("s_nop 0"); A("v_writelane_b32 v47, s100, m0")
        A("s_add_u32 m0, s%d, 0" % (S_M0 + 1))
    tile(1, False, True, True, 0, TOUCH)
    tile(0, False, True, True, nt, False)
    A("s_add_u32 s%d, s%d, 1" % (S_CNT, S_CNT))
    A("s_cmp_lt_u32 s%d, 6" % S_CNT)
    A("s_cbranch_scc1 L_k1_loop")
    if STAMP == 2:
        for q in range(6):
            r = 82 + len(stamp.regs); stamp.regs.append(r)
            A("v_readlane_b32 s%d, v47, %d" % (r, q)); A("s_nop 1"); A("s_add_u32 s%d, s%d, s80" % (r, r))
        stamp()
        stamp.off = True
    tile(1, False, True, True, 2, False, [touch()] + wotouch())
    tile(0, False, False, True, 0, False, wsetup(), wdma())
    tile(1, False, False, False, 0, False, rest())
    assert not st["pend"]
    stamp(); stamp.real()

    E = 2
    def pk(op, d, a, b, c=None, mods=""):
        if c is None: A("%s %s, %s, %s %s" % (op, d, a, b, mods))
        else: A("%s %s, %s, %s, %s %s" % (op, d, a, b, c, mods))
    def rsag2(op, qa, opb, qb):
        seqs = []
        for (o, q) in ((op, qa), (opb, qb)):
            seqs.append([
                "v_permlane32_swap_b32 v%d, v%d" % (q[0], q[1]),
                "v_permlane32_swap_b32 v%d, v%d" % (q[2], q[3]),
                "%s v%d, v%d, v%d" % (o, q[0], q[0], q[1]),
                "%s v%d, v%d, v%d" % (o, q[2], q[2], q[3]),
                "v_permlane16_swap_b32 v%d, v%d" % (q[0], q[2]),
                "%s v%d, v%d, v%d" % (o, q[0], q[0], q[2]),
                "v_mov_b32 v%d, v%d" % (q[2], q[0]),
                "v_permlane16_swap_b32 v%d, v%d" % (q[0], q[2]),
                "v_mov_b32 v%d, v%d" % (q[1], q[0]),
                "v_mov_b32 v%d, v%d" % (q[3], q[2]),
                "v_permlane32_swap_b32 v%d, v%d" % (q[0], q[1]),
                "v_permlane32_swap_b32 v%d, v%d" % (q[2], q[3])])
        for x, y in zip(*seqs):
            A(x); A(y)
    MX = [232, 234, 236, 238]; MN = [240, 242, 244, 246]; PB16 = 20; WP = 176
    def feature(cb0):
        for tb in range(NTB):
            for h in range(2):
                f, b = accb(cb0 + h, tb); assert f == "v"
                A("v_cvt_pk_bf16_f32 v%d, v%d, v%d" % (PB16 + 4 * tb + 2 * h, b, b + 1))
                A("v_cvt_pk_bf16_f32 v%d, v%d, v%d" % (PB16 + 4 * tb + 2 * h + 1, b + 2, b + 3))
        for tb in range(NTB):
            for fb in range(2):
                A("v_mfma_f32_16x16x32_bf16 %s, %s, %s, 0" % (acc(cb0 + fb, tb), vr(WP + 4 * fb, 4), vr(PB16 + 4 * tb, 4)))
    def feature2(cb0):
        for tb in range(NTB):
            p0 = accb(cb0, tb)[1]; p1 = accb(cb0 + 1, tb)[1]
            for step in range(4):
                for (op3, op2, d) in (("v_max3_f32", "v_max_f32", MX[tb]), ("v_min3_f32", "v_min_f32", MN[tb])):
                    if step == 0: A("%s v%d, v%d, v%d, v%d" % (op3, d, p0, p0 + 1, p0 + 2))
                    if step == 1: A("%s v%d, v%d, v%d, v%d" % (op3, d, d, p0 + 3, p1))
                    if step == 2: A("%s v%d, v%d, v%d, v%d" % (op3, d, d, p1 + 1, p1 + 2))
                    if step == 3: A("%s v%d, v%d, v%d" % (op2, d, d, p1 + 3))
        rsag2("v_max_f32", MX, "v_min_f32", MN)
        for b in MX + MN: A("v_mul_f32 v%d, s%d, v%d" % (b, S_C, b))
    def exps(cb0, tb, EM):
        for h in range(2):
            p = accb(cb0 + h, tb)[1]
            for u in range(2):
                pk("v_pk_fma_f32", vr(EM + 4 * h + 2 * u, 2), vr(p + 2 * u, 2), sr(S_C, 2), vr(MN[tb], 2),
                   "op_sel_hi:[1,1,0] neg_lo:[1,0,0] neg_hi:[1,0,0]")
                pk("v_pk_fma_f32", vr(p + 2 * u, 2), vr(p + 2 * u, 2), sr(S_C, 2), vr(MX[tb], 2),
                   "op_sel_hi:[1,1,0] neg_lo:[0,0,1] neg_hi:[0,0,1]")
        for h in range(2):
            p = accb(cb0 + h, tb)[1]
            for r in range(4):
                A("v_exp_f32 v%d, v%d" % (p + r, p + r))
                A("v_exp_f32 v%d, v%d" % (EM + 4 * h + r, EM + 4 * h + r))
    VH = 36; VS = 37
    A("v_and_b32 v%d, 15, v1" % VH)
    A("v_lshlrev_b32 v%d, 4, v%d" % (VH, VH))
    A("v_lshrrev_b32 v38, 5, v1")
    A("v_lshl_add_u32 v%d, v38, 8, v%d" % (VH, VH))
    A("v_bfe_u32 v38, v1, 4, 1")
    A("v_mul_u32_u24 v%d, %d, v38" % (VS, MBS))
    A("v_add_u32 v%d, v%d, v%d" % (VS, VS, VH))
    A("v_lshl_add_u32 v%d, v38, 9, v%d" % (VH, VH))
    A("s_lshl_b32 s3, s%d, 4" % S_I)
    A("s_lshl_b32 s62, s%d, 2" % S_W)
    A("s_add_u32 s62, s62, s3")
    A("s_mul_i32 s62, s62, %d" % MBS)
    A("s_mul_i32 s3, s%d, 7" % S_J)
    A("s_add_u32 s3, s3, 1")
    A("s_lshr_b32 s3, s3, 1")
    A("s_lshl_b32 s3, s3, 10")
    A("s_add_u32 s63, s62, s3")
    for tb in range(1, 4): A("s_add_u32 s%d, s63, %d" % (63 + tb, tb * MBS))
    A("s_add_u32 s67, s63, 3072")
    A("s_sub_u32 s3, s63, 512")
    A("s_bitcmp1_b32 s%d, 0" % S_J)
    A("s_cselect_b32 s67, s3, s67")
    A("s_add_u32 s76, s67, %d" % (2 * MBS))
    FREEV = [accb(6, 0)[1] + 4 * i for i in range(16)]
    def glu(fb, fi):
        gs, us = [], []
        for tb in range(4):
            out = []
            for cb in (6 + 2 * fb, 7 + 2 * fb):
                f, b = accb(cb, tb)
                if f == "a":
                    d = FREEV[fi]; fi += 1
                    for r in range(4): A("v_accvgpr_read_b32 v%d, a%d" % (d + r, b + r))
                    b = d
                out.append(b)
            gs.append(out[0]); us.append(out[1])
        for tb in range(4):
            for u in range(2): pk("v_pk_mul_f32", vr(gs[tb] + 2 * u, 2), vr(gs[tb] + 2 * u, 2), sr(S_C, 2))
        for tb in range(4):
            for r in range(4): A("v_exp_f32 v%d, -v%d" % (gs[tb] + r, gs[tb] + r))
        for tb in range(4):
            for u in range(2): pk("v_pk_add_f32", vr(gs[tb] + 2 * u, 2), vr(gs[tb] + 2 * u, 2), "1.0", None, "op_sel_hi:[1,0]")
        for tb in range(4):
            for r in range(4): A("v_rcp_f32 v%d, v%d" % (gs[tb] + r, gs[tb] + r))
        for tb in range(4):
            for u in range(2): pk("v_pk_mul_f32", vr(gs[tb] + 2 * u, 2), vr(gs[tb] + 2 * u, 2), vr(us[tb] + 2 * u, 2))
        return gs, us
    def packswap(dst, a, b):
        for (d, x) in ((dst, a), (dst + 2, b)):
            A("v_cvt_pk_bf16_f32 v%d, v%d, v%d" % (d, x, x + 1))
            A("v_cvt_pk_bf16_f32 v%d, v%d, v%d" % (d + 1, x + 2, x + 3))
    def doswap(d):
        A("v_permlane16_swap_b32 v%d, v%d" % (d, d + 2))
        A("v_permlane16_swap_b32 v%d, v%d" % (d + 1, d + 3))
    def glu_pair(p, D4):
        g0, u0 = glu(2 * p, 0)
        g1, u1 = glu(2 * p + 1, 8)
        for tb in range(4): packswap(D4[tb], g0[tb], g1[tb])
        for tb in range(4): doswap(D4[tb])
        return ["buffer_store_dwordx4 %s, v%d, s[%d:%d], s%d offen offset:%d%s" % (vr(D4[tb], 4), VH, SRD_W, SRD_W + 3, 63 + tb, p * 1024, SC) for tb in range(4)]
    def capture(fn):
        start = len(A.lines)
        r = fn()
        body = [x.strip() for x in A.lines[start:]]; del A.lines[start:]
        return body, r
    def spread(fn, stores, every):
        body, r = capture(fn)
        k = 0
        for n, ln in enumerate(body):
            if n % every == 0 and k < len(stores):
                A(stores[k]); k += 1
            A(ln)
        for x in stores[k:]: A(x)
        return r
    PKA = [PB16 + 4 * i for i in range(4)]
    PKB = [accb(10, 0)[1] + 4 * i for i in range(4)]
    PK1 = [accb(11, 0)[1] + 4 * i for i in range(4)]
    st0 = glu_pair(0, PKA)
    st1 = spread(lambda: glu_pair(1, PK1), st0, 30)
    st2 = spread(lambda: glu_pair(2, PKA), st1, 40)
    def last():
        g6, u6 = glu(6, 0)
        for tp in range(2): packswap(PKB[tp], g6[2 * tp], g6[2 * tp + 1])
        for tp in range(2): doswap(PKB[tp])
    spread(last, st2, 25)
    for tp in range(2):
        A("buffer_store_dwordx4 %s, v%d, s[%d:%d], s%d offen%s" % (vr(PKB[tp], 4), VS, SRD_W, SRD_W + 3, 67 if tp == 0 else 76, SC))
    stamp()
    def flag_group(saddr, soff):
        return ["v_mov_b32 v38, s%d" % saddr, "v_mov_b32 v39, 1", "s_mov_b64 exec, 1",
                "buffer_store_dword v39, v38, s[%d:%d], %s offen sc1" % (SRD_W, SRD_W + 3, soff), "s_mov_b64 exec, -1"]
    A("v_bfe_u32 v224, v1, 2, 2")
    A("v_lshrrev_b32 v225, 4, v1")
    A("v_and_b32 v226, 3, v1")
    A("v_lshl_add_u32 v227, v225, 2, v224")
    A("v_lshlrev_b32 v228, 6, v227")
    A("v_lshl_add_u32 v228, v226, 3, v228")
    A("v_add_u32 v228, %d, v228" % WPB)
    for fb in range(2):
        for t in range(2):
            A("ds_read_b64_tr_b16 %s, v228 offset:%d" % (vr(WP + 4 * fb + 2 * t, 2), fb * 32 + t * 1024))
    A("s_waitcnt lgkmcnt(0)")
    A("s_barrier")
    dbgld = "buffer_load_dword v47, v%d, s[%d:%d], 0 offen sc1" % (P_L4, SRD_D, SRD_D + 3)
    A(dbgld)
    feature(0)
    SP = [248, 250, 252, 254]; SM = [200, 202, 204, 206]
    VB = accb(2, 0)[1]
    assert accb(3, 0)[1] == VB + 16
    for db in range(2):
        for tb in range(4):
            s = VB + db * 16 + tb * 4
            d = VB + db * 8 + tb * 2
            A("v_cvt_pk_bf16_f32 v%d, v%d, v%d" % (d, s, s + 1))
            A("v_cvt_pk_bf16_f32 v%d, v%d, v%d" % (d + 1, s + 2, s + 3))
    feature2(0)
    A("s_lshl_b32 s61, s%d, 13" % S_W)
    A("s_add_u32 s61, s61, %d" % SCR)
    VPW = 192; VPR = 196
    A("v_and_b32 v229, 15, v1")
    A("v_lshlrev_b32 v229, 7, v229")
    A("v_xor_b32 v230, v225, v226")
    A("v_lshl_add_u32 v229, v230, 3, v229")
    A("v_add_u32 v229, s61, v229")
    for q in range(4):
        A("v_xor_b32 v230, %d, v224" % q)
        A("v_lshl_add_u32 v%d, v230, 5, v229" % (VPW + q))
    A("v_lshlrev_b32 v229, 7, v227")
    A("v_xor_b32 v230, v226, v224")
    A("v_lshl_add_u32 v229, v230, 3, v229")
    A("v_add_u32 v229, s61, v229")
    for q in range(4):
        A("v_xor_b32 v230, %d, v225" % q)
        A("v_lshl_add_u32 v%d, v230, 5, v229" % (VPR + q))
    EMR = [PB16, PB16 + 8, VB + 16, VB + 24]
    for tb in range(4):
        exps(0, tb, EMR[tb])
    t0 = 144
    for tb in range(4):
        p0 = accb(0, tb)[1]; p1 = accb(1, tb)[1]; e = EMR[tb]
        pk("v_pk_add_f32", vr(t0, 2), vr(p0, 2), vr(p0 + 2, 2))
        pk("v_pk_add_f32", vr(t0 + 2, 2), vr(e, 2), vr(e + 2, 2))
        pk("v_pk_add_f32", vr(t0, 2), vr(t0, 2), vr(p1, 2))
        pk("v_pk_add_f32", vr(t0 + 2, 2), vr(t0 + 2, 2), vr(e + 4, 2))
        pk("v_pk_add_f32", vr(t0, 2), vr(t0, 2), vr(p1 + 2, 2))
        pk("v_pk_add_f32", vr(t0 + 2, 2), vr(t0 + 2, 2), vr(e + 6, 2))
        A("v_add_f32 v%d, v%d, v%d" % (SP[tb], t0, t0 + 1))
        A("v_add_f32 v%d, v%d, v%d" % (SM[tb], t0 + 2, t0 + 3))
    rsag2("v_add_f32", SP, "v_add_f32", SM)
    for i in SP + SM: A("v_rcp_f32 v%d, v%d" % (i, i))
    HPOS = O("hpos", 0)
    def hflag():
        A("s_waitcnt vmcnt(0)")
        for x in flag_group(77, "0"): A(x)
    if HPOS == 0: hflag()
    for tb in range(4):
        srcs = [(accb(0, tb)[1], SP), (accb(1, tb)[1], SP), (EMR[tb], SM), (EMR[tb] + 4, SM)]
        for q, (p, sc) in enumerate(srcs):
            for u in range(2):
                pk("v_pk_mul_f32", vr(p + 2 * u, 2), vr(p + 2 * u, 2), vr(sc[tb], 2), None, "op_sel_hi:[1,0]")
        for q, (p, sc) in enumerate(srcs):
            A("v_cvt_pk_bf16_f32 v%d, v%d, v%d" % (p, p, p + 1))
            A("v_cvt_pk_bf16_f32 v%d, v%d, v%d" % (p + 1, p + 2, p + 3))
        for q, (p, sc) in enumerate(srcs):
            A("ds_write_b64 v%d, %s offset:%d" % (VPW + q, vr(p, 2), tb * 2048))
    if HPOS == 1: hflag()
    A("s_mov_b32 s37, 0x40000")
    A.label("L_dpoll")
    A("v_cmp_eq_u32 vcc, s46, v47")
    A("s_nop 0")
    A("s_cmp_eq_u64 vcc, -1")
    A("s_cbranch_scc1 L_dpoll_ok")
    A(dbgld)
    A("s_sub_u32 s37, s37, 1")
    A("s_waitcnt vmcnt(0)")
    A("s_cbranch_scc0 L_dpoll")
    A.label("L_dpoll_ok")
    V_RW, V_RR, V_ZS, V_ZL, V_KS, V_KL, V_PD, V_P4 = 40, 41, 42, 43, 44, 45, 46, 47
    A("v_add_u32 v%d, s61, v%d" % (V_RW, P_VL))
    A("s_lshl_b32 s3, s%d, 11" % S_W)
    A("v_add_u32 v%d, s3, v%d" % (V_KS, P_VL))
    A("v_add_u32 v%d, %d, v%d" % (V_RR, SCR, V_KS))
    A("v_lshl_add_u32 v230, v225, 2, v226")
    A("v_lshl_add_u32 v%d, v224, 4, v230" % V_ZL)
    A("v_lshlrev_b32 v%d, 4, v%d" % (V_ZL, V_ZL))
    A("v_add_u32 v%d, 8192, v%d" % (V_ZL, V_ZL))
    A("s_lshl_b32 s3, s%d, 8" % S_W)
    A("s_add_u32 s3, s3, 8192")
    A("v_lshl_add_u32 v%d, v230, 4, s3" % V_ZS)
    A("s_lshr_b32 s3, s%d, 1" % S_W)
    A("s_lshl_b32 s3, s3, 12")
    A("s_and_b32 s6, s%d, 1" % S_W)
    A("s_lshl_b32 s6, s6, 10")
    A("s_add_u32 s3, s3, s6")
    A("v_add_u32 v%d, s3, v%d" % (V_KL, P_VL))
    A("v_and_b32 v%d, 124, v%d" % (V_P4, P_L4))
    S_KVB = 60
    A("s_lshl_b32 s3, s%d, 3" % S_J)
    A("s_mul_i32 s%d, s3, 9216" % S_KVB)
    A("s_add_u32 s%d, s%d, %d" % (S_KVB, S_KVB, WS_KVP))
    A("s_mul_i32 s3, s%d, 9216" % S_I)
    A("s_add_u32 s61, s%d, s3" % S_KVB)
    A("s_add_u32 s3, s%d, 112" % S_J)
    A("s_lshl_b32 s3, s3, 10")
    A("s_add_u32 s63, s62, s3")
    for tb in range(1, 4): A("s_add_u32 s%d, s63, %d" % (63 + tb, tb * MBS))
    A("s_mov_b32 s67, 0x358637bd")
    A("s_waitcnt lgkmcnt(0)")
    APH = 64
    for fblk in range(4):
        for ks in range(2):
            for t in range(2):
                A("ds_read_b64_tr_b16 %s, v%d offset:%d" % (ar(APH + 8 * fblk + 4 * ks + 2 * t, 2), VPR + fblk, (32 * ks + 16 * t) * 128))
    A("v_mov_b32 v231, 0x3f803f80")
    for fblk in range(4):
        A("v_cmp_eq_u32 vcc, %d, v226" % fblk)
        for r in range(4):
            A("v_cndmask_b32 v%d, 0, v231, vcc" % (PB16 + 4 * fblk + r))
    stamp()

    KV = accb(0, 0)[1]; ZB = VB + 16; QE = 144; LB = 48
    side = []
    import re
    def unpack(x):
        if not x.startswith("v_pk_") or not O("unpack", 0): return [x]
        if O("unpack", 0) == 2 and not re.search(r"op_sel:\[[01,]*1", x): return [x]
        I = parse(x); n = len(I.ops) - 1
        def arr(name, dflt):
            m = re.search(name + r":\[([01,]+)\]", I.mods)
            return [int(c) for c in m.group(1).split(",")] if m else [dflt] * n
        sel = [arr("op_sel", 0), arr("op_sel_hi", 1)]; neg = [arr("neg_lo", 0), arr("neg_hi", 0)]
        def half(o, h):
            m = re.match(r"([vs])\[(\d+):\d+\]", o)
            return "%s%d" % (m.group(1), int(m.group(2)) + h) if m else o
        op = I.op.replace("v_pk_", "v_")
        res = []
        for h in range(2):
            src = [("-" if neg[h][k] else "") + half(I.ops[1 + k], sel[h][k]) for k in range(n)]
            if n == 2 and not src[1].startswith("v"): src = src[::-1]
            res.append("%s %s, %s" % (op, half(I.ops[0], h), ", ".join(src)))
        return res
    def S(fn):
        for x in capture(fn)[0]: side.extend(unpack(x))
    def kvm():
        for fblk in range(4):
            for ks in range(2):
                for db in range(2):
                    d = vr(KV + 8 * fblk + 4 * db, 4)
                    A("v_mfma_f32_16x16x32_bf16 %s, %s, %s, %s" % (d, ar(APH + 8 * fblk + 4 * ks, 4), vr(VB + db * 8 + ks * 4, 4), "0" if ks == 0 else d))
                A("v_mfma_f32_16x16x32_bf16 %s, %s, %s, %s" % (vr(ZB, 4), ar(APH + 8 * fblk + 4 * ks, 4), vr(PB16 + 4 * fblk, 4), "0" if (ks == 0 and fblk == 0) else vr(ZB, 4)))
        for b in range(8):
            A("ds_write_b128 v%d, %s offset:%d" % (V_RW, vr(KV + 4 * b, 4), b * 1024))
        A("buffer_store_dwordx4 %s, v%d, s[%d:%d], s61 offen sc1" % (vr(ZB, 4), V_ZS, SRD_W, SRD_W + 3))
    PRE = 1
    if PRE:
        A("s_waitcnt lgkmcnt(0)")
        kvm(); feature(4)
        A("s_waitcnt lgkmcnt(0)"); A("s_barrier")
    else:
        S(kvm)
        S(lambda: feature(4))
        side.append(("bar",))
    def redr():
        for w in range(4):
            A("ds_read_b128 %s, v%d offset:%d" % (vr(KV + 8 * w, 4), V_RR, w * 8192))
            A("ds_read_b128 %s, v%d offset:%d" % (vr(KV + 8 * w + 4, 4), V_RR, w * 8192 + 1024))
    if PRE:
        redr(); feature2(4); A("s_waitcnt lgkmcnt(0)")
    else:
        S(redr)
        S(lambda: feature2(4))
        side.append(("lgkm",))
    def reda():
        for w in range(1, 4):
            for u in range(4): pk("v_pk_add_f32", vr(KV + 2 * u, 2), vr(KV + 2 * u, 2), vr(KV + 8 * w + 2 * u, 2))
        A("buffer_store_dwordx4 %s, v%d, s[%d:%d], s61 offen sc1" % (vr(KV, 4), V_KS, SRD_W, SRD_W + 3))
        A("buffer_store_dwordx4 %s, v%d, s[%d:%d], s61 offen offset:1024 sc1" % (vr(KV + 4, 4), V_KS, SRD_W, SRD_W + 3))
    if PRE: reda(); stamp()
    else:
        S(reda)
        side.append(("ev", "kvst"))
    def qexp():
        for half in range(2):
            for tb in (2 * half, 2 * half + 1):
                exps(4, tb, PB16 + 8 * (tb & 1))
            for tb in (2 * half, 2 * half + 1):
                e = PB16 + 8 * (tb & 1)
                for h in range(2):
                    p = accb(4 + h, tb)[1]
                    A("v_cvt_pk_bf16_f32 v%d, v%d, v%d" % (QE + 8 * tb + 2 * h, p, p + 1))
                    A("v_cvt_pk_bf16_f32 v%d, v%d, v%d" % (QE + 8 * tb + 2 * h + 1, p + 2, p + 3))
                    A("v_cvt_pk_bf16_f32 v%d, v%d, v%d" % (QE + 8 * tb + 4 + 2 * h, e + 4 * h, e + 4 * h + 1))
                    A("v_cvt_pk_bf16_f32 v%d, v%d, v%d" % (QE + 8 * tb + 4 + 2 * h + 1, e + 4 * h + 2, e + 4 * h + 3))
    QPRE = 1
    if QPRE: qexp()
    else: S(qexp)
    side.append(("mark", "qdone"))
    side.append(("join", "kvl"))
    AF = LB + 12; ZQ = 64; KF = 80; AUX = 96
    def oph1():
        for i in range(1, 8):
            for u in range(6): pk("v_pk_add_f32", vr(LB + 2 * u, 2), vr(LB + 2 * u, 2), vr(LB + 12 * i + 2 * u, 2))
        for h in range(2):
            A("v_cvt_pk_bf16_f32 v%d, v%d, v%d" % (AF + 2 * h, LB + 4 * h, LB + 4 * h + 1))
            A("v_cvt_pk_bf16_f32 v%d, v%d, v%d" % (AF + 2 * h + 1, LB + 4 * h + 2, LB + 4 * h + 3))
        A("s_lshl_b32 s3, s%d, 10" % S_W)
        A("v_add_u32 v%d, %d, v%d" % (V_RR, SCR, P_VL))
        A("v_add_u32 v%d, s3, v%d" % (V_RW, V_RR))
        A("ds_write_b128 v%d, %s" % (V_RW, vr(AF, 4)))
        for sh in (4, 8):
            for r in range(4):
                A("v_add_f32_dpp v%d, v%d, v%d row_ror:%d row_mask:0xf bank_mask:0xf" % (LB + 8 + r, LB + 8 + r, LB + 8 + r, sh))
        for fblk in range(4):
            for r in range(4):
                A("v_mov_b32_dpp v%d, v%d quad_perm:[%d,%d,%d,%d] row_mask:0xf bank_mask:0xf" % (ZQ + 4 * fblk + r, LB + 8 + r, fblk, fblk, fblk, fblk))
        for fblk in range(4):
            A("v_cvt_pk_bf16_f32 v%d, v%d, v%d" % (AUX + 2 * fblk, ZQ + 4 * fblk, ZQ + 4 * fblk + 1))
            A("v_cvt_pk_bf16_f32 v%d, v%d, v%d" % (AUX + 2 * fblk + 1, ZQ + 4 * fblk + 2, ZQ + 4 * fblk + 3))
        A("v_and_b32 v%d, 3, v1" % ZQ)
        A("v_mov_b32 v%d, 0x3f803f80" % (ZQ + 1))
    S(oph1)
    side.append(["v_cmp_eq_u32 vcc, 1, v%d" % ZQ, "v_cndmask_b32 v%d, 0, v%d, vcc" % (ZQ + 1, ZQ + 1)])
    side.append(["v_cmp_eq_u32 vcc, 0, v%d" % ZQ] + ["v_cndmask_b32 v%d, v%d, v%d, vcc" % (AUX + r, ZQ + 1, AUX + r) for r in range(8)])
    side.append(("bar",))
    S(lambda: [A("ds_read_b128 %s, v%d offset:%d" % (vr(KF + 4 * q, 4), V_RR, q * 1024)) for q in range(4)])
    NN = [48, 64, 104, 120]; NA = [136, 20, 28, 176]
    def auxm():
        for tb in range(4):
            for s in range(2):
                A("v_mfma_f32_16x16x32_bf16 %s, %s, %s, 0" % (vr(NA[tb] + 4 * s, 4), vr(AUX + 4 * s, 4), vr(QE + 8 * tb + 4 * s, 4)))
        for x in NA:
            A("v_rcp_f32 v%d, v%d" % (x + 1, x + 1))
            A("v_rcp_f32 v%d, v%d" % (x + 5, x + 5))
        for x in NA: A("v_fma_f32 v%d, v%d, v%d, s67" % (x + 2, x, x + 1))
        for x in NA: A("v_fma_f32 v%d, v%d, v%d, v%d" % (x + 2, x + 4, x + 5, x + 2))
        for x in NA: A("v_rcp_f32 v%d, v%d" % (x + 2, x + 2))
        for x in NA:
            A("v_mul_f32 v%d, v%d, v%d" % (x, x + 1, x + 2))
            A("v_mul_f32 v%d, v%d, v%d" % (x + 4, x + 5, x + 2))
    S(auxm)
    side.append(("lgkm",))
    def oph2():
        for tb in range(4):
            for s in range(2):
                for db in range(2):
                    A("v_mfma_f32_16x16x32_bf16 %s, %s, %s, 0" % (vr(NN[tb] + 8 * s + 4 * db, 4), vr(KF + 8 * s + 4 * db, 4), vr(QE + 8 * tb + 4 * s, 4)))
        for n, x in zip(NN, NA):
            for u in range(4):
                pk("v_pk_mul_f32", vr(n + 2 * u, 2), vr(n + 2 * u, 2), vr(x, 2), None, "op_sel_hi:[1,0]")
            for u in range(4):
                pk("v_pk_fma_f32", vr(n + 2 * u, 2), vr(n + 8 + 2 * u, 2), vr(x + 4, 2), vr(n + 2 * u, 2), "op_sel_hi:[1,0,1]")
            for u in range(4):
                A("v_cvt_pk_bf16_f32 v%d, v%d, v%d" % (n + 8 + u, n + 2 * u, n + 2 * u + 1))
        for n in NN: doswap(n + 8)
        for tb, n in enumerate(NN):
            A("buffer_store_dwordx4 %s, v%d, s[%d:%d], s%d offen%s" % (vr(n + 8, 4), VH, SRD_W, SRD_W + 3, 63 + tb, SC))
    S(oph2)
    side.append(("ev", "ost"))

    ACC2 = [192, 64]; VG = 48; C1 = 56; PART = 128
    def acc2(s, cb, tb): return vr(ACC2[s] + 4 * (cb * 4 + tb), 4)
    def xf2(p, tb): return ar(32 * p + 4 * tb, 4)
    def wf2(p, cb, half=None):
        b = 32 * p + 16 + 4 * cb
        return ar(b, 4) if half is None else ar(b + 2 * half, 2)
    def dma2(stage):
        L = [[m0set(0, stage), lda(0)], [lda(1)], [lda(2)], [lda(3)], [m0set(1, stage), ldw(0)], [ldw(1)], [ldw(2)], [ldw(3)]]
        L[-1] += ["s_add_u32 s%d, s%d, 2048" % (S_AK, S_AK),
                  "s_add_u32 s%d, s%d, %d" % (S_WK, S_WK, 64 * 2048),
                  "s_add_u32 s%d, s%d, 1" % (S_KT, S_KT),
                  "s_cmp_eq_u32 s%d, s%d" % (S_KT, S_SW),
                  "s_cselect_b32 s%d, s%d, s%d" % (SRD_B, S_B2, SRD_B),
                  "s_cselect_b32 s%d, s%d, s%d" % (SRD_B + 1, S_B2 + 1, SRD_B + 1),
                  "s_cselect_b32 s%d, s%d, s%d" % (SRD_B + 2, S_B2 + 2, SRD_B + 2),
                  "s_cselect_b32 s%d, 0, s%d" % (S_WK, S_WK)]
        return L
    def reads2(stage, ks, p):
        so = stage * ST2
        def xr(tb): return "ds_read_b128 %s, v%d offset:%d" % (xf2(p, tb), P_XRD, so + tb * 2048 + ks * 1024)
        def wr(cb, t): return "ds_read_b64_tr_b16 %s, v%d offset:%d" % (wf2(p, cb, t), P_WRD + cb, so + (ks * 32 + 4 * t) * 256)
        R = [xr(0), wr(0, 0), wr(0, 1), xr(1), xr(2), xr(3)]
        for cb in range(1, 4): R += [wr(cb, 0), wr(cb, 1)]
        return R
    V2 = Cnt(63)
    p2 = {"pend": [], "block": None, "events": {}, "done": set(), "bar": -1}
    RATE = O("rate", 100); LAG = O("lag", 3)
    def isvm(x): return x.startswith(("buffer_load", "buffer_store", "buffer_atomic"))
    def out(x):
        if isinstance(x, tuple): V2.tag[x[1]] = V2.n
        else:
            A(x)
            if isvm(x): V2.issue()
    def at(lag, need, fn):
        p2["events"].setdefault(p2["bar"] + lag, []).append((need, fn))
    def spin(lab, reload):
        A("s_mov_b32 s37, 0x40000")
        A.label(lab)
        A("v_cmp_eq_u32 vcc, 1, v%d" % V_PD)
        A("s_nop 0")
        A("s_cmp_eq_u64 vcc, -1")
        A("s_cbranch_scc1 %s_ok" % lab)
        A(reload)
        A("s_sub_u32 s37, s37, 1")
        A("s_waitcnt vmcnt(0)")
        A("s_cbranch_scc0 %s" % lab)
        A.label(lab + "_ok")
    kvpoll = "buffer_load_dword v%d, v%d, s[%d:%d], s%d offen sc1" % (V_PD, V_P4, SRD_W, SRD_W + 3, S_F1)
    opoll = "buffer_load_dword v%d, v%d, s[%d:%d], s%d offen sc1" % (V_PD, P_L4, SRD_W, SRD_W + 3, S_HF)
    def ev_kvst():
        V2.tag["kvst"] = V2.n
        def e2():
            for x in flag_group(45, "s%d" % S_F1): out(x)
            at(1, [], e3)
        def e3():
            out(kvpoll); out(("tag", "kvp")); at(LAG + (1 if PRE and not QPRE else 0), ["kvp"], e4)
        def e4():
            assert "qdone" in p2["done"], "q path not finished before the kv loads"
            spin("L_kvpoll", kvpoll)
            L = []
            for i in range(8):
                L.append(["buffer_load_dwordx4 %s, v%d, s[%d:%d], s%d offen sc1" % (vr(LB + 12 * i, 4), V_KL, SRD_W, SRD_W + 3, S_KVB)])
                L.append(["buffer_load_dwordx4 %s, v%d, s[%d:%d], s%d offen offset:2048 sc1" % (vr(LB + 12 * i + 4, 4), V_KL, SRD_W, SRD_W + 3, S_KVB)])
                L.append(["buffer_load_dwordx4 %s, v%d, s[%d:%d], s%d offen sc1" % (vr(LB + 12 * i + 8, 4), V_ZL, SRD_W, SRD_W + 3, S_KVB),
                          "s_add_u32 s%d, s%d, 9216" % (S_KVB, S_KVB)])
            L[-1].append(("tag", "kvl"))
            p2["pend"] += L
            at(LAG, ["kvl"], lambda: p2["done"].add("kvl"))
        if PRE: at(1, [], e3)
        else: at(LAG, ["kvst"], e2)
    def ev_ost():
        V2.tag["ost"] = V2.n
        def e6():
            for x in flag_group(77, "s47"): out(x)
            for tb in range(4):
                out("buffer_load_dword v%d, v%d, s[%d:%d], 0 offen offset:%d sc1" % (VG + 2 * tb, P_GA, SRD_W, SRD_W + 3, 64 * tb))
            at(max(1, NPEEL - 1 - LAG - p2["bar"]), [], e7)
        def e7():
            out(opoll); out(("tag", "op")); at(LAG, ["op"], e8)
        def e8():
            spin("L_opoll", opoll); p2["done"].add("ochk"); print("o check at barrier", p2["bar"], file=sys.stderr)
        at(LAG + O("olag", 0), ["ost"], e6)
    EV = {"kvst": ev_kvst, "ost": ev_ost}
    def cost(x): return 2 if x.startswith(TRANS + ("v_mfma",)) else 1
    def side_step(budget):
        while budget > 0 and side and p2["block"] is None:
            x = side[0]
            if isinstance(x, tuple):
                if x[0] in ("bar", "lgkm"): p2["block"] = x[0]; side.pop(0)
                elif x[0] == "ev": side.pop(0); EV[x[1]]()
                elif x[0] == "mark": side.pop(0); p2["done"].add(x[1])
                elif x[0] == "join":
                    if x[1] in p2["done"]: side.pop(0)
                    else: return
                continue
            side.pop(0)
            for y in (x if isinstance(x, list) else [x]):
                out(y); budget -= cost(y)
    def tile2(stage, aset, first, dma_next, has_next, vm, hook=None, tidx=None):
        for ks in range(2):
            rd = reads2(stage, 1, 1) if ks == 0 else (reads2((stage + 1) % NS, 0, 0) if has_next else [])
            evs = []
            if ks == 1 and has_next:
                assert not p2["pend"]
                if tidx is not None:
                    evs = p2["events"].pop(tidx, [])
                    vm = V2.wait_for([("D", tidx + 1)] + [t for need, fn in evs for t in need])
                A("s_waitcnt lgkmcnt(0) vmcnt(%d)" % vm); A("s_barrier")
                if tidx is not None: p2["bar"] = tidx
                p2["block"] = None
            else:
                A("s_waitcnt lgkmcnt(0)")
                if p2["block"] == "lgkm": p2["block"] = None
            if ks == 1:
                for need, fn in evs: fn()
                if hook: hook()
                if dma_next:
                    d = dma2(stage)
                    if tidx is not None: d[-1] = d[-1] + [("tag", ("D", tidx + NS))]
                    p2["pend"] += d
            g = 0
            for cb in range(4):
                for tb in range(4):
                    c = "0" if (first and ks == 0) else acc2(aset, cb, tb)
                    A("v_mfma_f32_16x16x32_bf16 %s, %s, %s, %s" % (acc2(aset, cb, tb), wf2(ks, cb), xf2(ks, tb), c))
                    if g < len(rd): A(rd[g])
                    left = (16 - g) + (16 if ks == 1 else 0)
                    if p2["pend"] and (g % 4 == 3 or len(p2["pend"]) * 4 > left + 3):
                        for _ in range(1 + (len(p2["pend"]) > left)):
                            if p2["pend"]:
                                for x in p2["pend"].pop(0): out(x)
                    if tidx is not None: side_step(RATE + (1 if g >= len(rd) else 0))
                    g += 1
    A("s_mov_b32 s37, 0x40000")
    A.label("L_hpoll")
    A("buffer_load_dword v%d, v%d, s[%d:%d], s%d offen sc1" % (V_PD, P_L4, SRD_W, SRD_W + 3, S_HF))
    A("s_waitcnt vmcnt(0)")
    A("v_cmp_eq_u32 vcc, 1, v%d" % V_PD)
    A("s_nop 0")
    A("s_or_b64 vcc, vcc, s[68:69]")
    A("s_cmp_eq_u64 vcc, -1")
    A("s_cbranch_scc1 L_hpoll_ok")
    A("s_sub_u32 s37, s37, 1")
    A("s_cbranch_scc0 L_hpoll")
    A.label("L_hpoll_ok")
    if INV: A("buffer_inv sc1")
    if PRE:
        for x in flag_group(45, "s%d" % S_F1): out(x)
        ev_kvst()
    stamp(); stamp.real()
    def adma(stg):
        return [[m0set(0, stg), lda(0)], [lda(1)], [lda(2)], [lda(3), "s_add_u32 s%d, s%d, 2048" % (S_AK, S_AK), ("tag", ("D", stg))]]
    for stg in range(2):
        for g in adma(stg):
            for x in g: out(x)
    A("s_add_u32 s%d, s%d, s47" % (S_HF, S_HF))
    A("s_waitcnt vmcnt(4)")
    A("s_barrier")
    for x in reads2(0, 0, 0): A(x)
    stamp(); stamp.real()
    p2["pend"] = adma(2) + adma(3)
    if STAMP == 3: stamp.off = False; stamp(); stamp.off = True
    for t in range(NPEEL):
        tile2(t % NS, 0, t == 0, True, True, None, None, t)
        if STAMP == 3 and (t % 2 == 1 or t > 14): stamp.off = False; stamp(); stamp.off = True
        if STAMP == 3: print("tile", t, "side left", len(side), "block", p2["block"], "events", sorted(p2["events"].keys()), file=sys.stderr)
    assert not side and not p2["events"] and "ochk" in p2["done"], (len(side), p2["events"].keys())
    stamp()
    VMN = 16
    A("s_mov_b32 s%d, 0" % S_CNT)
    A.label("L_k2_loop1")
    for t in range(4): tile2(t, 0, False, True, True, VMN)
    A("s_add_u32 s%d, s%d, 1" % (S_CNT, S_CNT))
    A("s_cmp_lt_u32 s%d, s%d" % (S_CNT, S_N1))
    A("s_cbranch_scc1 L_k2_loop1")
    saved = list(p2["pend"])
    A("s_sub_u32 s3, s%d, %d" % (S_XF, WS_FLG))
    A("s_lshl_b32 s3, s3, 8")
    A("s_add_u32 s60, s3, %d" % WS_XCH)
    for q in range(1, 4): A("s_add_u32 s%d, s60, %d" % (60 + q, 4096 * q))
    for tb in range(4): A("v_sub_f32 v%d, 1.0, v%d" % (C1 + 2 * tb, VG + 2 * tb))
    A("s_cmp_eq_u32 s%d, 1" % S_KH)
    A("s_cbranch_scc1 L_k2_fin")
    for t in range(4):
        tile2(t, 0, False, False, t < 3, 8 * max(0, 2 - t))
    stamp(); stamp.real()
    for cb in range(4):
        for tb in range(4):
            a0 = ACC2[0] + 4 * (cb * 4 + tb); sl = tb & 1
            for u in range(2):
                A("v_pk_mul_f32 %s, %s, %s op_sel_hi:[1,0]" % (vr(a0 + 2 * u, 2), vr(a0 + 2 * u, 2), vr(C1 + 2 * tb, 2)))
        for tb in range(4):
            A("buffer_store_dwordx4 %s, v%d, s[%d:%d], s%d offen offset:%d sc1" % (acc2(0, cb, tb), P_VL, SRD_W, SRD_W + 3, 60 + cb, tb * 1024))
    A("s_waitcnt vmcnt(0)")
    for x in flag_group(S_XF, "0"): A(x)
    A("s_branch L_k2_out")
    A.label("L_k2_fin")
    p2["pend"] = saved
    if STAMP == 1: stamp.regs = stamp.regs[:-2]
    tile2(0, 1, True, True, True, VMN)
    for t in range(1, 4): tile2(t, 1, False, True, True, VMN)
    A("s_mov_b32 s%d, 0" % S_CNT)
    A.label("L_k2_loop2")
    for t in range(4): tile2(t, 1, False, True, True, VMN)
    A("s_add_u32 s%d, s%d, 1" % (S_CNT, S_CNT))
    A("s_cmp_lt_u32 s%d, 2" % S_CNT)
    A("s_cbranch_scc1 L_k2_loop2")
    xpoll = "buffer_load_dword v%d, v%d, s[%d:%d], s%d offen sc1" % (V_PD, P_Z0, SRD_W, SRD_W + 3, S_XF)
    p2["pend"].append([xpoll])
    tile2(0, 1, False, False, True, 16 + 1)
    tile2(1, 1, False, False, True, 8 + 1)
    def xhook():
        spin("L_xpoll", xpoll)
        p2["pend"] = [["buffer_load_dwordx4 %s, v%d, s[%d:%d], s%d offen offset:%d sc1" % (vr(PART + 4 * (cb * 4 + tb), 4), P_VL, SRD_W, SRD_W + 3, 60 + cb, tb * 1024)]
                      for tb in range(4) for cb in range(4)]
    tile2(2, 1, False, False, True, 0, xhook)
    tile2(3, 1, False, False, False, 0)
    assert not p2["pend"]
    stamp(); stamp.real()
    VO = 49
    A("v_lshlrev_b32 v%d, 11, v%d" % (VO, P_TOK))
    A("v_bfe_u32 v51, v1, 4, 1")
    A("v_lshl_add_u32 v%d, v51, 5, v%d" % (VO, VO))
    A("v_lshrrev_b32 v51, 5, v1")
    A("v_lshl_add_u32 v%d, v51, 4, v%d" % (VO, VO))
    A("s_lshl_b32 s72, s%d, 8" % S_NT)
    A("s_lshl_b32 s3, s%d, 7" % S_WN)
    A("s_add_u32 s72, s72, s3")
    OSC = " sc1" if O("osc1", 0) else ""
    for tb in range(4):
        sl = tb & 1
        A("s_waitcnt vmcnt(%d)" % (12 - 4 * tb + 2 * tb))
        for cb in range(4):
            a0 = ACC2[0] + 4 * (cb * 4 + tb); pp = PART + 4 * (cb * 4 + tb)
            for u in range(2):
                A("v_pk_fma_f32 %s, %s, %s, %s op_sel_hi:[1,0,1]" % (vr(a0 + 2 * u, 2), vr(a0 + 2 * u, 2), vr(C1 + 2 * tb, 2), vr(pp + 2 * u, 2)))
        for cb in range(4):
            a0 = ACC2[0] + 4 * (cb * 4 + tb); a1 = ACC2[1] + 4 * (cb * 4 + tb)
            for u in range(2):
                A("v_pk_fma_f32 %s, %s, %s, %s op_sel_hi:[1,0,1]" % (vr(a0 + 2 * u, 2), vr(a1 + 2 * u, 2), vr(VG + 2 * tb, 2), vr(a0 + 2 * u, 2)))
        for cp in range(2):
            d = 20 + 8 * (tb & 1) + 4 * cp
            for h in range(2):
                a0 = ACC2[0] + 4 * ((2 * cp + h) * 4 + tb)
                A("v_cvt_pk_bf16_f32 v%d, v%d, v%d" % (d + 2 * h, a0, a0 + 1))
                A("v_cvt_pk_bf16_f32 v%d, v%d, v%d" % (d + 2 * h + 1, a0 + 2, a0 + 3))
        for cp in range(2): doswap(20 + 8 * (tb & 1) + 4 * cp)
        for cp in range(2):
            d = 20 + 8 * (tb & 1) + 4 * cp
            A("buffer_store_dwordx4 %s, v%d, s[%d:%d], s72 offen offset:%d%s" % (vr(d, 4), VO, SRD_O, SRD_O + 3, cp * 64, OSC))
        A("s_add_u32 s72, s72, 32768")
    A.label("L_k2_out")
    stamp.finish(S_W, SRD_W, 38, "L_k1_end")
    A.label("L_k1_end")
    A("s_endpgm")
    A.label("L_code_end")
    return name, LDS

A = Asm()
n1, l1 = gen_k1(A)
hdr = ""
hdr += "; @launch grid=(256,1,1) block=(256,1,1) lds=%d\n" % l1
hdr += '.amdgcn_target "amdgcn-amd-amdhsa--gfx950"\n.text\n'
txt = hdr + A.text() + '.section .rodata,"a"\n' + kernel_desc(n1, 512, 256)
open(OUT, "w").write(txt)
```

```python
import sys
from asmlib import *
from asmlib import TRANS, parse

opts = dict(a.split("=") if "=" in a else (a, "1") for a in sys.argv[2:])
OUT = sys.argv[1]
O = lambda k, d: int(opts.get(k, d))
TOUCH = O("touch", 1)
STAMP = O("stamp", 0)
ONLY = O("only", 0)
HSC1 = O("hsc1", 0)
K2MAP = O("k2map", 0)
NH = O("nh", 32)
K2NODMA = O("k2nodma", 0); K2NOMFMA = O("k2nomfma", 0); K2NOLDS = O("k2nolds", 0); K2SEL = opts.get("k2sel", "aw")

MBS = 144 * 1024
WS_G = 0x1200000
WS_KVP = 0x1210000
WS_FLG = 0x1480000
WS_FLGH = 0x1494000
WS_FLGO = 0x1498000
WS_FLG1 = 0x1490000
WS_STAMP = 0x14A0000
WS_XCH = 0x1500000
WS_SIZE = WS_XCH + 128 * 65536
LOG2E = 0x3FB8AA3B
SC = " sc1"
INV = O("inv", 0)
DSC = " sc1" if O("dsc1", 1) else ""

class Cnt:
    def __init__(self, cap): self.n = 0; self.tag = {}; self.cap = cap
    def issue(self, tag=None, k=1):
        self.n += k
        if tag is not None: self.tag[tag] = self.n
    def wait_for(self, tags):
        last = max(self.tag[t] for t in tags)
        return min(self.n - last, self.cap)

class Stamper:
    def __init__(self, A, kidx): self.A = A; self.regs = []; self.k = kidx
    def start(self):
        if STAMP:
            self.A("s_memrealtime s[78:79]"); self.A("s_memtime s[80:81]")
    off = False
    def __call__(self, wait=True):
        if STAMP and not self.off:
            r = 82 + len(self.regs); assert r <= 99; self.regs.append(r)
            self.A("s_memtime s[100:101]")
            self.A("s_waitcnt lgkmcnt(0)")
            self.A("s_mov_b32 s%d, s100" % r)
    def real(self):
        if STAMP and not self.off:
            r = 82 + len(self.regs); assert r <= 99; self.regs.append(-r)
            self.A("s_memrealtime s[100:101]")
            self.A("s_waitcnt lgkmcnt(0)")
            self.A("s_mov_b32 s%d, s100" % r)
    def finish(self, swave, srd, T, endlabel):
        if not STAMP: return
        A = self.A
        A("s_waitcnt vmcnt(0)")
        A("s_memtime s[4:5]"); A("s_memrealtime s[6:7]")
        A("s_waitcnt lgkmcnt(0)")
        A("s_cmp_eq_u32 s%d, 0" % swave); A("s_cbranch_scc0 %s" % endlabel)
        A("s_lshl_b32 s3, s2, 7")
        A("s_add_u32 s3, s3, %d" % WS_STAMP)
        A("v_mov_b32 v%d, 0" % (T + 1))
        items = [(78, None), (6, None), (4, 80)] + [(abs(r), 80 if r > 0 else 78) for r in self.regs]
        if O("dbgstamp", 0):
            A("s_cmp_eq_u32 s2, %d" % O("dbgstamp", 0)); A("s_cbranch_scc0 %s" % endlabel)
            A("s_mov_b32 s3, 0"); srd = 48
            items = [(6, 78), (4, 80)] + items[3:17]
        for q, (s, b) in enumerate(items):
            if b is None: A("v_mov_b32 v%d, s%d" % (T, s))
            else:
                A("s_sub_u32 s5, s%d, s%d" % (s, b)); A("v_mov_b32 v%d, s5" % T)
            A("buffer_store_dword v%d, v%d, s[%d:%d], s3 offen offset:%d" % (T, T + 1, srd, srd + 3, 4 * q))

def mk_srd(A, b, lo, hi, addsgpr, size):
    if addsgpr is None:
        A("s_mov_b32 s%d, s%d" % (b, lo)); A("s_mov_b32 s%d, s%d" % (b + 1, hi))
        A("s_mov_b32 s%d, %d" % (b + 2, size))
    else:
        A("s_add_u32 s%d, s%d, s%d" % (b, lo, addsgpr)); A("s_addc_u32 s%d, s%d, 0" % (b + 1, hi))
        A("s_sub_u32 s%d, %d, s%d" % (b + 2, size, addsgpr))
    A("s_mov_b32 s%d, 0x20000" % (b + 3))


def k2ids(A, mt, nt, kh, xf):
    A("s_and_b32 s%d, s2, 1" % kh)
    if O("swap", 1): A("s_xor_b32 s%d, s%d, 1" % (kh, kh))
    A("s_bfe_u32 s%d, s2, 0x30003" % mt)
    A("s_bfe_u32 s3, s2, 0x10001")
    A("s_lshl_b32 s3, s3, 3")
    A("s_add_u32 s%d, s%d, s3" % (mt, mt))
    A("s_lshr_b32 s%d, s2, 6" % nt)
    A("s_bfe_u32 s3, s2, 0x10002")
    A("s_lshl_b32 s3, s3, 2")
    A("s_add_u32 s%d, s%d, s3" % (nt, nt))
    A("s_lshl_b32 s3, s%d, 3" % mt)
    A("s_add_u32 s3, s3, s%d" % nt)
    A("s_lshl_b32 s3, s3, 1")
    A("s_add_u32 s3, s3, s%d" % kh)
    A("s_lshl_b32 s3, s3, 2")
    A("s_add_u32 s3, s3, s26")
    A("s_lshl_b32 s%d, s3, 6" % xf)
    A("s_add_u32 s%d, s%d, %d" % (xf, xf, WS_FLG))

def gen_k1(A):
    name = "gated_mix__linear_kernel_hedgehog__glu_gated_glu__prompt_kernel"
    kernel_open(A, name)
    BK = 64
    XB = 0; QB = 32768; GB = QB + 64 * 192; UB = GB + 64 * 224 + 128
    STAGE = (UB + 64 * 224 + 255) // 256 * 256
    WPB = 2 * STAGE
    SCR = 131072
    LDS = 163840
    S_I, S_J, S_W, S_CNT, S_XK, S_QK, S_GK, S_TK, S_TSTEP = 24, 25, 26, 27, 28, 29, 30, 31, 37
    S_M0 = 32
    SRD_X, SRD_Q, SRD_G, SRD_W, SRD_T, SRD_P, SRD_D = 8, 12, 16, 20, 68, 72, 48
    S_C = 38
    V_DMA, V_XRD, V_QRD, V_GRD, V_TCH = 2, 20, 24, 28, 30
    T = 32
    NVACC = 208; V_ACC = 48
    A_X = 0; A_WR = 32; RING = 8; A_ACC = 144
    NTB = 4; NCB = 20; D = O("dd", 6)
    BLK = [("q", 1, 0), ("q", 1, 1), ("q", 2, 0), ("q", 2, 1), ("q", 0, 0), ("q", 0, 1)] + [(t, b) for b in range(7) for t in "gu"]
    def accb(cb, tb):
        b = (cb * NTB + tb) * 4
        return ("v", V_ACC + b) if b < NVACC else ("a", A_ACC + b - NVACC)
    def acc(cb, tb):
        f, b = accb(cb, tb); return "%s[%d:%d]" % (f, b, b + 3)
    def xf(p, tb): return ar(A_X + 16 * p + 4 * tb, 4)
    def wf(n, half=None):
        b = A_WR + 4 * (n % RING)
        return ar(b, 4) if half is None else ar(b + 2 * half, 2)
    stamp = Stamper(A, 0)
    VM = Cnt(63)

    A("s_load_dwordx4 s[4:7], s[0:1], 0")
    A("s_load_dwordx4 s[52:55], s[0:1], 40")
    A("s_load_dwordx4 s[56:59], s[0:1], 80")
    A("s_load_dwordx2 s[66:67], s[0:1], 16")
    A("s_load_dwordx4 s[40:43], s[0:1], 56")
    A("s_cmp_ge_u32 s2, 256")
    A("s_cbranch_scc1 L_k1_end")
    stamp.start()
    if STAMP == 3: stamp.off = True
    if O("ctouch", 1):
        A("s_getpc_b64 s[72:73]")
        A.label("L_pc")
        A("s_mov_b32 s74, L_code_end-L_pc")
        A("s_mov_b32 s75, 0x20000")
        A("s_and_b32 s73, s73, 0xffff")
        A("v_lshrrev_b32 v%d, 6, v0" % T)
        A("v_lshlrev_b32 v%d, 9, v%d" % (T, T))
        A("v_and_b32 v%d, 63, v0" % (T + 1))
        A("v_lshl_add_u32 v%d, v%d, 7, v%d" % (T, T + 1, T))
        A("s_lshr_b32 s3, s2, 3")
        A("s_lshl_b32 s3, s3, 11")
        A("v_cmp_gt_u32 vcc, 4, v%d" % (T + 1))
        A("v_mov_b32 v%d, 0x7ffffff0" % (T + 2))
        A("v_cndmask_b32 v%d, v%d, v%d, vcc" % (T, T + 2, T))
        A("buffer_load_dword v%d, v%d, s[72:75], s3 offen" % (V_TCH + 1, T)); VM.issue()
    A("v_lshrrev_b32 v1, 6, v0")
    A("s_lshr_b32 s%d, s2, 3" % S_I)
    A("s_and_b32 s%d, s%d, 7" % (S_I, S_I))
    A("v_readfirstlane_b32 s%d, v1" % S_W)
    A("s_and_b32 s3, s2, 7")
    A("s_lshl_b32 s3, s3, 2")
    A("s_lshr_b32 s%d, s2, 6" % S_J)
    A("s_add_u32 s%d, s%d, s3" % (S_J, S_J))
    A("v_and_b32 v1, 63, v0")
    A("v_lshrrev_b32 v%d, 3, v1" % T)
    A("v_lshlrev_b32 v%d, 11, v%d" % (T, T))
    A("v_and_b32 v%d, 7, v1" % (T + 1))
    A("v_lshrrev_b32 v%d, 4, v1" % (T + 2))
    A("v_xor_b32 v%d, v%d, v%d" % (T + 1, T + 1, T + 2))
    A("v_lshl_add_u32 v%d, v%d, 4, v%d" % (T, T + 1, T))
    A("s_lshl_b32 s3, s%d, 17" % S_W)
    A("v_add_u32 v%d, s3, v%d" % (T, T))
    A("v_xor_b32 v%d, 64, v%d" % (T + 1, T))
    plan = []
    for n in range(8):
        A("v_add_u32 v%d, %d, v%d" % (V_DMA + n, n * 16384 - 1024 * (n & 3), T + (n & 1)))
        plan.append((V_DMA + n, SRD_X, S_XK, n // 4 if n % 4 == 0 else None, 1024 * (n & 3)))
    for q in range(3): plan.append((V_DMA + 8 + q, SRD_Q, S_QK, 2 if q == 0 else None, 1024 * q))
    for g in range(7): plan.append((V_DMA + 11 + g, SRD_G, S_GK, 3 + g // 4 if g % 4 == 0 else None, 1024 * (g & 3)))
    LD = len(plan)
    A("s_lshl_b32 s%d, s%d, 13" % (S_M0, S_W))
    A("s_add_u32 s%d, s%d, 4096" % (S_M0 + 1, S_M0))
    A("s_mul_i32 s%d, s%d, 3072" % (S_M0 + 2, S_W))
    A("s_add_u32 s%d, s%d, %d" % (S_M0 + 2, S_M0 + 2, QB))
    A("s_and_b32 s3, s%d, 1" % S_W)
    A("s_mul_i32 s3, s3, 7168")
    A("s_cmp_ge_u32 s%d, 2" % S_W)
    A("s_mov_b32 s60, %d" % GB)
    A("s_cselect_b32 s%d, %d, s60" % (S_M0 + 3, UB))
    A("s_add_u32 s%d, s%d, s3" % (S_M0 + 3, S_M0 + 3))
    A("s_add_u32 s%d, s%d, 4096" % (S_M0 + 4, S_M0 + 3))
    for s in (S_XK, S_QK, S_GK): A("s_mov_b32 s%d, 0" % s)
    def dma_list(stage):
        L = []
        for (v, sd, so, m0i, off) in plan:
            g = []
            if m0i is not None:
                g.append("s_mov_b32 m0, s%d" % (S_M0 + m0i) if stage == 0 else "s_add_u32 m0, s%d, %d" % (S_M0 + m0i, STAGE * stage))
            g.append("buffer_load_dwordx4 v%d, s[%d:%d], s%d offen offset:%d lds" % (v, sd, sd + 3, so, off))
            L.append(g)
        L[-1] += ["s_add_u32 s%d, s%d, %d" % (S_XK, S_XK, BK * 2),
                  "s_add_u32 s%d, s%d, %d" % (S_GK, S_GK, BK * 7168),
                  "s_add_u32 s%d, s%d, %d" % (S_QK, S_QK, BK * 6144)]
        return L
    def emit(groups):
        for g in groups:
            for s in g: A(s)
            VM.issue()
    def rowperm(dst, src, tmp):
        A("v_and_b32 v%d, 0xfffffff3, v%d" % (dst, src))
        A("v_bfe_u32 v%d, v%d, 2, 1" % (tmp, src))
        A("v_lshl_or_b32 v%d, v%d, 3, v%d" % (dst, tmp, dst))
        A("v_bfe_u32 v%d, v%d, 3, 1" % (tmp, src))
        A("v_lshl_or_b32 v%d, v%d, 2, v%d" % (dst, tmp, dst))
    NEARLY = O("nearly", 1); NLATE = O("nlate", 1)
    if TOUCH:
        A("s_lshr_b32 s60, s2, 6")
        A("s_and_b32 s61, s%d, 1" % S_W)
        A("s_lshl_b32 s3, s60, 6")
        A("v_add_u32 v%d, s3, v1" % (T + 4))
        A("v_lshlrev_b32 v%d, 11, v%d" % (T + 4, T + 4))
        A("s_lshl_b32 s3, s61, 7")
        A("v_add_u32 v%d, s3, v%d" % (T + 4, T + 4))
        A("s_lshl_b32 s62, s%d, 4" % S_I)
        A("s_lshl_b32 s3, s61, 3")
        A("s_add_u32 s62, s62, s3")
        A("s_and_b32 s63, s%d, 28" % S_J)
        A("v_mul_u32_u24 v%d, 10923, v1" % (T + 5))
        A("v_lshrrev_b32 v%d, 16, v%d" % (T + 5, T + 5))
        A("v_mul_u32_u24 v%d, 6, v%d" % (T + 6, T + 5))
        A("v_sub_u32 v%d, v1, v%d" % (T + 6, T + 6))
        A("v_add_u32 v%d, s62, v%d" % (T + 5, T + 5))
        A("v_mul_u32_u24 v%d, 6144, v%d" % (T + 5, T + 5))
        A("v_lshrrev_b32 v%d, 1, v%d" % (T + 7, T + 6))
        A("v_lshl_add_u32 v%d, v%d, 11, v%d" % (T + 5, T + 7, T + 5))
        A("v_and_b32 v%d, 1, v%d" % (T + 6, T + 6))
        A("v_lshl_add_u32 v%d, v%d, 7, v%d" % (T + 5, T + 6, T + 5))
        A("s_lshl_b32 s3, s63, 6")
        A("v_add_u32 v%d, s3, v%d" % (T + 5, T + 5))
        A("v_mov_b32 v%d, 0x7ffffff0" % (T + 9))
        A("v_cmp_gt_u32 vcc, 48, v1")
        A("v_cndmask_b32 v%d, v%d, v%d, vcc" % (T + 5, T + 9, T + 5))
        A("v_mul_u32_u24 v%d, 9363, v1" % (T + 6))
        A("v_lshrrev_b32 v%d, 16, v%d" % (T + 6, T + 6))
        A("v_mul_u32_u24 v%d, 7, v%d" % (T + 7, T + 6))
        A("v_sub_u32 v%d, v1, v%d" % (T + 7, T + 7))
        A("v_add_u32 v%d, s62, v%d" % (T + 6, T + 6))
        A("v_mul_u32_u24 v%d, 7168, v%d" % (T + 6, T + 6))
        A("v_lshl_add_u32 v%d, v%d, 7, v%d" % (T + 6, T + 7, T + 6))
        A("s_mul_i32 s3, s63, 224")
        A("v_add_u32 v%d, s3, v%d" % (T + 6, T + 6))
        A("v_cmp_gt_u32 vcc, 56, v1")
        A("v_cndmask_b32 v%d, v%d, v%d, vcc" % (T + 6, T + 9, T + 6))
        A("s_and_b32 s3, s2, 63")
        A("s_lshl_b32 s3, s3, 1")
        A("s_add_u32 s3, s3, s61")
        A("s_lshl_b32 s3, s3, 13")
        A("v_lshlrev_b32 v%d, 7, v1" % (T + 7))
        A("v_add_u32 v%d, s3, v%d" % (T + 7, T + 7))
    A("s_waitcnt lgkmcnt(0)")
    A("s_lshl_b32 s64, s%d, 19" % S_I)
    mk_srd(A, SRD_X, 4, 5, 64, 2048 * 2048)
    if TOUCH:
        def sel(cond_sgpr, val, voff, lo, hi, size, step, start):
            A("s_cmp_eq_u32 s%d, %d" % (cond_sgpr, val))
            A("s_cselect_b64 vcc, -1, 0")
            A("s_cselect_b32 s%d, s%d, s%d" % (SRD_T, lo, SRD_T))
            A("s_cselect_b32 s%d, s%d, s%d" % (SRD_T + 1, hi, SRD_T + 1))
            A("s_cselect_b32 s%d, %d, s%d" % (SRD_T + 2, size, SRD_T + 2))
            A("s_cselect_b32 s%d, %d, s%d" % (S_TSTEP, step, S_TSTEP))
            A("s_cselect_b32 s%d, %d, s%d" % (S_TK, start, S_TK))
            A("v_cndmask_b32 v%d, v%d, v%d, vcc" % (V_TCH, V_TCH, voff))
        A("s_mov_b32 s%d, s6" % SRD_T); A("s_mov_b32 s%d, s7" % (SRD_T + 1))
        A("s_mov_b32 s%d, %d" % (SRD_T + 2, 1024 * 6144)); A("s_mov_b32 s%d, 0x20000" % (SRD_T + 3))
        A("s_mov_b32 s%d, %d" % (S_TSTEP, 128 * 6144))
        A("s_mov_b32 s%d, %d" % (S_TK, 0 if NEARLY else 128 * 6144))
        A("v_mov_b32 v%d, v%d" % (V_TCH, T + 5))
        sel(60, 1, T + 6, 52, 53, 1024 * 7168, 128 * 7168, 0 if NEARLY else 128 * 7168)
        sel(60, 2, T + 6, 54, 55, 1024 * 7168, 128 * 7168, 0 if NEARLY else 128 * 7168)
        sel(60, 3, T + 7, 40, 41, 3584 * 2048, 1 << 20, (1 << 32) - (NEARLY << 20) if NEARLY else 0)
        A("s_lshr_b32 s61, s%d, 1" % S_W)
        sel(61, 0, T + 4, SRD_X, SRD_X + 1, 256 * 2048, 256, 0 if NEARLY else 256)
        def touch():
            return ["buffer_load_dword v%d, v%d, s[%d:%d], s%d offen" % (V_TCH + 1, V_TCH, SRD_T, SRD_T + 3, S_TK),
                    "s_add_u32 s%d, s%d, s%d" % (S_TK, S_TK, S_TSTEP)]
        emit([touch() for _ in range(NEARLY)])
    D0 = dma_list(0)
    emit(D0[0:8])
    A("s_and_b32 s3, s%d, 1" % S_W)
    A("s_mul_i32 s3, s3, 448")
    A("s_and_b32 s65, s%d, 1" % S_J)
    A("s_lshl_b32 s65, s65, 1")
    for g in range(7):
        A("v_add_u32 v%d, s3, v1" % T)
        if g: A("v_add_u32 v%d, %d, v%d" % (T, 64 * g, T))
        A("v_mul_u32_u24 v%d, 4682, v%d" % (T + 1, T))
        A("v_lshrrev_b32 v%d, 16, v%d" % (T + 1, T + 1))
        A("v_mul_u32_u24 v%d, 14, v%d" % (T + 2, T + 1))
        A("v_sub_u32 v%d, v%d, v%d" % (T + 2, T, T + 2))
        A("v_add_u32 v%d, s65, v%d" % (T + 2, T + 2))
        A("v_subrev_u32 v%d, 14, v%d" % (T + 3, T + 2))
        A("v_min_u32 v%d, v%d, v%d" % (T + 2, T + 2, T + 3))
        rowperm(T + 4, T + 1, T + 3)
        A("v_mul_u32_u24 v%d, 7168, v%d" % (T + 1, T + 4))
        A("v_lshl_add_u32 v%d, v%d, 4, v%d" % (T + 1, T + 2, T + 1))
        A("v_subrev_u32 v%d, %d, v%d" % (V_DMA + 11 + g, 1024 * (g & 3), T + 1))
    A("s_cmp_ge_u32 s%d, 2" % S_W)
    A("s_cselect_b32 s60, s54, s52")
    A("s_cselect_b32 s61, s55, s53")
    A("s_mul_i32 s3, s%d, 224" % S_J)
    mk_srd(A, SRD_G, 60, 61, 3, 1024 * 7168)
    emit([g[:2] if len(g) > 2 and not g[0].startswith("buffer") else g[:1] if g[0].startswith("buffer") else g for g in D0[11:18]])
    A("s_mul_i32 s3, s%d, 192" % S_W)
    for q in range(3):
        A("v_add_u32 v%d, s3, v1" % T)
        if q: A("v_add_u32 v%d, %d, v%d" % (T, 64 * q, T))
        A("v_mul_u32_u24 v%d, 5462, v%d" % (T + 1, T))
        A("v_lshrrev_b32 v%d, 16, v%d" % (T + 1, T + 1))
        A("v_mul_u32_u24 v%d, 12, v%d" % (T + 2, T + 1))
        A("v_sub_u32 v%d, v%d, v%d" % (T + 2, T, T + 2))
        A("v_bfe_u32 v%d, v%d, 2, 1" % (T + 3, T + 1))
        A("v_lshlrev_b32 v%d, 1, v%d" % (T + 3, T + 3))
        A("v_xor_b32 v%d, v%d, v%d" % (T + 2, T + 2, T + 3))
        rowperm(T + 4, T + 1, T + 3)
        A("v_mul_u32_u24 v%d, 6144, v%d" % (T + 1, T + 4))
        A("v_lshrrev_b32 v%d, 2, v%d" % (T + 3, T + 2))
        A("v_lshlrev_b32 v%d, 11, v%d" % (T + 3, T + 3))
        A("v_and_b32 v%d, 3, v%d" % (T + 2, T + 2))
        A("v_lshlrev_b32 v%d, 4, v%d" % (T + 2, T + 2))
        A("v_add3_u32 v%d, v%d, v%d, v%d" % (T + 1, T + 1, T + 2, T + 3))
        A("v_subrev_u32 v%d, %d, v%d" % (V_DMA + 8 + q, 1024 * q, T + 1))
    A("s_lshl_b32 s3, s%d, 6" % S_J)
    mk_srd(A, SRD_Q, 6, 7, 3, 1024 * 6144)
    emit(D0[8:11])
    for s in D0[17][1:]: A(s)
    mk_srd(A, SRD_W, 58, 59, None, WS_SIZE)
    S_F1 = 44
    A("s_lshl_b32 s%d, s%d, 7" % (S_F1, S_J))
    A("s_add_u32 s%d, s%d, %d" % (S_F1, S_F1, WS_FLG1))
    A("s_lshl_b32 s3, s%d, 2" % S_I)
    A("s_add_u32 s3, s3, s%d" % S_W)
    A("s_lshl_b32 s45, s3, 2")
    A("s_lshr_b32 s3, s3, 1")
    A("s_lshl_b32 s3, s3, 5")
    A("s_add_u32 s3, s3, s%d" % S_J)
    A("s_lshl_b32 s3, s3, 1")
    A("s_and_b32 s60, s%d, 1" % S_W)
    A("s_add_u32 s3, s3, s60")
    A("s_lshl_b32 s3, s3, 2")
    A("s_add_u32 s77, s3, %d" % WS_FLGH)
    k2ids(A, 61, 62, 63, 64)
    A("s_add_u32 s3, s%d, s45" % S_F1)
    A("v_mov_b32 v%d, s3" % T)
    A("v_writelane_b32 v%d, s77, 1" % T)
    A("s_add_u32 s3, s77, %d" % (WS_FLGO - WS_FLGH))
    A("v_writelane_b32 v%d, s3, 2" % T)
    A("v_writelane_b32 v%d, s64, 3" % T)
    A("v_mov_b32 v%d, 0" % (T + 1))
    A("buffer_store_dword v%d, v%d, s[%d:%d], 0 offen sc1" % (T + 1, T, SRD_W, SRD_W + 3)); VM.issue()
    VM.tag["g"] = VM.n
    EARLY = O("early", 0)
    D1 = dma_list(1)
    emit(D1[:EARLY])
    A("s_lshl_b32 s3, s%d, 11" % S_J)
    mk_srd(A, SRD_P, 66, 67, 3, 65536)
    A("s_and_b32 s3, s%d, 1" % S_W)
    A("s_lshl_b32 s47, s3, 10")
    A("v_lshl_add_u32 v%d, v1, 4, s47" % (T + 3))
    late = D1[EARLY:] + [["s_add_u32 m0, s47, %d" % WPB, "buffer_load_dwordx4 v%d, s[%d:%d], 0 offen lds" % (T + 3, SRD_P, SRD_P + 3)]]
    mk_srd(A, SRD_D, 56, 57, None, 256)
    if TOUCH: late += [touch() for _ in range(NLATE)]
    A("s_load_dwordx2 s[4:5], s[0:1], 24")
    A("s_load_dwordx2 s[56:57], s[0:1], 72")
    A("v_and_b32 v%d, 15, v1" % (T + 4))
    A("v_lshlrev_b32 v%d, 7, v%d" % (T + 4, T + 4))
    A("s_lshl_b32 s3, s%d, 13" % S_W)
    A("v_add_u32 v%d, s3, v%d" % (T + 4, T + 4))
    A("v_bfe_u32 v%d, v1, 1, 3" % (T + 5))
    A("v_lshrrev_b32 v%d, 4, v1" % (T + 6))
    for ks in range(2):
        A("v_or_b32 v%d, %d, v%d" % (T + 7, ks * 4, T + 6))
        A("v_xor_b32 v%d, v%d, v%d" % (T + 7, T + 7, T + 5))
        A("v_lshl_add_u32 v%d, v%d, 4, v%d" % (V_XRD + ks, T + 7, T + 4))
        A("v_add_u32 v%d, %d, v%d" % (V_XRD + 2 + ks, STAGE, V_XRD + ks))
    A("v_bfe_u32 v%d, v1, 2, 2" % (T + 4))
    A("v_and_b32 v%d, 3, v1" % (T + 5))
    A("v_bfe_u32 v%d, v1, 4, 1" % (T + 7))
    A("v_lshrrev_b32 v%d, 5, v1" % (T + 8))
    A("v_lshl_add_u32 v%d, v%d, 4, v%d" % (T + 4, T + 8, T + 4))
    A("v_lshl_add_u32 v%d, v%d, 2, v%d" % (T + 4, T + 7, T + 4))
    A("v_lshlrev_b32 v%d, 3, v%d" % (T + 5, T + 5))
    A("v_mul_u32_u24 v%d, 192, v%d" % (T + 9, T + 4))
    A("v_add_u32 v%d, v%d, v%d" % (T + 9, T + 9, T + 5))
    for h in range(2):
        A("v_xor_b32 v%d, %d, v%d" % (T + 8, h, T + 7))
        A("v_lshl_add_u32 v%d, v%d, 5, v%d" % (T + 8, T + 8, T + 9))
        for st in range(2): A("v_add_u32 v%d, %d, v%d" % (V_QRD + st * 2 + h, QB + STAGE * st, T + 8))
    A("v_mul_u32_u24 v%d, 224, v%d" % (T + 9, T + 4))
    A("v_add_u32 v%d, v%d, v%d" % (T + 8, T + 9, T + 5))
    for st in range(2): A("v_add_u32 v%d, %d, v%d" % (V_GRD + st, GB + STAGE * st, T + 8))
    A("s_mov_b32 s%d, 0x%x" % (S_C, LOG2E)); A("s_mov_b32 s%d, 0x%x" % (S_C + 1, LOG2E))
    stamp(False)
    A("s_waitcnt vmcnt(%d) lgkmcnt(0)" % VM.wait_for(["g"]))
    A("s_barrier")
    def xread(stage, ks, p, tb):
        return "ds_read_b128 %s, v%d offset:%d" % (xf(p, tb), V_XRD + 2 * stage + ks, tb * 2048)
    def wread(stage, ks, cb, n, t):
        b = BLK[cb]
        if b[0] == "q":
            return "ds_read_b64_tr_b16 %s, v%d offset:%d" % (wf(n, t), V_QRD + stage * 2 + b[2], (ks * 32 + t * 8) * 192 + b[1] * 64)
        return "ds_read_b64_tr_b16 %s, v%d offset:%d" % (wf(n, t), V_GRD + stage, (ks * 32 + t * 8) * 224 + b[1] * 32 + (UB - GB if b[0] == "u" else 0))
    Q = Cnt(15)
    for tb in range(NTB):
        A(xread(0, 0, 0, tb)); Q.issue(("x", 0, tb))
    for n in range(D):
        for t in range(2):
            A(wread(0, 0, n, n, t)); Q.issue(("w", n))
    A("s_lshl_b32 s3, s%d, 3" % S_J)
    A("s_add_u32 s3, s3, s%d" % S_I)
    A("s_cmp_eq_u32 s%d, 0" % S_W)
    A("s_cselect_b32 s3, s3, 0x1000")
    A("v_mov_b32 v%d, s3" % (T + 5))
    A("v_mov_b32 v%d, 1" % (T + 6))
    bytest = "buffer_store_byte v%d, v%d, s[%d:%d], 0 offen sc1" % (T + 6, T + 5, SRD_D, SRD_D + 3)
    NPRO = 1 + (NLATE if TOUCH else 0)
    if STAMP: stamp(); stamp.real()


    NS = 4; ST2 = 16384; AB = 65536
    TH = O("th", 8)
    NH = (72 - TH) // 2; NF1 = 56 - NH; NT2 = NH + TH
    NPEEL = NF1 - 4
    S_MT, S_NT, S_KH, S_XF = 52, 53, 54, 55
    S_AK, S_WK, S_KT, S_SW, S_WK0, S_M0H, S_AK0 = 28, 29, 30, 31, 34, 35, 36
    SRD_A, SRD_B, SRD_O = 8, 12, 16
    S_B2 = 72; S_WM, S_WN = 42, 43; S_HF = 70
    P_DMA, P_XRD, P_WRD, P_TOK, P_GA, P_VL, P_Z0, P_L4 = 2, 10, 11, 15, 16, 17, 18, 19
    P_XRD2, P_AH = 3, 5
    def groups(B, n=2):
        L = []; i = 0
        while i < len(B.lines):
            k = n
            while i + k < len(B.lines) and ("s_addc" in B.lines[i + k] or "s_cselect" in B.lines[i + k] or "s_cselect" in "".join(B.lines[i + k + 1:i + k + 2])): k += 1
            L.append([x.strip() for x in B.lines[i:i + k]]); i += k
        return L
    def m0set(i, stage):
        return "s_add_u32 m0, s%d, %d" % (S_M0 + i, ST2 * stage) if stage else "s_mov_b32 m0, s%d" % (S_M0 + i)
    def lda(n): return "buffer_load_dwordx4 v%d, s[%d:%d], s%d offen offset:%d%s lds" % (P_DMA + (n & 2), SRD_A, SRD_A + 3, S_AK, 1024 * n, DSC)
    def ldw(n): return "buffer_load_dwordx4 v%d, s[%d:%d], s%d offen offset:%d lds" % (P_DMA + 4 + n, SRD_B, SRD_B + 3, S_WK, 1024 * n)
    def wotouch():
        B = Asm()
        mk_srd(B, 72, 4, 5, None, 1024 * 2048)
        B("s_lshr_b32 s3, s2, 3")
        B("s_lshl_b32 s3, s3, 2")
        B("s_add_u32 s3, s3, s%d" % S_W)
        B("s_lshl_b32 s3, s3, 14")
        B("s_bfe_u32 s6, s2, 0x10002")
        B("s_lshl_b32 s6, s6, 10")
        B("s_add_u32 s3, s3, s6")
        B("v_lshrrev_b32 v32, 3, v1")
        B("v_lshlrev_b32 v32, 11, v32")
        B("v_and_b32 v33, 7, v1")
        B("v_lshl_add_u32 v32, v33, 7, v32")
        B("buffer_load_dword v33, v32, s[72:75], s3 offen")
        return groups(B, 3)
    AG = 96
    def gloads():
        B = Asm()
        mk_srd(B, 72, 42, 43, None, 2048)
        B("v_and_b32 v34, 31, v1")
        B("v_lshlrev_b32 v34, 6, v34")
        B("v_lshrrev_b32 v35, 5, v1")
        B("s_lshl_b32 s3, s%d, 6" % S_W)
        B("s_lshl_b32 s6, s%d, 1" % S_J)
        B("s_add_u32 s3, s3, s6")
        B("v_add_u32 v30, s3, v35")
        B("v_lshl_add_u32 v35, v30, 11, v34")
        L = groups(B, 3)
        for q in range(4):
            L.append(["buffer_load_dwordx4 %s, v35, s[%d:%d], 0 offen offset:%d" % (ar(AG + 4 * q, 4), SRD_X, SRD_X + 3, 16 * q)])
            L.append(["buffer_load_dwordx4 %s, v34, s[72:75], 0 offen offset:%d" % (ar(AG + 16 + 4 * q, 4), 16 * q)])
        return L
    def wsetup():
        B = Asm()
        k2ids(B, S_MT, S_NT, S_KH, S_XF)
        B("v_lshrrev_b32 v32, 4, v1")
        B("v_and_b32 v33, 15, v1")
        B("v_lshlrev_b32 v34, 1, v32")
        B("v_xor_b32 v33, v33, v34")
        B("s_lshl_b32 s3, s%d, 4" % S_W)
        B("v_add_u32 v32, s3, v32")
        B("v_lshlrev_b32 v32, 11, v32")
        B("v_lshl_add_u32 v32, v33, 4, v32")
        B("v_xor_b32 v33, 128, v32")
        for n in range(4):
            B("v_add_u32 v%d, %d, v%d" % (P_DMA + 4 + n, n * 4 * 2048 - 1024 * n, 32 + (n >> 1)))
        B("s_lshl_b32 s%d, s%d, 12" % (S_M0 + 1, S_W))
        B("s_add_u32 s%d, s%d, %d" % (S_M0, S_M0 + 1, AB))
        B("s_mul_i32 s3, s%d, %d" % (S_KH, NH * 64 * 2048))
        B("s_lshl_b32 s6, s%d, 8" % S_NT)
        B("s_add_u32 s3, s3, s6")
        B("s_add_u32 s%d, s40, s3\ns_addc_u32 s%d, s41, 0" % (SRD_B, SRD_B + 1))
        B("s_sub_u32 s%d, %d, s3" % (SRD_B + 2, 3584 * 2048))
        B("s_mov_b32 s%d, 0" % S_WK)
        return groups(B, 3)
    def wdma():
        L = []
        for stg in range(NS):
            for n in range(4):
                g = ([m0set(1, stg)] if n == 0 else []) + [ldw(n)]
                if n == 3: g.append("s_add_u32 s%d, s%d, %d" % (S_WK, S_WK, 64 * 2048))
                L.append(g)
        return L
    def rest():
        B = Asm()
        B("s_mov_b32 s47, %d" % (WS_FLGO - WS_FLGH))
        B("s_lshl_b32 s6, s%d, 8" % S_NT)
        B("s_add_u32 s%d, s4, s6\ns_addc_u32 s%d, s5, 0" % (S_B2, S_B2 + 1))
        B("s_sub_u32 s%d, %d, s6" % (S_B2 + 2, 1024 * 2048))
        B("v_lshlrev_b32 v%d, 4, v1" % P_VL)
        B("s_mul_i32 s3, s%d, %d" % (S_W, 2 * MBS))
        B("v_add_u32 v%d, s3, v%d" % (P_DMA, P_VL))
        B("v_add_u32 v%d, %d, v%d" % (P_DMA + 2, MBS - 2048, P_DMA))
        B("s_mov_b32 s%d, 0" % S_AK); B("s_mov_b32 s%d, %d" % (S_KT, NS))
        jh = (64 * NH - 1) // 112; jf = 64 * NH // 112
        full = (1 << 64) - 1
        ih = full ^ ((1 << (2 * jh + 2)) - 1); if_ = (1 << (2 * jf)) - 1
        B("s_mov_b32 s68, 0x%x" % (if_ & 0xffffffff)); B("s_mov_b32 s69, 0x%x" % (if_ >> 32))
        B("s_cmp_eq_u32 s%d, 0" % S_KH)
        B("s_cselect_b32 s%d, %d, %d" % (S_SW, NH, NF1))
        B("s_cselect_b32 s%d, %d, 0" % (S_WK0, (16 - TH) * 64 * 2048))
        B("s_mov_b32 s%d, %d" % (S_AK0, NF1 * 2048))
        B("s_cselect_b32 s%d, %d, s%d" % (S_AK0, (72 - TH) * 2048, S_AK0))
        B("s_cselect_b32 s68, 0x%x, s68" % (ih & 0xffffffff)); B("s_cselect_b32 s69, 0x%x, s69" % (ih >> 32))
        B("s_mul_i32 s3, s%d, %d" % (S_MT, 8 * MBS))
        B("s_mul_i32 s6, s%d, %d" % (S_KH, NH * 2048))
        B("s_add_u32 s3, s3, s6")
        mk_srd(B, SRD_A, 58, 59, 3, 128 * MBS)
        mk_srd(B, SRD_O, 56, 57, None, 2048 * 2048)
        B("s_lshr_b32 s%d, s%d, 1" % (S_WM, S_W)); B("s_and_b32 s%d, s%d, 1" % (S_WN, S_W))
        B("s_lshl_b32 s6, s%d, 7" % S_MT)
        B("s_lshl_b32 s3, s%d, 6" % S_WM)
        B("s_add_u32 s6, s6, s3")
        B("s_lshl_b32 s3, s%d, 5" % S_KH)
        B("s_add_u32 s6, s6, s3")
        B("v_and_b32 v32, 15, v1")
        B("v_add_u32 v%d, s6, v32" % P_TOK)
        B("v_lshlrev_b32 v%d, 2, v%d" % (P_GA, P_TOK))
        B("v_add_u32 v%d, %d, v%d" % (P_GA, WS_G, P_GA))
        B("s_lshl_b32 s3, s%d, 13" % S_WM)
        B("s_add_u32 s3, s3, %d" % AB)
        B("s_lshl_b32 s6, s%d, 12" % S_KH)
        B("s_add_u32 s%d, s3, s6" % S_M0H)
        B("v_add_u32 v%d, s%d, v%d" % (P_XRD, S_M0H, P_VL))
        B("s_sub_u32 s3, s3, s6")
        B("v_add_u32 v%d, s3, v%d" % (P_XRD2, P_VL))
        B("s_lshl_b32 s3, s%d, 11" % S_WN)
        B("s_add_u32 s%d, s%d, s3" % (S_M0H, S_M0H))
        B("s_sub_u32 s3, s%d, %d" % (S_M0H, AB))
        B("s_mul_i32 s3, s3, %d" % (MBS // 2048))
        B("v_add_u32 v%d, s3, v%d" % (P_AH, P_VL))
        B("v_lshrrev_b32 v34, 4, v1")
        B("v_bfe_u32 v32, v1, 2, 2")
        B("v_lshl_add_u32 v33, v34, 3, v32")
        B("v_lshlrev_b32 v33, 8, v33")
        B("v_and_b32 v35, 3, v1")
        B("v_lshl_add_u32 v33, v35, 3, v33")
        B("v_bfe_u32 v35, v1, 4, 1")
        B("v_lshl_add_u32 v32, v35, 2, v32")
        B("s_lshl_b32 s3, s%d, 2" % S_WN)
        for cb in range(4):
            B("s_add_u32 s6, s3, %d" % cb)
            B("v_xor_b32 v35, s6, v32")
            B("v_lshl_add_u32 v%d, v35, 5, v33" % (P_WRD + cb))
        B("v_mov_b32 v%d, 0" % P_Z0)
        B("v_lshlrev_b32 v%d, 2, v1" % P_L4)
        B("s_lshl_b32 s%d, s%d, 8" % (S_HF, S_MT))
        B("s_add_u32 s%d, s%d, %d" % (S_HF, S_HF, WS_FLGH))
        B("s_mov_b32 s46, 0x01010101")
        return groups(B, 3)

    st = {"pend": late}
    PB = 40 - D
    DSP = O("dsp", 1); DPOS = O("dpos", 2); DMARG = O("dmarg", 12)
    def tile(stage, first, dma_next, has_next, vm_extra, do_touch, extra=None, after=None):
        if extra: st["pend"] = st["pend"] + extra
        for n in range(40):
            ks, cb = divmod(n, 20)
            pre = []
            if n == PB and has_next:
                assert not st["pend"]
                pre += ["s_waitcnt lgkmcnt(0) vmcnt(%d)" % vm_extra, "s_barrier"]
                if first: pre.append(bytest)
                if dma_next: st["pend"] = dma_list(stage)
                if do_touch: st["pend"].append(touch())
                if after: st["pend"] = st["pend"] + after
            need_tags = [("w", n)] + ([("x", ks, tb) for tb in range(NTB)] if cb == 0 else [])
            if not (n == PB and has_next):
                pre.append("s_waitcnt lgkmcnt(%d)" % Q.wait_for(need_tags))
            rds = []
            def addw(m):
                if m < 40:
                    k2, c2 = divmod(m, 20)
                    for t in range(2): rds.append((wread(stage, k2, c2, m, t), ("w", m)))
                elif has_next:
                    for t in range(2): rds.append((wread(stage ^ 1, 0, m - 40, m, t), ("w", m - 40)))
            if n == PB - 2: addw(n + D); addw(n + D + 1)
            elif n == PB - 1: pass
            else: addw(n + D)
            if ks == 0 and cb in (4, 7, 10, 13):
                tb = (cb - 4) // 3
                rds.append((xread(stage, 1, 1, tb), ("x", 1, tb)))
            if has_next and n >= PB and n < PB + 4:
                tb = n - PB
                rds.append((xread(stage ^ 1, 0, 0, tb), ("x", 0, tb)))
            for s in pre: A(s)
            k = 0
            for tb in range(NTB):
                a, b = wf(n), xf(ks, tb)
                if BLK[cb][0] == "q" and BLK[cb][1] == 2: a, b = b, a
                c = "0" if (first and ks == 0) else acc(cb, tb)
                A("v_mfma_f32_16x16x32_bf16 %s, %s, %s, %s" % (acc(cb, tb), a, b, c))
                if k < len(rds):
                    A(rds[k][0]); Q.issue(rds[k][1]); k += 1
                if tb == 3:
                    while k < len(rds):
                        A(rds[k][0]); Q.issue(rds[k][1]); k += 1
                if tb == DPOS and st["pend"]:
                    left = (PB - n - 1) % 40 + 1 - DMARG
                    if DSP == 1 or (n % DSP == 0) or len(st["pend"]) * DSP >= left:
                        for s in st["pend"].pop(0): A(s)
    assert 40 % RING == 0 and D + 2 <= RING
    nt = 1 if TOUCH else 0
    tile(0, True, True, True, NPRO, False)
    A("s_mov_b32 s%d, 0" % S_CNT)
    A.label("L_k1_loop")
    if STAMP == 2:
        A("s_memtime s[100:101]"); A("s_waitcnt lgkmcnt(0)"); A("s_sub_u32 s100, s100, s80")
        A("s_mov_b32 m0, s%d" % S_CNT); A("s_nop 0"); A("v_writelane_b32 v47, s100, m0")
        A("s_add_u32 m0, s%d, 0" % (S_M0 + 1))
    tile(1, False, True, True, 0, TOUCH)
    tile(0, False, True, True, nt, False)
    A("s_add_u32 s%d, s%d, 1" % (S_CNT, S_CNT))
    A("s_cmp_lt_u32 s%d, 6" % S_CNT)
    A("s_cbranch_scc1 L_k1_loop")
    if STAMP == 2:
        for q in range(6):
            r = 82 + len(stamp.regs); stamp.regs.append(r)
            A("v_readlane_b32 s%d, v47, %d" % (r, q)); A("s_nop 1"); A("s_add_u32 s%d, s%d, s80" % (r, r))
        stamp()
        stamp.off = True
    tile(1, False, True, True, 10, False, [touch()] + gloads() + wotouch())
    tile(0, False, False, True, 0, False, wsetup(), wdma())
    tile(1, False, False, False, 0, False, rest())
    assert not st["pend"]
    stamp(); stamp.real()

    E = 2
    def pk(op, d, a, b, c=None, mods=""):
        if c is None: A("%s %s, %s, %s %s" % (op, d, a, b, mods))
        else: A("%s %s, %s, %s, %s %s" % (op, d, a, b, c, mods))
    def rsag2(op, qa, opb, qb):
        seqs = []
        for (o, q) in ((op, qa), (opb, qb)):
            seqs.append([
                "v_permlane32_swap_b32 v%d, v%d" % (q[0], q[1]),
                "v_permlane32_swap_b32 v%d, v%d" % (q[2], q[3]),
                "%s v%d, v%d, v%d" % (o, q[0], q[0], q[1]),
                "%s v%d, v%d, v%d" % (o, q[2], q[2], q[3]),
                "v_permlane16_swap_b32 v%d, v%d" % (q[0], q[2]),
                "%s v%d, v%d, v%d" % (o, q[0], q[0], q[2]),
                "v_mov_b32 v%d, v%d" % (q[2], q[0]),
                "v_permlane16_swap_b32 v%d, v%d" % (q[0], q[2]),
                "v_mov_b32 v%d, v%d" % (q[1], q[0]),
                "v_mov_b32 v%d, v%d" % (q[3], q[2]),
                "v_permlane32_swap_b32 v%d, v%d" % (q[0], q[1]),
                "v_permlane32_swap_b32 v%d, v%d" % (q[2], q[3])])
        for x, y in zip(*seqs):
            A(x); A(y)
    MX = [232, 234, 236, 238]; MN = [240, 242, 244, 246]; PB16 = 20; WP = 176
    def feature(cb0):
        for tb in range(NTB):
            for h in range(2):
                f, b = accb(cb0 + h, tb); assert f == "v"
                A("v_cvt_pk_bf16_f32 v%d, v%d, v%d" % (PB16 + 4 * tb + 2 * h, b, b + 1))
                A("v_cvt_pk_bf16_f32 v%d, v%d, v%d" % (PB16 + 4 * tb + 2 * h + 1, b + 2, b + 3))
        for tb in range(NTB):
            for fb in range(2):
                A("v_mfma_f32_16x16x32_bf16 %s, %s, %s, 0" % (acc(cb0 + fb, tb), vr(WP + 4 * fb, 4), vr(PB16 + 4 * tb, 4)))
    def feature2(cb0):
        for tb in range(NTB):
            p0 = accb(cb0, tb)[1]; p1 = accb(cb0 + 1, tb)[1]
            for step in range(4):
                for (op3, op2, d) in (("v_max3_f32", "v_max_f32", MX[tb]), ("v_min3_f32", "v_min_f32", MN[tb])):
                    if step == 0: A("%s v%d, v%d, v%d, v%d" % (op3, d, p0, p0 + 1, p0 + 2))
                    if step == 1: A("%s v%d, v%d, v%d, v%d" % (op3, d, d, p0 + 3, p1))
                    if step == 2: A("%s v%d, v%d, v%d, v%d" % (op3, d, d, p1 + 1, p1 + 2))
                    if step == 3: A("%s v%d, v%d, v%d" % (op2, d, d, p1 + 3))
        rsag2("v_max_f32", MX, "v_min_f32", MN)
        for b in MX + MN: A("v_mul_f32 v%d, s%d, v%d" % (b, S_C, b))
    def exps(cb0, tb, EM):
        for h in range(2):
            p = accb(cb0 + h, tb)[1]
            for u in range(2):
                pk("v_pk_fma_f32", vr(EM + 4 * h + 2 * u, 2), vr(p + 2 * u, 2), sr(S_C, 2), vr(MN[tb], 2),
                   "op_sel_hi:[1,1,0] neg_lo:[1,0,0] neg_hi:[1,0,0]")
                pk("v_pk_fma_f32", vr(p + 2 * u, 2), vr(p + 2 * u, 2), sr(S_C, 2), vr(MX[tb], 2),
                   "op_sel_hi:[1,1,0] neg_lo:[0,0,1] neg_hi:[0,0,1]")
        for h in range(2):
            p = accb(cb0 + h, tb)[1]
            for r in range(4):
                A("v_exp_f32 v%d, v%d" % (p + r, p + r))
                A("v_exp_f32 v%d, v%d" % (EM + 4 * h + r, EM + 4 * h + r))
    VH = 36; VS = 37
    A("v_mov_b32 v0, v30")
    A("v_and_b32 v%d, 15, v1" % VH)
    A("v_lshlrev_b32 v%d, 4, v%d" % (VH, VH))
    A("v_lshrrev_b32 v38, 5, v1")
    A("v_lshl_add_u32 v%d, v38, 8, v%d" % (VH, VH))
    A("v_bfe_u32 v38, v1, 4, 1")
    A("v_mul_u32_u24 v%d, %d, v38" % (VS, MBS))
    A("v_add_u32 v%d, v%d, v%d" % (VS, VS, VH))
    A("v_lshl_add_u32 v%d, v38, 9, v%d" % (VH, VH))
    A("s_lshl_b32 s3, s%d, 4" % S_I)
    A("s_lshl_b32 s62, s%d, 2" % S_W)
    A("s_add_u32 s62, s62, s3")
    A("s_mul_i32 s62, s62, %d" % MBS)
    A("s_mul_i32 s3, s%d, 7" % S_J)
    A("s_add_u32 s3, s3, 1")
    A("s_lshr_b32 s3, s3, 1")
    A("s_lshl_b32 s3, s3, 10")
    A("s_add_u32 s63, s62, s3")
    for tb in range(1, 4): A("s_add_u32 s%d, s63, %d" % (63 + tb, tb * MBS))
    A("s_add_u32 s67, s63, 3072")
    A("s_sub_u32 s3, s63, 512")
    A("s_bitcmp1_b32 s%d, 0" % S_J)
    A("s_cselect_b32 s67, s3, s67")
    A("s_add_u32 s76, s67, %d" % (2 * MBS))
    FREEV = [accb(6, 0)[1] + 4 * i for i in range(16)]
    def glu(fb, fi):
        gs, us = [], []
        for tb in range(4):
            out = []
            for cb in (6 + 2 * fb, 7 + 2 * fb):
                f, b = accb(cb, tb)
                if f == "a":
                    d = FREEV[fi]; fi += 1
                    for r in range(4): A("v_accvgpr_read_b32 v%d, a%d" % (d + r, b + r))
                    b = d
                out.append(b)
            gs.append(out[0]); us.append(out[1])
        for tb in range(4):
            for u in range(2): pk("v_pk_mul_f32", vr(gs[tb] + 2 * u, 2), vr(gs[tb] + 2 * u, 2), sr(S_C, 2))
        for tb in range(4):
            for r in range(4): A("v_exp_f32 v%d, -v%d" % (gs[tb] + r, gs[tb] + r))
        for tb in range(4):
            for u in range(2): pk("v_pk_add_f32", vr(gs[tb] + 2 * u, 2), vr(gs[tb] + 2 * u, 2), "1.0", None, "op_sel_hi:[1,0]")
        for tb in range(4):
            for r in range(4): A("v_rcp_f32 v%d, v%d" % (gs[tb] + r, gs[tb] + r))
        for tb in range(4):
            for u in range(2): pk("v_pk_mul_f32", vr(gs[tb] + 2 * u, 2), vr(gs[tb] + 2 * u, 2), vr(us[tb] + 2 * u, 2))
        return gs, us
    def packswap(dst, a, b):
        for (d, x) in ((dst, a), (dst + 2, b)):
            A("v_cvt_pk_bf16_f32 v%d, v%d, v%d" % (d, x, x + 1))
            A("v_cvt_pk_bf16_f32 v%d, v%d, v%d" % (d + 1, x + 2, x + 3))
    def doswap(d):
        A("v_permlane16_swap_b32 v%d, v%d" % (d, d + 2))
        A("v_permlane16_swap_b32 v%d, v%d" % (d + 1, d + 3))
    def glu_pair(p, D4):
        g0, u0 = glu(2 * p, 0)
        g1, u1 = glu(2 * p + 1, 8)
        for tb in range(4): packswap(D4[tb], g0[tb], g1[tb])
        for tb in range(4): doswap(D4[tb])
        return ["buffer_store_dwordx4 %s, v%d, s[%d:%d], s%d offen offset:%d%s" % (vr(D4[tb], 4), VH, SRD_W, SRD_W + 3, 63 + tb, p * 1024, SC) for tb in range(4)]
    def capture(fn):
        start = len(A.lines)
        r = fn()
        body = [x.strip() for x in A.lines[start:]]; del A.lines[start:]
        return body, r
    def spread(fn, stores, every):
        body, r = capture(fn)
        k = 0
        for n, ln in enumerate(body):
            if n % every == 0 and k < len(stores):
                A(stores[k]); k += 1
            A(ln)
        for x in stores[k:]: A(x)
        return r
    PKA = [PB16 + 4 * i for i in range(4)]
    PKB = [accb(10, 0)[1] + 4 * i for i in range(4)]
    PK1 = [accb(11, 0)[1] + 4 * i for i in range(4)]
    st0 = glu_pair(0, PKA)
    st1 = spread(lambda: glu_pair(1, PK1), st0, 30)
    st2 = spread(lambda: glu_pair(2, PKA), st1, 40)
    def last():
        g6, u6 = glu(6, 0)
        for tp in range(2): packswap(PKB[tp], g6[2 * tp], g6[2 * tp + 1])
        for tp in range(2): doswap(PKB[tp])
    spread(last, st2, 25)
    for tp in range(2):
        A("buffer_store_dwordx4 %s, v%d, s[%d:%d], s%d offen%s" % (vr(PKB[tp], 4), VS, SRD_W, SRD_W + 3, 67 if tp == 0 else 76, SC))
    stamp()
    def flag_group(saddr, soff):
        return ["v_mov_b32 v38, s%d" % saddr, "v_mov_b32 v39, 1", "s_mov_b64 exec, 1",
                "buffer_store_dword v39, v38, s[%d:%d], %s offen sc1" % (SRD_W, SRD_W + 3, soff), "s_mov_b64 exec, -1"]
    A("v_bfe_u32 v224, v1, 2, 2")
    A("v_lshrrev_b32 v225, 4, v1")
    A("v_and_b32 v226, 3, v1")
    A("v_lshl_add_u32 v227, v225, 2, v224")
    A("v_lshlrev_b32 v228, 6, v227")
    A("v_lshl_add_u32 v228, v226, 3, v228")
    A("v_add_u32 v228, %d, v228" % WPB)
    for fb in range(2):
        for t in range(2):
            A("ds_read_b64_tr_b16 %s, v228 offset:%d" % (vr(WP + 4 * fb + 2 * t, 2), fb * 32 + t * 1024))
    A("s_waitcnt lgkmcnt(0)")
    A("s_barrier")
    dbgld = "buffer_load_dword v47, v%d, s[%d:%d], 0 offen sc1" % (P_L4, SRD_D, SRD_D + 3)
    A(dbgld)
    feature(0)
    SP = [248, 250, 252, 254]; SM = [200, 202, 204, 206]
    VB = accb(2, 0)[1]
    assert accb(3, 0)[1] == VB + 16
    for db in range(2):
        for tb in range(4):
            s = VB + db * 16 + tb * 4
            d = VB + db * 8 + tb * 2
            A("v_cvt_pk_bf16_f32 v%d, v%d, v%d" % (d, s, s + 1))
            A("v_cvt_pk_bf16_f32 v%d, v%d, v%d" % (d + 1, s + 2, s + 3))
    feature2(0)
    A("s_lshl_b32 s61, s%d, 13" % S_W)
    A("s_add_u32 s61, s61, %d" % SCR)
    VPW = 192; VPR = 196
    A("v_and_b32 v229, 15, v1")
    A("v_lshlrev_b32 v229, 7, v229")
    A("v_xor_b32 v230, v225, v226")
    A("v_lshl_add_u32 v229, v230, 3, v229")
    A("v_add_u32 v229, s61, v229")
    for q in range(4):
        A("v_xor_b32 v230, %d, v224" % q)
        A("v_lshl_add_u32 v%d, v230, 5, v229" % (VPW + q))
    A("v_lshlrev_b32 v229, 7, v227")
    A("v_xor_b32 v230, v226, v224")
    A("v_lshl_add_u32 v229, v230, 3, v229")
    A("v_add_u32 v229, s61, v229")
    for q in range(4):
        A("v_xor_b32 v230, %d, v225" % q)
        A("v_lshl_add_u32 v%d, v230, 5, v229" % (VPR + q))
    EMR = [PB16, PB16 + 8, VB + 16, VB + 24]
    for tb in range(4):
        exps(0, tb, EMR[tb])
    t0 = 144
    for tb in range(4):
        p0 = accb(0, tb)[1]; p1 = accb(1, tb)[1]; e = EMR[tb]
        pk("v_pk_add_f32", vr(t0, 2), vr(p0, 2), vr(p0 + 2, 2))
        pk("v_pk_add_f32", vr(t0 + 2, 2), vr(e, 2), vr(e + 2, 2))
        pk("v_pk_add_f32", vr(t0, 2), vr(t0, 2), vr(p1, 2))
        pk("v_pk_add_f32", vr(t0 + 2, 2), vr(t0 + 2, 2), vr(e + 4, 2))
        pk("v_pk_add_f32", vr(t0, 2), vr(t0, 2), vr(p1 + 2, 2))
        pk("v_pk_add_f32", vr(t0 + 2, 2), vr(t0 + 2, 2), vr(e + 6, 2))
        A("v_add_f32 v%d, v%d, v%d" % (SP[tb], t0, t0 + 1))
        A("v_add_f32 v%d, v%d, v%d" % (SM[tb], t0 + 2, t0 + 3))
    rsag2("v_add_f32", SP, "v_add_f32", SM)
    for i in SP + SM: A("v_rcp_f32 v%d, v%d" % (i, i))
    HPOS = O("hpos", 0)
    def hflag():
        A("s_waitcnt vmcnt(0)")
        for x in flag_group(77, "0"): A(x)
    if HPOS == 0: hflag()
    for tb in range(4):
        srcs = [(accb(0, tb)[1], SP), (accb(1, tb)[1], SP), (EMR[tb], SM), (EMR[tb] + 4, SM)]
        for q, (p, sc) in enumerate(srcs):
            for u in range(2):
                pk("v_pk_mul_f32", vr(p + 2 * u, 2), vr(p + 2 * u, 2), vr(sc[tb], 2), None, "op_sel_hi:[1,0]")
        for q, (p, sc) in enumerate(srcs):
            A("v_cvt_pk_bf16_f32 v%d, v%d, v%d" % (p, p, p + 1))
            A("v_cvt_pk_bf16_f32 v%d, v%d, v%d" % (p + 1, p + 2, p + 3))
        for q, (p, sc) in enumerate(srcs):
            A("ds_write_b64 v%d, %s offset:%d" % (VPW + q, vr(p, 2), tb * 2048))
    if HPOS == 1: hflag()
    A("s_mov_b32 s37, 0x40000")
    A.label("L_dpoll")
    A("v_cmp_eq_u32 vcc, s46, v47")
    A("s_nop 0")
    A("s_cmp_eq_u64 vcc, -1")
    A("s_cbranch_scc1 L_dpoll_ok")
    A(dbgld)
    A("s_sub_u32 s37, s37, 1")
    A("s_waitcnt vmcnt(0)")
    A("s_cbranch_scc0 L_dpoll")
    A.label("L_dpoll_ok")
    V_RW, V_RR, V_ZS, V_ZL, V_KS, V_KL, V_PD, V_P4 = 40, 41, 42, 43, 44, 45, 46, 47
    A("v_add_u32 v%d, s61, v%d" % (V_RW, P_VL))
    A("s_lshl_b32 s3, s%d, 11" % S_W)
    A("v_add_u32 v%d, s3, v%d" % (V_KS, P_VL))
    A("v_add_u32 v%d, %d, v%d" % (V_RR, SCR, V_KS))
    A("v_lshl_add_u32 v230, v225, 2, v226")
    A("v_lshlrev_b32 v%d, 4, v230" % V_ZL)
    A("v_add_u32 v%d, 8192, v%d" % (V_ZL, V_ZL))
    ZRED = AB + 3 * ST2
    A("s_lshl_b32 s3, s%d, 10" % S_W)
    A("s_add_u32 s3, s3, %d" % ZRED)
    A("v_add_u32 v%d, s3, v%d" % (V_ZS, P_VL))
    A("v_add_u32 v229, %d, v%d" % (ZRED, P_VL))
    A("s_lshr_b32 s3, s%d, 1" % S_W)
    A("s_lshl_b32 s3, s3, 12")
    A("s_and_b32 s6, s%d, 1" % S_W)
    A("s_lshl_b32 s6, s6, 10")
    A("s_add_u32 s3, s3, s6")
    A("v_add_u32 v%d, s3, v%d" % (V_KL, P_VL))
    A("v_and_b32 v%d, 124, v%d" % (V_P4, P_L4))
    S_KVB = 60
    A("s_lshl_b32 s3, s%d, 3" % S_J)
    A("s_mul_i32 s%d, s3, 9216" % S_KVB)
    A("s_add_u32 s%d, s%d, %d" % (S_KVB, S_KVB, WS_KVP))
    A("s_mul_i32 s3, s%d, 9216" % S_I)
    A("s_add_u32 s61, s%d, s3" % S_KVB)
    A("s_add_u32 s3, s%d, 112" % S_J)
    A("s_lshl_b32 s3, s3, 10")
    A("s_add_u32 s63, s62, s3")
    for tb in range(1, 4): A("s_add_u32 s%d, s63, %d" % (63 + tb, tb * MBS))
    A("s_mov_b32 s67, 0x358637bd")
    A("s_waitcnt lgkmcnt(0)")
    APH = 64
    for fblk in range(4):
        for ks in range(2):
            for t in range(2):
                A("ds_read_b64_tr_b16 %s, v%d offset:%d" % (ar(APH + 8 * fblk + 4 * ks + 2 * t, 2), VPR + fblk, (32 * ks + 16 * t) * 128))
    A("v_mov_b32 v231, 0x3f803f80")
    for fblk in range(4):
        A("v_cmp_eq_u32 vcc, %d, v226" % fblk)
        for r in range(4):
            A("v_cndmask_b32 v%d, 0, v231, vcc" % (PB16 + 4 * fblk + r))
    stamp()

    KV = accb(0, 0)[1]; ZB = VB + 16; QE = 144; LB = 48
    side = []
    import re
    def unpack(x):
        if not x.startswith("v_pk_") or not O("unpack", 0): return [x]
        if O("unpack", 0) == 2 and not re.search(r"op_sel:\[[01,]*1", x): return [x]
        I = parse(x); n = len(I.ops) - 1
        def arr(name, dflt):
            m = re.search(name + r":\[([01,]+)\]", I.mods)
            return [int(c) for c in m.group(1).split(",")] if m else [dflt] * n
        sel = [arr("op_sel", 0), arr("op_sel_hi", 1)]; neg = [arr("neg_lo", 0), arr("neg_hi", 0)]
        def half(o, h):
            m = re.match(r"([vs])\[(\d+):\d+\]", o)
            return "%s%d" % (m.group(1), int(m.group(2)) + h) if m else o
        op = I.op.replace("v_pk_", "v_")
        res = []
        for h in range(2):
            src = [("-" if neg[h][k] else "") + half(I.ops[1 + k], sel[h][k]) for k in range(n)]
            if n == 2 and not src[1].startswith("v"): src = src[::-1]
            res.append("%s %s, %s" % (op, half(I.ops[0], h), ", ".join(src)))
        return res
    def S(fn):
        for x in capture(fn)[0]: side.extend(unpack(x))
    def kvm():
        for fblk in range(4):
            for ks in range(2):
                for db in range(2):
                    d = vr(KV + 8 * fblk + 4 * db, 4)
                    A("v_mfma_f32_16x16x32_bf16 %s, %s, %s, %s" % (d, ar(APH + 8 * fblk + 4 * ks, 4), vr(VB + db * 8 + ks * 4, 4), "0" if ks == 0 else d))
                A("v_mfma_f32_16x16x32_bf16 %s, %s, %s, %s" % (vr(ZB, 4), ar(APH + 8 * fblk + 4 * ks, 4), vr(PB16 + 4 * fblk, 4), "0" if (ks == 0 and fblk == 0) else vr(ZB, 4)))
        for b in range(8):
            A("ds_write_b128 v%d, %s offset:%d" % (V_RW, vr(KV + 4 * b, 4), b * 1024))
        A("ds_write_b128 v%d, %s" % (V_ZS, vr(ZB, 4)))
    PRE = 1
    hld = "buffer_load_dword v%d, v%d, s[%d:%d], s%d offen sc1" % (V_PD, P_L4, SRD_W, SRD_W + 3, S_HF)
    A("s_waitcnt lgkmcnt(0)")
    kvm(); feature(4)
    A("s_waitcnt lgkmcnt(0)"); A("s_barrier")
    A(hld)
    def redr():
        for w in range(4):
            A("ds_read_b128 %s, v%d offset:%d" % (vr(KV + 8 * w, 4), V_RR, w * 8192))
            A("ds_read_b128 %s, v%d offset:%d" % (vr(KV + 8 * w + 4, 4), V_RR, w * 8192 + 1024))
            A("ds_read_b128 %s, v229 offset:%d" % (vr(VB + 4 * w, 4), w * 1024))
    if PRE:
        redr(); feature2(4); A("s_waitcnt lgkmcnt(0)")
    else:
        S(redr)
        S(lambda: feature2(4))
        side.append(("lgkm",))
    def reda():
        for w in range(1, 4):
            for u in range(4): pk("v_pk_add_f32", vr(KV + 2 * u, 2), vr(KV + 2 * u, 2), vr(KV + 8 * w + 2 * u, 2))
            for u in range(2): pk("v_pk_add_f32", vr(VB + 2 * u, 2), vr(VB + 2 * u, 2), vr(VB + 4 * w + 2 * u, 2))
        A("buffer_store_dwordx4 %s, v%d, s[%d:%d], s61 offen sc1" % (vr(VB, 4), V_ZL, SRD_W, SRD_W + 3))
        A("buffer_store_dwordx4 %s, v%d, s[%d:%d], s61 offen sc1" % (vr(KV, 4), V_KS, SRD_W, SRD_W + 3))
        A("buffer_store_dwordx4 %s, v%d, s[%d:%d], s61 offen offset:1024 sc1" % (vr(KV + 4, 4), V_KS, SRD_W, SRD_W + 3))
    if PRE: reda(); stamp()
    else:
        S(reda)
        side.append(("ev", "kvst"))
    def qexp():
        for half in range(2):
            for tb in (2 * half, 2 * half + 1):
                exps(4, tb, PB16 + 8 * (tb & 1))
            for tb in (2 * half, 2 * half + 1):
                e = PB16 + 8 * (tb & 1)
                for h in range(2):
                    p = accb(4 + h, tb)[1]
                    A("v_cvt_pk_bf16_f32 v%d, v%d, v%d" % (QE + 8 * tb + 2 * h, p, p + 1))
                    A("v_cvt_pk_bf16_f32 v%d, v%d, v%d" % (QE + 8 * tb + 2 * h + 1, p + 2, p + 3))
                    A("v_cvt_pk_bf16_f32 v%d, v%d, v%d" % (QE + 8 * tb + 4 + 2 * h, e + 4 * h, e + 4 * h + 1))
                    A("v_cvt_pk_bf16_f32 v%d, v%d, v%d" % (QE + 8 * tb + 4 + 2 * h + 1, e + 4 * h + 2, e + 4 * h + 3))
    QPRE = 1
    side.append(("mark", "qdone"))
    side.append(("join", "kvl"))
    AF = LB + 12; ZQ = 64; KF = 80; AUX = 96
    def oph1():
        for i in range(1, 8):
            for u in range(6): pk("v_pk_add_f32", vr(LB + 2 * u, 2), vr(LB + 2 * u, 2), vr(LB + 12 * i + 2 * u, 2))
        for h in range(2):
            A("v_cvt_pk_bf16_f32 v%d, v%d, v%d" % (AF + 2 * h, LB + 4 * h, LB + 4 * h + 1))
            A("v_cvt_pk_bf16_f32 v%d, v%d, v%d" % (AF + 2 * h + 1, LB + 4 * h + 2, LB + 4 * h + 3))
        A("s_lshl_b32 s3, s%d, 10" % S_W)
        A("v_add_u32 v%d, %d, v%d" % (V_RR, SCR, P_VL))
        A("v_add_u32 v%d, s3, v%d" % (V_RW, V_RR))
        A("ds_write_b128 v%d, %s" % (V_RW, vr(AF, 4)))
        for fblk in range(4):
            for r in range(4):
                A("v_mov_b32_dpp v%d, v%d quad_perm:[%d,%d,%d,%d] row_mask:0xf bank_mask:0xf" % (ZQ + 4 * fblk + r, LB + 8 + r, fblk, fblk, fblk, fblk))
        for fblk in range(4):
            A("v_cvt_pk_bf16_f32 v%d, v%d, v%d" % (AUX + 2 * fblk, ZQ + 4 * fblk, ZQ + 4 * fblk + 1))
            A("v_cvt_pk_bf16_f32 v%d, v%d, v%d" % (AUX + 2 * fblk + 1, ZQ + 4 * fblk + 2, ZQ + 4 * fblk + 3))
        A("v_and_b32 v%d, 3, v1" % ZQ)
        A("v_mov_b32 v%d, 0x3f803f80" % (ZQ + 1))
    S(oph1)
    side.append(["v_cmp_eq_u32 vcc, 1, v%d" % ZQ, "v_cndmask_b32 v%d, 0, v%d, vcc" % (ZQ + 1, ZQ + 1)])
    side.append(["v_cmp_eq_u32 vcc, 0, v%d" % ZQ] + ["v_cndmask_b32 v%d, v%d, v%d, vcc" % (AUX + r, ZQ + 1, AUX + r) for r in range(8)])
    side.append(("bar",))
    S(lambda: [A("ds_read_b128 %s, v%d offset:%d" % (vr(KF + 4 * q, 4), V_RR, q * 1024)) for q in range(4)])
    NN = [48, 64, 104, 120]; NA = [136, 20, 28, 176]
    def auxm():
        for tb in range(4):
            for s in range(2):
                A("v_mfma_f32_16x16x32_bf16 %s, %s, %s, 0" % (vr(NA[tb] + 4 * s, 4), vr(AUX + 4 * s, 4), vr(QE + 8 * tb + 4 * s, 4)))
        for x in NA:
            A("v_rcp_f32 v%d, v%d" % (x + 1, x + 1))
            A("v_rcp_f32 v%d, v%d" % (x + 5, x + 5))
        for x in NA: A("v_fma_f32 v%d, v%d, v%d, s67" % (x + 2, x, x + 1))
        for x in NA: A("v_fma_f32 v%d, v%d, v%d, v%d" % (x + 2, x + 4, x + 5, x + 2))
        for x in NA: A("v_rcp_f32 v%d, v%d" % (x + 2, x + 2))
        for x in NA:
            A("v_mul_f32 v%d, v%d, v%d" % (x, x + 1, x + 2))
            A("v_mul_f32 v%d, v%d, v%d" % (x + 4, x + 5, x + 2))
    S(auxm)
    side.append(("lgkm",))
    def oph2():
        for tb in range(4):
            for s in range(2):
                for db in range(2):
                    A("v_mfma_f32_16x16x32_bf16 %s, %s, %s, 0" % (vr(NN[tb] + 8 * s + 4 * db, 4), vr(KF + 8 * s + 4 * db, 4), vr(QE + 8 * tb + 4 * s, 4)))
        for n, x in zip(NN, NA):
            for u in range(4):
                pk("v_pk_mul_f32", vr(n + 2 * u, 2), vr(n + 2 * u, 2), vr(x, 2), None, "op_sel_hi:[1,0]")
            for u in range(4):
                pk("v_pk_fma_f32", vr(n + 2 * u, 2), vr(n + 8 + 2 * u, 2), vr(x + 4, 2), vr(n + 2 * u, 2), "op_sel_hi:[1,0,1]")
            for u in range(4):
                A("v_cvt_pk_bf16_f32 v%d, v%d, v%d" % (n + 8 + u, n + 2 * u, n + 2 * u + 1))
        for n in NN: doswap(n + 8)
        for tb, n in enumerate(NN):
            A("buffer_store_dwordx4 %s, v%d, s[%d:%d], s%d offen%s" % (vr(n + 8, 4), VH, SRD_W, SRD_W + 3, 63 + tb, SC))
    S(oph2)
    side.append(("ev", "ost"))

    ACC2 = [192, 64]; VG = 48; C1 = 56; PART = 128
    def acc2(s, cb, tb): return vr(ACC2[s] + 4 * (cb * 4 + tb), 4)
    def xf2(p, tb): return ar(32 * p + 4 * tb, 4)
    def wf2(p, cb, half=None):
        b = 32 * p + 16 + 4 * cb
        return ar(b, 4) if half is None else ar(b + 2 * half, 2)
    def dma2(stage, half=False):
        L = [[m0set(0, stage), lda(0)], [lda(1)], [lda(2)], [lda(3)], [m0set(1, stage), ldw(0)], [ldw(1)], [ldw(2)], [ldw(3)]]
        if half:
            ldh = lambda n: "buffer_load_dwordx4 v%d, s[%d:%d], s%d offen offset:%d%s lds" % (P_AH, SRD_A, SRD_A + 3, S_AK, 1024 * n, DSC)
            L = [["s_add_u32 m0, s%d, %d" % (S_M0H, ST2 * stage), ldh(0)], [ldh(1)]] + L[4:]
        L[-1] += ["s_add_u32 s%d, s%d, 2048" % (S_AK, S_AK),
                  "s_add_u32 s%d, s%d, %d" % (S_WK, S_WK, 64 * 2048),
                  "s_add_u32 s%d, s%d, 1" % (S_KT, S_KT),
                  "s_cmp_eq_u32 s%d, s%d" % (S_KT, S_SW),
                  "s_cselect_b32 s%d, s%d, s%d" % (SRD_B, S_B2, SRD_B),
                  "s_cselect_b32 s%d, s%d, s%d" % (SRD_B + 1, S_B2 + 1, SRD_B + 1),
                  "s_cselect_b32 s%d, s%d, s%d" % (SRD_B + 2, S_B2 + 2, SRD_B + 2),
                  "s_cselect_b32 s%d, s%d, s%d" % (S_WK, S_WK0, S_WK),
                  "s_cselect_b32 s%d, s%d, s%d" % (S_AK, S_AK0, S_AK)]
        return L
    def reads2(stage, ks, p, half=False):
        so = stage * ST2
        def xr(tb): return "ds_read_b128 %s, v%d offset:%d" % (xf2(p, tb), P_XRD if tb < 2 else P_XRD2, so + tb * 2048 + ks * 1024)
        def wr(cb, t): return "ds_read_b64_tr_b16 %s, v%d offset:%d" % (wf2(p, cb, t), P_WRD + cb, so + (ks * 32 + 4 * t) * 256)
        R = [xr(0), wr(0, 0), wr(0, 1), xr(1)] + ([] if half else [xr(2), xr(3)])
        for cb in range(1, 4): R += [wr(cb, 0), wr(cb, 1)]
        return R
    V2 = Cnt(63)
    p2 = {"pend": [], "block": None, "events": {}, "done": set(), "bar": -1}
    RATE = O("rate", 100); LAG = O("lag", 3); RADD = O("radd", 0)
    def isvm(x): return x.startswith(("buffer_load", "buffer_store", "buffer_atomic"))
    def out(x):
        if isinstance(x, tuple): V2.tag[x[1]] = V2.n
        else:
            A(x)
            if isvm(x): V2.issue()
    def at(lag, need, fn):
        p2["events"].setdefault(p2["bar"] + lag, []).append((need, fn))
    def spin(lab, reload):
        A("s_mov_b32 s37, 0x40000")
        A.label(lab)
        A("v_cmp_eq_u32 vcc, 1, v%d" % V_PD)
        A("s_nop 0")
        A("s_cmp_eq_u64 vcc, -1")
        A("s_cbranch_scc1 %s_ok" % lab)
        A(reload)
        A("s_sub_u32 s37, s37, 1")
        A("s_waitcnt vmcnt(0)")
        A("s_cbranch_scc0 %s" % lab)
        A.label(lab + "_ok")
    kvpoll = "buffer_load_dword v%d, v%d, s[%d:%d], s%d offen sc1" % (V_PD, V_P4, SRD_W, SRD_W + 3, S_F1)
    opoll = "buffer_load_dword v%d, v%d, s[%d:%d], s%d offen sc1" % (V_PD, P_L4, SRD_W, SRD_W + 3, S_HF)
    def ev_kvst():
        V2.tag["kvst"] = V2.n
        def e2():
            for x in flag_group(45, "s%d" % S_F1): out(x)
            at(1, [], e3)
        def e3():
            out(kvpoll); out(("tag", "kvp")); at(LAG + (1 if PRE and not QPRE else 0), ["kvp"], e4)
        def e4():
            assert "qdone" in p2["done"], "q path not finished before the kv loads"
            spin("L_kvpoll", kvpoll)
            L = []
            for i in range(8):
                L.append(["buffer_load_dwordx4 %s, v%d, s[%d:%d], s%d offen sc1" % (vr(LB + 12 * i, 4), V_KL, SRD_W, SRD_W + 3, S_KVB)])
                L.append(["buffer_load_dwordx4 %s, v%d, s[%d:%d], s%d offen offset:2048 sc1" % (vr(LB + 12 * i + 4, 4), V_KL, SRD_W, SRD_W + 3, S_KVB)])
                L.append(["buffer_load_dwordx4 %s, v%d, s[%d:%d], s%d offen sc1" % (vr(LB + 12 * i + 8, 4), V_ZL, SRD_W, SRD_W + 3, S_KVB),
                          "s_add_u32 s%d, s%d, 9216" % (S_KVB, S_KVB)])
            L[-1].append(("tag", "kvl"))
            p2["pend"] += L
            at(LAG, ["kvl"], lambda: p2["done"].add("kvl"))
        if PRE: at(1, [], e3)
        else: at(LAG, ["kvst"], e2)
    def ev_ost():
        V2.tag["ost"] = V2.n
        def e6():
            for x in flag_group(77, "s47"): out(x)
            at(max(1, NPEEL - 1 - LAG - p2["bar"]), [], e7)
        def e7():
            out(opoll); out(("tag", "op")); at(LAG, ["op"], e8)
        def e8():
            spin("L_opoll", opoll); p2["done"].add("ochk"); print("o check at barrier", p2["bar"], file=sys.stderr)
            for tb in range(4):
                if tb == 2: out("s_lshl_b32 s3, s%d, 8" % S_KH); out("v_subrev_u32 v%d, s3, v%d" % (P_GA, P_GA))
                out("buffer_load_dword v%d, v%d, s[%d:%d], 0 offen offset:%d sc1" % (VG + 2 * tb, P_GA, SRD_W, SRD_W + 3, 64 * tb))
        at(LAG + O("olag", 0), ["ost"], e6)
    EV = {"kvst": ev_kvst, "ost": ev_ost}
    def cost(x): return 2 if x.startswith(TRANS + ("v_mfma",)) else 1
    def side_step(budget):
        while budget > 0 and side and p2["block"] is None:
            x = side[0]
            if isinstance(x, tuple):
                if x[0] in ("bar", "lgkm"): p2["block"] = x[0]; side.pop(0)
                elif x[0] == "ev": side.pop(0); EV[x[1]]()
                elif x[0] == "mark": side.pop(0); p2["done"].add(x[1])
                elif x[0] == "join":
                    if x[1] in p2["done"]: side.pop(0)
                    else: return
                continue
            side.pop(0)
            for y in (x if isinstance(x, list) else [x]):
                out(y); budget -= cost(y)
    def tile2(t):
        stage = t % NS; half = t >= NH; has_next = t + 1 < NT2
        aset = 0 if t < NF1 else 1
        first = t in (0, NF1, NH)
        ntb = 2 if half else 4; NG = 4 * ntb
        for ks in range(2):
            rd = reads2(stage, 1, 1, half) if ks == 0 else (reads2((stage + 1) % NS, 0, 0, t + 1 >= NH) if has_next else [])
            evs = []
            if ks == 1 and has_next:
                assert not p2["pend"]
                evs = p2["events"].pop(t, [])
                vm = V2.wait_for([("D", t + 1)] + [x for need, fn in evs for x in need])
                A("s_waitcnt lgkmcnt(0) vmcnt(%d)" % vm); A("s_barrier")
                p2["bar"] = t
                p2["block"] = None
            else:
                A("s_waitcnt lgkmcnt(0)")
                if p2["block"] == "lgkm": p2["block"] = None
            if ks == 1:
                for need, fn in evs: fn()
                if t + NS < NT2:
                    d = dma2(stage, t + NS >= NH)
                    d[-1] = d[-1] + [("tag", ("D", t + NS))]
                    p2["pend"] += d
            g = 0; k = 0
            for cb in range(4):
                for tb in range(ntb):
                    c = "0" if (first and ks == 0) else acc2(aset, cb, tb)
                    A("v_mfma_f32_16x16x32_bf16 %s, %s, %s, %s" % (acc2(aset, cb, tb), wf2(ks, cb), xf2(ks, tb), c))
                    nr = 1 if len(rd) - k <= NG - g else 2
                    busy = k < len(rd)
                    for _ in range(nr):
                        if k < len(rd): A(rd[k]); k += 1
                    left = (NG - g) + ((8 if t + 1 >= NH else 16) if ks == 1 else 0)
                    if p2["pend"] and (g % (NG // 4) == NG // 4 - 1 or len(p2["pend"]) * (NG // 4) > left + 3):
                        for _ in range(1 + (len(p2["pend"]) > left)):
                            if p2["pend"]:
                                for x in p2["pend"].pop(0): out(x)
                    side_step(p2.get("rate", RATE) + (0 if busy else 1))
                    g += 1
    A("s_mov_b32 s37, 0x40000")
    A("s_waitcnt vmcnt(3)")
    A.label("L_hpoll")
    A("v_cmp_eq_u32 vcc, 1, v%d" % V_PD)
    A("s_nop 0")
    A("s_or_b64 vcc, vcc, s[68:69]")
    A("s_cmp_eq_u64 vcc, -1")
    A("s_cbranch_scc1 L_hpoll_ok")
    A(hld)
    A("s_sub_u32 s37, s37, 1")
    A("s_waitcnt vmcnt(0)")
    A("s_cbranch_scc0 L_hpoll")
    A.label("L_hpoll_ok")
    stamp(); stamp.real()
    def adma(stg):
        return [[m0set(0, stg), lda(0)], [lda(1)], [lda(2)], [lda(3), "s_add_u32 s%d, s%d, 2048" % (S_AK, S_AK), ("tag", ("D", stg))]]
    for stg in range(2):
        for g in adma(stg):
            for x in g: out(x)
    A("s_add_u32 s%d, s%d, s47" % (S_HF, S_HF))
    qexp()
    GX = 80
    for r in range(32): A("v_accvgpr_read_b32 v%d, a%d" % (GX + r, AG + r))
    A("v_mov_b32 v112, 0"); A("v_mov_b32 v113, 0")
    for q in range(8):
        A("v_dot2c_f32_bf16 v112, v%d, v%d" % (GX + 2 * q, GX + 16 + 2 * q))
        A("v_dot2c_f32_bf16 v113, v%d, v%d" % (GX + 2 * q + 1, GX + 16 + 2 * q + 1))
    A("s_lshl_b32 s3, s%d, 8" % S_I)
    A("v_add_u32 v0, s3, v0")
    A("v_lshlrev_b32 v0, 2, v0")
    A("v_add_f32 v112, v112, v113")
    for sh in (8, 4, 2, 1):
        A("v_add_f32_dpp v112, v112, v112 row_ror:%d row_mask:0xf bank_mask:0xf" % sh)
    A("v_mov_b32 v113, v112")
    A("v_permlane16_swap_b32 v112, v113")
    A("v_add_f32 v112, v112, v113")
    A("v_mul_f32 v112, s%d, v112" % S_C)
    A("v_exp_f32 v112, -v112")
    A("v_add_f32 v112, 1.0, v112")
    A("v_rcp_f32 v112, v112")
    A("v_add_u32 v0, %d, v0" % WS_G)
    A("s_waitcnt vmcnt(4)")
    out("buffer_store_dword v112, v0, s[%d:%d], 0 offen sc1" % (SRD_W, SRD_W + 3))
    for x in flag_group(45, "s%d" % S_F1): out(x)
    ev_kvst()
    A("s_barrier")
    for x in reads2(0, 0, 0): A(x)
    stamp(); stamp.real()
    p2["pend"] = adma(2) + adma(3)
    C2 = 20
    for t in range(NT2):
        if t == NPEEL:
            assert not side and not p2["events"] and "ochk" in p2["done"], (len(side), p2["events"].keys())
            stamp()
        if t == NF1:
            side.append("s_sub_u32 s3, s%d, %d" % (S_XF, WS_FLG))
            side.append("s_lshl_b32 s3, s3, 7")
            side.append("s_add_u32 s60, s3, %d" % WS_XCH)
            side.append("s_add_u32 s61, s60, 4096")
            side.append("s_xor_b32 s62, s60, 32768" if 0 else "s_xor_b32 s3, s3, 32768")
            side.append("s_add_u32 s62, s3, %d" % WS_XCH)
            side.append("s_add_u32 s63, s62, 4096")
            side.append("s_xor_b32 s64, s%d, 256" % S_XF)
            for tb in range(4): side.append("v_sub_f32 v%d, 1.0, v%d" % (C1 + 2 * tb, VG + 2 * tb))
            side.append(["s_cmp_eq_u32 s%d, 1" % S_KH, "s_cselect_b64 vcc, -1, 0"] +
                        ["v_cndmask_b32 v%d, v%d, v%d, vcc" % (C2 + 2 * tb, C1 + 2 * tb, VG + 2 * tb) for tb in range(4)])
            for cb in range(4):
                for tb in range(4):
                    for r in range(4):
                        a0 = ACC2[0] + 4 * (cb * 4 + tb) + r
                        side.append("v_mul_f32 v%d, v%d, v%d" % (a0, a0, C1 + 2 * tb))
            p2["rate"] = 1
        if t == NH:
            assert not side
            stamp()
            for tbs in ((2, 3), (0, 1)):
                for tb in tbs:
                    for cb in range(4):
                        a0 = ACC2[0] + 4 * (cb * 4 + tb); a1 = ACC2[1] + 4 * (cb * 4 + tb)
                        for u in range(2):
                            A("v_pk_fma_f32 %s, %s, %s, %s op_sel_hi:[1,0,1]" % (vr(a0 + 2 * u, 2), vr(a1 + 2 * u, 2), vr(C2 + 2 * tb, 2), vr(a0 + 2 * u, 2)))
                    if tb >= 2:
                        for cb in range(4):
                            out("buffer_store_dwordx4 %s, v%d, s[%d:%d], s%d offen offset:%d sc1" % (acc2(0, cb, tb), P_VL, SRD_W, SRD_W + 3, 60 + tb - 2, cb * 1024))
            out(("tag", "xst"))
            xpoll = "buffer_load_dword v%d, v%d, s[%d:%d], s64 offen sc1" % (V_PD, P_Z0, SRD_W, SRD_W + 3)
            def x1():
                for x in flag_group(S_XF, "0"): out(x)
            def x2():
                out(xpoll); out(("tag", "xp"))
            def x3():
                spin("L_xpoll", xpoll)
                for tb in range(2):
                    for cb in range(4):
                        out("buffer_load_dwordx4 %s, v%d, s[%d:%d], s%d offen offset:%d sc1" % (vr(PART + 4 * (cb * 4 + tb), 4), P_VL, SRD_W, SRD_W + 3, 62 + tb, cb * 1024))
            XL = O("xlag", 3)
            at(XL, ["xst"], x1)
            p2["events"].setdefault(NT2 - 2 - O("xpl", 2), []).append(([], x2))
            p2["events"].setdefault(NT2 - 2, []).append((["xp"], x3))
        tile2(t)
        if STAMP == 3 and (t % 2 == 1) and t >= 10: stamp.off = False; stamp(); stamp.off = True
    assert not p2["pend"] and not p2["events"]
    stamp(); stamp.real()
    VO = 49
    A("v_lshlrev_b32 v%d, 11, v%d" % (VO, P_TOK))
    A("v_bfe_u32 v51, v1, 4, 1")
    A("v_lshl_add_u32 v%d, v51, 5, v%d" % (VO, VO))
    A("v_lshrrev_b32 v51, 5, v1")
    A("v_lshl_add_u32 v%d, v51, 4, v%d" % (VO, VO))
    A("s_lshl_b32 s72, s%d, 8" % S_NT)
    A("s_lshl_b32 s3, s%d, 7" % S_WN)
    A("s_add_u32 s72, s72, s3")
    OSC = " sc1" if O("osc1", 1) else ""
    for tb in range(2):
        for cb in range(4):
            a0 = ACC2[0] + 4 * (cb * 4 + tb); a1 = ACC2[1] + 4 * (cb * 4 + tb)
            for u in range(2):
                A("v_pk_fma_f32 %s, %s, %s, %s op_sel_hi:[1,0,1]" % (vr(a0 + 2 * u, 2), vr(a1 + 2 * u, 2), vr(VG + 2 * tb, 2), vr(a0 + 2 * u, 2)))
    for tb in range(2):
        A("s_waitcnt vmcnt(%d)" % (4 if tb == 0 else 2))
        for cb in range(4):
            a0 = ACC2[0] + 4 * (cb * 4 + tb); pp = PART + 4 * (cb * 4 + tb)
            for u in range(2):
                A("v_pk_add_f32 %s, %s, %s" % (vr(a0 + 2 * u, 2), vr(a0 + 2 * u, 2), vr(pp + 2 * u, 2)))
        for cp in range(2):
            d = 28 + 8 * tb + 4 * cp
            for h in range(2):
                a0 = ACC2[0] + 4 * ((2 * cp + h) * 4 + tb)
                A("v_cvt_pk_bf16_f32 v%d, v%d, v%d" % (d + 2 * h, a0, a0 + 1))
                A("v_cvt_pk_bf16_f32 v%d, v%d, v%d" % (d + 2 * h + 1, a0 + 2, a0 + 3))
        for cp in range(2): doswap(28 + 8 * tb + 4 * cp)
        for cp in range(2):
            d = 28 + 8 * tb + 4 * cp
            A("buffer_store_dwordx4 %s, v%d, s[%d:%d], s72 offen offset:%d%s" % (vr(d, 4), VO, SRD_O, SRD_O + 3, cp * 64, OSC))
        A("s_add_u32 s72, s72, 32768")
    A.label("L_k2_out")
    stamp.finish(S_W, SRD_W, 38, "L_k1_end")
    A.label("L_k1_end")
    A("s_endpgm")
    A.label("L_code_end")
    return name, LDS

A = Asm()
n1, l1 = gen_k1(A)
hdr = ""
hdr += "; @launch grid=(256,1,1) block=(256,1,1) lds=%d\n" % l1
hdr += '.amdgcn_target "amdgcn-amd-amdhsa--gfx950"\n.text\n'
txt = hdr + A.text() + '.section .rodata,"a"\n' + kernel_desc(n1, 512, 256)
open(OUT, "w").write(txt)
```

```python
import sys
from asmlib import *
from asmlib import TRANS, parse

opts = dict(a.split("=") if "=" in a else (a, "1") for a in sys.argv[2:])
OUT = sys.argv[1]
O = lambda k, d: int(opts.get(k, d))
TOUCH = O("touch", 1)
STAMP = O("stamp", 0)
ONLY = O("only", 0)
HSC1 = O("hsc1", 0)
K2MAP = O("k2map", 0)
NH = O("nh", 32)
K2NODMA = O("k2nodma", 0); K2NOMFMA = O("k2nomfma", 0); K2NOLDS = O("k2nolds", 0); K2SEL = opts.get("k2sel", "aw")

MBS = 144 * 1024
WS_G = 0x1200000
WS_KVP = 0x1210000
WS_FLG = 0x1480000
WS_FLGH = 0x1494000
WS_FLGO = 0x1498000
WS_FLG1 = 0x1490000
WS_STAMP = 0x14A0000
WS_XCH = 0x1500000
WS_SIZE = WS_XCH + 128 * 65536
LOG2E = 0x3FB8AA3B
SC = " sc1"
INV = O("inv", 0)
DSC = " sc1" if O("dsc1", 1) else ""

class Cnt:
    def __init__(self, cap): self.n = 0; self.tag = {}; self.cap = cap
    def issue(self, tag=None, k=1):
        self.n += k
        if tag is not None: self.tag[tag] = self.n
    def wait_for(self, tags):
        last = max(self.tag[t] for t in tags)
        return min(self.n - last, self.cap)

class Stamper:
    def __init__(self, A, kidx): self.A = A; self.regs = []; self.k = kidx
    def start(self):
        if STAMP:
            self.A("s_memrealtime s[78:79]"); self.A("s_memtime s[80:81]")
    off = False
    def __call__(self, wait=True):
        if STAMP and not self.off:
            r = 82 + len(self.regs); assert r <= 99; self.regs.append(r)
            self.A("s_memtime s[100:101]")
            self.A("s_waitcnt lgkmcnt(0)")
            self.A("s_mov_b32 s%d, s100" % r)
    def real(self):
        if STAMP and not self.off:
            r = 82 + len(self.regs); assert r <= 99; self.regs.append(-r)
            self.A("s_memrealtime s[100:101]")
            self.A("s_waitcnt lgkmcnt(0)")
            self.A("s_mov_b32 s%d, s100" % r)
    def finish(self, swave, srd, T, endlabel):
        if not STAMP: return
        A = self.A
        A("s_waitcnt vmcnt(0)")
        A("s_memtime s[4:5]"); A("s_memrealtime s[6:7]")
        A("s_waitcnt lgkmcnt(0)")
        A("s_cmp_eq_u32 s%d, 0" % swave); A("s_cbranch_scc0 %s" % endlabel)
        A("s_lshl_b32 s3, s2, 7")
        A("s_add_u32 s3, s3, %d" % WS_STAMP)
        A("v_mov_b32 v%d, 0" % (T + 1))
        items = [(78, None), (6, None), (4, 80)] + [(abs(r), 80 if r > 0 else 78) for r in self.regs]
        if O("dbgstamp", 0):
            A("s_cmp_eq_u32 s2, %d" % O("dbgstamp", 0)); A("s_cbranch_scc0 %s" % endlabel)
            A("s_mov_b32 s3, 0"); srd = 48
            items = [(6, 78), (4, 80)] + items[3:17]
        for q, (s, b) in enumerate(items):
            if b is None: A("v_mov_b32 v%d, s%d" % (T, s))
            else:
                A("s_sub_u32 s5, s%d, s%d" % (s, b)); A("v_mov_b32 v%d, s5" % T)
            A("buffer_store_dword v%d, v%d, s[%d:%d], s3 offen offset:%d" % (T, T + 1, srd, srd + 3, 4 * q))

def mk_srd(A, b, lo, hi, addsgpr, size):
    if addsgpr is None:
        A("s_mov_b32 s%d, s%d" % (b, lo)); A("s_mov_b32 s%d, s%d" % (b + 1, hi))
        A("s_mov_b32 s%d, %d" % (b + 2, size))
    else:
        A("s_add_u32 s%d, s%d, s%d" % (b, lo, addsgpr)); A("s_addc_u32 s%d, s%d, 0" % (b + 1, hi))
        A("s_sub_u32 s%d, %d, s%d" % (b + 2, size, addsgpr))
    A("s_mov_b32 s%d, 0x20000" % (b + 3))


def k2ids(A, mt, nt, kh, xf):
    A("s_and_b32 s%d, s2, 1" % kh)
    if O("swap", 1): A("s_xor_b32 s%d, s%d, 1" % (kh, kh))
    A("s_bfe_u32 s%d, s2, 0x30003" % mt)
    A("s_bfe_u32 s3, s2, 0x10001")
    A("s_lshl_b32 s3, s3, 3")
    A("s_add_u32 s%d, s%d, s3" % (mt, mt))
    A("s_lshr_b32 s%d, s2, 6" % nt)
    A("s_bfe_u32 s3, s2, 0x10002")
    A("s_lshl_b32 s3, s3, 2")
    A("s_add_u32 s%d, s%d, s3" % (nt, nt))
    A("s_lshl_b32 s3, s%d, 3" % mt)
    A("s_add_u32 s3, s3, s%d" % nt)
    A("s_lshl_b32 s3, s3, 1")
    A("s_add_u32 s3, s3, s%d" % kh)
    A("s_lshl_b32 s3, s3, 2")
    A("s_add_u32 s3, s3, s26")
    A("s_lshl_b32 s%d, s3, 6" % xf)
    A("s_add_u32 s%d, s%d, %d" % (xf, xf, WS_FLG))

def gen_k1(A):
    name = "gated_mix__linear_kernel_hedgehog__glu_gated_glu__prompt_kernel"
    kernel_open(A, name)
    BK = 64
    XB = 0; QB = 32768; GB = QB + 64 * 192; UB = GB + 64 * 224 + 128
    STAGE = (UB + 64 * 224 + 255) // 256 * 256
    WPB = 2 * STAGE
    SCR = 131072
    LDS = 163840
    S_I, S_J, S_W, S_CNT, S_XK, S_QK, S_GK, S_TK, S_TSTEP = 24, 25, 26, 27, 28, 29, 30, 31, 37
    S_M0 = 32
    SRD_X, SRD_Q, SRD_G, SRD_W, SRD_T, SRD_P, SRD_D = 8, 12, 16, 20, 68, 72, 48
    S_C = 38
    V_DMA, V_XRD, V_QRD, V_GRD, V_TCH = 2, 20, 24, 28, 30
    T = 32
    NVACC = 208; V_ACC = 48
    A_X = 0; A_WR = 32; RING = 8; A_ACC = 144
    NTB = 4; NCB = 20; D = O("dd", 6)
    BLK = [("q", 1, 0), ("q", 1, 1), ("q", 2, 0), ("q", 2, 1), ("q", 0, 0), ("q", 0, 1)] + [(t, b) for b in range(7) for t in "gu"]
    def accb(cb, tb):
        b = (cb * NTB + tb) * 4
        return ("v", V_ACC + b) if b < NVACC else ("a", A_ACC + b - NVACC)
    def acc(cb, tb):
        f, b = accb(cb, tb); return "%s[%d:%d]" % (f, b, b + 3)
    def xf(p, tb): return ar(A_X + 16 * p + 4 * tb, 4)
    def wf(n, half=None):
        b = A_WR + 4 * (n % RING)
        return ar(b, 4) if half is None else ar(b + 2 * half, 2)
    stamp = Stamper(A, 0)
    VM = Cnt(63)

    A("s_load_dwordx4 s[4:7], s[0:1], 0")
    A("s_load_dwordx4 s[52:55], s[0:1], 40")
    A("s_load_dwordx4 s[56:59], s[0:1], 80")
    A("s_load_dwordx2 s[66:67], s[0:1], 16")
    A("s_load_dwordx4 s[40:43], s[0:1], 56")
    A("s_cmp_ge_u32 s2, 256")
    A("s_cbranch_scc1 L_k1_end")
    stamp.start()
    if STAMP >= 3: stamp.off = True
    if O("ctouch", 1):
        A("s_getpc_b64 s[72:73]")
        A.label("L_pc")
        A("s_mov_b32 s74, L_code_end-L_pc")
        A("s_mov_b32 s75, 0x20000")
        A("s_and_b32 s73, s73, 0xffff")
        A("v_lshrrev_b32 v%d, 6, v0" % T)
        A("v_lshlrev_b32 v%d, 9, v%d" % (T, T))
        A("v_and_b32 v%d, 63, v0" % (T + 1))
        A("v_lshl_add_u32 v%d, v%d, 7, v%d" % (T, T + 1, T))
        A("s_lshr_b32 s3, s2, 3")
        A("s_lshl_b32 s3, s3, 11")
        A("v_cmp_gt_u32 vcc, 4, v%d" % (T + 1))
        A("v_mov_b32 v%d, 0x7ffffff0" % (T + 2))
        A("v_cndmask_b32 v%d, v%d, v%d, vcc" % (T, T + 2, T))
        A("buffer_load_dword v%d, v%d, s[72:75], s3 offen" % (V_TCH + 1, T)); VM.issue()
    A("v_lshrrev_b32 v1, 6, v0")
    A("s_lshr_b32 s%d, s2, 3" % S_I)
    A("s_and_b32 s%d, s%d, 7" % (S_I, S_I))
    A("v_readfirstlane_b32 s%d, v1" % S_W)
    A("s_and_b32 s3, s2, 7")
    A("s_lshl_b32 s3, s3, 2")
    A("s_lshr_b32 s%d, s2, 6" % S_J)
    A("s_add_u32 s%d, s%d, s3" % (S_J, S_J))
    A("v_and_b32 v1, 63, v0")
    A("v_lshrrev_b32 v%d, 3, v1" % T)
    A("v_lshlrev_b32 v%d, 11, v%d" % (T, T))
    A("v_and_b32 v%d, 7, v1" % (T + 1))
    A("v_lshrrev_b32 v%d, 4, v1" % (T + 2))
    A("v_xor_b32 v%d, v%d, v%d" % (T + 1, T + 1, T + 2))
    A("v_lshl_add_u32 v%d, v%d, 4, v%d" % (T, T + 1, T))
    A("s_lshl_b32 s3, s%d, 17" % S_W)
    A("v_add_u32 v%d, s3, v%d" % (T, T))
    A("v_xor_b32 v%d, 64, v%d" % (T + 1, T))
    plan = []
    for n in range(8):
        A("v_add_u32 v%d, %d, v%d" % (V_DMA + n, n * 16384 - 1024 * (n & 3), T + (n & 1)))
        plan.append((V_DMA + n, SRD_X, S_XK, n // 4 if n % 4 == 0 else None, 1024 * (n & 3)))
    for q in range(3): plan.append((V_DMA + 8 + q, SRD_Q, S_QK, 2 if q == 0 else None, 1024 * q))
    for g in range(7): plan.append((V_DMA + 11 + g, SRD_G, S_GK, 3 + g // 4 if g % 4 == 0 else None, 1024 * (g & 3)))
    LD = len(plan)
    A("s_lshl_b32 s%d, s%d, 13" % (S_M0, S_W))
    A("s_add_u32 s%d, s%d, 4096" % (S_M0 + 1, S_M0))
    A("s_mul_i32 s%d, s%d, 3072" % (S_M0 + 2, S_W))
    A("s_add_u32 s%d, s%d, %d" % (S_M0 + 2, S_M0 + 2, QB))
    A("s_and_b32 s3, s%d, 1" % S_W)
    A("s_mul_i32 s3, s3, 7168")
    A("s_cmp_ge_u32 s%d, 2" % S_W)
    A("s_mov_b32 s60, %d" % GB)
    A("s_cselect_b32 s%d, %d, s60" % (S_M0 + 3, UB))
    A("s_add_u32 s%d, s%d, s3" % (S_M0 + 3, S_M0 + 3))
    A("s_add_u32 s%d, s%d, 4096" % (S_M0 + 4, S_M0 + 3))
    for s in (S_XK, S_QK, S_GK): A("s_mov_b32 s%d, 0" % s)
    def dma_list(stage):
        L = []
        for (v, sd, so, m0i, off) in plan:
            g = []
            if m0i is not None:
                g.append("s_mov_b32 m0, s%d" % (S_M0 + m0i) if stage == 0 else "s_add_u32 m0, s%d, %d" % (S_M0 + m0i, STAGE * stage))
            g.append("buffer_load_dwordx4 v%d, s[%d:%d], s%d offen offset:%d lds" % (v, sd, sd + 3, so, off))
            L.append(g)
        L[-1] += ["s_add_u32 s%d, s%d, %d" % (S_XK, S_XK, BK * 2),
                  "s_add_u32 s%d, s%d, %d" % (S_GK, S_GK, BK * 7168),
                  "s_add_u32 s%d, s%d, %d" % (S_QK, S_QK, BK * 6144)]
        return L
    def emit(groups):
        for g in groups:
            for s in g: A(s)
            VM.issue()
    def rowperm(dst, src, tmp):
        A("v_and_b32 v%d, 0xfffffff3, v%d" % (dst, src))
        A("v_bfe_u32 v%d, v%d, 2, 1" % (tmp, src))
        A("v_lshl_or_b32 v%d, v%d, 3, v%d" % (dst, tmp, dst))
        A("v_bfe_u32 v%d, v%d, 3, 1" % (tmp, src))
        A("v_lshl_or_b32 v%d, v%d, 2, v%d" % (dst, tmp, dst))
    NEARLY = O("nearly", 1); NLATE = O("nlate", 1)
    if TOUCH:
        A("s_lshr_b32 s60, s2, 6")
        A("s_and_b32 s61, s%d, 1" % S_W)
        A("s_lshl_b32 s3, s60, 6")
        A("v_add_u32 v%d, s3, v1" % (T + 4))
        A("v_lshlrev_b32 v%d, 11, v%d" % (T + 4, T + 4))
        A("s_lshl_b32 s3, s61, 7")
        A("v_add_u32 v%d, s3, v%d" % (T + 4, T + 4))
        A("s_lshl_b32 s62, s%d, 4" % S_I)
        A("s_lshl_b32 s3, s61, 3")
        A("s_add_u32 s62, s62, s3")
        A("s_and_b32 s63, s%d, 28" % S_J)
        A("v_mul_u32_u24 v%d, 10923, v1" % (T + 5))
        A("v_lshrrev_b32 v%d, 16, v%d" % (T + 5, T + 5))
        A("v_mul_u32_u24 v%d, 6, v%d" % (T + 6, T + 5))
        A("v_sub_u32 v%d, v1, v%d" % (T + 6, T + 6))
        A("v_add_u32 v%d, s62, v%d" % (T + 5, T + 5))
        A("v_mul_u32_u24 v%d, 6144, v%d" % (T + 5, T + 5))
        A("v_lshrrev_b32 v%d, 1, v%d" % (T + 7, T + 6))
        A("v_lshl_add_u32 v%d, v%d, 11, v%d" % (T + 5, T + 7, T + 5))
        A("v_and_b32 v%d, 1, v%d" % (T + 6, T + 6))
        A("v_lshl_add_u32 v%d, v%d, 7, v%d" % (T + 5, T + 6, T + 5))
        A("s_lshl_b32 s3, s63, 6")
        A("v_add_u32 v%d, s3, v%d" % (T + 5, T + 5))
        A("v_mov_b32 v%d, 0x7ffffff0" % (T + 9))
        A("v_cmp_gt_u32 vcc, 48, v1")
        A("v_cndmask_b32 v%d, v%d, v%d, vcc" % (T + 5, T + 9, T + 5))
        A("v_mul_u32_u24 v%d, 9363, v1" % (T + 6))
        A("v_lshrrev_b32 v%d, 16, v%d" % (T + 6, T + 6))
        A("v_mul_u32_u24 v%d, 7, v%d" % (T + 7, T + 6))
        A("v_sub_u32 v%d, v1, v%d" % (T + 7, T + 7))
        A("v_add_u32 v%d, s62, v%d" % (T + 6, T + 6))
        A("v_mul_u32_u24 v%d, 7168, v%d" % (T + 6, T + 6))
        A("v_lshl_add_u32 v%d, v%d, 7, v%d" % (T + 6, T + 7, T + 6))
        A("s_mul_i32 s3, s63, 224")
        A("v_add_u32 v%d, s3, v%d" % (T + 6, T + 6))
        A("v_cmp_gt_u32 vcc, 56, v1")
        A("v_cndmask_b32 v%d, v%d, v%d, vcc" % (T + 6, T + 9, T + 6))
        A("s_and_b32 s3, s2, 63")
        A("s_lshl_b32 s3, s3, 1")
        A("s_add_u32 s3, s3, s61")
        A("s_lshl_b32 s3, s3, 13")
        A("v_lshlrev_b32 v%d, 7, v1" % (T + 7))
        A("v_add_u32 v%d, s3, v%d" % (T + 7, T + 7))
    A("s_waitcnt lgkmcnt(0)")
    A("s_lshl_b32 s64, s%d, 19" % S_I)
    mk_srd(A, SRD_X, 4, 5, 64, 2048 * 2048)
    if TOUCH:
        def sel(cond_sgpr, val, voff, lo, hi, size, step, start):
            A("s_cmp_eq_u32 s%d, %d" % (cond_sgpr, val))
            A("s_cselect_b64 vcc, -1, 0")
            A("s_cselect_b32 s%d, s%d, s%d" % (SRD_T, lo, SRD_T))
            A("s_cselect_b32 s%d, s%d, s%d" % (SRD_T + 1, hi, SRD_T + 1))
            A("s_cselect_b32 s%d, %d, s%d" % (SRD_T + 2, size, SRD_T + 2))
            A("s_cselect_b32 s%d, %d, s%d" % (S_TSTEP, step, S_TSTEP))
            A("s_cselect_b32 s%d, %d, s%d" % (S_TK, start, S_TK))
            A("v_cndmask_b32 v%d, v%d, v%d, vcc" % (V_TCH, V_TCH, voff))
        A("s_mov_b32 s%d, s6" % SRD_T); A("s_mov_b32 s%d, s7" % (SRD_T + 1))
        A("s_mov_b32 s%d, %d" % (SRD_T + 2, 1024 * 6144)); A("s_mov_b32 s%d, 0x20000" % (SRD_T + 3))
        A("s_mov_b32 s%d, %d" % (S_TSTEP, 128 * 6144))
        A("s_mov_b32 s%d, %d" % (S_TK, 0 if NEARLY else 128 * 6144))
        A("v_mov_b32 v%d, v%d" % (V_TCH, T + 5))
        sel(60, 1, T + 6, 52, 53, 1024 * 7168, 128 * 7168, 0 if NEARLY else 128 * 7168)
        sel(60, 2, T + 6, 54, 55, 1024 * 7168, 128 * 7168, 0 if NEARLY else 128 * 7168)
        sel(60, 3, T + 7, 40, 41, 3584 * 2048, 1 << 20, (1 << 32) - (NEARLY << 20) if NEARLY else 0)
        A("s_lshr_b32 s61, s%d, 1" % S_W)
        sel(61, 0, T + 4, SRD_X, SRD_X + 1, 256 * 2048, 256, 0 if NEARLY else 256)
        def touch():
            return ["buffer_load_dword v%d, v%d, s[%d:%d], s%d offen" % (V_TCH + 1, V_TCH, SRD_T, SRD_T + 3, S_TK),
                    "s_add_u32 s%d, s%d, s%d" % (S_TK, S_TK, S_TSTEP)]
        emit([touch() for _ in range(NEARLY)])
    D0 = dma_list(0)
    emit(D0[0:8])
    A("s_and_b32 s3, s%d, 1" % S_W)
    A("s_mul_i32 s3, s3, 448")
    A("s_and_b32 s65, s%d, 1" % S_J)
    A("s_lshl_b32 s65, s65, 1")
    for g in range(7):
        A("v_add_u32 v%d, s3, v1" % T)
        if g: A("v_add_u32 v%d, %d, v%d" % (T, 64 * g, T))
        A("v_mul_u32_u24 v%d, 4682, v%d" % (T + 1, T))
        A("v_lshrrev_b32 v%d, 16, v%d" % (T + 1, T + 1))
        A("v_mul_u32_u24 v%d, 14, v%d" % (T + 2, T + 1))
        A("v_sub_u32 v%d, v%d, v%d" % (T + 2, T, T + 2))
        A("v_add_u32 v%d, s65, v%d" % (T + 2, T + 2))
        A("v_subrev_u32 v%d, 14, v%d" % (T + 3, T + 2))
        A("v_min_u32 v%d, v%d, v%d" % (T + 2, T + 2, T + 3))
        rowperm(T + 4, T + 1, T + 3)
        A("v_mul_u32_u24 v%d, 7168, v%d" % (T + 1, T + 4))
        A("v_lshl_add_u32 v%d, v%d, 4, v%d" % (T + 1, T + 2, T + 1))
        A("v_subrev_u32 v%d, %d, v%d" % (V_DMA + 11 + g, 1024 * (g & 3), T + 1))
    A("s_cmp_ge_u32 s%d, 2" % S_W)
    A("s_cselect_b32 s60, s54, s52")
    A("s_cselect_b32 s61, s55, s53")
    A("s_mul_i32 s3, s%d, 224" % S_J)
    mk_srd(A, SRD_G, 60, 61, 3, 1024 * 7168)
    emit([g[:2] if len(g) > 2 and not g[0].startswith("buffer") else g[:1] if g[0].startswith("buffer") else g for g in D0[11:18]])
    A("s_mul_i32 s3, s%d, 192" % S_W)
    for q in range(3):
        A("v_add_u32 v%d, s3, v1" % T)
        if q: A("v_add_u32 v%d, %d, v%d" % (T, 64 * q, T))
        A("v_mul_u32_u24 v%d, 5462, v%d" % (T + 1, T))
        A("v_lshrrev_b32 v%d, 16, v%d" % (T + 1, T + 1))
        A("v_mul_u32_u24 v%d, 12, v%d" % (T + 2, T + 1))
        A("v_sub_u32 v%d, v%d, v%d" % (T + 2, T, T + 2))
        A("v_bfe_u32 v%d, v%d, 2, 1" % (T + 3, T + 1))
        A("v_lshlrev_b32 v%d, 1, v%d" % (T + 3, T + 3))
        A("v_xor_b32 v%d, v%d, v%d" % (T + 2, T + 2, T + 3))
        rowperm(T + 4, T + 1, T + 3)
        A("v_mul_u32_u24 v%d, 6144, v%d" % (T + 1, T + 4))
        A("v_lshrrev_b32 v%d, 2, v%d" % (T + 3, T + 2))
        A("v_lshlrev_b32 v%d, 11, v%d" % (T + 3, T + 3))
        A("v_and_b32 v%d, 3, v%d" % (T + 2, T + 2))
        A("v_lshlrev_b32 v%d, 4, v%d" % (T + 2, T + 2))
        A("v_add3_u32 v%d, v%d, v%d, v%d" % (T + 1, T + 1, T + 2, T + 3))
        A("v_subrev_u32 v%d, %d, v%d" % (V_DMA + 8 + q, 1024 * q, T + 1))
    A("s_lshl_b32 s3, s%d, 6" % S_J)
    mk_srd(A, SRD_Q, 6, 7, 3, 1024 * 6144)
    emit(D0[8:11])
    for s in D0[17][1:]: A(s)
    mk_srd(A, SRD_W, 58, 59, None, WS_SIZE)
    S_F1 = 44
    A("s_lshl_b32 s%d, s%d, 7" % (S_F1, S_J))
    A("s_add_u32 s%d, s%d, %d" % (S_F1, S_F1, WS_FLG1))
    A("s_lshl_b32 s3, s%d, 2" % S_I)
    A("s_add_u32 s3, s3, s%d" % S_W)
    A("s_lshl_b32 s45, s3, 2")
    A("s_lshr_b32 s3, s3, 1")
    A("s_lshl_b32 s3, s3, 5")
    A("s_add_u32 s3, s3, s%d" % S_J)
    A("s_lshl_b32 s3, s3, 1")
    A("s_and_b32 s60, s%d, 1" % S_W)
    A("s_add_u32 s3, s3, s60")
    A("s_lshl_b32 s3, s3, 2")
    A("s_add_u32 s77, s3, %d" % WS_FLGH)
    k2ids(A, 61, 62, 63, 64)
    A("s_add_u32 s3, s%d, s45" % S_F1)
    A("v_mov_b32 v%d, s3" % T)
    A("v_writelane_b32 v%d, s77, 1" % T)
    A("s_add_u32 s3, s77, %d" % (WS_FLGO - WS_FLGH))
    A("v_writelane_b32 v%d, s3, 2" % T)
    A("v_writelane_b32 v%d, s64, 3" % T)
    A("v_mov_b32 v%d, 0" % (T + 1))
    A("buffer_store_dword v%d, v%d, s[%d:%d], 0 offen sc1" % (T + 1, T, SRD_W, SRD_W + 3)); VM.issue()
    VM.tag["g"] = VM.n
    EARLY = O("early", 0)
    D1 = dma_list(1)
    emit(D1[:EARLY])
    A("s_lshl_b32 s3, s%d, 11" % S_J)
    mk_srd(A, SRD_P, 66, 67, 3, 65536)
    A("s_and_b32 s3, s%d, 1" % S_W)
    A("s_lshl_b32 s47, s3, 10")
    A("v_lshl_add_u32 v%d, v1, 4, s47" % (T + 3))
    late = D1[EARLY:] + [["s_add_u32 m0, s47, %d" % WPB, "buffer_load_dwordx4 v%d, s[%d:%d], 0 offen lds" % (T + 3, SRD_P, SRD_P + 3)]]
    mk_srd(A, SRD_D, 56, 57, None, 256)
    if TOUCH: late += [touch() for _ in range(NLATE)]
    A("s_load_dwordx2 s[4:5], s[0:1], 24")
    A("s_load_dwordx2 s[56:57], s[0:1], 72")
    A("v_and_b32 v%d, 15, v1" % (T + 4))
    A("v_lshlrev_b32 v%d, 7, v%d" % (T + 4, T + 4))
    A("s_lshl_b32 s3, s%d, 13" % S_W)
    A("v_add_u32 v%d, s3, v%d" % (T + 4, T + 4))
    A("v_bfe_u32 v%d, v1, 1, 3" % (T + 5))
    A("v_lshrrev_b32 v%d, 4, v1" % (T + 6))
    for ks in range(2):
        A("v_or_b32 v%d, %d, v%d" % (T + 7, ks * 4, T + 6))
        A("v_xor_b32 v%d, v%d, v%d" % (T + 7, T + 7, T + 5))
        A("v_lshl_add_u32 v%d, v%d, 4, v%d" % (V_XRD + ks, T + 7, T + 4))
        A("v_add_u32 v%d, %d, v%d" % (V_XRD + 2 + ks, STAGE, V_XRD + ks))
    A("v_bfe_u32 v%d, v1, 2, 2" % (T + 4))
    A("v_and_b32 v%d, 3, v1" % (T + 5))
    A("v_bfe_u32 v%d, v1, 4, 1" % (T + 7))
    A("v_lshrrev_b32 v%d, 5, v1" % (T + 8))
    A("v_lshl_add_u32 v%d, v%d, 4, v%d" % (T + 4, T + 8, T + 4))
    A("v_lshl_add_u32 v%d, v%d, 2, v%d" % (T + 4, T + 7, T + 4))
    A("v_lshlrev_b32 v%d, 3, v%d" % (T + 5, T + 5))
    A("v_mul_u32_u24 v%d, 192, v%d" % (T + 9, T + 4))
    A("v_add_u32 v%d, v%d, v%d" % (T + 9, T + 9, T + 5))
    for h in range(2):
        A("v_xor_b32 v%d, %d, v%d" % (T + 8, h, T + 7))
        A("v_lshl_add_u32 v%d, v%d, 5, v%d" % (T + 8, T + 8, T + 9))
        for st in range(2): A("v_add_u32 v%d, %d, v%d" % (V_QRD + st * 2 + h, QB + STAGE * st, T + 8))
    A("v_mul_u32_u24 v%d, 224, v%d" % (T + 9, T + 4))
    A("v_add_u32 v%d, v%d, v%d" % (T + 8, T + 9, T + 5))
    for st in range(2): A("v_add_u32 v%d, %d, v%d" % (V_GRD + st, GB + STAGE * st, T + 8))
    A("s_mov_b32 s%d, 0x%x" % (S_C, LOG2E)); A("s_mov_b32 s%d, 0x%x" % (S_C + 1, LOG2E))
    stamp(False)
    A("s_waitcnt vmcnt(%d) lgkmcnt(0)" % VM.wait_for(["g"]))
    A("s_barrier")
    def xread(stage, ks, p, tb):
        return "ds_read_b128 %s, v%d offset:%d" % (xf(p, tb), V_XRD + 2 * stage + ks, tb * 2048)
    def wread(stage, ks, cb, n, t):
        b = BLK[cb]
        if b[0] == "q":
            return "ds_read_b64_tr_b16 %s, v%d offset:%d" % (wf(n, t), V_QRD + stage * 2 + b[2], (ks * 32 + t * 8) * 192 + b[1] * 64)
        return "ds_read_b64_tr_b16 %s, v%d offset:%d" % (wf(n, t), V_GRD + stage, (ks * 32 + t * 8) * 224 + b[1] * 32 + (UB - GB if b[0] == "u" else 0))
    Q = Cnt(15)
    for tb in range(NTB):
        A(xread(0, 0, 0, tb)); Q.issue(("x", 0, tb))
    for n in range(D):
        for t in range(2):
            A(wread(0, 0, n, n, t)); Q.issue(("w", n))
    A("s_lshl_b32 s3, s%d, 3" % S_J)
    A("s_add_u32 s3, s3, s%d" % S_I)
    A("s_cmp_eq_u32 s%d, 0" % S_W)
    A("s_cselect_b32 s3, s3, 0x1000")
    A("v_mov_b32 v%d, s3" % (T + 5))
    A("v_mov_b32 v%d, 1" % (T + 6))
    bytest = "buffer_store_byte v%d, v%d, s[%d:%d], 0 offen sc1" % (T + 6, T + 5, SRD_D, SRD_D + 3)
    NPRO = 1 + (NLATE if TOUCH else 0)
    if STAMP: stamp(); stamp.real()


    NS = 4; ST2 = 16384; AB = 65536
    TH = O("th", 8)
    NH = (72 - TH) // 2; NF1 = 56 - NH; NT2 = NH + TH
    NPEEL = NF1 - 4
    S_MT, S_NT, S_KH, S_XF = 52, 53, 54, 55
    S_AK, S_WK, S_KT, S_SW, S_WK0, S_M0H, S_AK0 = 28, 29, 30, 31, 34, 35, 36
    SRD_A, SRD_B, SRD_O = 8, 12, 16
    S_B2 = 72; S_WM, S_WN = 42, 43; S_HF = 70
    P_DMA, P_XRD, P_WRD, P_TOK, P_GA, P_VL, P_Z0, P_L4 = 2, 10, 11, 15, 16, 17, 18, 19
    P_XRD2, P_AH = 3, 5
    def groups(B, n=2):
        L = []; i = 0
        while i < len(B.lines):
            k = n
            while i + k < len(B.lines) and ("s_addc" in B.lines[i + k] or "s_cselect" in B.lines[i + k] or "s_cselect" in "".join(B.lines[i + k + 1:i + k + 2])): k += 1
            L.append([x.strip() for x in B.lines[i:i + k]]); i += k
        return L
    def m0set(i, stage):
        return "s_add_u32 m0, s%d, %d" % (S_M0 + i, ST2 * stage) if stage else "s_mov_b32 m0, s%d" % (S_M0 + i)
    def lda(n): return "buffer_load_dwordx4 v%d, s[%d:%d], s%d offen offset:%d%s lds" % (P_DMA + (n & 2), SRD_A, SRD_A + 3, S_AK, 1024 * n, DSC)
    def ldw(n): return "buffer_load_dwordx4 v%d, s[%d:%d], s%d offen offset:%d lds" % (P_DMA + 4 + n, SRD_B, SRD_B + 3, S_WK, 1024 * n)
    def wotouch():
        B = Asm()
        mk_srd(B, 72, 4, 5, None, 1024 * 2048)
        B("s_lshr_b32 s3, s2, 3")
        B("s_lshl_b32 s3, s3, 2")
        B("s_add_u32 s3, s3, s%d" % S_W)
        B("s_lshl_b32 s3, s3, 14")
        B("s_bfe_u32 s6, s2, 0x10002")
        B("s_lshl_b32 s6, s6, 10")
        B("s_add_u32 s3, s3, s6")
        B("v_lshrrev_b32 v32, 3, v1")
        B("v_lshlrev_b32 v32, 11, v32")
        B("v_and_b32 v33, 7, v1")
        B("v_lshl_add_u32 v32, v33, 7, v32")
        B("buffer_load_dword v33, v32, s[72:75], s3 offen")
        return groups(B, 3)
    AG = 96
    def gloads():
        B = Asm()
        mk_srd(B, 72, 42, 43, None, 2048)
        B("v_and_b32 v34, 31, v1")
        B("v_lshlrev_b32 v34, 6, v34")
        B("v_lshrrev_b32 v35, 5, v1")
        B("s_lshl_b32 s3, s%d, 6" % S_W)
        B("s_lshl_b32 s6, s%d, 1" % S_J)
        B("s_add_u32 s3, s3, s6")
        B("v_add_u32 v30, s3, v35")
        B("v_lshl_add_u32 v35, v30, 11, v34")
        L = groups(B, 3)
        for q in range(4):
            L.append(["buffer_load_dwordx4 %s, v35, s[%d:%d], 0 offen offset:%d" % (ar(AG + 4 * q, 4), SRD_X, SRD_X + 3, 16 * q)])
            L.append(["buffer_load_dwordx4 %s, v34, s[72:75], 0 offen offset:%d" % (ar(AG + 16 + 4 * q, 4), 16 * q)])
        return L
    def wsetup():
        B = Asm()
        k2ids(B, S_MT, S_NT, S_KH, S_XF)
        B("v_lshrrev_b32 v32, 4, v1")
        B("v_and_b32 v33, 15, v1")
        B("v_lshlrev_b32 v34, 1, v32")
        B("v_xor_b32 v33, v33, v34")
        B("s_lshl_b32 s3, s%d, 4" % S_W)
        B("v_add_u32 v32, s3, v32")
        B("v_lshlrev_b32 v32, 11, v32")
        B("v_lshl_add_u32 v32, v33, 4, v32")
        B("v_xor_b32 v33, 128, v32")
        for n in range(4):
            B("v_add_u32 v%d, %d, v%d" % (P_DMA + 4 + n, n * 4 * 2048 - 1024 * n, 32 + (n >> 1)))
        B("s_lshl_b32 s%d, s%d, 12" % (S_M0 + 1, S_W))
        B("s_add_u32 s%d, s%d, %d" % (S_M0, S_M0 + 1, AB))
        B("s_mul_i32 s3, s%d, %d" % (S_KH, NH * 64 * 2048))
        B("s_lshl_b32 s6, s%d, 8" % S_NT)
        B("s_add_u32 s3, s3, s6")
        B("s_add_u32 s%d, s40, s3\ns_addc_u32 s%d, s41, 0" % (SRD_B, SRD_B + 1))
        B("s_sub_u32 s%d, %d, s3" % (SRD_B + 2, 3584 * 2048))
        B("s_mov_b32 s%d, 0" % S_WK)
        return groups(B, 3)
    def wdma():
        L = []
        for stg in range(NS):
            for n in range(4):
                g = ([m0set(1, stg)] if n == 0 else []) + [ldw(n)]
                if n == 3: g.append("s_add_u32 s%d, s%d, %d" % (S_WK, S_WK, 64 * 2048))
                L.append(g)
        return L
    def rest():
        B = Asm()
        B("s_mov_b32 s47, %d" % (WS_FLGO - WS_FLGH))
        B("s_lshl_b32 s6, s%d, 8" % S_NT)
        B("s_add_u32 s%d, s4, s6\ns_addc_u32 s%d, s5, 0" % (S_B2, S_B2 + 1))
        B("s_sub_u32 s%d, %d, s6" % (S_B2 + 2, 1024 * 2048))
        B("v_lshlrev_b32 v%d, 4, v1" % P_VL)
        B("s_mul_i32 s3, s%d, %d" % (S_W, 2 * MBS))
        B("v_add_u32 v%d, s3, v%d" % (P_DMA, P_VL))
        B("v_add_u32 v%d, %d, v%d" % (P_DMA + 2, MBS - 2048, P_DMA))
        B("s_mov_b32 s%d, 0" % S_AK); B("s_mov_b32 s%d, %d" % (S_KT, NS))
        jh = (64 * NH - 1) // 112; jf = 64 * NH // 112
        full = (1 << 64) - 1
        ih = full ^ ((1 << (2 * jh + 2)) - 1); if_ = (1 << (2 * jf)) - 1
        B("s_mov_b32 s68, 0x%x" % (if_ & 0xffffffff)); B("s_mov_b32 s69, 0x%x" % (if_ >> 32))
        B("s_cmp_eq_u32 s%d, 0" % S_KH)
        B("s_cselect_b32 s%d, %d, %d" % (S_SW, NH, NF1))
        B("s_cselect_b32 s%d, %d, 0" % (S_WK0, (16 - TH) * 64 * 2048))
        B("s_mov_b32 s%d, %d" % (S_AK0, NF1 * 2048))
        B("s_cselect_b32 s%d, %d, s%d" % (S_AK0, (72 - TH) * 2048, S_AK0))
        B("s_cselect_b32 s68, 0x%x, s68" % (ih & 0xffffffff)); B("s_cselect_b32 s69, 0x%x, s69" % (ih >> 32))
        B("s_mul_i32 s3, s%d, %d" % (S_MT, 8 * MBS))
        B("s_mul_i32 s6, s%d, %d" % (S_KH, NH * 2048))
        B("s_add_u32 s3, s3, s6")
        mk_srd(B, SRD_A, 58, 59, 3, 128 * MBS)
        mk_srd(B, SRD_O, 56, 57, None, 2048 * 2048)
        B("s_lshr_b32 s%d, s%d, 1" % (S_WM, S_W)); B("s_and_b32 s%d, s%d, 1" % (S_WN, S_W))
        B("s_lshl_b32 s6, s%d, 7" % S_MT)
        B("s_lshl_b32 s3, s%d, 6" % S_WM)
        B("s_add_u32 s6, s6, s3")
        B("s_lshl_b32 s3, s%d, 5" % S_KH)
        B("s_add_u32 s6, s6, s3")
        B("v_and_b32 v32, 15, v1")
        B("v_add_u32 v%d, s6, v32" % P_TOK)
        B("v_lshlrev_b32 v%d, 2, v%d" % (P_GA, P_TOK))
        B("v_add_u32 v%d, %d, v%d" % (P_GA, WS_G, P_GA))
        B("s_lshl_b32 s3, s%d, 13" % S_WM)
        B("s_add_u32 s3, s3, %d" % AB)
        B("s_lshl_b32 s6, s%d, 12" % S_KH)
        B("s_add_u32 s%d, s3, s6" % S_M0H)
        B("v_add_u32 v%d, s%d, v%d" % (P_XRD, S_M0H, P_VL))
        B("s_sub_u32 s3, s3, s6")
        B("v_add_u32 v%d, s3, v%d" % (P_XRD2, P_VL))
        B("s_lshl_b32 s3, s%d, 11" % S_WN)
        B("s_add_u32 s%d, s%d, s3" % (S_M0H, S_M0H))
        B("s_sub_u32 s3, s%d, %d" % (S_M0H, AB))
        B("s_mul_i32 s3, s3, %d" % (MBS // 2048))
        B("v_add_u32 v%d, s3, v%d" % (P_AH, P_VL))
        B("v_lshrrev_b32 v34, 4, v1")
        B("v_bfe_u32 v32, v1, 2, 2")
        B("v_lshl_add_u32 v33, v34, 3, v32")
        B("v_lshlrev_b32 v33, 8, v33")
        B("v_and_b32 v35, 3, v1")
        B("v_lshl_add_u32 v33, v35, 3, v33")
        B("v_bfe_u32 v35, v1, 4, 1")
        B("v_lshl_add_u32 v32, v35, 2, v32")
        B("s_lshl_b32 s3, s%d, 2" % S_WN)
        for cb in range(4):
            B("s_add_u32 s6, s3, %d" % cb)
            B("v_xor_b32 v35, s6, v32")
            B("v_lshl_add_u32 v%d, v35, 5, v33" % (P_WRD + cb))
        B("v_mov_b32 v%d, 0" % P_Z0)
        B("v_lshlrev_b32 v%d, 2, v1" % P_L4)
        B("s_lshl_b32 s%d, s%d, 8" % (S_HF, S_MT))
        B("s_add_u32 s%d, s%d, %d" % (S_HF, S_HF, WS_FLGH))
        B("s_mov_b32 s46, 0x01010101")
        return groups(B, 3)

    st = {"pend": late}
    PB = 40 - D
    DSP = O("dsp", 1); DPOS = O("dpos", 2); DMARG = O("dmarg", 12)
    def tile(stage, first, dma_next, has_next, vm_extra, do_touch, extra=None, after=None):
        if extra: st["pend"] = st["pend"] + extra
        for n in range(40):
            ks, cb = divmod(n, 20)
            pre = []
            if n == PB and has_next:
                assert not st["pend"]
                pre += ["s_waitcnt lgkmcnt(0) vmcnt(%d)" % vm_extra, "s_barrier"]
                if first: pre.append(bytest)
                if dma_next: st["pend"] = dma_list(stage)
                if do_touch: st["pend"].append(touch())
                if after: st["pend"] = st["pend"] + after
            need_tags = [("w", n)] + ([("x", ks, tb) for tb in range(NTB)] if cb == 0 else [])
            if not (n == PB and has_next):
                pre.append("s_waitcnt lgkmcnt(%d)" % Q.wait_for(need_tags))
            rds = []
            def addw(m):
                if m < 40:
                    k2, c2 = divmod(m, 20)
                    for t in range(2): rds.append((wread(stage, k2, c2, m, t), ("w", m)))
                elif has_next:
                    for t in range(2): rds.append((wread(stage ^ 1, 0, m - 40, m, t), ("w", m - 40)))
            if n == PB - 2: addw(n + D); addw(n + D + 1)
            elif n == PB - 1: pass
            else: addw(n + D)
            if ks == 0 and cb in (4, 7, 10, 13):
                tb = (cb - 4) // 3
                rds.append((xread(stage, 1, 1, tb), ("x", 1, tb)))
            if has_next and n >= PB and n < PB + 4:
                tb = n - PB
                rds.append((xread(stage ^ 1, 0, 0, tb), ("x", 0, tb)))
            for s in pre: A(s)
            k = 0
            for tb in range(NTB):
                a, b = wf(n), xf(ks, tb)
                if BLK[cb][0] == "q" and BLK[cb][1] == 2: a, b = b, a
                c = "0" if (first and ks == 0) else acc(cb, tb)
                A("v_mfma_f32_16x16x32_bf16 %s, %s, %s, %s" % (acc(cb, tb), a, b, c))
                if k < len(rds):
                    A(rds[k][0]); Q.issue(rds[k][1]); k += 1
                if tb == 3:
                    while k < len(rds):
                        A(rds[k][0]); Q.issue(rds[k][1]); k += 1
                if tb == DPOS and st["pend"]:
                    left = (PB - n - 1) % 40 + 1 - DMARG
                    if DSP == 1 or (n % DSP == 0) or len(st["pend"]) * DSP >= left:
                        for s in st["pend"].pop(0): A(s)
    assert 40 % RING == 0 and D + 2 <= RING
    nt = 1 if TOUCH else 0
    tile(0, True, True, True, NPRO, False)
    A("s_mov_b32 s%d, 0" % S_CNT)
    A.label("L_k1_loop")
    if STAMP == 2:
        A("s_memtime s[100:101]"); A("s_waitcnt lgkmcnt(0)"); A("s_sub_u32 s100, s100, s80")
        A("s_mov_b32 m0, s%d" % S_CNT); A("s_nop 0"); A("v_writelane_b32 v47, s100, m0")
        A("s_add_u32 m0, s%d, 0" % (S_M0 + 1))
    tile(1, False, True, True, 0, TOUCH)
    tile(0, False, True, True, nt, False)
    A("s_add_u32 s%d, s%d, 1" % (S_CNT, S_CNT))
    A("s_cmp_lt_u32 s%d, 6" % S_CNT)
    A("s_cbranch_scc1 L_k1_loop")
    if STAMP == 2:
        for q in range(6):
            r = 82 + len(stamp.regs); stamp.regs.append(r)
            A("v_readlane_b32 s%d, v47, %d" % (r, q)); A("s_nop 1"); A("s_add_u32 s%d, s%d, s80" % (r, r))
        stamp()
        stamp.off = True
    tile(1, False, True, True, 10, False, [touch()] + gloads() + wotouch())
    tile(0, False, False, True, 0, False, wsetup(), wdma())
    tile(1, False, False, False, 0, False, rest())
    assert not st["pend"]
    stamp(); stamp.real()

    E = 2
    def pk(op, d, a, b, c=None, mods=""):
        if c is None: A("%s %s, %s, %s %s" % (op, d, a, b, mods))
        else: A("%s %s, %s, %s, %s %s" % (op, d, a, b, c, mods))
    def rsag2(op, qa, opb, qb):
        seqs = []
        for (o, q) in ((op, qa), (opb, qb)):
            seqs.append([
                "v_permlane32_swap_b32 v%d, v%d" % (q[0], q[1]),
                "v_permlane32_swap_b32 v%d, v%d" % (q[2], q[3]),
                "%s v%d, v%d, v%d" % (o, q[0], q[0], q[1]),
                "%s v%d, v%d, v%d" % (o, q[2], q[2], q[3]),
                "v_permlane16_swap_b32 v%d, v%d" % (q[0], q[2]),
                "%s v%d, v%d, v%d" % (o, q[0], q[0], q[2]),
                "v_mov_b32 v%d, v%d" % (q[2], q[0]),
                "v_permlane16_swap_b32 v%d, v%d" % (q[0], q[2]),
                "v_mov_b32 v%d, v%d" % (q[1], q[0]),
                "v_mov_b32 v%d, v%d" % (q[3], q[2]),
                "v_permlane32_swap_b32 v%d, v%d" % (q[0], q[1]),
                "v_permlane32_swap_b32 v%d, v%d" % (q[2], q[3])])
        for x, y in zip(*seqs):
            A(x); A(y)
    MX = [232, 234, 236, 238]; MN = [240, 242, 244, 246]; PB16 = 20; WP = 176
    def feature(cb0):
        for tb in range(NTB):
            for h in range(2):
                f, b = accb(cb0 + h, tb); assert f == "v"
                A("v_cvt_pk_bf16_f32 v%d, v%d, v%d" % (PB16 + 4 * tb + 2 * h, b, b + 1))
                A("v_cvt_pk_bf16_f32 v%d, v%d, v%d" % (PB16 + 4 * tb + 2 * h + 1, b + 2, b + 3))
        for tb in range(NTB):
            for fb in range(2):
                A("v_mfma_f32_16x16x32_bf16 %s, %s, %s, 0" % (acc(cb0 + fb, tb), vr(WP + 4 * fb, 4), vr(PB16 + 4 * tb, 4)))
    def feature2(cb0):
        for tb in range(NTB):
            p0 = accb(cb0, tb)[1]; p1 = accb(cb0 + 1, tb)[1]
            for step in range(4):
                for (op3, op2, d) in (("v_max3_f32", "v_max_f32", MX[tb]), ("v_min3_f32", "v_min_f32", MN[tb])):
                    if step == 0: A("%s v%d, v%d, v%d, v%d" % (op3, d, p0, p0 + 1, p0 + 2))
                    if step == 1: A("%s v%d, v%d, v%d, v%d" % (op3, d, d, p0 + 3, p1))
                    if step == 2: A("%s v%d, v%d, v%d, v%d" % (op3, d, d, p1 + 1, p1 + 2))
                    if step == 3: A("%s v%d, v%d, v%d" % (op2, d, d, p1 + 3))
        rsag2("v_max_f32", MX, "v_min_f32", MN)
        for b in MX + MN: A("v_mul_f32 v%d, s%d, v%d" % (b, S_C, b))
    def exps(cb0, tb, EM):
        for h in range(2):
            p = accb(cb0 + h, tb)[1]
            for u in range(2):
                pk("v_pk_fma_f32", vr(EM + 4 * h + 2 * u, 2), vr(p + 2 * u, 2), sr(S_C, 2), vr(MN[tb], 2),
                   "op_sel_hi:[1,1,0] neg_lo:[1,0,0] neg_hi:[1,0,0]")
                pk("v_pk_fma_f32", vr(p + 2 * u, 2), vr(p + 2 * u, 2), sr(S_C, 2), vr(MX[tb], 2),
                   "op_sel_hi:[1,1,0] neg_lo:[0,0,1] neg_hi:[0,0,1]")
        for h in range(2):
            p = accb(cb0 + h, tb)[1]
            for r in range(4):
                A("v_exp_f32 v%d, v%d" % (p + r, p + r))
                A("v_exp_f32 v%d, v%d" % (EM + 4 * h + r, EM + 4 * h + r))
    VH = 36; VS = 37
    A("v_mov_b32 v0, v30")
    A("v_and_b32 v%d, 15, v1" % VH)
    A("v_lshlrev_b32 v%d, 4, v%d" % (VH, VH))
    A("v_lshrrev_b32 v38, 5, v1")
    A("v_lshl_add_u32 v%d, v38, 8, v%d" % (VH, VH))
    A("v_bfe_u32 v38, v1, 4, 1")
    A("v_mul_u32_u24 v%d, %d, v38" % (VS, MBS))
    A("v_add_u32 v%d, v%d, v%d" % (VS, VS, VH))
    A("v_lshl_add_u32 v%d, v38, 9, v%d" % (VH, VH))
    A("s_lshl_b32 s3, s%d, 4" % S_I)
    A("s_lshl_b32 s62, s%d, 2" % S_W)
    A("s_add_u32 s62, s62, s3")
    A("s_mul_i32 s62, s62, %d" % MBS)
    A("s_mul_i32 s3, s%d, 7" % S_J)
    A("s_add_u32 s3, s3, 1")
    A("s_lshr_b32 s3, s3, 1")
    A("s_lshl_b32 s3, s3, 10")
    A("s_add_u32 s63, s62, s3")
    for tb in range(1, 4): A("s_add_u32 s%d, s63, %d" % (63 + tb, tb * MBS))
    A("s_add_u32 s67, s63, 3072")
    A("s_sub_u32 s3, s63, 512")
    A("s_bitcmp1_b32 s%d, 0" % S_J)
    A("s_cselect_b32 s67, s3, s67")
    A("s_add_u32 s76, s67, %d" % (2 * MBS))
    FREEV = [accb(6, 0)[1] + 4 * i for i in range(16)]
    def glu(fb, fi):
        gs, us = [], []
        for tb in range(4):
            out = []
            for cb in (6 + 2 * fb, 7 + 2 * fb):
                f, b = accb(cb, tb)
                if f == "a":
                    d = FREEV[fi]; fi += 1
                    for r in range(4): A("v_accvgpr_read_b32 v%d, a%d" % (d + r, b + r))
                    b = d
                out.append(b)
            gs.append(out[0]); us.append(out[1])
        for tb in range(4):
            for u in range(2): pk("v_pk_mul_f32", vr(gs[tb] + 2 * u, 2), vr(gs[tb] + 2 * u, 2), sr(S_C, 2))
        for tb in range(4):
            for r in range(4): A("v_exp_f32 v%d, -v%d" % (gs[tb] + r, gs[tb] + r))
        for tb in range(4):
            for u in range(2): pk("v_pk_add_f32", vr(gs[tb] + 2 * u, 2), vr(gs[tb] + 2 * u, 2), "1.0", None, "op_sel_hi:[1,0]")
        for tb in range(4):
            for r in range(4): A("v_rcp_f32 v%d, v%d" % (gs[tb] + r, gs[tb] + r))
        for tb in range(4):
            for u in range(2): pk("v_pk_mul_f32", vr(gs[tb] + 2 * u, 2), vr(gs[tb] + 2 * u, 2), vr(us[tb] + 2 * u, 2))
        return gs, us
    def packswap(dst, a, b):
        for (d, x) in ((dst, a), (dst + 2, b)):
            A("v_cvt_pk_bf16_f32 v%d, v%d, v%d" % (d, x, x + 1))
            A("v_cvt_pk_bf16_f32 v%d, v%d, v%d" % (d + 1, x + 2, x + 3))
    def doswap(d):
        A("v_permlane16_swap_b32 v%d, v%d" % (d, d + 2))
        A("v_permlane16_swap_b32 v%d, v%d" % (d + 1, d + 3))
    def glu_pair(p, D4):
        g0, u0 = glu(2 * p, 0)
        g1, u1 = glu(2 * p + 1, 8)
        for tb in range(4): packswap(D4[tb], g0[tb], g1[tb])
        for tb in range(4): doswap(D4[tb])
        return ["buffer_store_dwordx4 %s, v%d, s[%d:%d], s%d offen offset:%d%s" % (vr(D4[tb], 4), VH, SRD_W, SRD_W + 3, 63 + tb, p * 1024, SC) for tb in range(4)]
    def capture(fn):
        start = len(A.lines)
        r = fn()
        body = [x.strip() for x in A.lines[start:]]; del A.lines[start:]
        return body, r
    def spread(fn, stores, every):
        body, r = capture(fn)
        k = 0
        for n, ln in enumerate(body):
            if n % every == 0 and k < len(stores):
                A(stores[k]); k += 1
            A(ln)
        for x in stores[k:]: A(x)
        return r
    PKA = [PB16 + 4 * i for i in range(4)]
    PKB = [accb(10, 0)[1] + 4 * i for i in range(4)]
    PK1 = [accb(11, 0)[1] + 4 * i for i in range(4)]
    st0 = glu_pair(0, PKA)
    st1 = spread(lambda: glu_pair(1, PK1), st0, 30)
    st2 = spread(lambda: glu_pair(2, PKA), st1, 40)
    def last():
        g6, u6 = glu(6, 0)
        for tp in range(2): packswap(PKB[tp], g6[2 * tp], g6[2 * tp + 1])
        for tp in range(2): doswap(PKB[tp])
    spread(last, st2, 25)
    for tp in range(2):
        A("buffer_store_dwordx4 %s, v%d, s[%d:%d], s%d offen%s" % (vr(PKB[tp], 4), VS, SRD_W, SRD_W + 3, 67 if tp == 0 else 76, SC))
    stamp()
    def flag_group(saddr, soff):
        return ["v_mov_b32 v38, s%d" % saddr, "v_mov_b32 v39, 1", "s_mov_b64 exec, 1",
                "buffer_store_dword v39, v38, s[%d:%d], %s offen sc1" % (SRD_W, SRD_W + 3, soff), "s_mov_b64 exec, -1"]
    A("v_bfe_u32 v224, v1, 2, 2")
    A("v_lshrrev_b32 v225, 4, v1")
    A("v_and_b32 v226, 3, v1")
    A("v_lshl_add_u32 v227, v225, 2, v224")
    A("v_lshlrev_b32 v228, 6, v227")
    A("v_lshl_add_u32 v228, v226, 3, v228")
    A("v_add_u32 v228, %d, v228" % WPB)
    for fb in range(2):
        for t in range(2):
            A("ds_read_b64_tr_b16 %s, v228 offset:%d" % (vr(WP + 4 * fb + 2 * t, 2), fb * 32 + t * 1024))
    A("s_waitcnt lgkmcnt(0)")
    A("s_barrier")
    dbgld = "buffer_load_dword v47, v%d, s[%d:%d], 0 offen sc1" % (P_L4, SRD_D, SRD_D + 3)
    A(dbgld)
    feature(0)
    SP = [248, 250, 252, 254]; SM = [200, 202, 204, 206]
    VB = accb(2, 0)[1]
    assert accb(3, 0)[1] == VB + 16
    for db in range(2):
        for tb in range(4):
            s = VB + db * 16 + tb * 4
            d = VB + db * 8 + tb * 2
            A("v_cvt_pk_bf16_f32 v%d, v%d, v%d" % (d, s, s + 1))
            A("v_cvt_pk_bf16_f32 v%d, v%d, v%d" % (d + 1, s + 2, s + 3))
    feature2(0)
    A("s_lshl_b32 s61, s%d, 13" % S_W)
    A("s_add_u32 s61, s61, %d" % SCR)
    VPW = 192; VPR = 196
    A("v_and_b32 v229, 15, v1")
    A("v_lshlrev_b32 v229, 7, v229")
    A("v_xor_b32 v230, v225, v226")
    A("v_lshl_add_u32 v229, v230, 3, v229")
    A("v_add_u32 v229, s61, v229")
    for q in range(4):
        A("v_xor_b32 v230, %d, v224" % q)
        A("v_lshl_add_u32 v%d, v230, 5, v229" % (VPW + q))
    A("v_lshlrev_b32 v229, 7, v227")
    A("v_xor_b32 v230, v226, v224")
    A("v_lshl_add_u32 v229, v230, 3, v229")
    A("v_add_u32 v229, s61, v229")
    for q in range(4):
        A("v_xor_b32 v230, %d, v225" % q)
        A("v_lshl_add_u32 v%d, v230, 5, v229" % (VPR + q))
    EMR = [PB16, PB16 + 8, VB + 16, VB + 24]
    for tb in range(4):
        exps(0, tb, EMR[tb])
    t0 = 144
    for tb in range(4):
        p0 = accb(0, tb)[1]; p1 = accb(1, tb)[1]; e = EMR[tb]
        pk("v_pk_add_f32", vr(t0, 2), vr(p0, 2), vr(p0 + 2, 2))
        pk("v_pk_add_f32", vr(t0 + 2, 2), vr(e, 2), vr(e + 2, 2))
        pk("v_pk_add_f32", vr(t0, 2), vr(t0, 2), vr(p1, 2))
        pk("v_pk_add_f32", vr(t0 + 2, 2), vr(t0 + 2, 2), vr(e + 4, 2))
        pk("v_pk_add_f32", vr(t0, 2), vr(t0, 2), vr(p1 + 2, 2))
        pk("v_pk_add_f32", vr(t0 + 2, 2), vr(t0 + 2, 2), vr(e + 6, 2))
        A("v_add_f32 v%d, v%d, v%d" % (SP[tb], t0, t0 + 1))
        A("v_add_f32 v%d, v%d, v%d" % (SM[tb], t0 + 2, t0 + 3))
    rsag2("v_add_f32", SP, "v_add_f32", SM)
    for i in SP + SM: A("v_rcp_f32 v%d, v%d" % (i, i))
    HPOS = O("hpos", 0)
    def hflag():
        A("s_waitcnt vmcnt(0)")
        for x in flag_group(77, "0"): A(x)
    if HPOS == 0: hflag()
    for tb in range(4):
        srcs = [(accb(0, tb)[1], SP), (accb(1, tb)[1], SP), (EMR[tb], SM), (EMR[tb] + 4, SM)]
        for q, (p, sc) in enumerate(srcs):
            for u in range(2):
                pk("v_pk_mul_f32", vr(p + 2 * u, 2), vr(p + 2 * u, 2), vr(sc[tb], 2), None, "op_sel_hi:[1,0]")
        for q, (p, sc) in enumerate(srcs):
            A("v_cvt_pk_bf16_f32 v%d, v%d, v%d" % (p, p, p + 1))
            A("v_cvt_pk_bf16_f32 v%d, v%d, v%d" % (p + 1, p + 2, p + 3))
        for q, (p, sc) in enumerate(srcs):
            A("ds_write_b64 v%d, %s offset:%d" % (VPW + q, vr(p, 2), tb * 2048))
    if HPOS == 1: hflag()
    A("s_mov_b32 s37, 0x40000")
    A.label("L_dpoll")
    A("v_cmp_eq_u32 vcc, s46, v47")
    A("s_nop 0")
    A("s_cmp_eq_u64 vcc, -1")
    A("s_cbranch_scc1 L_dpoll_ok")
    A(dbgld)
    A("s_sub_u32 s37, s37, 1")
    A("s_waitcnt vmcnt(0)")
    A("s_cbranch_scc0 L_dpoll")
    A.label("L_dpoll_ok")
    V_RW, V_RR, V_ZS, V_ZL, V_KS, V_KL, V_PD, V_P4 = 40, 41, 42, 43, 44, 45, 46, 47
    A("v_add_u32 v%d, s61, v%d" % (V_RW, P_VL))
    A("s_lshl_b32 s3, s%d, 11" % S_W)
    A("v_add_u32 v%d, s3, v%d" % (V_KS, P_VL))
    A("v_add_u32 v%d, %d, v%d" % (V_RR, SCR, V_KS))
    A("v_lshl_add_u32 v230, v225, 2, v226")
    A("v_lshlrev_b32 v%d, 4, v230" % V_ZL)
    A("v_add_u32 v%d, 8192, v%d" % (V_ZL, V_ZL))
    ZRED = AB + 3 * ST2
    A("s_lshl_b32 s3, s%d, 10" % S_W)
    A("s_add_u32 s3, s3, %d" % ZRED)
    A("v_add_u32 v%d, s3, v%d" % (V_ZS, P_VL))
    A("v_add_u32 v229, %d, v%d" % (ZRED, P_VL))
    A("s_lshr_b32 s3, s%d, 1" % S_W)
    A("s_lshl_b32 s3, s3, 12")
    A("s_and_b32 s6, s%d, 1" % S_W)
    A("s_lshl_b32 s6, s6, 10")
    A("s_add_u32 s3, s3, s6")
    A("v_add_u32 v%d, s3, v%d" % (V_KL, P_VL))
    A("v_and_b32 v%d, 124, v%d" % (V_P4, P_L4))
    S_KVB = 60
    A("s_lshl_b32 s3, s%d, 3" % S_J)
    A("s_mul_i32 s%d, s3, 9216" % S_KVB)
    A("s_add_u32 s%d, s%d, %d" % (S_KVB, S_KVB, WS_KVP))
    A("s_mul_i32 s3, s%d, 9216" % S_I)
    A("s_add_u32 s61, s%d, s3" % S_KVB)
    A("s_add_u32 s3, s%d, 112" % S_J)
    A("s_lshl_b32 s3, s3, 10")
    A("s_add_u32 s63, s62, s3")
    for tb in range(1, 4): A("s_add_u32 s%d, s63, %d" % (63 + tb, tb * MBS))
    A("s_mov_b32 s67, 0x358637bd")
    A("s_waitcnt lgkmcnt(0)")
    APH = 64
    for fblk in range(4):
        for ks in range(2):
            for t in range(2):
                A("ds_read_b64_tr_b16 %s, v%d offset:%d" % (ar(APH + 8 * fblk + 4 * ks + 2 * t, 2), VPR + fblk, (32 * ks + 16 * t) * 128))
    A("v_mov_b32 v231, 0x3f803f80")
    for fblk in range(4):
        A("v_cmp_eq_u32 vcc, %d, v226" % fblk)
        for r in range(4):
            A("v_cndmask_b32 v%d, 0, v231, vcc" % (PB16 + 4 * fblk + r))
    stamp()

    KV = accb(0, 0)[1]; ZB = VB + 16; QE = 144; LB = 48
    side = []
    import re
    def unpack(x):
        if not x.startswith("v_pk_") or not O("unpack", 0): return [x]
        if O("unpack", 0) == 2 and not re.search(r"op_sel:\[[01,]*1", x): return [x]
        I = parse(x); n = len(I.ops) - 1
        def arr(name, dflt):
            m = re.search(name + r":\[([01,]+)\]", I.mods)
            return [int(c) for c in m.group(1).split(",")] if m else [dflt] * n
        sel = [arr("op_sel", 0), arr("op_sel_hi", 1)]; neg = [arr("neg_lo", 0), arr("neg_hi", 0)]
        def half(o, h):
            m = re.match(r"([vs])\[(\d+):\d+\]", o)
            return "%s%d" % (m.group(1), int(m.group(2)) + h) if m else o
        op = I.op.replace("v_pk_", "v_")
        res = []
        for h in range(2):
            src = [("-" if neg[h][k] else "") + half(I.ops[1 + k], sel[h][k]) for k in range(n)]
            if n == 2 and not src[1].startswith("v"): src = src[::-1]
            res.append("%s %s, %s" % (op, half(I.ops[0], h), ", ".join(src)))
        return res
    def S(fn):
        for x in capture(fn)[0]: side.extend(unpack(x))
    def kvm():
        for fblk in range(4):
            for ks in range(2):
                for db in range(2):
                    d = vr(KV + 8 * fblk + 4 * db, 4)
                    A("v_mfma_f32_16x16x32_bf16 %s, %s, %s, %s" % (d, ar(APH + 8 * fblk + 4 * ks, 4), vr(VB + db * 8 + ks * 4, 4), "0" if ks == 0 else d))
                A("v_mfma_f32_16x16x32_bf16 %s, %s, %s, %s" % (vr(ZB, 4), ar(APH + 8 * fblk + 4 * ks, 4), vr(PB16 + 4 * fblk, 4), "0" if (ks == 0 and fblk == 0) else vr(ZB, 4)))
        for b in range(8):
            A("ds_write_b128 v%d, %s offset:%d" % (V_RW, vr(KV + 4 * b, 4), b * 1024))
        A("ds_write_b128 v%d, %s" % (V_ZS, vr(ZB, 4)))
    PRE = 1
    hld = "buffer_load_dword v%d, v%d, s[%d:%d], s%d offen sc1" % (V_PD, P_L4, SRD_W, SRD_W + 3, S_HF)
    A("s_waitcnt lgkmcnt(0)")
    kvm(); feature(4)
    A("s_waitcnt lgkmcnt(0)"); A("s_barrier")
    A(hld)
    def redr():
        for w in range(4):
            A("ds_read_b128 %s, v%d offset:%d" % (vr(KV + 8 * w, 4), V_RR, w * 8192))
            A("ds_read_b128 %s, v%d offset:%d" % (vr(KV + 8 * w + 4, 4), V_RR, w * 8192 + 1024))
            A("ds_read_b128 %s, v229 offset:%d" % (vr(VB + 4 * w, 4), w * 1024))
    if PRE:
        redr(); feature2(4); A("s_waitcnt lgkmcnt(0)")
    else:
        S(redr)
        S(lambda: feature2(4))
        side.append(("lgkm",))
    def reda():
        for w in range(1, 4):
            for u in range(4): pk("v_pk_add_f32", vr(KV + 2 * u, 2), vr(KV + 2 * u, 2), vr(KV + 8 * w + 2 * u, 2))
            for u in range(2): pk("v_pk_add_f32", vr(VB + 2 * u, 2), vr(VB + 2 * u, 2), vr(VB + 4 * w + 2 * u, 2))
        A("buffer_store_dwordx4 %s, v%d, s[%d:%d], s61 offen sc1" % (vr(VB, 4), V_ZL, SRD_W, SRD_W + 3))
        A("buffer_store_dwordx4 %s, v%d, s[%d:%d], s61 offen sc1" % (vr(KV, 4), V_KS, SRD_W, SRD_W + 3))
        A("buffer_store_dwordx4 %s, v%d, s[%d:%d], s61 offen offset:1024 sc1" % (vr(KV + 4, 4), V_KS, SRD_W, SRD_W + 3))
    if PRE: reda(); stamp()
    else:
        S(reda)
        side.append(("ev", "kvst"))
    def qexp():
        for half in range(2):
            for tb in (2 * half, 2 * half + 1):
                exps(4, tb, PB16 + 8 * (tb & 1))
            for tb in (2 * half, 2 * half + 1):
                e = PB16 + 8 * (tb & 1)
                for h in range(2):
                    p = accb(4 + h, tb)[1]
                    A("v_cvt_pk_bf16_f32 v%d, v%d, v%d" % (QE + 8 * tb + 2 * h, p, p + 1))
                    A("v_cvt_pk_bf16_f32 v%d, v%d, v%d" % (QE + 8 * tb + 2 * h + 1, p + 2, p + 3))
                    A("v_cvt_pk_bf16_f32 v%d, v%d, v%d" % (QE + 8 * tb + 4 + 2 * h, e + 4 * h, e + 4 * h + 1))
                    A("v_cvt_pk_bf16_f32 v%d, v%d, v%d" % (QE + 8 * tb + 4 + 2 * h + 1, e + 4 * h + 2, e + 4 * h + 3))
    QPRE = 1
    side.append(("mark", "qdone"))
    side.append(("join", "kvl"))
    AF = LB + 12; ZQ = 64; KF = 80; AUX = 96
    def oph1():
        for i in range(1, 8):
            for u in range(6): pk("v_pk_add_f32", vr(LB + 2 * u, 2), vr(LB + 2 * u, 2), vr(LB + 12 * i + 2 * u, 2))
        for h in range(2):
            A("v_cvt_pk_bf16_f32 v%d, v%d, v%d" % (AF + 2 * h, LB + 4 * h, LB + 4 * h + 1))
            A("v_cvt_pk_bf16_f32 v%d, v%d, v%d" % (AF + 2 * h + 1, LB + 4 * h + 2, LB + 4 * h + 3))
        A("s_lshl_b32 s3, s%d, 10" % S_W)
        A("v_add_u32 v%d, %d, v%d" % (V_RR, SCR, P_VL))
        A("v_add_u32 v%d, s3, v%d" % (V_RW, V_RR))
        A("ds_write_b128 v%d, %s" % (V_RW, vr(AF, 4)))
        for fblk in range(4):
            for r in range(4):
                A("v_mov_b32_dpp v%d, v%d quad_perm:[%d,%d,%d,%d] row_mask:0xf bank_mask:0xf" % (ZQ + 4 * fblk + r, LB + 8 + r, fblk, fblk, fblk, fblk))
        for fblk in range(4):
            A("v_cvt_pk_bf16_f32 v%d, v%d, v%d" % (AUX + 2 * fblk, ZQ + 4 * fblk, ZQ + 4 * fblk + 1))
            A("v_cvt_pk_bf16_f32 v%d, v%d, v%d" % (AUX + 2 * fblk + 1, ZQ + 4 * fblk + 2, ZQ + 4 * fblk + 3))
        A("v_and_b32 v%d, 3, v1" % ZQ)
        A("v_mov_b32 v%d, 0x3f803f80" % (ZQ + 1))
    S(oph1)
    side.append(["v_cmp_eq_u32 vcc, 1, v%d" % ZQ, "v_cndmask_b32 v%d, 0, v%d, vcc" % (ZQ + 1, ZQ + 1)])
    side.append(["v_cmp_eq_u32 vcc, 0, v%d" % ZQ] + ["v_cndmask_b32 v%d, v%d, v%d, vcc" % (AUX + r, ZQ + 1, AUX + r) for r in range(8)])
    side.append(("bar",))
    S(lambda: [A("ds_read_b128 %s, v%d offset:%d" % (vr(KF + 4 * q, 4), V_RR, q * 1024)) for q in range(4)])
    NN = [48, 64, 104, 120]; NA = [136, 20, 28, 176]
    def auxm():
        for tb in range(4):
            for s in range(2):
                A("v_mfma_f32_16x16x32_bf16 %s, %s, %s, 0" % (vr(NA[tb] + 4 * s, 4), vr(AUX + 4 * s, 4), vr(QE + 8 * tb + 4 * s, 4)))
        for x in NA:
            A("v_rcp_f32 v%d, v%d" % (x + 1, x + 1))
            A("v_rcp_f32 v%d, v%d" % (x + 5, x + 5))
        for x in NA: A("v_fma_f32 v%d, v%d, v%d, s67" % (x + 2, x, x + 1))
        for x in NA: A("v_fma_f32 v%d, v%d, v%d, v%d" % (x + 2, x + 4, x + 5, x + 2))
        for x in NA: A("v_rcp_f32 v%d, v%d" % (x + 2, x + 2))
        for x in NA:
            A("v_mul_f32 v%d, v%d, v%d" % (x, x + 1, x + 2))
            A("v_mul_f32 v%d, v%d, v%d" % (x + 4, x + 5, x + 2))
    S(auxm)
    side.append(("lgkm",))
    def oph2():
        for tb in range(4):
            for s in range(2):
                for db in range(2):
                    A("v_mfma_f32_16x16x32_bf16 %s, %s, %s, 0" % (vr(NN[tb] + 8 * s + 4 * db, 4), vr(KF + 8 * s + 4 * db, 4), vr(QE + 8 * tb + 4 * s, 4)))
        for n, x in zip(NN, NA):
            for u in range(4):
                pk("v_pk_mul_f32", vr(n + 2 * u, 2), vr(n + 2 * u, 2), vr(x, 2), None, "op_sel_hi:[1,0]")
            for u in range(4):
                pk("v_pk_fma_f32", vr(n + 2 * u, 2), vr(n + 8 + 2 * u, 2), vr(x + 4, 2), vr(n + 2 * u, 2), "op_sel_hi:[1,0,1]")
            for u in range(4):
                A("v_cvt_pk_bf16_f32 v%d, v%d, v%d" % (n + 8 + u, n + 2 * u, n + 2 * u + 1))
        for n in NN: doswap(n + 8)
        for tb, n in enumerate(NN):
            A("buffer_store_dwordx4 %s, v%d, s[%d:%d], s%d offen%s" % (vr(n + 8, 4), VH, SRD_W, SRD_W + 3, 63 + tb, SC))
    S(oph2)
    side.append(("ev", "ost"))

    ACC2 = [192, 64]; VG = 48; C1 = 56; PART = 128
    def acc2(s, cb, tb): return vr(ACC2[s] + 4 * (cb * 4 + tb), 4)
    def xf2(p, tb): return ar(32 * p + 4 * tb, 4)
    def wf2(p, cb, half=None):
        b = 32 * p + 16 + 4 * cb
        return ar(b, 4) if half is None else ar(b + 2 * half, 2)
    def dma2(stage, half=False):
        L = [[m0set(0, stage), lda(0)], [lda(1)], [lda(2)], [lda(3)], [m0set(1, stage), ldw(0)], [ldw(1)], [ldw(2)], [ldw(3)]]
        if half:
            ldh = lambda n: "buffer_load_dwordx4 v%d, s[%d:%d], s%d offen offset:%d%s lds" % (P_AH, SRD_A, SRD_A + 3, S_AK, 1024 * n, DSC)
            L = [["s_add_u32 m0, s%d, %d" % (S_M0H, ST2 * stage), ldh(0)], [ldh(1)]] + L[4:]
        L[-1] += ["s_add_u32 s%d, s%d, 2048" % (S_AK, S_AK),
                  "s_add_u32 s%d, s%d, %d" % (S_WK, S_WK, 64 * 2048),
                  "s_add_u32 s%d, s%d, 1" % (S_KT, S_KT),
                  "s_cmp_eq_u32 s%d, s%d" % (S_KT, S_SW),
                  "s_cselect_b32 s%d, s%d, s%d" % (SRD_B, S_B2, SRD_B),
                  "s_cselect_b32 s%d, s%d, s%d" % (SRD_B + 1, S_B2 + 1, SRD_B + 1),
                  "s_cselect_b32 s%d, s%d, s%d" % (SRD_B + 2, S_B2 + 2, SRD_B + 2),
                  "s_cselect_b32 s%d, s%d, s%d" % (S_WK, S_WK0, S_WK),
                  "s_cselect_b32 s%d, s%d, s%d" % (S_AK, S_AK0, S_AK)]
        return L
    def reads2(stage, ks, p, half=False):
        so = stage * ST2
        def xr(tb): return "ds_read_b128 %s, v%d offset:%d" % (xf2(p, tb), P_XRD if tb < 2 else P_XRD2, so + tb * 2048 + ks * 1024)
        def wr(cb, t): return "ds_read_b64_tr_b16 %s, v%d offset:%d" % (wf2(p, cb, t), P_WRD + cb, so + (ks * 32 + 4 * t) * 256)
        R = [xr(0), wr(0, 0), wr(0, 1), xr(1)] + ([] if half else [xr(2), xr(3)])
        for cb in range(1, 4): R += [wr(cb, 0), wr(cb, 1)]
        return R
    V2 = Cnt(63)
    p2 = {"pend": [], "block": None, "events": {}, "done": set(), "bar": -1}
    RATE = O("rate", 100); LAG = O("lag", 3); RADD = O("radd", 0)
    def isvm(x): return x.startswith(("buffer_load", "buffer_store", "buffer_atomic"))
    def out(x):
        if isinstance(x, tuple): V2.tag[x[1]] = V2.n
        else:
            A(x)
            if isvm(x): V2.issue()
    def at(lag, need, fn):
        p2["events"].setdefault(p2["bar"] + lag, []).append((need, fn))
    def spin(lab, reload):
        A("s_mov_b32 s37, 0x40000")
        A.label(lab)
        A("v_cmp_eq_u32 vcc, 1, v%d" % V_PD)
        A("s_nop 0")
        A("s_cmp_eq_u64 vcc, -1")
        A("s_cbranch_scc1 %s_ok" % lab)
        A(reload)
        A("s_sub_u32 s37, s37, 1")
        A("s_waitcnt vmcnt(0)")
        A("s_cbranch_scc0 %s" % lab)
        A.label(lab + "_ok")
    kvpoll = "buffer_load_dword v%d, v%d, s[%d:%d], s%d offen sc1" % (V_PD, V_P4, SRD_W, SRD_W + 3, S_F1)
    opoll = "buffer_load_dword v%d, v%d, s[%d:%d], s%d offen sc1" % (V_PD, P_L4, SRD_W, SRD_W + 3, S_HF)
    def ev_kvst():
        V2.tag["kvst"] = V2.n
        def e2():
            for x in flag_group(45, "s%d" % S_F1): out(x)
            at(1, [], e3)
        def e3():
            out(kvpoll); out(("tag", "kvp")); at(LAG + (1 if PRE and not QPRE else 0), ["kvp"], e4)
        def e4():
            assert "qdone" in p2["done"], "q path not finished before the kv loads"
            spin("L_kvpoll", kvpoll)
            L = []
            for i in range(8):
                L.append(["buffer_load_dwordx4 %s, v%d, s[%d:%d], s%d offen sc1" % (vr(LB + 12 * i, 4), V_KL, SRD_W, SRD_W + 3, S_KVB)])
                L.append(["buffer_load_dwordx4 %s, v%d, s[%d:%d], s%d offen offset:2048 sc1" % (vr(LB + 12 * i + 4, 4), V_KL, SRD_W, SRD_W + 3, S_KVB)])
                L.append(["buffer_load_dwordx4 %s, v%d, s[%d:%d], s%d offen sc1" % (vr(LB + 12 * i + 8, 4), V_ZL, SRD_W, SRD_W + 3, S_KVB),
                          "s_add_u32 s%d, s%d, 9216" % (S_KVB, S_KVB)])
            L[-1].append(("tag", "kvl"))
            p2["pend"] += L
            at(LAG, ["kvl"], lambda: p2["done"].add("kvl"))
        if PRE: at(1, [], e3)
        else: at(LAG, ["kvst"], e2)
    def ev_ost():
        V2.tag["ost"] = V2.n
        def e6():
            for x in flag_group(77, "s47"): out(x)
            at(max(1, NPEEL - 1 - LAG - p2["bar"]), [], e7)
        def e7():
            out(opoll); out(("tag", "op")); at(LAG, ["op"], e8)
        def e8():
            spin("L_opoll", opoll); p2["done"].add("ochk"); print("o check at barrier", p2["bar"], file=sys.stderr)
            for tb in range(4):
                if tb == 2: out("s_lshl_b32 s3, s%d, 8" % S_KH); out("v_subrev_u32 v%d, s3, v%d" % (P_GA, P_GA))
                out("buffer_load_dword v%d, v%d, s[%d:%d], 0 offen offset:%d sc1" % (VG + 2 * tb, P_GA, SRD_W, SRD_W + 3, 64 * tb))
        at(LAG + O("olag", 0), ["ost"], e6)
    EV = {"kvst": ev_kvst, "ost": ev_ost}
    def cost(x): return 2 if x.startswith(TRANS + ("v_mfma",)) else 1
    def side_step(budget):
        while budget > 0 and side and p2["block"] is None:
            x = side[0]
            if isinstance(x, tuple):
                if x[0] in ("bar", "lgkm"): p2["block"] = x[0]; side.pop(0)
                elif x[0] == "ev": side.pop(0); EV[x[1]]()
                elif x[0] == "mark": side.pop(0); p2["done"].add(x[1])
                elif x[0] == "join":
                    if x[1] in p2["done"]: side.pop(0)
                    else: return
                continue
            side.pop(0)
            for y in (x if isinstance(x, list) else [x]):
                out(y); budget -= cost(y)
    def tile2(t):
        stage = t % NS; half = t >= NH; has_next = t + 1 < NT2
        aset = 0 if t < NF1 else 1
        first = t in (0, NF1, NH)
        ntb = 2 if half else 4; NG = 4 * ntb
        for ks in range(2):
            rd = reads2(stage, 1, 1, half) if ks == 0 else (reads2((stage + 1) % NS, 0, 0, t + 1 >= NH) if has_next else [])
            evs = []
            if ks == 1 and has_next:
                assert not p2["pend"]
                evs = p2["events"].pop(t, [])
                vm = V2.wait_for([("D", t + 1)] + [x for need, fn in evs for x in need])
                A("s_waitcnt lgkmcnt(0) vmcnt(%d)" % vm); A("s_barrier")
                p2["bar"] = t
                p2["block"] = None
            else:
                A("s_waitcnt lgkmcnt(0)")
                if p2["block"] == "lgkm": p2["block"] = None
            if ks == 1:
                for need, fn in evs: fn()
                if t + NS < NT2:
                    d = dma2(stage, t + NS >= NH)
                    d[-1] = d[-1] + [("tag", ("D", t + NS))]
                    p2["pend"] += d
            g = 0; k = 0
            for cb in range(4):
                for tb in range(ntb):
                    c = "0" if (first and ks == 0) else acc2(aset, cb, tb)
                    A("v_mfma_f32_16x16x32_bf16 %s, %s, %s, %s" % (acc2(aset, cb, tb), wf2(ks, cb), xf2(ks, tb), c))
                    nr = 1 if len(rd) - k <= NG - g else 2
                    busy = k < len(rd)
                    for _ in range(nr):
                        if k < len(rd): A(rd[k]); k += 1
                    left = (NG - g) + ((8 if t + 1 >= NH else 16) if ks == 1 else 0)
                    if p2["pend"] and (g % (NG // 4) == NG // 4 - 1 or len(p2["pend"]) * (NG // 4) > left + 3):
                        for _ in range(1 + (len(p2["pend"]) > left)):
                            if p2["pend"]:
                                for x in p2["pend"].pop(0): out(x)
                    side_step(p2.get("rate", RATE) + (0 if busy else 1))
                    g += 1
    A("s_mov_b32 s37, 0x40000")
    A("s_waitcnt vmcnt(3)")
    A.label("L_hpoll")
    A("v_cmp_eq_u32 vcc, 1, v%d" % V_PD)
    A("s_nop 0")
    A("s_or_b64 vcc, vcc, s[68:69]")
    A("s_cmp_eq_u64 vcc, -1")
    A("s_cbranch_scc1 L_hpoll_ok")
    A(hld)
    A("s_sub_u32 s37, s37, 1")
    A("s_waitcnt vmcnt(0)")
    A("s_cbranch_scc0 L_hpoll")
    A.label("L_hpoll_ok")
    stamp(); stamp.real()
    def adma(stg):
        return [[m0set(0, stg), lda(0)], [lda(1)], [lda(2)], [lda(3), "s_add_u32 s%d, s%d, 2048" % (S_AK, S_AK), ("tag", ("D", stg))]]
    for stg in range(2):
        for g in adma(stg):
            for x in g: out(x)
    A("s_add_u32 s%d, s%d, s47" % (S_HF, S_HF))
    qexp()
    GX = 80
    for r in range(32): A("v_accvgpr_read_b32 v%d, a%d" % (GX + r, AG + r))
    A("v_mov_b32 v112, 0"); A("v_mov_b32 v113, 0")
    for q in range(8):
        A("v_dot2c_f32_bf16 v112, v%d, v%d" % (GX + 2 * q, GX + 16 + 2 * q))
        A("v_dot2c_f32_bf16 v113, v%d, v%d" % (GX + 2 * q + 1, GX + 16 + 2 * q + 1))
    A("s_lshl_b32 s3, s%d, 8" % S_I)
    A("v_add_u32 v0, s3, v0")
    A("v_lshlrev_b32 v0, 2, v0")
    A("v_add_f32 v112, v112, v113")
    for sh in (8, 4, 2, 1):
        A("v_add_f32_dpp v112, v112, v112 row_ror:%d row_mask:0xf bank_mask:0xf" % sh)
    A("v_mov_b32 v113, v112")
    A("v_permlane16_swap_b32 v112, v113")
    A("v_add_f32 v112, v112, v113")
    A("v_mul_f32 v112, s%d, v112" % S_C)
    A("v_exp_f32 v112, -v112")
    A("v_add_f32 v112, 1.0, v112")
    A("v_rcp_f32 v112, v112")
    A("v_add_u32 v0, %d, v0" % WS_G)
    A("s_waitcnt vmcnt(4)")
    out("buffer_store_dword v112, v0, s[%d:%d], 0 offen sc1" % (SRD_W, SRD_W + 3))
    for x in flag_group(45, "s%d" % S_F1): out(x)
    ev_kvst()
    A("s_barrier")
    for x in reads2(0, 0, 0): A(x)
    stamp(); stamp.real()
    p2["pend"] = adma(2) + adma(3)
    if STAMP == 4: stamp.off = False; stamp(); stamp.off = True
    C2 = 20
    XB16 = O("xb16", 1)
    for t in range(NT2):
        if t == NPEEL:
            assert not side and not p2["events"] and "ochk" in p2["done"], (len(side), p2["events"].keys())
            stamp()
        if t == NF1:
            side.append("s_sub_u32 s3, s%d, %d" % (S_XF, WS_FLG))
            side.append("s_lshl_b32 s3, s3, 7")
            side.append("s_add_u32 s60, s3, %d" % WS_XCH)
            side.append("s_add_u32 s61, s60, 4096")
            side.append("s_xor_b32 s62, s60, 32768" if 0 else "s_xor_b32 s3, s3, 32768")
            side.append("s_add_u32 s62, s3, %d" % WS_XCH)
            side.append("s_add_u32 s63, s62, 4096")
            side.append("s_xor_b32 s64, s%d, 256" % S_XF)
            for tb in range(4): side.append("v_sub_f32 v%d, 1.0, v%d" % (C1 + 2 * tb, VG + 2 * tb))
            side.append(["s_cmp_eq_u32 s%d, 1" % S_KH, "s_cselect_b64 vcc, -1, 0"] +
                        ["v_cndmask_b32 v%d, v%d, v%d, vcc" % (C2 + 2 * tb, C1 + 2 * tb, VG + 2 * tb) for tb in range(4)])
            for cb in range(4):
                for tb in range(4):
                    for r in range(4):
                        a0 = ACC2[0] + 4 * (cb * 4 + tb) + r
                        side.append("v_mul_f32 v%d, v%d, v%d" % (a0, a0, C1 + 2 * tb))
            p2["rate"] = 1
        if t == NH:
            assert not side
            stamp()
            for tbs in ((2, 3), (0, 1)):
                for tb in tbs:
                    for cb in range(4):
                        a0 = ACC2[0] + 4 * (cb * 4 + tb); a1 = ACC2[1] + 4 * (cb * 4 + tb)
                        for u in range(2):
                            A("v_pk_fma_f32 %s, %s, %s, %s op_sel_hi:[1,0,1]" % (vr(a0 + 2 * u, 2), vr(a1 + 2 * u, 2), vr(C2 + 2 * tb, 2), vr(a0 + 2 * u, 2)))
                    if tb >= 2 and XB16:
                        for cb in range(4):
                            a0 = ACC2[0] + 4 * (cb * 4 + tb); d = 160 + 8 * (tb - 2) + 2 * cb
                            A("v_cvt_pk_bf16_f32 v%d, v%d, v%d" % (d, a0, a0 + 1))
                            A("v_cvt_pk_bf16_f32 v%d, v%d, v%d" % (d + 1, a0 + 2, a0 + 3))
                        for q in range(2):
                            out("buffer_store_dwordx4 %s, v%d, s[%d:%d], s60 offen offset:%d sc1" % (vr(160 + 8 * (tb - 2) + 4 * q, 4), P_VL, SRD_W, SRD_W + 3, (tb - 2) * 2048 + q * 1024))
                    elif tb >= 2:
                        for cb in range(4):
                            out("buffer_store_dwordx4 %s, v%d, s[%d:%d], s%d offen offset:%d sc1" % (acc2(0, cb, tb), P_VL, SRD_W, SRD_W + 3, 60 + tb - 2, cb * 1024))
            out(("tag", "xst"))
            xpoll = "buffer_load_dword v%d, v%d, s[%d:%d], s64 offen sc1" % (V_PD, P_Z0, SRD_W, SRD_W + 3)
            def x1():
                for x in flag_group(S_XF, "0"): out(x)
            def x2():
                out(xpoll); out(("tag", "xp"))
            def x3():
                spin("L_xpoll", xpoll)
                if XB16:
                    for q in range(4):
                        out("buffer_load_dwordx4 %s, v%d, s[%d:%d], s62 offen offset:%d sc1" % (vr(176 + 4 * q, 4), P_VL, SRD_W, SRD_W + 3, q * 1024))
                    return
                for tb in range(2):
                    for cb in range(4):
                        out("buffer_load_dwordx4 %s, v%d, s[%d:%d], s%d offen offset:%d sc1" % (vr(PART + 4 * (cb * 4 + tb), 4), P_VL, SRD_W, SRD_W + 3, 62 + tb, cb * 1024))
            XL = O("xlag", 2)
            at(XL, ["xst"], x1)
            p2["events"].setdefault(NT2 - 2 - O("xpl", 2), []).append(([], x2))
            p2["events"].setdefault(NT2 - 2, []).append((["xp"], x3))
        tile2(t)
        if STAMP == 3 and (t % 2 == 1) and t >= 10: stamp.off = False; stamp(); stamp.off = True
        if STAMP == 4 and t < 16: stamp.off = False; stamp(); stamp.off = True
    assert not p2["pend"] and not p2["events"]
    stamp(); stamp.real()
    VO = 49
    A("v_lshlrev_b32 v%d, 11, v%d" % (VO, P_TOK))
    A("v_bfe_u32 v51, v1, 4, 1")
    A("v_lshl_add_u32 v%d, v51, 5, v%d" % (VO, VO))
    A("v_lshrrev_b32 v51, 5, v1")
    A("v_lshl_add_u32 v%d, v51, 4, v%d" % (VO, VO))
    A("s_lshl_b32 s72, s%d, 8" % S_NT)
    A("s_lshl_b32 s3, s%d, 7" % S_WN)
    A("s_add_u32 s72, s72, s3")
    OSC = " sc1" if O("osc1", 1) else ""
    for tb in range(2):
        for cb in range(4):
            a0 = ACC2[0] + 4 * (cb * 4 + tb); a1 = ACC2[1] + 4 * (cb * 4 + tb)
            for u in range(2):
                A("v_pk_fma_f32 %s, %s, %s, %s op_sel_hi:[1,0,1]" % (vr(a0 + 2 * u, 2), vr(a1 + 2 * u, 2), vr(VG + 2 * tb, 2), vr(a0 + 2 * u, 2)))
    for tb in range(2):
        A("s_waitcnt vmcnt(%d)" % ((2 if XB16 else 4) if tb == 0 else 2))
        if XB16:
            for cb in range(4):
                for u in range(2):
                    src = 176 + 8 * tb + 2 * cb + u; pp = PART + 4 * (cb * 4 + tb) + 2 * u
                    A("v_lshlrev_b32 v%d, 16, v%d" % (pp, src))
                    A("v_and_b32 v%d, 0xffff0000, v%d" % (pp + 1, src))
        for cb in range(4):
            a0 = ACC2[0] + 4 * (cb * 4 + tb); pp = PART + 4 * (cb * 4 + tb)
            for u in range(2):
                A("v_pk_add_f32 %s, %s, %s" % (vr(a0 + 2 * u, 2), vr(a0 + 2 * u, 2), vr(pp + 2 * u, 2)))
        for cp in range(2):
            d = 28 + 8 * tb + 4 * cp
            for h in range(2):
                a0 = ACC2[0] + 4 * ((2 * cp + h) * 4 + tb)
                A("v_cvt_pk_bf16_f32 v%d, v%d, v%d" % (d + 2 * h, a0, a0 + 1))
                A("v_cvt_pk_bf16_f32 v%d, v%d, v%d" % (d + 2 * h + 1, a0 + 2, a0 + 3))
        for cp in range(2): doswap(28 + 8 * tb + 4 * cp)
        for cp in range(2):
            d = 28 + 8 * tb + 4 * cp
            A("buffer_store_dwordx4 %s, v%d, s[%d:%d], s72 offen offset:%d%s" % (vr(d, 4), VO, SRD_O, SRD_O + 3, cp * 64, OSC))
        A("s_add_u32 s72, s72, 32768")
    A.label("L_k2_out")
    stamp.finish(S_W, SRD_W, 38, "L_k1_end")
    A.label("L_k1_end")
    A("s_endpgm")
    A.label("L_code_end")
    return name, LDS

A = Asm()
n1, l1 = gen_k1(A)
hdr = ""
hdr += "; @launch grid=(256,1,1) block=(256,1,1) lds=%d\n" % l1
hdr += '.amdgcn_target "amdgcn-amd-amdhsa--gfx950"\n.text\n'
txt = hdr + A.text() + '.section .rodata,"a"\n' + kernel_desc(n1, 512, 256)
open(OUT, "w").write(txt)
```

```python
import sys
from asmlib import *
from asmlib import TRANS, parse

opts = dict(a.split("=") if "=" in a else (a, "1") for a in sys.argv[2:])
OUT = sys.argv[1]
O = lambda k, d: int(opts.get(k, d))
TOUCH = O("touch", 1)
STAMP = O("stamp", 0)
ONLY = O("only", 0)
HSC1 = O("hsc1", 0)
K2MAP = O("k2map", 0)
NH = O("nh", 32)
K2NODMA = O("k2nodma", 0); K2NOMFMA = O("k2nomfma", 0); K2NOLDS = O("k2nolds", 0); K2SEL = opts.get("k2sel", "aw")

MBS = 144 * 1024
WS_G = 0x1200000
WS_KVP = 0x1210000
WS_FLG = 0x1480000
WS_FLGH = 0x1494000
WS_FLGO = 0x1498000
WS_FLG1 = 0x1490000
WS_STAMP = 0x14A0000
WS_XCH = 0x1500000
WS_SIZE = WS_XCH + 128 * 65536
LOG2E = 0x3FB8AA3B
SC = " sc1"
INV = O("inv", 0)
DSC = " sc1" if O("dsc1", 1) else ""

class Cnt:
    def __init__(self, cap): self.n = 0; self.tag = {}; self.cap = cap
    def issue(self, tag=None, k=1):
        self.n += k
        if tag is not None: self.tag[tag] = self.n
    def wait_for(self, tags):
        last = max(self.tag[t] for t in tags)
        return min(self.n - last, self.cap)

class Stamper:
    def __init__(self, A, kidx): self.A = A; self.regs = []; self.k = kidx
    def start(self):
        if STAMP:
            self.A("s_memrealtime s[78:79]"); self.A("s_memtime s[80:81]")
    off = False
    def __call__(self, wait=True):
        if STAMP and not self.off:
            r = 82 + len(self.regs); assert r <= 99; self.regs.append(r)
            self.A("s_memtime s[100:101]")
            self.A("s_waitcnt lgkmcnt(0)")
            self.A("s_mov_b32 s%d, s100" % r)
    def real(self):
        if STAMP and not self.off:
            r = 82 + len(self.regs); assert r <= 99; self.regs.append(-r)
            self.A("s_memrealtime s[100:101]")
            self.A("s_waitcnt lgkmcnt(0)")
            self.A("s_mov_b32 s%d, s100" % r)
    def finish(self, swave, srd, T, endlabel):
        if not STAMP: return
        A = self.A
        A("s_waitcnt vmcnt(0)")
        A("s_memtime s[4:5]"); A("s_memrealtime s[6:7]")
        A("s_waitcnt lgkmcnt(0)")
        A("s_cmp_eq_u32 s%d, 0" % swave); A("s_cbranch_scc0 %s" % endlabel)
        A("s_lshl_b32 s3, s2, 7")
        A("s_add_u32 s3, s3, %d" % WS_STAMP)
        A("v_mov_b32 v%d, 0" % (T + 1))
        items = [(78, None), (6, None), (4, 80)] + [(abs(r), 80 if r > 0 else 78) for r in self.regs]
        if O("dbgstamp", 0):
            A("s_cmp_eq_u32 s2, %d" % O("dbgstamp", 0)); A("s_cbranch_scc0 %s" % endlabel)
            A("s_mov_b32 s3, 0"); srd = 48
            items = [(6, 78), (4, 80)] + items[3:17]
        for q, (s, b) in enumerate(items):
            if b is None: A("v_mov_b32 v%d, s%d" % (T, s))
            else:
                A("s_sub_u32 s5, s%d, s%d" % (s, b)); A("v_mov_b32 v%d, s5" % T)
            A("buffer_store_dword v%d, v%d, s[%d:%d], s3 offen offset:%d" % (T, T + 1, srd, srd + 3, 4 * q))

def mk_srd(A, b, lo, hi, addsgpr, size):
    if addsgpr is None:
        A("s_mov_b32 s%d, s%d" % (b, lo)); A("s_mov_b32 s%d, s%d" % (b + 1, hi))
        A("s_mov_b32 s%d, %d" % (b + 2, size))
    else:
        A("s_add_u32 s%d, s%d, s%d" % (b, lo, addsgpr)); A("s_addc_u32 s%d, s%d, 0" % (b + 1, hi))
        A("s_sub_u32 s%d, %d, s%d" % (b + 2, size, addsgpr))
    A("s_mov_b32 s%d, 0x20000" % (b + 3))


def k2ids(A, mt, nt, kh, xf):
    A("s_and_b32 s%d, s2, 1" % kh)
    if O("swap", 1): A("s_xor_b32 s%d, s%d, 1" % (kh, kh))
    A("s_bfe_u32 s%d, s2, 0x30003" % mt)
    A("s_bfe_u32 s3, s2, 0x10001")
    A("s_lshl_b32 s3, s3, 3")
    A("s_add_u32 s%d, s%d, s3" % (mt, mt))
    A("s_lshr_b32 s%d, s2, 6" % nt)
    A("s_bfe_u32 s3, s2, 0x10002")
    A("s_lshl_b32 s3, s3, 2")
    A("s_add_u32 s%d, s%d, s3" % (nt, nt))
    A("s_lshl_b32 s3, s%d, 3" % mt)
    A("s_add_u32 s3, s3, s%d" % nt)
    A("s_lshl_b32 s3, s3, 1")
    A("s_add_u32 s3, s3, s%d" % kh)
    A("s_lshl_b32 s3, s3, 2")
    A("s_add_u32 s3, s3, s26")
    A("s_lshl_b32 s%d, s3, 6" % xf)
    A("s_add_u32 s%d, s%d, %d" % (xf, xf, WS_FLG))

def gen_k1(A):
    name = "gated_mix__linear_kernel_hedgehog__glu_gated_glu__prompt_kernel"
    kernel_open(A, name)
    BK = 64
    XB = 0; QB = 32768; GB = QB + 64 * 192; UB = GB + 64 * 224 + 128
    STAGE = (UB + 64 * 224 + 255) // 256 * 256
    WPB = 2 * STAGE
    SCR = 131072
    LDS = 163840
    S_I, S_J, S_W, S_CNT, S_XK, S_QK, S_GK, S_TK, S_TSTEP = 24, 25, 26, 27, 28, 29, 30, 31, 37
    S_M0 = 32
    SRD_X, SRD_Q, SRD_G, SRD_W, SRD_T, SRD_P, SRD_D = 8, 12, 16, 20, 68, 72, 48
    S_C = 38
    V_DMA, V_XRD, V_QRD, V_GRD, V_TCH = 2, 20, 24, 28, 30
    T = 32
    NVACC = 208; V_ACC = 48
    A_X = 0; A_WR = 32; RING = 8; A_ACC = 144
    NTB = 4; NCB = 20; D = O("dd", 6)
    BLK = [("q", 1, 0), ("q", 1, 1), ("q", 2, 0), ("q", 2, 1), ("q", 0, 0), ("q", 0, 1)] + [(t, b) for b in range(7) for t in "gu"]
    def accb(cb, tb):
        b = (cb * NTB + tb) * 4
        return ("v", V_ACC + b) if b < NVACC else ("a", A_ACC + b - NVACC)
    def acc(cb, tb):
        f, b = accb(cb, tb); return "%s[%d:%d]" % (f, b, b + 3)
    def xf(p, tb): return ar(A_X + 16 * p + 4 * tb, 4)
    def wf(n, half=None):
        b = A_WR + 4 * (n % RING)
        return ar(b, 4) if half is None else ar(b + 2 * half, 2)
    stamp = Stamper(A, 0)
    VM = Cnt(63)

    A("s_load_dwordx4 s[4:7], s[0:1], 0")
    A("s_load_dwordx4 s[52:55], s[0:1], 40")
    A("s_load_dwordx4 s[56:59], s[0:1], 80")
    A("s_load_dwordx2 s[66:67], s[0:1], 16")
    A("s_load_dwordx4 s[40:43], s[0:1], 56")
    A("s_cmp_ge_u32 s2, 256")
    A("s_cbranch_scc1 L_k1_end")
    stamp.start()
    if STAMP >= 3: stamp.off = True
    if O("ctouch", 1):
        A("s_getpc_b64 s[72:73]")
        A.label("L_pc")
        A("s_mov_b32 s74, L_code_end-L_pc")
        A("s_mov_b32 s75, 0x20000")
        A("s_and_b32 s73, s73, 0xffff")
        A("v_lshrrev_b32 v%d, 6, v0" % T)
        A("v_lshlrev_b32 v%d, 9, v%d" % (T, T))
        A("v_and_b32 v%d, 63, v0" % (T + 1))
        A("v_lshl_add_u32 v%d, v%d, 7, v%d" % (T, T + 1, T))
        A("s_lshr_b32 s3, s2, 3")
        A("s_lshl_b32 s3, s3, 11")
        A("v_cmp_gt_u32 vcc, 4, v%d" % (T + 1))
        A("v_mov_b32 v%d, 0x7ffffff0" % (T + 2))
        A("v_cndmask_b32 v%d, v%d, v%d, vcc" % (T, T + 2, T))
        A("buffer_load_dword v%d, v%d, s[72:75], s3 offen" % (V_TCH + 1, T)); VM.issue()
    A("v_lshrrev_b32 v1, 6, v0")
    A("s_lshr_b32 s%d, s2, 3" % S_I)
    A("s_and_b32 s%d, s%d, 7" % (S_I, S_I))
    A("v_readfirstlane_b32 s%d, v1" % S_W)
    A("s_and_b32 s3, s2, 7")
    A("s_lshl_b32 s3, s3, 2")
    A("s_lshr_b32 s%d, s2, 6" % S_J)
    A("s_add_u32 s%d, s%d, s3" % (S_J, S_J))
    A("v_and_b32 v1, 63, v0")
    A("v_lshrrev_b32 v%d, 3, v1" % T)
    A("v_lshlrev_b32 v%d, 11, v%d" % (T, T))
    A("v_and_b32 v%d, 7, v1" % (T + 1))
    A("v_lshrrev_b32 v%d, 4, v1" % (T + 2))
    A("v_xor_b32 v%d, v%d, v%d" % (T + 1, T + 1, T + 2))
    A("v_lshl_add_u32 v%d, v%d, 4, v%d" % (T, T + 1, T))
    A("s_lshl_b32 s3, s%d, 17" % S_W)
    A("v_add_u32 v%d, s3, v%d" % (T, T))
    A("v_xor_b32 v%d, 64, v%d" % (T + 1, T))
    plan = []
    for n in range(8):
        A("v_add_u32 v%d, %d, v%d" % (V_DMA + n, n * 16384 - 1024 * (n & 3), T + (n & 1)))
        plan.append((V_DMA + n, SRD_X, S_XK, n // 4 if n % 4 == 0 else None, 1024 * (n & 3)))
    for q in range(3): plan.append((V_DMA + 8 + q, SRD_Q, S_QK, 2 if q == 0 else None, 1024 * q))
    for g in range(7): plan.append((V_DMA + 11 + g, SRD_G, S_GK, 3 + g // 4 if g % 4 == 0 else None, 1024 * (g & 3)))
    LD = len(plan)
    A("s_lshl_b32 s%d, s%d, 13" % (S_M0, S_W))
    A("s_add_u32 s%d, s%d, 4096" % (S_M0 + 1, S_M0))
    A("s_mul_i32 s%d, s%d, 3072" % (S_M0 + 2, S_W))
    A("s_add_u32 s%d, s%d, %d" % (S_M0 + 2, S_M0 + 2, QB))
    A("s_and_b32 s3, s%d, 1" % S_W)
    A("s_mul_i32 s3, s3, 7168")
    A("s_cmp_ge_u32 s%d, 2" % S_W)
    A("s_mov_b32 s60, %d" % GB)
    A("s_cselect_b32 s%d, %d, s60" % (S_M0 + 3, UB))
    A("s_add_u32 s%d, s%d, s3" % (S_M0 + 3, S_M0 + 3))
    A("s_add_u32 s%d, s%d, 4096" % (S_M0 + 4, S_M0 + 3))
    for s in (S_XK, S_QK, S_GK): A("s_mov_b32 s%d, 0" % s)
    def dma_list(stage):
        L = []
        for (v, sd, so, m0i, off) in plan:
            g = []
            if m0i is not None:
                g.append("s_mov_b32 m0, s%d" % (S_M0 + m0i) if stage == 0 else "s_add_u32 m0, s%d, %d" % (S_M0 + m0i, STAGE * stage))
            dnt = O("dnt", 0)
            g.append("buffer_load_dwordx4 v%d, s[%d:%d], s%d offen offset:%d%s lds" % (v, sd, sd + 3, so, off, " nt" if (dnt == 1 or (dnt == 2 and sd != SRD_X) or (dnt == 3 and sd == SRD_X)) else ""))
            L.append(g)
        L[-1] += ["s_add_u32 s%d, s%d, %d" % (S_XK, S_XK, BK * 2),
                  "s_add_u32 s%d, s%d, %d" % (S_GK, S_GK, BK * 7168),
                  "s_add_u32 s%d, s%d, %d" % (S_QK, S_QK, BK * 6144)]
        return L
    def emit(groups):
        for g in groups:
            for s in g: A(s)
            VM.issue()
    def rowperm(dst, src, tmp):
        A("v_and_b32 v%d, 0xfffffff3, v%d" % (dst, src))
        A("v_bfe_u32 v%d, v%d, 2, 1" % (tmp, src))
        A("v_lshl_or_b32 v%d, v%d, 3, v%d" % (dst, tmp, dst))
        A("v_bfe_u32 v%d, v%d, 3, 1" % (tmp, src))
        A("v_lshl_or_b32 v%d, v%d, 2, v%d" % (dst, tmp, dst))
    NEARLY = O("nearly", 1); NLATE = O("nlate", 1)
    if TOUCH:
        A("s_lshr_b32 s60, s2, 6")
        A("s_and_b32 s61, s%d, 1" % S_W)
        A("s_lshl_b32 s3, s60, 6")
        A("v_add_u32 v%d, s3, v1" % (T + 4))
        A("v_lshlrev_b32 v%d, 11, v%d" % (T + 4, T + 4))
        A("s_lshl_b32 s3, s61, 7")
        A("v_add_u32 v%d, s3, v%d" % (T + 4, T + 4))
        A("s_lshl_b32 s62, s%d, 4" % S_I)
        A("s_lshl_b32 s3, s61, 3")
        A("s_add_u32 s62, s62, s3")
        A("s_and_b32 s63, s%d, 28" % S_J)
        A("v_mul_u32_u24 v%d, 10923, v1" % (T + 5))
        A("v_lshrrev_b32 v%d, 16, v%d" % (T + 5, T + 5))
        A("v_mul_u32_u24 v%d, 6, v%d" % (T + 6, T + 5))
        A("v_sub_u32 v%d, v1, v%d" % (T + 6, T + 6))
        A("v_add_u32 v%d, s62, v%d" % (T + 5, T + 5))
        A("v_mul_u32_u24 v%d, 6144, v%d" % (T + 5, T + 5))
        A("v_lshrrev_b32 v%d, 1, v%d" % (T + 7, T + 6))
        A("v_lshl_add_u32 v%d, v%d, 11, v%d" % (T + 5, T + 7, T + 5))
        A("v_and_b32 v%d, 1, v%d" % (T + 6, T + 6))
        A("v_lshl_add_u32 v%d, v%d, 7, v%d" % (T + 5, T + 6, T + 5))
        A("s_lshl_b32 s3, s63, 6")
        A("v_add_u32 v%d, s3, v%d" % (T + 5, T + 5))
        A("v_mov_b32 v%d, 0x7ffffff0" % (T + 9))
        A("v_cmp_gt_u32 vcc, 48, v1")
        A("v_cndmask_b32 v%d, v%d, v%d, vcc" % (T + 5, T + 9, T + 5))
        A("v_mul_u32_u24 v%d, 9363, v1" % (T + 6))
        A("v_lshrrev_b32 v%d, 16, v%d" % (T + 6, T + 6))
        A("v_mul_u32_u24 v%d, 7, v%d" % (T + 7, T + 6))
        A("v_sub_u32 v%d, v1, v%d" % (T + 7, T + 7))
        A("v_add_u32 v%d, s62, v%d" % (T + 6, T + 6))
        A("v_mul_u32_u24 v%d, 7168, v%d" % (T + 6, T + 6))
        A("v_lshl_add_u32 v%d, v%d, 7, v%d" % (T + 6, T + 7, T + 6))
        A("s_mul_i32 s3, s63, 224")
        A("v_add_u32 v%d, s3, v%d" % (T + 6, T + 6))
        A("v_cmp_gt_u32 vcc, 56, v1")
        A("v_cndmask_b32 v%d, v%d, v%d, vcc" % (T + 6, T + 9, T + 6))
        A("s_and_b32 s3, s2, 63")
        A("s_lshl_b32 s3, s3, 1")
        A("s_add_u32 s3, s3, s61")
        A("s_lshl_b32 s3, s3, 13")
        A("v_lshlrev_b32 v%d, 7, v1" % (T + 7))
        A("v_add_u32 v%d, s3, v%d" % (T + 7, T + 7))
    A("s_waitcnt lgkmcnt(0)")
    A("s_lshl_b32 s64, s%d, 19" % S_I)
    mk_srd(A, SRD_X, 4, 5, 64, 2048 * 2048)
    if TOUCH:
        def sel(cond_sgpr, val, voff, lo, hi, size, step, start):
            A("s_cmp_eq_u32 s%d, %d" % (cond_sgpr, val))
            A("s_cselect_b64 vcc, -1, 0")
            A("s_cselect_b32 s%d, s%d, s%d" % (SRD_T, lo, SRD_T))
            A("s_cselect_b32 s%d, s%d, s%d" % (SRD_T + 1, hi, SRD_T + 1))
            A("s_cselect_b32 s%d, %d, s%d" % (SRD_T + 2, size, SRD_T + 2))
            A("s_cselect_b32 s%d, %d, s%d" % (S_TSTEP, step, S_TSTEP))
            A("s_cselect_b32 s%d, %d, s%d" % (S_TK, start, S_TK))
            A("v_cndmask_b32 v%d, v%d, v%d, vcc" % (V_TCH, V_TCH, voff))
        A("s_mov_b32 s%d, s6" % SRD_T); A("s_mov_b32 s%d, s7" % (SRD_T + 1))
        A("s_mov_b32 s%d, %d" % (SRD_T + 2, 1024 * 6144)); A("s_mov_b32 s%d, 0x20000" % (SRD_T + 3))
        A("s_mov_b32 s%d, %d" % (S_TSTEP, 128 * 6144))
        A("s_mov_b32 s%d, %d" % (S_TK, 0 if NEARLY else 128 * 6144))
        A("v_mov_b32 v%d, v%d" % (V_TCH, T + 5))
        sel(60, 1, T + 6, 52, 53, 1024 * 7168, 128 * 7168, 0 if NEARLY else 128 * 7168)
        sel(60, 2, T + 6, 54, 55, 1024 * 7168, 128 * 7168, 0 if NEARLY else 128 * 7168)
        sel(60, 3, T + 7, 40, 41, 3584 * 2048, 1 << 20, (1 << 32) - (NEARLY << 20) if NEARLY else 0)
        A("s_lshr_b32 s61, s%d, 1" % S_W)
        sel(61, 0, T + 4, SRD_X, SRD_X + 1, 256 * 2048, 256, 0 if NEARLY else 256)
        def touch():
            ld = "buffer_load_dword v%d, v%d, s[%d:%d], s%d offen" % (V_TCH + 1, V_TCH, SRD_T, SRD_T + 3, S_TK)
            if O("tnt", 0) == 1:
                l1 = A.newlabel("L_t"); l2 = A.newlabel("L_t")
                return ["s_cmp_eq_u32 s%d, %d" % (S_TSTEP, 1 << 20), "s_cbranch_scc1 %s" % l1, ld, "s_branch %s" % l2, l1 + ":", ld + " nt", l2 + ":",
                        "s_add_u32 s%d, s%d, s%d" % (S_TK, S_TK, S_TSTEP)]
            return [ld + (" nt" if O("tnt", 0) == 2 else ""), "s_add_u32 s%d, s%d, s%d" % (S_TK, S_TK, S_TSTEP)]
        emit([touch() for _ in range(NEARLY)])
    D0 = dma_list(0)
    emit(D0[0:8])
    A("s_and_b32 s3, s%d, 1" % S_W)
    A("s_mul_i32 s3, s3, 448")
    A("s_and_b32 s65, s%d, 1" % S_J)
    A("s_lshl_b32 s65, s65, 1")
    for g in range(7):
        A("v_add_u32 v%d, s3, v1" % T)
        if g: A("v_add_u32 v%d, %d, v%d" % (T, 64 * g, T))
        A("v_mul_u32_u24 v%d, 4682, v%d" % (T + 1, T))
        A("v_lshrrev_b32 v%d, 16, v%d" % (T + 1, T + 1))
        A("v_mul_u32_u24 v%d, 14, v%d" % (T + 2, T + 1))
        A("v_sub_u32 v%d, v%d, v%d" % (T + 2, T, T + 2))
        A("v_add_u32 v%d, s65, v%d" % (T + 2, T + 2))
        A("v_subrev_u32 v%d, 14, v%d" % (T + 3, T + 2))
        A("v_min_u32 v%d, v%d, v%d" % (T + 2, T + 2, T + 3))
        rowperm(T + 4, T + 1, T + 3)
        A("v_mul_u32_u24 v%d, 7168, v%d" % (T + 1, T + 4))
        A("v_lshl_add_u32 v%d, v%d, 4, v%d" % (T + 1, T + 2, T + 1))
        A("v_subrev_u32 v%d, %d, v%d" % (V_DMA + 11 + g, 1024 * (g & 3), T + 1))
    A("s_cmp_ge_u32 s%d, 2" % S_W)
    A("s_cselect_b32 s60, s54, s52")
    A("s_cselect_b32 s61, s55, s53")
    A("s_mul_i32 s3, s%d, 224" % S_J)
    mk_srd(A, SRD_G, 60, 61, 3, 1024 * 7168)
    emit([g[:2] if len(g) > 2 and not g[0].startswith("buffer") else g[:1] if g[0].startswith("buffer") else g for g in D0[11:18]])
    A("s_mul_i32 s3, s%d, 192" % S_W)
    for q in range(3):
        A("v_add_u32 v%d, s3, v1" % T)
        if q: A("v_add_u32 v%d, %d, v%d" % (T, 64 * q, T))
        A("v_mul_u32_u24 v%d, 5462, v%d" % (T + 1, T))
        A("v_lshrrev_b32 v%d, 16, v%d" % (T + 1, T + 1))
        A("v_mul_u32_u24 v%d, 12, v%d" % (T + 2, T + 1))
        A("v_sub_u32 v%d, v%d, v%d" % (T + 2, T, T + 2))
        A("v_bfe_u32 v%d, v%d, 2, 1" % (T + 3, T + 1))
        A("v_lshlrev_b32 v%d, 1, v%d" % (T + 3, T + 3))
        A("v_xor_b32 v%d, v%d, v%d" % (T + 2, T + 2, T + 3))
        rowperm(T + 4, T + 1, T + 3)
        A("v_mul_u32_u24 v%d, 6144, v%d" % (T + 1, T + 4))
        A("v_lshrrev_b32 v%d, 2, v%d" % (T + 3, T + 2))
        A("v_lshlrev_b32 v%d, 11, v%d" % (T + 3, T + 3))
        A("v_and_b32 v%d, 3, v%d" % (T + 2, T + 2))
        A("v_lshlrev_b32 v%d, 4, v%d" % (T + 2, T + 2))
        A("v_add3_u32 v%d, v%d, v%d, v%d" % (T + 1, T + 1, T + 2, T + 3))
        A("v_subrev_u32 v%d, %d, v%d" % (V_DMA + 8 + q, 1024 * q, T + 1))
    A("s_lshl_b32 s3, s%d, 6" % S_J)
    mk_srd(A, SRD_Q, 6, 7, 3, 1024 * 6144)
    emit(D0[8:11])
    for s in D0[17][1:]: A(s)
    mk_srd(A, SRD_W, 58, 59, None, WS_SIZE)
    S_F1 = 44
    A("s_lshl_b32 s%d, s%d, 7" % (S_F1, S_J))
    A("s_add_u32 s%d, s%d, %d" % (S_F1, S_F1, WS_FLG1))
    A("s_lshl_b32 s3, s%d, 2" % S_I)
    A("s_add_u32 s3, s3, s%d" % S_W)
    A("s_lshl_b32 s45, s3, 2")
    A("s_lshr_b32 s3, s3, 1")
    A("s_lshl_b32 s3, s3, 5")
    A("s_add_u32 s3, s3, s%d" % S_J)
    A("s_lshl_b32 s3, s3, 1")
    A("s_and_b32 s60, s%d, 1" % S_W)
    A("s_add_u32 s3, s3, s60")
    A("s_lshl_b32 s3, s3, 2")
    A("s_add_u32 s77, s3, %d" % WS_FLGH)
    k2ids(A, 61, 62, 63, 64)
    A("s_add_u32 s3, s%d, s45" % S_F1)
    A("v_mov_b32 v%d, s3" % T)
    A("v_writelane_b32 v%d, s77, 1" % T)
    A("s_add_u32 s3, s77, %d" % (WS_FLGO - WS_FLGH))
    A("v_writelane_b32 v%d, s3, 2" % T)
    A("v_writelane_b32 v%d, s64, 3" % T)
    A("v_mov_b32 v%d, 0" % (T + 1))
    A("buffer_store_dword v%d, v%d, s[%d:%d], 0 offen sc1" % (T + 1, T, SRD_W, SRD_W + 3)); VM.issue()
    VM.tag["g"] = VM.n
    EARLY = O("early", 0)
    D1 = dma_list(1)
    emit(D1[:EARLY])
    A("s_lshl_b32 s3, s%d, 11" % S_J)
    mk_srd(A, SRD_P, 66, 67, 3, 65536)
    A("s_and_b32 s3, s%d, 1" % S_W)
    A("s_lshl_b32 s47, s3, 10")
    A("v_lshl_add_u32 v%d, v1, 4, s47" % (T + 3))
    late = D1[EARLY:] + [["s_add_u32 m0, s47, %d" % WPB, "buffer_load_dwordx4 v%d, s[%d:%d], 0 offen lds" % (T + 3, SRD_P, SRD_P + 3)]]
    mk_srd(A, SRD_D, 56, 57, None, 256)
    if TOUCH: late += [touch() for _ in range(NLATE)]
    A("s_load_dwordx2 s[4:5], s[0:1], 24")
    A("s_load_dwordx2 s[56:57], s[0:1], 72")
    A("v_and_b32 v%d, 15, v1" % (T + 4))
    A("v_lshlrev_b32 v%d, 7, v%d" % (T + 4, T + 4))
    A("s_lshl_b32 s3, s%d, 13" % S_W)
    A("v_add_u32 v%d, s3, v%d" % (T + 4, T + 4))
    A("v_bfe_u32 v%d, v1, 1, 3" % (T + 5))
    A("v_lshrrev_b32 v%d, 4, v1" % (T + 6))
    for ks in range(2):
        A("v_or_b32 v%d, %d, v%d" % (T + 7, ks * 4, T + 6))
        A("v_xor_b32 v%d, v%d, v%d" % (T + 7, T + 7, T + 5))
        A("v_lshl_add_u32 v%d, v%d, 4, v%d" % (V_XRD + ks, T + 7, T + 4))
        A("v_add_u32 v%d, %d, v%d" % (V_XRD + 2 + ks, STAGE, V_XRD + ks))
    A("v_bfe_u32 v%d, v1, 2, 2" % (T + 4))
    A("v_and_b32 v%d, 3, v1" % (T + 5))
    A("v_bfe_u32 v%d, v1, 4, 1" % (T + 7))
    A("v_lshrrev_b32 v%d, 5, v1" % (T + 8))
    A("v_lshl_add_u32 v%d, v%d, 4, v%d" % (T + 4, T + 8, T + 4))
    A("v_lshl_add_u32 v%d, v%d, 2, v%d" % (T + 4, T + 7, T + 4))
    A("v_lshlrev_b32 v%d, 3, v%d" % (T + 5, T + 5))
    A("v_mul_u32_u24 v%d, 192, v%d" % (T + 9, T + 4))
    A("v_add_u32 v%d, v%d, v%d" % (T + 9, T + 9, T + 5))
    for h in range(2):
        A("v_xor_b32 v%d, %d, v%d" % (T + 8, h, T + 7))
        A("v_lshl_add_u32 v%d, v%d, 5, v%d" % (T + 8, T + 8, T + 9))
        for st in range(2): A("v_add_u32 v%d, %d, v%d" % (V_QRD + st * 2 + h, QB + STAGE * st, T + 8))
    A("v_mul_u32_u24 v%d, 224, v%d" % (T + 9, T + 4))
    A("v_add_u32 v%d, v%d, v%d" % (T + 8, T + 9, T + 5))
    for st in range(2): A("v_add_u32 v%d, %d, v%d" % (V_GRD + st, GB + STAGE * st, T + 8))
    A("s_mov_b32 s%d, 0x%x" % (S_C, LOG2E)); A("s_mov_b32 s%d, 0x%x" % (S_C + 1, LOG2E))
    stamp(False)
    A("s_waitcnt vmcnt(%d) lgkmcnt(0)" % VM.wait_for(["g"]))
    A("s_barrier")
    def xread(stage, ks, p, tb):
        return "ds_read_b128 %s, v%d offset:%d" % (xf(p, tb), V_XRD + 2 * stage + ks, tb * 2048)
    def wread(stage, ks, cb, n, t):
        b = BLK[cb]
        if b[0] == "q":
            return "ds_read_b64_tr_b16 %s, v%d offset:%d" % (wf(n, t), V_QRD + stage * 2 + b[2], (ks * 32 + t * 8) * 192 + b[1] * 64)
        return "ds_read_b64_tr_b16 %s, v%d offset:%d" % (wf(n, t), V_GRD + stage, (ks * 32 + t * 8) * 224 + b[1] * 32 + (UB - GB if b[0] == "u" else 0))
    Q = Cnt(15)
    for tb in range(NTB):
        A(xread(0, 0, 0, tb)); Q.issue(("x", 0, tb))
    for n in range(D):
        for t in range(2):
            A(wread(0, 0, n, n, t)); Q.issue(("w", n))
    A("s_lshl_b32 s3, s%d, 3" % S_J)
    A("s_add_u32 s3, s3, s%d" % S_I)
    A("s_cmp_eq_u32 s%d, 0" % S_W)
    A("s_cselect_b32 s3, s3, 0x1000")
    A("v_mov_b32 v%d, s3" % (T + 5))
    A("v_mov_b32 v%d, 1" % (T + 6))
    bytest = "buffer_store_byte v%d, v%d, s[%d:%d], 0 offen sc1" % (T + 6, T + 5, SRD_D, SRD_D + 3)
    NPRO = 1 + (NLATE if TOUCH else 0)
    if STAMP: stamp(); stamp.real()


    NS = 4; ST2 = 16384; AB = 65536
    TH = O("th", 8)
    NH = (72 - TH) // 2; NF1 = 56 - NH; NT2 = NH + TH
    NPEEL = NF1 - 4
    S_MT, S_NT, S_KH, S_XF = 52, 53, 54, 55
    S_AK, S_WK, S_KT, S_SW, S_WK0, S_M0H, S_AK0 = 28, 29, 30, 31, 34, 35, 36
    SRD_A, SRD_B, SRD_O = 8, 12, 16
    S_B2 = 72; S_WM, S_WN = 42, 43; S_HF = 70
    P_DMA, P_XRD, P_WRD, P_TOK, P_GA, P_VL, P_Z0, P_L4 = 2, 10, 11, 15, 16, 17, 18, 19
    P_XRD2, P_AH = 3, 5
    def groups(B, n=2):
        L = []; i = 0
        while i < len(B.lines):
            k = n
            while i + k < len(B.lines) and ("s_addc" in B.lines[i + k] or "s_cselect" in B.lines[i + k] or "s_cselect" in "".join(B.lines[i + k + 1:i + k + 2])): k += 1
            L.append([x.strip() for x in B.lines[i:i + k]]); i += k
        return L
    def m0set(i, stage):
        return "s_add_u32 m0, s%d, %d" % (S_M0 + i, ST2 * stage) if stage else "s_mov_b32 m0, s%d" % (S_M0 + i)
    def lda(n): return "buffer_load_dwordx4 v%d, s[%d:%d], s%d offen offset:%d%s lds" % (P_DMA + (n & 2), SRD_A, SRD_A + 3, S_AK, 1024 * n, DSC)
    def ldw(n): return "buffer_load_dwordx4 v%d, s[%d:%d], s%d offen offset:%d lds" % (P_DMA + 4 + n, SRD_B, SRD_B + 3, S_WK, 1024 * n)
    def wotouch():
        B = Asm()
        mk_srd(B, 72, 4, 5, None, 1024 * 2048)
        B("s_lshr_b32 s3, s2, 3")
        B("s_lshl_b32 s3, s3, 2")
        B("s_add_u32 s3, s3, s%d" % S_W)
        B("s_lshl_b32 s3, s3, 14")
        B("s_bfe_u32 s6, s2, 0x10002")
        B("s_lshl_b32 s6, s6, 10")
        B("s_add_u32 s3, s3, s6")
        B("v_lshrrev_b32 v32, 3, v1")
        B("v_lshlrev_b32 v32, 11, v32")
        B("v_and_b32 v33, 7, v1")
        B("v_lshl_add_u32 v32, v33, 7, v32")
        B("buffer_load_dword v33, v32, s[72:75], s3 offen" + (" nt" if O("tnt", 0) else ""))
        return groups(B, 3)
    AG = 96
    def gloads():
        B = Asm()
        mk_srd(B, 72, 42, 43, None, 2048)
        B("v_and_b32 v34, 31, v1")
        B("v_lshlrev_b32 v34, 6, v34")
        B("v_lshrrev_b32 v35, 5, v1")
        B("s_lshl_b32 s3, s%d, 6" % S_W)
        B("s_lshl_b32 s6, s%d, 1" % S_J)
        B("s_add_u32 s3, s3, s6")
        B("v_add_u32 v30, s3, v35")
        B("v_lshl_add_u32 v35, v30, 11, v34")
        L = groups(B, 3)
        for q in range(4):
            L.append(["buffer_load_dwordx4 %s, v35, s[%d:%d], 0 offen offset:%d" % (ar(AG + 4 * q, 4), SRD_X, SRD_X + 3, 16 * q)])
            L.append(["buffer_load_dwordx4 %s, v34, s[72:75], 0 offen offset:%d" % (ar(AG + 16 + 4 * q, 4), 16 * q)])
        return L
    def wsetup():
        B = Asm()
        k2ids(B, S_MT, S_NT, S_KH, S_XF)
        B("v_lshrrev_b32 v32, 4, v1")
        B("v_and_b32 v33, 15, v1")
        B("v_lshlrev_b32 v34, 1, v32")
        B("v_xor_b32 v33, v33, v34")
        B("s_lshl_b32 s3, s%d, 4" % S_W)
        B("v_add_u32 v32, s3, v32")
        B("v_lshlrev_b32 v32, 11, v32")
        B("v_lshl_add_u32 v32, v33, 4, v32")
        B("v_xor_b32 v33, 128, v32")
        for n in range(4):
            B("v_add_u32 v%d, %d, v%d" % (P_DMA + 4 + n, n * 4 * 2048 - 1024 * n, 32 + (n >> 1)))
        B("s_lshl_b32 s%d, s%d, 12" % (S_M0 + 1, S_W))
        B("s_add_u32 s%d, s%d, %d" % (S_M0, S_M0 + 1, AB))
        B("s_mul_i32 s3, s%d, %d" % (S_KH, NH * 64 * 2048))
        B("s_lshl_b32 s6, s%d, 8" % S_NT)
        B("s_add_u32 s3, s3, s6")
        B("s_add_u32 s%d, s40, s3\ns_addc_u32 s%d, s41, 0" % (SRD_B, SRD_B + 1))
        B("s_sub_u32 s%d, %d, s3" % (SRD_B + 2, 3584 * 2048))
        B("s_mov_b32 s%d, 0" % S_WK)
        return groups(B, 3)
    def wdma():
        L = []
        for stg in range(NS):
            for n in range(4):
                g = ([m0set(1, stg)] if n == 0 else []) + [ldw(n)]
                if n == 3: g.append("s_add_u32 s%d, s%d, %d" % (S_WK, S_WK, 64 * 2048))
                L.append(g)
        return L
    def rest():
        B = Asm()
        B("s_mov_b32 s47, %d" % (WS_FLGO - WS_FLGH))
        B("s_lshl_b32 s6, s%d, 8" % S_NT)
        B("s_add_u32 s%d, s4, s6\ns_addc_u32 s%d, s5, 0" % (S_B2, S_B2 + 1))
        B("s_sub_u32 s%d, %d, s6" % (S_B2 + 2, 1024 * 2048))
        B("v_lshlrev_b32 v%d, 4, v1" % P_VL)
        B("s_mul_i32 s3, s%d, %d" % (S_W, 2 * MBS))
        B("v_add_u32 v%d, s3, v%d" % (P_DMA, P_VL))
        B("v_add_u32 v%d, %d, v%d" % (P_DMA + 2, MBS - 2048, P_DMA))
        B("s_mov_b32 s%d, 0" % S_AK); B("s_mov_b32 s%d, %d" % (S_KT, NS))
        jh = (64 * NH - 1) // 112; jf = 64 * NH // 112
        full = (1 << 64) - 1
        ih = full ^ ((1 << (2 * jh + 2)) - 1); if_ = (1 << (2 * jf)) - 1
        B("s_mov_b32 s68, 0x%x" % (if_ & 0xffffffff)); B("s_mov_b32 s69, 0x%x" % (if_ >> 32))
        B("s_cmp_eq_u32 s%d, 0" % S_KH)
        B("s_cselect_b32 s%d, %d, %d" % (S_SW, NH, NF1))
        B("s_cselect_b32 s%d, %d, 0" % (S_WK0, (16 - TH) * 64 * 2048))
        B("s_mov_b32 s%d, %d" % (S_AK0, NF1 * 2048))
        B("s_cselect_b32 s%d, %d, s%d" % (S_AK0, (72 - TH) * 2048, S_AK0))
        B("s_cselect_b32 s68, 0x%x, s68" % (ih & 0xffffffff)); B("s_cselect_b32 s69, 0x%x, s69" % (ih >> 32))
        B("s_mul_i32 s3, s%d, %d" % (S_MT, 8 * MBS))
        B("s_mul_i32 s6, s%d, %d" % (S_KH, NH * 2048))
        B("s_add_u32 s3, s3, s6")
        mk_srd(B, SRD_A, 58, 59, 3, 128 * MBS)
        mk_srd(B, SRD_O, 56, 57, None, 2048 * 2048)
        B("s_lshr_b32 s%d, s%d, 1" % (S_WM, S_W)); B("s_and_b32 s%d, s%d, 1" % (S_WN, S_W))
        B("s_lshl_b32 s6, s%d, 7" % S_MT)
        B("s_lshl_b32 s3, s%d, 6" % S_WM)
        B("s_add_u32 s6, s6, s3")
        B("s_lshl_b32 s3, s%d, 5" % S_KH)
        B("s_add_u32 s6, s6, s3")
        B("v_and_b32 v32, 15, v1")
        B("v_add_u32 v%d, s6, v32" % P_TOK)
        B("v_lshlrev_b32 v%d, 2, v%d" % (P_GA, P_TOK))
        B("v_add_u32 v%d, %d, v%d" % (P_GA, WS_G, P_GA))
        B("s_lshl_b32 s3, s%d, 13" % S_WM)
        B("s_add_u32 s3, s3, %d" % AB)
        B("s_lshl_b32 s6, s%d, 12" % S_KH)
        B("s_add_u32 s%d, s3, s6" % S_M0H)
        B("v_add_u32 v%d, s%d, v%d" % (P_XRD, S_M0H, P_VL))
        B("s_sub_u32 s3, s3, s6")
        B("v_add_u32 v%d, s3, v%d" % (P_XRD2, P_VL))
        B("s_lshl_b32 s3, s%d, 11" % S_WN)
        B("s_add_u32 s%d, s%d, s3" % (S_M0H, S_M0H))
        B("s_sub_u32 s3, s%d, %d" % (S_M0H, AB))
        B("s_mul_i32 s3, s3, %d" % (MBS // 2048))
        B("v_add_u32 v%d, s3, v%d" % (P_AH, P_VL))
        B("v_lshrrev_b32 v34, 4, v1")
        B("v_bfe_u32 v32, v1, 2, 2")
        B("v_lshl_add_u32 v33, v34, 3, v32")
        B("v_lshlrev_b32 v33, 8, v33")
        B("v_and_b32 v35, 3, v1")
        B("v_lshl_add_u32 v33, v35, 3, v33")
        B("v_bfe_u32 v35, v1, 4, 1")
        B("v_lshl_add_u32 v32, v35, 2, v32")
        B("s_lshl_b32 s3, s%d, 2" % S_WN)
        for cb in range(4):
            B("s_add_u32 s6, s3, %d" % cb)
            B("v_xor_b32 v35, s6, v32")
            B("v_lshl_add_u32 v%d, v35, 5, v33" % (P_WRD + cb))
        B("v_mov_b32 v%d, 0" % P_Z0)
        B("v_lshlrev_b32 v%d, 2, v1" % P_L4)
        B("s_lshl_b32 s%d, s%d, 8" % (S_HF, S_MT))
        B("s_add_u32 s%d, s%d, %d" % (S_HF, S_HF, WS_FLGH))
        B("s_mov_b32 s46, 0x01010101")
        return groups(B, 3)

    st = {"pend": late}
    PB = 40 - D
    DSP = O("dsp", 1); DPOS = O("dpos", 2); DMARG = O("dmarg", 12)
    def tile(stage, first, dma_next, has_next, vm_extra, do_touch, extra=None, after=None):
        if extra: st["pend"] = st["pend"] + extra
        for n in range(40):
            ks, cb = divmod(n, 20)
            pre = []
            if n == PB and has_next:
                assert not st["pend"]
                pre += ["s_waitcnt lgkmcnt(0) vmcnt(%d)" % vm_extra, "s_barrier"]
                if first: pre.append(bytest)
                if dma_next: st["pend"] = dma_list(stage)
                if do_touch: st["pend"].append(touch())
                if after: st["pend"] = st["pend"] + after
            need_tags = [("w", n)] + ([("x", ks, tb) for tb in range(NTB)] if cb == 0 else [])
            if not (n == PB and has_next):
                pre.append("s_waitcnt lgkmcnt(%d)" % Q.wait_for(need_tags))
            rds = []
            def addw(m):
                if m < 40:
                    k2, c2 = divmod(m, 20)
                    for t in range(2): rds.append((wread(stage, k2, c2, m, t), ("w", m)))
                elif has_next:
                    for t in range(2): rds.append((wread(stage ^ 1, 0, m - 40, m, t), ("w", m - 40)))
            if n == PB - 2: addw(n + D); addw(n + D + 1)
            elif n == PB - 1: pass
            else: addw(n + D)
            if ks == 0 and cb in (4, 7, 10, 13):
                tb = (cb - 4) // 3
                rds.append((xread(stage, 1, 1, tb), ("x", 1, tb)))
            if has_next and n >= PB and n < PB + 4:
                tb = n - PB
                rds.append((xread(stage ^ 1, 0, 0, tb), ("x", 0, tb)))
            for s in pre: A(s)
            k = 0
            for tb in range(NTB):
                a, b = wf(n), xf(ks, tb)
                if BLK[cb][0] == "q" and BLK[cb][1] == 2: a, b = b, a
                c = "0" if (first and ks == 0) else acc(cb, tb)
                A("v_mfma_f32_16x16x32_bf16 %s, %s, %s, %s" % (acc(cb, tb), a, b, c))
                if k < len(rds):
                    A(rds[k][0]); Q.issue(rds[k][1]); k += 1
                if tb == 3:
                    while k < len(rds):
                        A(rds[k][0]); Q.issue(rds[k][1]); k += 1
                if tb == DPOS and st["pend"]:
                    left = (PB - n - 1) % 40 + 1 - DMARG
                    if DSP == 1 or (n % DSP == 0) or len(st["pend"]) * DSP >= left:
                        for s in st["pend"].pop(0): A(s)
    assert 40 % RING == 0 and D + 2 <= RING
    nt = 1 if TOUCH else 0
    tile(0, True, True, True, NPRO, False)
    A("s_mov_b32 s%d, 0" % S_CNT)
    A.label("L_k1_loop")
    if STAMP == 2:
        A("s_memtime s[100:101]"); A("s_waitcnt lgkmcnt(0)"); A("s_sub_u32 s100, s100, s80")
        A("s_mov_b32 m0, s%d" % S_CNT); A("s_nop 0"); A("v_writelane_b32 v47, s100, m0")
        A("s_add_u32 m0, s%d, 0" % (S_M0 + 1))
    tile(1, False, True, True, 0, TOUCH)
    tile(0, False, True, True, nt, False)
    A("s_add_u32 s%d, s%d, 1" % (S_CNT, S_CNT))
    A("s_cmp_lt_u32 s%d, 6" % S_CNT)
    A("s_cbranch_scc1 L_k1_loop")
    if STAMP == 2:
        for q in range(6):
            r = 82 + len(stamp.regs); stamp.regs.append(r)
            A("v_readlane_b32 s%d, v47, %d" % (r, q)); A("s_nop 1"); A("s_add_u32 s%d, s%d, s80" % (r, r))
        stamp()
        stamp.off = True
    tile(1, False, True, True, 10, False, [touch()] + gloads() + wotouch())
    tile(0, False, False, True, 0, False, wsetup(), wdma())
    tile(1, False, False, False, 0, False, rest())
    assert not st["pend"]
    stamp(); stamp.real()

    E = 2
    def pk(op, d, a, b, c=None, mods=""):
        if c is None: A("%s %s, %s, %s %s" % (op, d, a, b, mods))
        else: A("%s %s, %s, %s, %s %s" % (op, d, a, b, c, mods))
    def rsag2(op, qa, opb, qb):
        seqs = []
        for (o, q) in ((op, qa), (opb, qb)):
            seqs.append([
                "v_permlane32_swap_b32 v%d, v%d" % (q[0], q[1]),
                "v_permlane32_swap_b32 v%d, v%d" % (q[2], q[3]),
                "%s v%d, v%d, v%d" % (o, q[0], q[0], q[1]),
                "%s v%d, v%d, v%d" % (o, q[2], q[2], q[3]),
                "v_permlane16_swap_b32 v%d, v%d" % (q[0], q[2]),
                "%s v%d, v%d, v%d" % (o, q[0], q[0], q[2]),
                "v_mov_b32 v%d, v%d" % (q[2], q[0]),
                "v_permlane16_swap_b32 v%d, v%d" % (q[0], q[2]),
                "v_mov_b32 v%d, v%d" % (q[1], q[0]),
                "v_mov_b32 v%d, v%d" % (q[3], q[2]),
                "v_permlane32_swap_b32 v%d, v%d" % (q[0], q[1]),
                "v_permlane32_swap_b32 v%d, v%d" % (q[2], q[3])])
        for x, y in zip(*seqs):
            A(x); A(y)
    MX = [232, 234, 236, 238]; MN = [240, 242, 244, 246]; PB16 = 20; WP = 176
    def feature(cb0):
        for tb in range(NTB):
            for h in range(2):
                f, b = accb(cb0 + h, tb); assert f == "v"
                A("v_cvt_pk_bf16_f32 v%d, v%d, v%d" % (PB16 + 4 * tb + 2 * h, b, b + 1))
                A("v_cvt_pk_bf16_f32 v%d, v%d, v%d" % (PB16 + 4 * tb + 2 * h + 1, b + 2, b + 3))
        for tb in range(NTB):
            for fb in range(2):
                A("v_mfma_f32_16x16x32_bf16 %s, %s, %s, 0" % (acc(cb0 + fb, tb), vr(WP + 4 * fb, 4), vr(PB16 + 4 * tb, 4)))
    def feature2(cb0):
        for tb in range(NTB):
            p0 = accb(cb0, tb)[1]; p1 = accb(cb0 + 1, tb)[1]
            for step in range(4):
                for (op3, op2, d) in (("v_max3_f32", "v_max_f32", MX[tb]), ("v_min3_f32", "v_min_f32", MN[tb])):
                    if step == 0: A("%s v%d, v%d, v%d, v%d" % (op3, d, p0, p0 + 1, p0 + 2))
                    if step == 1: A("%s v%d, v%d, v%d, v%d" % (op3, d, d, p0 + 3, p1))
                    if step == 2: A("%s v%d, v%d, v%d, v%d" % (op3, d, d, p1 + 1, p1 + 2))
                    if step == 3: A("%s v%d, v%d, v%d" % (op2, d, d, p1 + 3))
        rsag2("v_max_f32", MX, "v_min_f32", MN)
        for b in MX + MN: A("v_mul_f32 v%d, s%d, v%d" % (b, S_C, b))
    def exps(cb0, tb, EM):
        for h in range(2):
            p = accb(cb0 + h, tb)[1]
            for u in range(2):
                pk("v_pk_fma_f32", vr(EM + 4 * h + 2 * u, 2), vr(p + 2 * u, 2), sr(S_C, 2), vr(MN[tb], 2),
                   "op_sel_hi:[1,1,0] neg_lo:[1,0,0] neg_hi:[1,0,0]")
                pk("v_pk_fma_f32", vr(p + 2 * u, 2), vr(p + 2 * u, 2), sr(S_C, 2), vr(MX[tb], 2),
                   "op_sel_hi:[1,1,0] neg_lo:[0,0,1] neg_hi:[0,0,1]")
        for h in range(2):
            p = accb(cb0 + h, tb)[1]
            for r in range(4):
                A("v_exp_f32 v%d, v%d" % (p + r, p + r))
                A("v_exp_f32 v%d, v%d" % (EM + 4 * h + r, EM + 4 * h + r))
    VH = 36; VS = 37
    A("v_mov_b32 v0, v30")
    A("v_and_b32 v%d, 15, v1" % VH)
    A("v_lshlrev_b32 v%d, 4, v%d" % (VH, VH))
    A("v_lshrrev_b32 v38, 5, v1")
    A("v_lshl_add_u32 v%d, v38, 8, v%d" % (VH, VH))
    A("v_bfe_u32 v38, v1, 4, 1")
    A("v_mul_u32_u24 v%d, %d, v38" % (VS, MBS))
    A("v_add_u32 v%d, v%d, v%d" % (VS, VS, VH))
    A("v_lshl_add_u32 v%d, v38, 9, v%d" % (VH, VH))
    A("s_lshl_b32 s3, s%d, 4" % S_I)
    A("s_lshl_b32 s62, s%d, 2" % S_W)
    A("s_add_u32 s62, s62, s3")
    A("s_mul_i32 s62, s62, %d" % MBS)
    A("s_mul_i32 s3, s%d, 7" % S_J)
    A("s_add_u32 s3, s3, 1")
    A("s_lshr_b32 s3, s3, 1")
    A("s_lshl_b32 s3, s3, 10")
    A("s_add_u32 s63, s62, s3")
    for tb in range(1, 4): A("s_add_u32 s%d, s63, %d" % (63 + tb, tb * MBS))
    A("s_add_u32 s67, s63, 3072")
    A("s_sub_u32 s3, s63, 512")
    A("s_bitcmp1_b32 s%d, 0" % S_J)
    A("s_cselect_b32 s67, s3, s67")
    A("s_add_u32 s76, s67, %d" % (2 * MBS))
    FREEV = [accb(6, 0)[1] + 4 * i for i in range(16)]
    def glu(fb, fi):
        gs, us = [], []
        for tb in range(4):
            out = []
            for cb in (6 + 2 * fb, 7 + 2 * fb):
                f, b = accb(cb, tb)
                if f == "a":
                    d = FREEV[fi]; fi += 1
                    for r in range(4): A("v_accvgpr_read_b32 v%d, a%d" % (d + r, b + r))
                    b = d
                out.append(b)
            gs.append(out[0]); us.append(out[1])
        for tb in range(4):
            for u in range(2): pk("v_pk_mul_f32", vr(gs[tb] + 2 * u, 2), vr(gs[tb] + 2 * u, 2), sr(S_C, 2))
        for tb in range(4):
            for r in range(4): A("v_exp_f32 v%d, -v%d" % (gs[tb] + r, gs[tb] + r))
        for tb in range(4):
            for u in range(2): pk("v_pk_add_f32", vr(gs[tb] + 2 * u, 2), vr(gs[tb] + 2 * u, 2), "1.0", None, "op_sel_hi:[1,0]")
        for tb in range(4):
            for r in range(4): A("v_rcp_f32 v%d, v%d" % (gs[tb] + r, gs[tb] + r))
        for tb in range(4):
            for u in range(2): pk("v_pk_mul_f32", vr(gs[tb] + 2 * u, 2), vr(gs[tb] + 2 * u, 2), vr(us[tb] + 2 * u, 2))
        return gs, us
    def packswap(dst, a, b):
        for (d, x) in ((dst, a), (dst + 2, b)):
            A("v_cvt_pk_bf16_f32 v%d, v%d, v%d" % (d, x, x + 1))
            A("v_cvt_pk_bf16_f32 v%d, v%d, v%d" % (d + 1, x + 2, x + 3))
    def doswap(d):
        A("v_permlane16_swap_b32 v%d, v%d" % (d, d + 2))
        A("v_permlane16_swap_b32 v%d, v%d" % (d + 1, d + 3))
    def glu_pair(p, D4):
        g0, u0 = glu(2 * p, 0)
        g1, u1 = glu(2 * p + 1, 8)
        for tb in range(4): packswap(D4[tb], g0[tb], g1[tb])
        for tb in range(4): doswap(D4[tb])
        return ["buffer_store_dwordx4 %s, v%d, s[%d:%d], s%d offen offset:%d%s" % (vr(D4[tb], 4), VH, SRD_W, SRD_W + 3, 63 + tb, p * 1024, SC) for tb in range(4)]
    def capture(fn):
        start = len(A.lines)
        r = fn()
        body = [x.strip() for x in A.lines[start:]]; del A.lines[start:]
        return body, r
    def spread(fn, stores, every):
        body, r = capture(fn)
        k = 0
        for n, ln in enumerate(body):
            if n % every == 0 and k < len(stores):
                A(stores[k]); k += 1
            A(ln)
        for x in stores[k:]: A(x)
        return r
    PKA = [PB16 + 4 * i for i in range(4)]
    PKB = [accb(10, 0)[1] + 4 * i for i in range(4)]
    PK1 = [accb(11, 0)[1] + 4 * i for i in range(4)]
    st0 = glu_pair(0, PKA)
    st1 = spread(lambda: glu_pair(1, PK1), st0, 30)
    st2 = spread(lambda: glu_pair(2, PKA), st1, 40)
    def last():
        g6, u6 = glu(6, 0)
        for tp in range(2): packswap(PKB[tp], g6[2 * tp], g6[2 * tp + 1])
        for tp in range(2): doswap(PKB[tp])
    spread(last, st2, 25)
    for tp in range(2):
        A("buffer_store_dwordx4 %s, v%d, s[%d:%d], s%d offen%s" % (vr(PKB[tp], 4), VS, SRD_W, SRD_W + 3, 67 if tp == 0 else 76, SC))
    stamp()
    def flag_group(saddr, soff):
        return ["v_mov_b32 v38, s%d" % saddr, "v_mov_b32 v39, 1", "s_mov_b64 exec, 1",
                "buffer_store_dword v39, v38, s[%d:%d], %s offen sc1" % (SRD_W, SRD_W + 3, soff), "s_mov_b64 exec, -1"]
    A("v_bfe_u32 v224, v1, 2, 2")
    A("v_lshrrev_b32 v225, 4, v1")
    A("v_and_b32 v226, 3, v1")
    A("v_lshl_add_u32 v227, v225, 2, v224")
    A("v_lshlrev_b32 v228, 6, v227")
    A("v_lshl_add_u32 v228, v226, 3, v228")
    A("v_add_u32 v228, %d, v228" % WPB)
    for fb in range(2):
        for t in range(2):
            A("ds_read_b64_tr_b16 %s, v228 offset:%d" % (vr(WP + 4 * fb + 2 * t, 2), fb * 32 + t * 1024))
    A("s_waitcnt lgkmcnt(0)")
    A("s_barrier")
    dbgld = "buffer_load_dword v47, v%d, s[%d:%d], 0 offen sc1" % (P_L4, SRD_D, SRD_D + 3)
    A(dbgld)
    feature(0)
    SP = [248, 250, 252, 254]; SM = [200, 202, 204, 206]
    VB = accb(2, 0)[1]
    assert accb(3, 0)[1] == VB + 16
    for db in range(2):
        for tb in range(4):
            s = VB + db * 16 + tb * 4
            d = VB + db * 8 + tb * 2
            A("v_cvt_pk_bf16_f32 v%d, v%d, v%d" % (d, s, s + 1))
            A("v_cvt_pk_bf16_f32 v%d, v%d, v%d" % (d + 1, s + 2, s + 3))
    feature2(0)
    A("s_lshl_b32 s61, s%d, 13" % S_W)
    A("s_add_u32 s61, s61, %d" % SCR)
    VPW = 192; VPR = 196
    A("v_and_b32 v229, 15, v1")
    A("v_lshlrev_b32 v229, 7, v229")
    A("v_xor_b32 v230, v225, v226")
    A("v_lshl_add_u32 v229, v230, 3, v229")
    A("v_add_u32 v229, s61, v229")
    for q in range(4):
        A("v_xor_b32 v230, %d, v224" % q)
        A("v_lshl_add_u32 v%d, v230, 5, v229" % (VPW + q))
    A("v_lshlrev_b32 v229, 7, v227")
    A("v_xor_b32 v230, v226, v224")
    A("v_lshl_add_u32 v229, v230, 3, v229")
    A("v_add_u32 v229, s61, v229")
    for q in range(4):
        A("v_xor_b32 v230, %d, v225" % q)
        A("v_lshl_add_u32 v%d, v230, 5, v229" % (VPR + q))
    EMR = [PB16, PB16 + 8, VB + 16, VB + 24]
    for tb in range(4):
        exps(0, tb, EMR[tb])
    t0 = 144
    for tb in range(4):
        p0 = accb(0, tb)[1]; p1 = accb(1, tb)[1]; e = EMR[tb]
        pk("v_pk_add_f32", vr(t0, 2), vr(p0, 2), vr(p0 + 2, 2))
        pk("v_pk_add_f32", vr(t0 + 2, 2), vr(e, 2), vr(e + 2, 2))
        pk("v_pk_add_f32", vr(t0, 2), vr(t0, 2), vr(p1, 2))
        pk("v_pk_add_f32", vr(t0 + 2, 2), vr(t0 + 2, 2), vr(e + 4, 2))
        pk("v_pk_add_f32", vr(t0, 2), vr(t0, 2), vr(p1 + 2, 2))
        pk("v_pk_add_f32", vr(t0 + 2, 2), vr(t0 + 2, 2), vr(e + 6, 2))
        A("v_add_f32 v%d, v%d, v%d" % (SP[tb], t0, t0 + 1))
        A("v_add_f32 v%d, v%d, v%d" % (SM[tb], t0 + 2, t0 + 3))
    rsag2("v_add_f32", SP, "v_add_f32", SM)
    for i in SP + SM: A("v_rcp_f32 v%d, v%d" % (i, i))
    HPOS = O("hpos", 0)
    def hflag():
        A("s_waitcnt vmcnt(0)")
        for x in flag_group(77, "0"): A(x)
    if HPOS == 0: hflag()
    for tb in range(4):
        srcs = [(accb(0, tb)[1], SP), (accb(1, tb)[1], SP), (EMR[tb], SM), (EMR[tb] + 4, SM)]
        for q, (p, sc) in enumerate(srcs):
            for u in range(2):
                pk("v_pk_mul_f32", vr(p + 2 * u, 2), vr(p + 2 * u, 2), vr(sc[tb], 2), None, "op_sel_hi:[1,0]")
        for q, (p, sc) in enumerate(srcs):
            A("v_cvt_pk_bf16_f32 v%d, v%d, v%d" % (p, p, p + 1))
            A("v_cvt_pk_bf16_f32 v%d, v%d, v%d" % (p + 1, p + 2, p + 3))
        for q, (p, sc) in enumerate(srcs):
            A("ds_write_b64 v%d, %s offset:%d" % (VPW + q, vr(p, 2), tb * 2048))
    if HPOS == 1: hflag()
    A("s_mov_b32 s37, 0x40000")
    A.label("L_dpoll")
    A("v_cmp_eq_u32 vcc, s46, v47")
    A("s_nop 0")
    A("s_cmp_eq_u64 vcc, -1")
    A("s_cbranch_scc1 L_dpoll_ok")
    A(dbgld)
    A("s_sub_u32 s37, s37, 1")
    A("s_waitcnt vmcnt(0)")
    A("s_cbranch_scc0 L_dpoll")
    A.label("L_dpoll_ok")
    V_RW, V_RR, V_ZS, V_ZL, V_KS, V_KL, V_PD, V_P4 = 40, 41, 42, 43, 44, 45, 46, 47
    A("v_add_u32 v%d, s61, v%d" % (V_RW, P_VL))
    A("s_lshl_b32 s3, s%d, 11" % S_W)
    A("v_add_u32 v%d, s3, v%d" % (V_KS, P_VL))
    A("v_add_u32 v%d, %d, v%d" % (V_RR, SCR, V_KS))
    A("v_lshl_add_u32 v230, v225, 2, v226")
    A("v_lshlrev_b32 v%d, 4, v230" % V_ZL)
    A("v_add_u32 v%d, 8192, v%d" % (V_ZL, V_ZL))
    ZRED = AB + 3 * ST2
    A("s_lshl_b32 s3, s%d, 10" % S_W)
    A("s_add_u32 s3, s3, %d" % ZRED)
    A("v_add_u32 v%d, s3, v%d" % (V_ZS, P_VL))
    A("v_add_u32 v229, %d, v%d" % (ZRED, P_VL))
    A("s_lshr_b32 s3, s%d, 1" % S_W)
    A("s_lshl_b32 s3, s3, 12")
    A("s_and_b32 s6, s%d, 1" % S_W)
    A("s_lshl_b32 s6, s6, 10")
    A("s_add_u32 s3, s3, s6")
    A("v_add_u32 v%d, s3, v%d" % (V_KL, P_VL))
    A("v_and_b32 v%d, 124, v%d" % (V_P4, P_L4))
    S_KVB = 60
    A("s_lshl_b32 s3, s%d, 3" % S_J)
    A("s_mul_i32 s%d, s3, 9216" % S_KVB)
    A("s_add_u32 s%d, s%d, %d" % (S_KVB, S_KVB, WS_KVP))
    A("s_mul_i32 s3, s%d, 9216" % S_I)
    A("s_add_u32 s61, s%d, s3" % S_KVB)
    A("s_add_u32 s3, s%d, 112" % S_J)
    A("s_lshl_b32 s3, s3, 10")
    A("s_add_u32 s63, s62, s3")
    for tb in range(1, 4): A("s_add_u32 s%d, s63, %d" % (63 + tb, tb * MBS))
    A("s_mov_b32 s67, 0x358637bd")
    A("s_waitcnt lgkmcnt(0)")
    APH = 64
    for fblk in range(4):
        for ks in range(2):
            for t in range(2):
                A("ds_read_b64_tr_b16 %s, v%d offset:%d" % (ar(APH + 8 * fblk + 4 * ks + 2 * t, 2), VPR + fblk, (32 * ks + 16 * t) * 128))
    A("v_mov_b32 v231, 0x3f803f80")
    for fblk in range(4):
        A("v_cmp_eq_u32 vcc, %d, v226" % fblk)
        for r in range(4):
            A("v_cndmask_b32 v%d, 0, v231, vcc" % (PB16 + 4 * fblk + r))
    stamp()

    KV = accb(0, 0)[1]; ZB = VB + 16; QE = 144; LB = 48
    side = []
    import re
    def unpack(x):
        if not x.startswith("v_pk_") or not O("unpack", 0): return [x]
        if O("unpack", 0) == 2 and not re.search(r"op_sel:\[[01,]*1", x): return [x]
        I = parse(x); n = len(I.ops) - 1
        def arr(name, dflt):
            m = re.search(name + r":\[([01,]+)\]", I.mods)
            return [int(c) for c in m.group(1).split(",")] if m else [dflt] * n
        sel = [arr("op_sel", 0), arr("op_sel_hi", 1)]; neg = [arr("neg_lo", 0), arr("neg_hi", 0)]
        def half(o, h):
            m = re.match(r"([vs])\[(\d+):\d+\]", o)
            return "%s%d" % (m.group(1), int(m.group(2)) + h) if m else o
        op = I.op.replace("v_pk_", "v_")
        res = []
        for h in range(2):
            src = [("-" if neg[h][k] else "") + half(I.ops[1 + k], sel[h][k]) for k in range(n)]
            if n == 2 and not src[1].startswith("v"): src = src[::-1]
            res.append("%s %s, %s" % (op, half(I.ops[0], h), ", ".join(src)))
        return res
    def S(fn):
        for x in capture(fn)[0]: side.extend(unpack(x))
    def kvm():
        for fblk in range(4):
            for ks in range(2):
                for db in range(2):
                    d = vr(KV + 8 * fblk + 4 * db, 4)
                    A("v_mfma_f32_16x16x32_bf16 %s, %s, %s, %s" % (d, ar(APH + 8 * fblk + 4 * ks, 4), vr(VB + db * 8 + ks * 4, 4), "0" if ks == 0 else d))
                A("v_mfma_f32_16x16x32_bf16 %s, %s, %s, %s" % (vr(ZB, 4), ar(APH + 8 * fblk + 4 * ks, 4), vr(PB16 + 4 * fblk, 4), "0" if (ks == 0 and fblk == 0) else vr(ZB, 4)))
        for b in range(8):
            A("ds_write_b128 v%d, %s offset:%d" % (V_RW, vr(KV + 4 * b, 4), b * 1024))
        A("ds_write_b128 v%d, %s" % (V_ZS, vr(ZB, 4)))
    PRE = 1
    hld = "buffer_load_dword v%d, v%d, s[%d:%d], s%d offen sc1" % (V_PD, P_L4, SRD_W, SRD_W + 3, S_HF)
    A("s_waitcnt lgkmcnt(0)")
    kvm(); feature(4)
    A("s_waitcnt lgkmcnt(0)"); A("s_barrier")
    A(hld)
    def redr():
        for w in range(4):
            A("ds_read_b128 %s, v%d offset:%d" % (vr(KV + 8 * w, 4), V_RR, w * 8192))
            A("ds_read_b128 %s, v%d offset:%d" % (vr(KV + 8 * w + 4, 4), V_RR, w * 8192 + 1024))
            A("ds_read_b128 %s, v229 offset:%d" % (vr(VB + 4 * w, 4), w * 1024))
    if PRE:
        redr(); feature2(4); A("s_waitcnt lgkmcnt(0)")
    else:
        S(redr)
        S(lambda: feature2(4))
        side.append(("lgkm",))
    def reda():
        for w in range(1, 4):
            for u in range(4): pk("v_pk_add_f32", vr(KV + 2 * u, 2), vr(KV + 2 * u, 2), vr(KV + 8 * w + 2 * u, 2))
            for u in range(2): pk("v_pk_add_f32", vr(VB + 2 * u, 2), vr(VB + 2 * u, 2), vr(VB + 4 * w + 2 * u, 2))
        A("buffer_store_dwordx4 %s, v%d, s[%d:%d], s61 offen sc1" % (vr(VB, 4), V_ZL, SRD_W, SRD_W + 3))
        A("buffer_store_dwordx4 %s, v%d, s[%d:%d], s61 offen sc1" % (vr(KV, 4), V_KS, SRD_W, SRD_W + 3))
        A("buffer_store_dwordx4 %s, v%d, s[%d:%d], s61 offen offset:1024 sc1" % (vr(KV + 4, 4), V_KS, SRD_W, SRD_W + 3))
    if PRE: reda(); stamp()
    else:
        S(reda)
        side.append(("ev", "kvst"))
    def qexp():
        for half in range(2):
            for tb in (2 * half, 2 * half + 1):
                exps(4, tb, PB16 + 8 * (tb & 1))
            for tb in (2 * half, 2 * half + 1):
                e = PB16 + 8 * (tb & 1)
                for h in range(2):
                    p = accb(4 + h, tb)[1]
                    A("v_cvt_pk_bf16_f32 v%d, v%d, v%d" % (QE + 8 * tb + 2 * h, p, p + 1))
                    A("v_cvt_pk_bf16_f32 v%d, v%d, v%d" % (QE + 8 * tb + 2 * h + 1, p + 2, p + 3))
                    A("v_cvt_pk_bf16_f32 v%d, v%d, v%d" % (QE + 8 * tb + 4 + 2 * h, e + 4 * h, e + 4 * h + 1))
                    A("v_cvt_pk_bf16_f32 v%d, v%d, v%d" % (QE + 8 * tb + 4 + 2 * h + 1, e + 4 * h + 2, e + 4 * h + 3))
    QPRE = 1
    side.append(("mark", "qdone"))
    side.append(("join", "kvl"))
    AF = LB + 12; ZQ = 64; KF = 80; AUX = 96
    def oph1():
        for i in range(1, 8):
            for u in range(6): pk("v_pk_add_f32", vr(LB + 2 * u, 2), vr(LB + 2 * u, 2), vr(LB + 12 * i + 2 * u, 2))
        for h in range(2):
            A("v_cvt_pk_bf16_f32 v%d, v%d, v%d" % (AF + 2 * h, LB + 4 * h, LB + 4 * h + 1))
            A("v_cvt_pk_bf16_f32 v%d, v%d, v%d" % (AF + 2 * h + 1, LB + 4 * h + 2, LB + 4 * h + 3))
        A("s_lshl_b32 s3, s%d, 10" % S_W)
        A("v_add_u32 v%d, %d, v%d" % (V_RR, SCR, P_VL))
        A("v_add_u32 v%d, s3, v%d" % (V_RW, V_RR))
        A("ds_write_b128 v%d, %s" % (V_RW, vr(AF, 4)))
        for fblk in range(4):
            for r in range(4):
                A("v_mov_b32_dpp v%d, v%d quad_perm:[%d,%d,%d,%d] row_mask:0xf bank_mask:0xf" % (ZQ + 4 * fblk + r, LB + 8 + r, fblk, fblk, fblk, fblk))
        for fblk in range(4):
            A("v_cvt_pk_bf16_f32 v%d, v%d, v%d" % (AUX + 2 * fblk, ZQ + 4 * fblk, ZQ + 4 * fblk + 1))
            A("v_cvt_pk_bf16_f32 v%d, v%d, v%d" % (AUX + 2 * fblk + 1, ZQ + 4 * fblk + 2, ZQ + 4 * fblk + 3))
        A("v_and_b32 v%d, 3, v1" % ZQ)
        A("v_mov_b32 v%d, 0x3f803f80" % (ZQ + 1))
    S(oph1)
    side.append(["v_cmp_eq_u32 vcc, 1, v%d" % ZQ, "v_cndmask_b32 v%d, 0, v%d, vcc" % (ZQ + 1, ZQ + 1)])
    side.append(["v_cmp_eq_u32 vcc, 0, v%d" % ZQ] + ["v_cndmask_b32 v%d, v%d, v%d, vcc" % (AUX + r, ZQ + 1, AUX + r) for r in range(8)])
    side.append(("bar",))
    S(lambda: [A("ds_read_b128 %s, v%d offset:%d" % (vr(KF + 4 * q, 4), V_RR, q * 1024)) for q in range(4)])
    NN = [48, 64, 104, 120]; NA = [136, 20, 28, 176]
    def auxm():
        for tb in range(4):
            for s in range(2):
                A("v_mfma_f32_16x16x32_bf16 %s, %s, %s, 0" % (vr(NA[tb] + 4 * s, 4), vr(AUX + 4 * s, 4), vr(QE + 8 * tb + 4 * s, 4)))
        for x in NA:
            A("v_rcp_f32 v%d, v%d" % (x + 1, x + 1))
            A("v_rcp_f32 v%d, v%d" % (x + 5, x + 5))
        for x in NA: A("v_fma_f32 v%d, v%d, v%d, s67" % (x + 2, x, x + 1))
        for x in NA: A("v_fma_f32 v%d, v%d, v%d, v%d" % (x + 2, x + 4, x + 5, x + 2))
        for x in NA: A("v_rcp_f32 v%d, v%d" % (x + 2, x + 2))
        for x in NA:
            A("v_mul_f32 v%d, v%d, v%d" % (x, x + 1, x + 2))
            A("v_mul_f32 v%d, v%d, v%d" % (x + 4, x + 5, x + 2))
    S(auxm)
    side.append(("lgkm",))
    def oph2():
        for tb in range(4):
            for s in range(2):
                for db in range(2):
                    A("v_mfma_f32_16x16x32_bf16 %s, %s, %s, 0" % (vr(NN[tb] + 8 * s + 4 * db, 4), vr(KF + 8 * s + 4 * db, 4), vr(QE + 8 * tb + 4 * s, 4)))
        for n, x in zip(NN, NA):
            for u in range(4):
                pk("v_pk_mul_f32", vr(n + 2 * u, 2), vr(n + 2 * u, 2), vr(x, 2), None, "op_sel_hi:[1,0]")
            for u in range(4):
                pk("v_pk_fma_f32", vr(n + 2 * u, 2), vr(n + 8 + 2 * u, 2), vr(x + 4, 2), vr(n + 2 * u, 2), "op_sel_hi:[1,0,1]")
            for u in range(4):
                A("v_cvt_pk_bf16_f32 v%d, v%d, v%d" % (n + 8 + u, n + 2 * u, n + 2 * u + 1))
        for n in NN: doswap(n + 8)
        for tb, n in enumerate(NN):
            A("buffer_store_dwordx4 %s, v%d, s[%d:%d], s%d offen%s" % (vr(n + 8, 4), VH, SRD_W, SRD_W + 3, 63 + tb, SC))
    S(oph2)
    side.append(("ev", "ost"))

    ACC2 = [192, 64]; VG = 48; C1 = 56; PART = 128
    def acc2(s, cb, tb): return vr(ACC2[s] + 4 * (cb * 4 + tb), 4)
    def xf2(p, tb): return ar(32 * p + 4 * tb, 4)
    def wf2(p, cb, half=None):
        b = 32 * p + 16 + 4 * cb
        return ar(b, 4) if half is None else ar(b + 2 * half, 2)
    def dma2(stage, half=False):
        L = [[m0set(0, stage), lda(0)], [lda(1)], [lda(2)], [lda(3)], [m0set(1, stage), ldw(0)], [ldw(1)], [ldw(2)], [ldw(3)]]
        if half:
            ldh = lambda n: "buffer_load_dwordx4 v%d, s[%d:%d], s%d offen offset:%d%s lds" % (P_AH, SRD_A, SRD_A + 3, S_AK, 1024 * n, DSC)
            L = [["s_add_u32 m0, s%d, %d" % (S_M0H, ST2 * stage), ldh(0)], [ldh(1)]] + L[4:]
        L[-1] += ["s_add_u32 s%d, s%d, 2048" % (S_AK, S_AK),
                  "s_add_u32 s%d, s%d, %d" % (S_WK, S_WK, 64 * 2048),
                  "s_add_u32 s%d, s%d, 1" % (S_KT, S_KT),
                  "s_cmp_eq_u32 s%d, s%d" % (S_KT, S_SW),
                  "s_cselect_b32 s%d, s%d, s%d" % (SRD_B, S_B2, SRD_B),
                  "s_cselect_b32 s%d, s%d, s%d" % (SRD_B + 1, S_B2 + 1, SRD_B + 1),
                  "s_cselect_b32 s%d, s%d, s%d" % (SRD_B + 2, S_B2 + 2, SRD_B + 2),
                  "s_cselect_b32 s%d, s%d, s%d" % (S_WK, S_WK0, S_WK),
                  "s_cselect_b32 s%d, s%d, s%d" % (S_AK, S_AK0, S_AK)]
        return L
    def reads2(stage, ks, p, half=False):
        so = stage * ST2
        def xr(tb): return "ds_read_b128 %s, v%d offset:%d" % (xf2(p, tb), P_XRD if tb < 2 else P_XRD2, so + tb * 2048 + ks * 1024)
        def wr(cb, t): return "ds_read_b64_tr_b16 %s, v%d offset:%d" % (wf2(p, cb, t), P_WRD + cb, so + (ks * 32 + 4 * t) * 256)
        R = [xr(0), wr(0, 0), wr(0, 1), xr(1)] + ([] if half else [xr(2), xr(3)])
        for cb in range(1, 4): R += [wr(cb, 0), wr(cb, 1)]
        return R
    V2 = Cnt(63)
    p2 = {"pend": [], "block": None, "events": {}, "done": set(), "bar": -1}
    RATE = O("rate", 100); LAG = O("lag", 3); RADD = O("radd", 0)
    def isvm(x): return x.startswith(("buffer_load", "buffer_store", "buffer_atomic"))
    def out(x):
        if isinstance(x, tuple): V2.tag[x[1]] = V2.n
        else:
            A(x)
            if isvm(x): V2.issue()
    def at(lag, need, fn):
        p2["events"].setdefault(p2["bar"] + lag, []).append((need, fn))
    def spin(lab, reload):
        A("s_mov_b32 s37, 0x40000")
        A.label(lab)
        A("v_cmp_eq_u32 vcc, 1, v%d" % V_PD)
        A("s_nop 0")
        A("s_cmp_eq_u64 vcc, -1")
        A("s_cbranch_scc1 %s_ok" % lab)
        A(reload)
        A("s_sub_u32 s37, s37, 1")
        A("s_waitcnt vmcnt(0)")
        A("s_cbranch_scc0 %s" % lab)
        A.label(lab + "_ok")
    kvpoll = "buffer_load_dword v%d, v%d, s[%d:%d], s%d offen sc1" % (V_PD, V_P4, SRD_W, SRD_W + 3, S_F1)
    opoll = "buffer_load_dword v%d, v%d, s[%d:%d], s%d offen sc1" % (V_PD, P_L4, SRD_W, SRD_W + 3, S_HF)
    def ev_kvst():
        V2.tag["kvst"] = V2.n
        def e2():
            for x in flag_group(45, "s%d" % S_F1): out(x)
            at(1, [], e3)
        def e3():
            out(kvpoll); out(("tag", "kvp")); at(LAG + (1 if PRE and not QPRE else 0), ["kvp"], e4)
        def e4():
            assert "qdone" in p2["done"], "q path not finished before the kv loads"
            spin("L_kvpoll", kvpoll)
            L = []
            for i in range(8):
                L.append(["buffer_load_dwordx4 %s, v%d, s[%d:%d], s%d offen sc1" % (vr(LB + 12 * i, 4), V_KL, SRD_W, SRD_W + 3, S_KVB)])
                L.append(["buffer_load_dwordx4 %s, v%d, s[%d:%d], s%d offen offset:2048 sc1" % (vr(LB + 12 * i + 4, 4), V_KL, SRD_W, SRD_W + 3, S_KVB)])
                L.append(["buffer_load_dwordx4 %s, v%d, s[%d:%d], s%d offen sc1" % (vr(LB + 12 * i + 8, 4), V_ZL, SRD_W, SRD_W + 3, S_KVB),
                          "s_add_u32 s%d, s%d, 9216" % (S_KVB, S_KVB)])
            L[-1].append(("tag", "kvl"))
            p2["pend"] += L
            at(LAG, ["kvl"], lambda: p2["done"].add("kvl"))
        if PRE: at(1, [], e3)
        else: at(LAG, ["kvst"], e2)
    def ev_ost():
        V2.tag["ost"] = V2.n
        def e6():
            for x in flag_group(77, "s47"): out(x)
            at(max(1, NPEEL - 1 - LAG - p2["bar"]), [], e7)
        def e7():
            out(opoll); out(("tag", "op")); at(LAG, ["op"], e8)
        def e8():
            spin("L_opoll", opoll); p2["done"].add("ochk"); print("o check at barrier", p2["bar"], file=sys.stderr)
            for tb in range(4):
                if tb == 2: out("s_lshl_b32 s3, s%d, 8" % S_KH); out("v_subrev_u32 v%d, s3, v%d" % (P_GA, P_GA))
                out("buffer_load_dword v%d, v%d, s[%d:%d], 0 offen offset:%d sc1" % (VG + 2 * tb, P_GA, SRD_W, SRD_W + 3, 64 * tb))
        at(LAG + O("olag", 0), ["ost"], e6)
    EV = {"kvst": ev_kvst, "ost": ev_ost}
    def cost(x): return 2 if x.startswith(TRANS + ("v_mfma",)) else 1
    def side_step(budget):
        while budget > 0 and side and p2["block"] is None:
            x = side[0]
            if isinstance(x, tuple):
                if x[0] in ("bar", "lgkm"): p2["block"] = x[0]; side.pop(0)
                elif x[0] == "ev": side.pop(0); EV[x[1]]()
                elif x[0] == "mark": side.pop(0); p2["done"].add(x[1])
                elif x[0] == "join":
                    if x[1] in p2["done"]: side.pop(0)
                    else: return
                continue
            side.pop(0)
            for y in (x if isinstance(x, list) else [x]):
                out(y); budget -= cost(y)
    def tile2(t):
        stage = t % NS; half = t >= NH; has_next = t + 1 < NT2
        aset = 0 if t < NF1 else 1
        first = t in (0, NF1, NH)
        ntb = 2 if half else 4; NG = 4 * ntb
        for ks in range(2):
            rd = reads2(stage, 1, 1, half) if ks == 0 else (reads2((stage + 1) % NS, 0, 0, t + 1 >= NH) if has_next else [])
            evs = []
            if ks == 1 and has_next:
                assert not p2["pend"]
                evs = p2["events"].pop(t, [])
                vm = V2.wait_for([("D", t + 1)] + [x for need, fn in evs for x in need])
                A("s_waitcnt lgkmcnt(0) vmcnt(%d)" % vm); A("s_barrier")
                p2["bar"] = t
                p2["block"] = None
            else:
                A("s_waitcnt lgkmcnt(0)")
                if p2["block"] == "lgkm": p2["block"] = None
            if ks == 1:
                for need, fn in evs: fn()
                if t + NS < NT2:
                    d = dma2(stage, t + NS >= NH)
                    d[-1] = d[-1] + [("tag", ("D", t + NS))]
                    p2["pend"] += d
            g = 0; k = 0
            for cb in range(4):
                for tb in range(ntb):
                    c = "0" if (first and ks == 0) else acc2(aset, cb, tb)
                    A("v_mfma_f32_16x16x32_bf16 %s, %s, %s, %s" % (acc2(aset, cb, tb), wf2(ks, cb), xf2(ks, tb), c))
                    nr = 1 if len(rd) - k <= NG - g else 2
                    busy = k < len(rd)
                    for _ in range(nr):
                        if k < len(rd): A(rd[k]); k += 1
                    left = (NG - g) + ((8 if t + 1 >= NH else 16) if ks == 1 else 0)
                    if p2["pend"] and (g % (NG // 4) == NG // 4 - 1 or len(p2["pend"]) * (NG // 4) > left + 3):
                        for _ in range(1 + (len(p2["pend"]) > left)):
                            if p2["pend"]:
                                for x in p2["pend"].pop(0): out(x)
                    side_step(p2.get("rate", RATE) + (0 if busy else 1))
                    g += 1
    A("s_mov_b32 s37, 0x40000")
    A("s_waitcnt vmcnt(3)")
    A.label("L_hpoll")
    A("v_cmp_eq_u32 vcc, 1, v%d" % V_PD)
    A("s_nop 0")
    A("s_or_b64 vcc, vcc, s[68:69]")
    A("s_cmp_eq_u64 vcc, -1")
    A("s_cbranch_scc1 L_hpoll_ok")
    A(hld)
    A("s_sub_u32 s37, s37, 1")
    A("s_waitcnt vmcnt(0)")
    A("s_cbranch_scc0 L_hpoll")
    A.label("L_hpoll_ok")
    stamp(); stamp.real()
    def adma(stg):
        return [[m0set(0, stg), lda(0)], [lda(1)], [lda(2)], [lda(3), "s_add_u32 s%d, s%d, 2048" % (S_AK, S_AK), ("tag", ("D", stg))]]
    for stg in range(2):
        for g in adma(stg):
            for x in g: out(x)
    A("s_add_u32 s%d, s%d, s47" % (S_HF, S_HF))
    qexp()
    GX = 80
    for r in range(32): A("v_accvgpr_read_b32 v%d, a%d" % (GX + r, AG + r))
    A("v_mov_b32 v112, 0"); A("v_mov_b32 v113, 0")
    for q in range(8):
        A("v_dot2c_f32_bf16 v112, v%d, v%d" % (GX + 2 * q, GX + 16 + 2 * q))
        A("v_dot2c_f32_bf16 v113, v%d, v%d" % (GX + 2 * q + 1, GX + 16 + 2 * q + 1))
    A("s_lshl_b32 s3, s%d, 8" % S_I)
    A("v_add_u32 v0, s3, v0")
    A("v_lshlrev_b32 v0, 2, v0")
    A("v_add_f32 v112, v112, v113")
    for sh in (8, 4, 2, 1):
        A("v_add_f32_dpp v112, v112, v112 row_ror:%d row_mask:0xf bank_mask:0xf" % sh)
    A("v_mov_b32 v113, v112")
    A("v_permlane16_swap_b32 v112, v113")
    A("v_add_f32 v112, v112, v113")
    A("v_mul_f32 v112, s%d, v112" % S_C)
    A("v_exp_f32 v112, -v112")
    A("v_add_f32 v112, 1.0, v112")
    A("v_rcp_f32 v112, v112")
    A("v_add_u32 v0, %d, v0" % WS_G)
    A("s_waitcnt vmcnt(4)")
    out("buffer_store_dword v112, v0, s[%d:%d], 0 offen sc1" % (SRD_W, SRD_W + 3))
    for x in flag_group(45, "s%d" % S_F1): out(x)
    ev_kvst()
    A("s_barrier")
    for x in reads2(0, 0, 0): A(x)
    stamp(); stamp.real()
    p2["pend"] = adma(2) + adma(3)
    if STAMP == 4: stamp.off = False; stamp(); stamp.off = True
    C2 = 20
    XB16 = O("xb16", 1)
    for t in range(NT2):
        if t == NPEEL:
            assert not side and not p2["events"] and "ochk" in p2["done"], (len(side), p2["events"].keys())
            stamp()
        if t == NF1:
            side.append("s_sub_u32 s3, s%d, %d" % (S_XF, WS_FLG))
            side.append("s_lshl_b32 s3, s3, 7")
            side.append("s_add_u32 s60, s3, %d" % WS_XCH)
            side.append("s_add_u32 s61, s60, 4096")
            side.append("s_xor_b32 s62, s60, 32768" if 0 else "s_xor_b32 s3, s3, 32768")
            side.append("s_add_u32 s62, s3, %d" % WS_XCH)
            side.append("s_add_u32 s63, s62, 4096")
            side.append("s_xor_b32 s64, s%d, 256" % S_XF)
            for tb in range(4): side.append("v_sub_f32 v%d, 1.0, v%d" % (C1 + 2 * tb, VG + 2 * tb))
            side.append(["s_cmp_eq_u32 s%d, 1" % S_KH, "s_cselect_b64 vcc, -1, 0"] +
                        ["v_cndmask_b32 v%d, v%d, v%d, vcc" % (C2 + 2 * tb, C1 + 2 * tb, VG + 2 * tb) for tb in range(4)])
            for cb in range(4):
                for tb in range(4):
                    for r in range(4):
                        a0 = ACC2[0] + 4 * (cb * 4 + tb) + r
                        side.append("v_mul_f32 v%d, v%d, v%d" % (a0, a0, C1 + 2 * tb))
            p2["rate"] = 1
        if t == NH:
            assert not side
            stamp()
            for tbs in ((2, 3), (0, 1)):
                for tb in tbs:
                    for cb in range(4):
                        a0 = ACC2[0] + 4 * (cb * 4 + tb); a1 = ACC2[1] + 4 * (cb * 4 + tb)
                        for u in range(2):
                            A("v_pk_fma_f32 %s, %s, %s, %s op_sel_hi:[1,0,1]" % (vr(a0 + 2 * u, 2), vr(a1 + 2 * u, 2), vr(C2 + 2 * tb, 2), vr(a0 + 2 * u, 2)))
                    if tb >= 2 and XB16:
                        for cb in range(4):
                            a0 = ACC2[0] + 4 * (cb * 4 + tb); d = 160 + 8 * (tb - 2) + 2 * cb
                            A("v_cvt_pk_bf16_f32 v%d, v%d, v%d" % (d, a0, a0 + 1))
                            A("v_cvt_pk_bf16_f32 v%d, v%d, v%d" % (d + 1, a0 + 2, a0 + 3))
                        for q in range(2):
                            out("buffer_store_dwordx4 %s, v%d, s[%d:%d], s60 offen offset:%d sc1" % (vr(160 + 8 * (tb - 2) + 4 * q, 4), P_VL, SRD_W, SRD_W + 3, (tb - 2) * 2048 + q * 1024))
                    elif tb >= 2:
                        for cb in range(4):
                            out("buffer_store_dwordx4 %s, v%d, s[%d:%d], s%d offen offset:%d sc1" % (acc2(0, cb, tb), P_VL, SRD_W, SRD_W + 3, 60 + tb - 2, cb * 1024))
            out(("tag", "xst"))
            xpoll = "buffer_load_dword v%d, v%d, s[%d:%d], s64 offen sc1" % (V_PD, P_Z0, SRD_W, SRD_W + 3)
            def x1():
                for x in flag_group(S_XF, "0"): out(x)
            def x2():
                out(xpoll); out(("tag", "xp"))
            def x3():
                spin("L_xpoll", xpoll)
                if XB16:
                    for q in range(4):
                        out("buffer_load_dwordx4 %s, v%d, s[%d:%d], s62 offen offset:%d sc1" % (vr(176 + 4 * q, 4), P_VL, SRD_W, SRD_W + 3, q * 1024))
                    return
                for tb in range(2):
                    for cb in range(4):
                        out("buffer_load_dwordx4 %s, v%d, s[%d:%d], s%d offen offset:%d sc1" % (vr(PART + 4 * (cb * 4 + tb), 4), P_VL, SRD_W, SRD_W + 3, 62 + tb, cb * 1024))
            XL = O("xlag", 2)
            at(XL, ["xst"], x1)
            p2["events"].setdefault(NT2 - 2 - O("xpl", 2), []).append(([], x2))
            p2["events"].setdefault(NT2 - 2, []).append((["xp"], x3))
        tile2(t)
        if STAMP == 3 and (t % 2 == 1) and t >= 10: stamp.off = False; stamp(); stamp.off = True
        if STAMP == 4 and t < 16: stamp.off = False; stamp(); stamp.off = True
    assert not p2["pend"] and not p2["events"]
    stamp(); stamp.real()
    VO = 49
    A("v_lshlrev_b32 v%d, 11, v%d" % (VO, P_TOK))
    A("v_bfe_u32 v51, v1, 4, 1")
    A("v_lshl_add_u32 v%d, v51, 5, v%d" % (VO, VO))
    A("v_lshrrev_b32 v51, 5, v1")
    A("v_lshl_add_u32 v%d, v51, 4, v%d" % (VO, VO))
    A("s_lshl_b32 s72, s%d, 8" % S_NT)
    A("s_lshl_b32 s3, s%d, 7" % S_WN)
    A("s_add_u32 s72, s72, s3")
    OSC = " sc1" if O("osc1", 1) else ""
    for tb in range(2):
        for cb in range(4):
            a0 = ACC2[0] + 4 * (cb * 4 + tb); a1 = ACC2[1] + 4 * (cb * 4 + tb)
            for u in range(2):
                A("v_pk_fma_f32 %s, %s, %s, %s op_sel_hi:[1,0,1]" % (vr(a0 + 2 * u, 2), vr(a1 + 2 * u, 2), vr(VG + 2 * tb, 2), vr(a0 + 2 * u, 2)))
    for tb in range(2):
        A("s_waitcnt vmcnt(%d)" % ((2 if XB16 else 4) if tb == 0 else 2))
        if XB16:
            for cb in range(4):
                for u in range(2):
                    src = 176 + 8 * tb + 2 * cb + u; pp = PART + 4 * (cb * 4 + tb) + 2 * u
                    A("v_lshlrev_b32 v%d, 16, v%d" % (pp, src))
                    A("v_and_b32 v%d, 0xffff0000, v%d" % (pp + 1, src))
        for cb in range(4):
            a0 = ACC2[0] + 4 * (cb * 4 + tb); pp = PART + 4 * (cb * 4 + tb)
            for u in range(2):
                A("v_pk_add_f32 %s, %s, %s" % (vr(a0 + 2 * u, 2), vr(a0 + 2 * u, 2), vr(pp + 2 * u, 2)))
        for cp in range(2):
            d = 28 + 8 * tb + 4 * cp
            for h in range(2):
                a0 = ACC2[0] + 4 * ((2 * cp + h) * 4 + tb)
                A("v_cvt_pk_bf16_f32 v%d, v%d, v%d" % (d + 2 * h, a0, a0 + 1))
                A("v_cvt_pk_bf16_f32 v%d, v%d, v%d" % (d + 2 * h + 1, a0 + 2, a0 + 3))
        for cp in range(2): doswap(28 + 8 * tb + 4 * cp)
        for cp in range(2):
            d = 28 + 8 * tb + 4 * cp
            A("buffer_store_dwordx4 %s, v%d, s[%d:%d], s72 offen offset:%d%s" % (vr(d, 4), VO, SRD_O, SRD_O + 3, cp * 64, OSC))
        A("s_add_u32 s72, s72, 32768")
    A.label("L_k2_out")
    stamp.finish(S_W, SRD_W, 38, "L_k1_end")
    A.label("L_k1_end")
    A("s_endpgm")
    A.label("L_code_end")
    return name, LDS

A = Asm()
n1, l1 = gen_k1(A)
hdr = ""
hdr += "; @launch grid=(256,1,1) block=(256,1,1) lds=%d\n" % l1
hdr += '.amdgcn_target "amdgcn-amd-amdhsa--gfx950"\n.text\n'
txt = hdr + A.text() + '.section .rodata,"a"\n' + kernel_desc(n1, 512, 256)
open(OUT, "w").write(txt)
```

```python
import sys
from asmlib import *
from asmlib import TRANS, parse

opts = dict(a.split("=") if "=" in a else (a, "1") for a in sys.argv[2:])
OUT = sys.argv[1]
O = lambda k, d: int(opts.get(k, d))
TOUCH = O("touch", 1)
STAMP = O("stamp", 0)
ONLY = O("only", 0)
HSC1 = O("hsc1", 0)
K2MAP = O("k2map", 0)
NH = O("nh", 32)
K2NODMA = O("k2nodma", 0); K2NOMFMA = O("k2nomfma", 0); K2NOLDS = O("k2nolds", 0); K2SEL = opts.get("k2sel", "aw")

MBS = 144 * 1024
WS_G = 0x1200000
WS_KVP = 0x1210000
WS_FLG = 0x1480000
WS_FLGH = 0x1494000
WS_FLGO = 0x1498000
WS_FLG1 = 0x1490000
WS_STAMP = 0x14A0000
WS_XCH = 0x1500000
WS_SIZE = WS_XCH + 128 * 65536
LOG2E = 0x3FB8AA3B
SC = " sc1"
INV = O("inv", 0)
DSC = " sc1" if O("dsc1", 1) else ""

class Cnt:
    def __init__(self, cap): self.n = 0; self.tag = {}; self.cap = cap
    def issue(self, tag=None, k=1):
        self.n += k
        if tag is not None: self.tag[tag] = self.n
    def wait_for(self, tags):
        last = max(self.tag[t] for t in tags)
        return min(self.n - last, self.cap)

class Stamper:
    def __init__(self, A, kidx): self.A = A; self.regs = []; self.k = kidx
    def start(self):
        if STAMP:
            self.A("s_memrealtime s[78:79]"); self.A("s_memtime s[80:81]")
    off = False
    def __call__(self, wait=True):
        if STAMP and not self.off:
            r = 82 + len(self.regs); assert r <= 99; self.regs.append(r)
            self.A("s_memtime s[100:101]")
            self.A("s_waitcnt lgkmcnt(0)")
            self.A("s_mov_b32 s%d, s100" % r)
    def real(self):
        if STAMP and not self.off:
            r = 82 + len(self.regs); assert r <= 99; self.regs.append(-r)
            self.A("s_memrealtime s[100:101]")
            self.A("s_waitcnt lgkmcnt(0)")
            self.A("s_mov_b32 s%d, s100" % r)
    def finish(self, swave, srd, T, endlabel):
        if not STAMP: return
        A = self.A
        A("s_waitcnt vmcnt(0)")
        A("s_memtime s[4:5]"); A("s_memrealtime s[6:7]")
        A("s_waitcnt lgkmcnt(0)")
        A("s_cmp_eq_u32 s%d, 0" % swave); A("s_cbranch_scc0 %s" % endlabel)
        A("s_lshl_b32 s3, s2, 7")
        A("s_add_u32 s3, s3, %d" % WS_STAMP)
        A("v_mov_b32 v%d, 0" % (T + 1))
        items = [(78, None), (6, None), (4, 80)] + [(abs(r), 80 if r > 0 else 78) for r in self.regs]
        if O("dbgstamp", 0):
            A("s_cmp_eq_u32 s2, %d" % O("dbgstamp", 0)); A("s_cbranch_scc0 %s" % endlabel)
            A("s_mov_b32 s3, 0"); srd = 48
            items = [(6, 78), (4, 80)] + items[3:17]
        for q, (s, b) in enumerate(items):
            if b is None: A("v_mov_b32 v%d, s%d" % (T, s))
            else:
                A("s_sub_u32 s5, s%d, s%d" % (s, b)); A("v_mov_b32 v%d, s5" % T)
            A("buffer_store_dword v%d, v%d, s[%d:%d], s3 offen offset:%d" % (T, T + 1, srd, srd + 3, 4 * q))

def mk_srd(A, b, lo, hi, addsgpr, size):
    if addsgpr is None:
        A("s_mov_b32 s%d, s%d" % (b, lo)); A("s_mov_b32 s%d, s%d" % (b + 1, hi))
        A("s_mov_b32 s%d, %d" % (b + 2, size))
    else:
        A("s_add_u32 s%d, s%d, s%d" % (b, lo, addsgpr)); A("s_addc_u32 s%d, s%d, 0" % (b + 1, hi))
        A("s_sub_u32 s%d, %d, s%d" % (b + 2, size, addsgpr))
    A("s_mov_b32 s%d, 0x20000" % (b + 3))


def k2ids(A, mt, nt, kh, xf):
    A("s_and_b32 s%d, s2, 1" % kh)
    if O("swap", 1): A("s_xor_b32 s%d, s%d, 1" % (kh, kh))
    A("s_bfe_u32 s%d, s2, 0x30003" % mt)
    A("s_bfe_u32 s3, s2, 0x10001")
    A("s_lshl_b32 s3, s3, 3")
    A("s_add_u32 s%d, s%d, s3" % (mt, mt))
    A("s_lshr_b32 s%d, s2, 6" % nt)
    A("s_bfe_u32 s3, s2, 0x10002")
    A("s_lshl_b32 s3, s3, 2")
    A("s_add_u32 s%d, s%d, s3" % (nt, nt))
    A("s_lshl_b32 s3, s%d, 3" % mt)
    A("s_add_u32 s3, s3, s%d" % nt)
    A("s_lshl_b32 s3, s3, 1")
    A("s_add_u32 s3, s3, s%d" % kh)
    A("s_lshl_b32 s3, s3, 2")
    A("s_add_u32 s3, s3, s26")
    A("s_lshl_b32 s%d, s3, 6" % xf)
    A("s_add_u32 s%d, s%d, %d" % (xf, xf, WS_FLG))

def gen_k1(A):
    name = "gated_mix__linear_kernel_hedgehog__glu_gated_glu__prompt_kernel"
    kernel_open(A, name)
    BK = 64
    XB = 0; QB = 32768; GB = QB + 64 * 192; UB = GB + 64 * 224 + 128
    STAGE = (UB + 64 * 224 + 255) // 256 * 256
    WPB = 2 * STAGE
    SCR = 131072
    LDS = 163840
    S_I, S_J, S_W, S_CNT, S_XK, S_QK, S_GK, S_TK, S_TSTEP = 24, 25, 26, 27, 28, 29, 30, 31, 37
    S_M0 = 32
    SRD_X, SRD_Q, SRD_G, SRD_W, SRD_T, SRD_P, SRD_D = 8, 12, 16, 20, 68, 72, 48
    S_C = 38
    V_DMA, V_XRD, V_QRD, V_GRD, V_TCH = 2, 20, 24, 28, 30
    T = 32
    NVACC = 208; V_ACC = 48
    A_X = 0; A_WR = 32; RING = 8; A_ACC = 144
    NTB = 4; NCB = 20; D = O("dd", 6)
    BLK = [("q", 1, 0), ("q", 1, 1), ("q", 2, 0), ("q", 2, 1), ("q", 0, 0), ("q", 0, 1)] + [(t, b) for b in range(7) for t in "gu"]
    def accb(cb, tb):
        b = (cb * NTB + tb) * 4
        return ("v", V_ACC + b) if b < NVACC else ("a", A_ACC + b - NVACC)
    def acc(cb, tb):
        f, b = accb(cb, tb); return "%s[%d:%d]" % (f, b, b + 3)
    def xf(p, tb): return ar(A_X + 16 * p + 4 * tb, 4)
    def wf(n, half=None):
        b = A_WR + 4 * (n % RING)
        return ar(b, 4) if half is None else ar(b + 2 * half, 2)
    stamp = Stamper(A, 0)
    VM = Cnt(63)

    A("s_load_dwordx4 s[4:7], s[0:1], 0")
    A("s_load_dwordx4 s[52:55], s[0:1], 40")
    A("s_load_dwordx4 s[56:59], s[0:1], 80")
    A("s_load_dwordx2 s[66:67], s[0:1], 16")
    A("s_load_dwordx4 s[40:43], s[0:1], 56")
    A("s_cmp_ge_u32 s2, 256")
    A("s_cbranch_scc1 L_k1_end")
    stamp.start()
    if STAMP >= 3: stamp.off = True
    if O("ctouch", 1):
        A("s_getpc_b64 s[72:73]")
        A.label("L_pc")
        A("s_mov_b32 s74, L_code_end-L_pc")
        A("s_mov_b32 s75, 0x20000")
        A("s_and_b32 s73, s73, 0xffff")
        A("v_lshrrev_b32 v%d, 6, v0" % T)
        A("v_lshlrev_b32 v%d, 9, v%d" % (T, T))
        A("v_and_b32 v%d, 63, v0" % (T + 1))
        A("v_lshl_add_u32 v%d, v%d, 7, v%d" % (T, T + 1, T))
        A("s_lshr_b32 s3, s2, 3")
        A("s_lshl_b32 s3, s3, 11")
        A("v_cmp_gt_u32 vcc, 4, v%d" % (T + 1))
        A("v_mov_b32 v%d, 0x7ffffff0" % (T + 2))
        A("v_cndmask_b32 v%d, v%d, v%d, vcc" % (T, T + 2, T))
        A("buffer_load_dword v%d, v%d, s[72:75], s3 offen" % (V_TCH + 1, T)); VM.issue()
    A("v_lshrrev_b32 v1, 6, v0")
    A("s_lshr_b32 s%d, s2, 3" % S_I)
    A("s_and_b32 s%d, s%d, 7" % (S_I, S_I))
    A("v_readfirstlane_b32 s%d, v1" % S_W)
    A("s_and_b32 s3, s2, 7")
    A("s_lshl_b32 s3, s3, 2")
    A("s_lshr_b32 s%d, s2, 6" % S_J)
    A("s_add_u32 s%d, s%d, s3" % (S_J, S_J))
    A("v_and_b32 v1, 63, v0")
    A("v_lshrrev_b32 v%d, 3, v1" % T)
    A("v_lshlrev_b32 v%d, 11, v%d" % (T, T))
    A("v_and_b32 v%d, 7, v1" % (T + 1))
    A("v_lshrrev_b32 v%d, 4, v1" % (T + 2))
    A("v_xor_b32 v%d, v%d, v%d" % (T + 1, T + 1, T + 2))
    A("v_lshl_add_u32 v%d, v%d, 4, v%d" % (T, T + 1, T))
    A("s_lshl_b32 s3, s%d, 17" % S_W)
    A("v_add_u32 v%d, s3, v%d" % (T, T))
    A("v_xor_b32 v%d, 64, v%d" % (T + 1, T))
    plan = []
    for n in range(8):
        A("v_add_u32 v%d, %d, v%d" % (V_DMA + n, n * 16384 - 1024 * (n & 3), T + (n & 1)))
        plan.append((V_DMA + n, SRD_X, S_XK, n // 4 if n % 4 == 0 else None, 1024 * (n & 3)))
    for q in range(3): plan.append((V_DMA + 8 + q, SRD_Q, S_QK, 2 if q == 0 else None, 1024 * q))
    for g in range(7): plan.append((V_DMA + 11 + g, SRD_G, S_GK, 3 + g // 4 if g % 4 == 0 else None, 1024 * (g & 3)))
    LD = len(plan)
    A("s_lshl_b32 s%d, s%d, 13" % (S_M0, S_W))
    A("s_add_u32 s%d, s%d, 4096" % (S_M0 + 1, S_M0))
    A("s_mul_i32 s%d, s%d, 3072" % (S_M0 + 2, S_W))
    A("s_add_u32 s%d, s%d, %d" % (S_M0 + 2, S_M0 + 2, QB))
    A("s_and_b32 s3, s%d, 1" % S_W)
    A("s_mul_i32 s3, s3, 7168")
    A("s_cmp_ge_u32 s%d, 2" % S_W)
    A("s_mov_b32 s60, %d" % GB)
    A("s_cselect_b32 s%d, %d, s60" % (S_M0 + 3, UB))
    A("s_add_u32 s%d, s%d, s3" % (S_M0 + 3, S_M0 + 3))
    A("s_add_u32 s%d, s%d, 4096" % (S_M0 + 4, S_M0 + 3))
    for s in (S_XK, S_QK, S_GK): A("s_mov_b32 s%d, 0" % s)
    def dma_list(stage):
        L = []
        for (v, sd, so, m0i, off) in plan:
            g = []
            if m0i is not None:
                g.append("s_mov_b32 m0, s%d" % (S_M0 + m0i) if stage == 0 else "s_add_u32 m0, s%d, %d" % (S_M0 + m0i, STAGE * stage))
            dnt = O("dnt", 0)
            g.append("buffer_load_dwordx4 v%d, s[%d:%d], s%d offen offset:%d%s lds" % (v, sd, sd + 3, so, off, " nt" if (dnt == 1 or (dnt == 2 and sd != SRD_X) or (dnt == 3 and sd == SRD_X)) else ""))
            L.append(g)
        L[-1] += ["s_add_u32 s%d, s%d, %d" % (S_XK, S_XK, BK * 2),
                  "s_add_u32 s%d, s%d, %d" % (S_GK, S_GK, BK * 7168),
                  "s_add_u32 s%d, s%d, %d" % (S_QK, S_QK, BK * 6144)]
        return L
    def emit(groups):
        for g in groups:
            for s in g: A(s)
            VM.issue()
    def rowperm(dst, src, tmp):
        A("v_and_b32 v%d, 0xfffffff3, v%d" % (dst, src))
        A("v_bfe_u32 v%d, v%d, 2, 1" % (tmp, src))
        A("v_lshl_or_b32 v%d, v%d, 3, v%d" % (dst, tmp, dst))
        A("v_bfe_u32 v%d, v%d, 3, 1" % (tmp, src))
        A("v_lshl_or_b32 v%d, v%d, 2, v%d" % (dst, tmp, dst))
    NEARLY = O("nearly", 1); NLATE = O("nlate", 1)
    if TOUCH:
        A("s_lshr_b32 s60, s2, 6")
        A("s_and_b32 s61, s%d, 1" % S_W)
        A("s_lshl_b32 s3, s60, 6")
        A("v_add_u32 v%d, s3, v1" % (T + 4))
        A("v_lshlrev_b32 v%d, 11, v%d" % (T + 4, T + 4))
        A("s_lshl_b32 s3, s61, 7")
        A("v_add_u32 v%d, s3, v%d" % (T + 4, T + 4))
        A("s_lshl_b32 s62, s%d, 4" % S_I)
        A("s_lshl_b32 s3, s61, 3")
        A("s_add_u32 s62, s62, s3")
        A("s_and_b32 s63, s%d, 28" % S_J)
        A("v_mul_u32_u24 v%d, 10923, v1" % (T + 5))
        A("v_lshrrev_b32 v%d, 16, v%d" % (T + 5, T + 5))
        A("v_mul_u32_u24 v%d, 6, v%d" % (T + 6, T + 5))
        A("v_sub_u32 v%d, v1, v%d" % (T + 6, T + 6))
        A("v_add_u32 v%d, s62, v%d" % (T + 5, T + 5))
        A("v_mul_u32_u24 v%d, 6144, v%d" % (T + 5, T + 5))
        A("v_lshrrev_b32 v%d, 1, v%d" % (T + 7, T + 6))
        A("v_lshl_add_u32 v%d, v%d, 11, v%d" % (T + 5, T + 7, T + 5))
        A("v_and_b32 v%d, 1, v%d" % (T + 6, T + 6))
        A("v_lshl_add_u32 v%d, v%d, 7, v%d" % (T + 5, T + 6, T + 5))
        A("s_lshl_b32 s3, s63, 6")
        A("v_add_u32 v%d, s3, v%d" % (T + 5, T + 5))
        A("v_mov_b32 v%d, 0x7ffffff0" % (T + 9))
        A("v_cmp_gt_u32 vcc, 48, v1")
        A("v_cndmask_b32 v%d, v%d, v%d, vcc" % (T + 5, T + 9, T + 5))
        A("v_mul_u32_u24 v%d, 9363, v1" % (T + 6))
        A("v_lshrrev_b32 v%d, 16, v%d" % (T + 6, T + 6))
        A("v_mul_u32_u24 v%d, 7, v%d" % (T + 7, T + 6))
        A("v_sub_u32 v%d, v1, v%d" % (T + 7, T + 7))
        A("v_add_u32 v%d, s62, v%d" % (T + 6, T + 6))
        A("v_mul_u32_u24 v%d, 7168, v%d" % (T + 6, T + 6))
        A("v_lshl_add_u32 v%d, v%d, 7, v%d" % (T + 6, T + 7, T + 6))
        A("s_mul_i32 s3, s63, 224")
        A("v_add_u32 v%d, s3, v%d" % (T + 6, T + 6))
        A("v_cmp_gt_u32 vcc, 56, v1")
        A("v_cndmask_b32 v%d, v%d, v%d, vcc" % (T + 6, T + 9, T + 6))
        A("s_and_b32 s3, s2, 63")
        A("s_lshl_b32 s3, s3, 1")
        A("s_add_u32 s3, s3, s61")
        A("s_lshl_b32 s3, s3, 13")
        A("v_lshlrev_b32 v%d, 7, v1" % (T + 7))
        A("v_add_u32 v%d, s3, v%d" % (T + 7, T + 7))
    A("s_waitcnt lgkmcnt(0)")
    A("s_lshl_b32 s64, s%d, 19" % S_I)
    mk_srd(A, SRD_X, 4, 5, 64, 2048 * 2048)
    if TOUCH:
        def sel(cond_sgpr, val, voff, lo, hi, size, step, start):
            A("s_cmp_eq_u32 s%d, %d" % (cond_sgpr, val))
            A("s_cselect_b64 vcc, -1, 0")
            A("s_cselect_b32 s%d, s%d, s%d" % (SRD_T, lo, SRD_T))
            A("s_cselect_b32 s%d, s%d, s%d" % (SRD_T + 1, hi, SRD_T + 1))
            A("s_cselect_b32 s%d, %d, s%d" % (SRD_T + 2, size, SRD_T + 2))
            A("s_cselect_b32 s%d, %d, s%d" % (S_TSTEP, step, S_TSTEP))
            A("s_cselect_b32 s%d, %d, s%d" % (S_TK, start, S_TK))
            A("v_cndmask_b32 v%d, v%d, v%d, vcc" % (V_TCH, V_TCH, voff))
        A("s_mov_b32 s%d, s6" % SRD_T); A("s_mov_b32 s%d, s7" % (SRD_T + 1))
        A("s_mov_b32 s%d, %d" % (SRD_T + 2, 1024 * 6144)); A("s_mov_b32 s%d, 0x20000" % (SRD_T + 3))
        A("s_mov_b32 s%d, %d" % (S_TSTEP, 128 * 6144))
        A("s_mov_b32 s%d, %d" % (S_TK, 0 if NEARLY else 128 * 6144))
        A("v_mov_b32 v%d, v%d" % (V_TCH, T + 5))
        sel(60, 1, T + 6, 52, 53, 1024 * 7168, 128 * 7168, 0 if NEARLY else 128 * 7168)
        sel(60, 2, T + 6, 54, 55, 1024 * 7168, 128 * 7168, 0 if NEARLY else 128 * 7168)
        sel(60, 3, T + 7, 40, 41, 3584 * 2048, 1 << 20, (1 << 32) - (NEARLY << 20) if NEARLY else 0)
        A("s_lshr_b32 s61, s%d, 1" % S_W)
        sel(61, 0, T + 4, SRD_X, SRD_X + 1, 256 * 2048, 256, 0 if NEARLY else 256)
        def touch():
            ld = "buffer_load_dword v%d, v%d, s[%d:%d], s%d offen" % (V_TCH + 1, V_TCH, SRD_T, SRD_T + 3, S_TK)
            if O("tnt", 0) == 1:
                l1 = A.newlabel("L_t"); l2 = A.newlabel("L_t")
                return ["s_cmp_eq_u32 s%d, %d" % (S_TSTEP, 1 << 20), "s_cbranch_scc1 %s" % l1, ld, "s_branch %s" % l2, l1 + ":", ld + " nt", l2 + ":",
                        "s_add_u32 s%d, s%d, s%d" % (S_TK, S_TK, S_TSTEP)]
            return [ld + (" nt" if O("tnt", 0) == 2 else ""), "s_add_u32 s%d, s%d, s%d" % (S_TK, S_TK, S_TSTEP)]
        emit([touch() for _ in range(NEARLY)])
    D0 = dma_list(0)
    emit(D0[0:8])
    A("s_cmp_ge_u32 s%d, 2" % S_W)
    A("s_cselect_b32 s60, s54, s52")
    A("s_cselect_b32 s61, s55, s53")
    A("s_mul_i32 s3, s%d, 224" % S_J)
    mk_srd(A, SRD_G, 60, 61, 3, 1024 * 7168)
    A("s_lshl_b32 s3, s%d, 6" % S_J)
    mk_srd(A, SRD_Q, 6, 7, 3, 1024 * 6144)
    A("s_and_b32 s3, s%d, 1" % S_W)
    A("s_mul_i32 s3, s3, 448")
    A("s_and_b32 s65, s%d, 1" % S_J)
    A("s_lshl_b32 s65, s65, 1")
    for g in range(7):
        A("v_add_u32 v%d, s3, v1" % T)
        if g: A("v_add_u32 v%d, %d, v%d" % (T, 64 * g, T))
        A("v_mul_u32_u24 v%d, 4682, v%d" % (T + 1, T))
        A("v_lshrrev_b32 v%d, 16, v%d" % (T + 1, T + 1))
        A("v_mul_u32_u24 v%d, 14, v%d" % (T + 2, T + 1))
        A("v_sub_u32 v%d, v%d, v%d" % (T + 2, T, T + 2))
        A("v_add_u32 v%d, s65, v%d" % (T + 2, T + 2))
        A("v_subrev_u32 v%d, 14, v%d" % (T + 3, T + 2))
        A("v_min_u32 v%d, v%d, v%d" % (T + 2, T + 2, T + 3))
        rowperm(T + 4, T + 1, T + 3)
        A("v_mul_u32_u24 v%d, 7168, v%d" % (T + 1, T + 4))
        A("v_lshl_add_u32 v%d, v%d, 4, v%d" % (T + 1, T + 2, T + 1))
        A("v_subrev_u32 v%d, %d, v%d" % (V_DMA + 11 + g, 1024 * (g & 3), T + 1))
        emit([[x for x in D0[11 + g] if not x.startswith("s_add_u32 s")]])
    A("s_mul_i32 s3, s%d, 192" % S_W)
    for q in range(3):
        A("v_add_u32 v%d, s3, v1" % T)
        if q: A("v_add_u32 v%d, %d, v%d" % (T, 64 * q, T))
        A("v_mul_u32_u24 v%d, 5462, v%d" % (T + 1, T))
        A("v_lshrrev_b32 v%d, 16, v%d" % (T + 1, T + 1))
        A("v_mul_u32_u24 v%d, 12, v%d" % (T + 2, T + 1))
        A("v_sub_u32 v%d, v%d, v%d" % (T + 2, T, T + 2))
        A("v_bfe_u32 v%d, v%d, 2, 1" % (T + 3, T + 1))
        A("v_lshlrev_b32 v%d, 1, v%d" % (T + 3, T + 3))
        A("v_xor_b32 v%d, v%d, v%d" % (T + 2, T + 2, T + 3))
        rowperm(T + 4, T + 1, T + 3)
        A("v_mul_u32_u24 v%d, 6144, v%d" % (T + 1, T + 4))
        A("v_lshrrev_b32 v%d, 2, v%d" % (T + 3, T + 2))
        A("v_lshlrev_b32 v%d, 11, v%d" % (T + 3, T + 3))
        A("v_and_b32 v%d, 3, v%d" % (T + 2, T + 2))
        A("v_lshlrev_b32 v%d, 4, v%d" % (T + 2, T + 2))
        A("v_add3_u32 v%d, v%d, v%d, v%d" % (T + 1, T + 1, T + 2, T + 3))
        A("v_subrev_u32 v%d, %d, v%d" % (V_DMA + 8 + q, 1024 * q, T + 1))
        emit([D0[8 + q]])
    for s in D0[17][1:]: A(s)
    mk_srd(A, SRD_W, 58, 59, None, WS_SIZE)
    S_F1 = 44
    A("s_lshl_b32 s%d, s%d, 7" % (S_F1, S_J))
    A("s_add_u32 s%d, s%d, %d" % (S_F1, S_F1, WS_FLG1))
    A("s_lshl_b32 s3, s%d, 2" % S_I)
    A("s_add_u32 s3, s3, s%d" % S_W)
    A("s_lshl_b32 s45, s3, 2")
    A("s_lshr_b32 s3, s3, 1")
    A("s_lshl_b32 s3, s3, 5")
    A("s_add_u32 s3, s3, s%d" % S_J)
    A("s_lshl_b32 s3, s3, 1")
    A("s_and_b32 s60, s%d, 1" % S_W)
    A("s_add_u32 s3, s3, s60")
    A("s_lshl_b32 s3, s3, 2")
    A("s_add_u32 s77, s3, %d" % WS_FLGH)
    k2ids(A, 61, 62, 63, 64)
    A("s_add_u32 s3, s%d, s45" % S_F1)
    A("v_mov_b32 v%d, s3" % T)
    A("v_writelane_b32 v%d, s77, 1" % T)
    A("s_add_u32 s3, s77, %d" % (WS_FLGO - WS_FLGH))
    A("v_writelane_b32 v%d, s3, 2" % T)
    A("v_writelane_b32 v%d, s64, 3" % T)
    A("v_mov_b32 v%d, 0" % (T + 1))
    A("buffer_store_dword v%d, v%d, s[%d:%d], 0 offen sc1" % (T + 1, T, SRD_W, SRD_W + 3)); VM.issue()
    VM.tag["g"] = VM.n
    EARLY = O("early", 0)
    D1 = dma_list(1)
    emit(D1[:EARLY])
    A("s_lshl_b32 s3, s%d, 11" % S_J)
    mk_srd(A, SRD_P, 66, 67, 3, 65536)
    A("s_and_b32 s3, s%d, 1" % S_W)
    A("s_lshl_b32 s47, s3, 10")
    A("v_lshl_add_u32 v%d, v1, 4, s47" % (T + 3))
    late = D1[EARLY:] + [["s_add_u32 m0, s47, %d" % WPB, "buffer_load_dwordx4 v%d, s[%d:%d], 0 offen lds" % (T + 3, SRD_P, SRD_P + 3)]]
    mk_srd(A, SRD_D, 56, 57, None, 256)
    if TOUCH: late += [touch() for _ in range(NLATE)]
    A("s_load_dwordx2 s[4:5], s[0:1], 24")
    A("s_load_dwordx2 s[56:57], s[0:1], 72")
    A("v_and_b32 v%d, 15, v1" % (T + 4))
    A("v_lshlrev_b32 v%d, 7, v%d" % (T + 4, T + 4))
    A("s_lshl_b32 s3, s%d, 13" % S_W)
    A("v_add_u32 v%d, s3, v%d" % (T + 4, T + 4))
    A("v_bfe_u32 v%d, v1, 1, 3" % (T + 5))
    A("v_lshrrev_b32 v%d, 4, v1" % (T + 6))
    for ks in range(2):
        A("v_or_b32 v%d, %d, v%d" % (T + 7, ks * 4, T + 6))
        A("v_xor_b32 v%d, v%d, v%d" % (T + 7, T + 7, T + 5))
        A("v_lshl_add_u32 v%d, v%d, 4, v%d" % (V_XRD + ks, T + 7, T + 4))
        A("v_add_u32 v%d, %d, v%d" % (V_XRD + 2 + ks, STAGE, V_XRD + ks))
    A("v_bfe_u32 v%d, v1, 2, 2" % (T + 4))
    A("v_and_b32 v%d, 3, v1" % (T + 5))
    A("v_bfe_u32 v%d, v1, 4, 1" % (T + 7))
    A("v_lshrrev_b32 v%d, 5, v1" % (T + 8))
    A("v_lshl_add_u32 v%d, v%d, 4, v%d" % (T + 4, T + 8, T + 4))
    A("v_lshl_add_u32 v%d, v%d, 2, v%d" % (T + 4, T + 7, T + 4))
    A("v_lshlrev_b32 v%d, 3, v%d" % (T + 5, T + 5))
    A("v_mul_u32_u24 v%d, 192, v%d" % (T + 9, T + 4))
    A("v_add_u32 v%d, v%d, v%d" % (T + 9, T + 9, T + 5))
    for h in range(2):
        A("v_xor_b32 v%d, %d, v%d" % (T + 8, h, T + 7))
        A("v_lshl_add_u32 v%d, v%d, 5, v%d" % (T + 8, T + 8, T + 9))
        for st in range(2): A("v_add_u32 v%d, %d, v%d" % (V_QRD + st * 2 + h, QB + STAGE * st, T + 8))
    A("v_mul_u32_u24 v%d, 224, v%d" % (T + 9, T + 4))
    A("v_add_u32 v%d, v%d, v%d" % (T + 8, T + 9, T + 5))
    for st in range(2): A("v_add_u32 v%d, %d, v%d" % (V_GRD + st, GB + STAGE * st, T + 8))
    A("s_mov_b32 s%d, 0x%x" % (S_C, LOG2E)); A("s_mov_b32 s%d, 0x%x" % (S_C + 1, LOG2E))
    stamp(False)
    A("s_waitcnt vmcnt(%d) lgkmcnt(0)" % VM.wait_for(["g"]))
    A("s_barrier")
    def xread(stage, ks, p, tb):
        return "ds_read_b128 %s, v%d offset:%d" % (xf(p, tb), V_XRD + 2 * stage + ks, tb * 2048)
    def wread(stage, ks, cb, n, t):
        b = BLK[cb]
        if b[0] == "q":
            return "ds_read_b64_tr_b16 %s, v%d offset:%d" % (wf(n, t), V_QRD + stage * 2 + b[2], (ks * 32 + t * 8) * 192 + b[1] * 64)
        return "ds_read_b64_tr_b16 %s, v%d offset:%d" % (wf(n, t), V_GRD + stage, (ks * 32 + t * 8) * 224 + b[1] * 32 + (UB - GB if b[0] == "u" else 0))
    Q = Cnt(15)
    for tb in range(NTB):
        A(xread(0, 0, 0, tb)); Q.issue(("x", 0, tb))
    for n in range(D):
        for t in range(2):
            A(wread(0, 0, n, n, t)); Q.issue(("w", n))
    A("s_lshl_b32 s3, s%d, 3" % S_J)
    A("s_add_u32 s3, s3, s%d" % S_I)
    A("s_cmp_eq_u32 s%d, 0" % S_W)
    A("s_cselect_b32 s3, s3, 0x1000")
    A("v_mov_b32 v%d, s3" % (T + 5))
    A("v_mov_b32 v%d, 1" % (T + 6))
    bytest = "buffer_store_byte v%d, v%d, s[%d:%d], 0 offen sc1" % (T + 6, T + 5, SRD_D, SRD_D + 3)
    NPRO = 1 + (NLATE if TOUCH else 0)
    if STAMP: stamp(); stamp.real()


    NS = 4; ST2 = 16384; AB = 65536
    TH = O("th", 8)
    NH = (72 - TH) // 2; NF1 = 56 - NH; NT2 = NH + TH
    NPEEL = NF1 - 4
    S_MT, S_NT, S_KH, S_XF = 52, 53, 54, 55
    S_AK, S_WK, S_KT, S_SW, S_WK0, S_M0H, S_AK0 = 28, 29, 30, 31, 34, 35, 36
    SRD_A, SRD_B, SRD_O = 8, 12, 16
    S_B2 = 72; S_WM, S_WN = 42, 43; S_HF = 70
    P_DMA, P_XRD, P_WRD, P_TOK, P_GA, P_VL, P_Z0, P_L4 = 2, 10, 11, 15, 16, 17, 18, 19
    P_XRD2, P_AH = 3, 5
    def groups(B, n=2):
        L = []; i = 0
        while i < len(B.lines):
            k = n
            while i + k < len(B.lines) and ("s_addc" in B.lines[i + k] or "s_cselect" in B.lines[i + k] or "s_cselect" in "".join(B.lines[i + k + 1:i + k + 2])): k += 1
            L.append([x.strip() for x in B.lines[i:i + k]]); i += k
        return L
    def m0set(i, stage):
        return "s_add_u32 m0, s%d, %d" % (S_M0 + i, ST2 * stage) if stage else "s_mov_b32 m0, s%d" % (S_M0 + i)
    def lda(n): return "buffer_load_dwordx4 v%d, s[%d:%d], s%d offen offset:%d%s lds" % (P_DMA + (n & 2), SRD_A, SRD_A + 3, S_AK, 1024 * n, DSC)
    def ldw(n): return "buffer_load_dwordx4 v%d, s[%d:%d], s%d offen offset:%d lds" % (P_DMA + 4 + n, SRD_B, SRD_B + 3, S_WK, 1024 * n)
    def wotouch():
        B = Asm()
        mk_srd(B, 72, 4, 5, None, 1024 * 2048)
        B("s_lshr_b32 s3, s2, 3")
        B("s_lshl_b32 s3, s3, 2")
        B("s_add_u32 s3, s3, s%d" % S_W)
        B("s_lshl_b32 s3, s3, 14")
        B("s_bfe_u32 s6, s2, 0x10002")
        B("s_lshl_b32 s6, s6, 10")
        B("s_add_u32 s3, s3, s6")
        B("v_lshrrev_b32 v32, 3, v1")
        B("v_lshlrev_b32 v32, 11, v32")
        B("v_and_b32 v33, 7, v1")
        B("v_lshl_add_u32 v32, v33, 7, v32")
        B("buffer_load_dword v33, v32, s[72:75], s3 offen" + (" nt" if O("tnt", 0) else ""))
        return groups(B, 3)
    AG = 96
    def gloads():
        B = Asm()
        mk_srd(B, 72, 42, 43, None, 2048)
        B("v_and_b32 v34, 31, v1")
        B("v_lshlrev_b32 v34, 6, v34")
        B("v_lshrrev_b32 v35, 5, v1")
        B("s_lshl_b32 s3, s%d, 6" % S_W)
        B("s_lshl_b32 s6, s%d, 1" % S_J)
        B("s_add_u32 s3, s3, s6")
        B("v_add_u32 v30, s3, v35")
        B("v_lshl_add_u32 v35, v30, 11, v34")
        L = groups(B, 3)
        for q in range(4):
            L.append(["buffer_load_dwordx4 %s, v35, s[%d:%d], 0 offen offset:%d" % (ar(AG + 4 * q, 4), SRD_X, SRD_X + 3, 16 * q)])
            L.append(["buffer_load_dwordx4 %s, v34, s[72:75], 0 offen offset:%d" % (ar(AG + 16 + 4 * q, 4), 16 * q)])
        return L
    def wsetup():
        B = Asm()
        k2ids(B, S_MT, S_NT, S_KH, S_XF)
        B("v_lshrrev_b32 v32, 4, v1")
        B("v_and_b32 v33, 15, v1")
        B("v_lshlrev_b32 v34, 1, v32")
        B("v_xor_b32 v33, v33, v34")
        B("s_lshl_b32 s3, s%d, 4" % S_W)
        B("v_add_u32 v32, s3, v32")
        B("v_lshlrev_b32 v32, 11, v32")
        B("v_lshl_add_u32 v32, v33, 4, v32")
        B("v_xor_b32 v33, 128, v32")
        for n in range(4):
            B("v_add_u32 v%d, %d, v%d" % (P_DMA + 4 + n, n * 4 * 2048 - 1024 * n, 32 + (n >> 1)))
        B("s_lshl_b32 s%d, s%d, 12" % (S_M0 + 1, S_W))
        B("s_add_u32 s%d, s%d, %d" % (S_M0, S_M0 + 1, AB))
        B("s_mul_i32 s3, s%d, %d" % (S_KH, NH * 64 * 2048))
        B("s_lshl_b32 s6, s%d, 8" % S_NT)
        B("s_add_u32 s3, s3, s6")
        B("s_add_u32 s%d, s40, s3\ns_addc_u32 s%d, s41, 0" % (SRD_B, SRD_B + 1))
        B("s_sub_u32 s%d, %d, s3" % (SRD_B + 2, 3584 * 2048))
        B("s_mov_b32 s%d, 0" % S_WK)
        return groups(B, 3)
    def wdma():
        L = []
        for stg in range(NS):
            for n in range(4):
                g = ([m0set(1, stg)] if n == 0 else []) + [ldw(n)]
                if n == 3: g.append("s_add_u32 s%d, s%d, %d" % (S_WK, S_WK, 64 * 2048))
                L.append(g)
        return L
    def rest():
        B = Asm()
        B("s_mov_b32 s47, %d" % (WS_FLGO - WS_FLGH))
        B("s_lshl_b32 s6, s%d, 8" % S_NT)
        B("s_add_u32 s%d, s4, s6\ns_addc_u32 s%d, s5, 0" % (S_B2, S_B2 + 1))
        B("s_sub_u32 s%d, %d, s6" % (S_B2 + 2, 1024 * 2048))
        B("v_lshlrev_b32 v%d, 4, v1" % P_VL)
        B("s_mul_i32 s3, s%d, %d" % (S_W, 2 * MBS))
        B("v_add_u32 v%d, s3, v%d" % (P_DMA, P_VL))
        B("v_add_u32 v%d, %d, v%d" % (P_DMA + 2, MBS - 2048, P_DMA))
        B("s_mov_b32 s%d, 0" % S_AK); B("s_mov_b32 s%d, %d" % (S_KT, NS))
        jh = (64 * NH - 1) // 112; jf = 64 * NH // 112
        full = (1 << 64) - 1
        ih = full ^ ((1 << (2 * jh + 2)) - 1); if_ = (1 << (2 * jf)) - 1
        B("s_mov_b32 s68, 0x%x" % (if_ & 0xffffffff)); B("s_mov_b32 s69, 0x%x" % (if_ >> 32))
        B("s_cmp_eq_u32 s%d, 0" % S_KH)
        B("s_cselect_b32 s%d, %d, %d" % (S_SW, NH, NF1))
        B("s_cselect_b32 s%d, %d, 0" % (S_WK0, (16 - TH) * 64 * 2048))
        B("s_mov_b32 s%d, %d" % (S_AK0, NF1 * 2048))
        B("s_cselect_b32 s%d, %d, s%d" % (S_AK0, (72 - TH) * 2048, S_AK0))
        B("s_cselect_b32 s68, 0x%x, s68" % (ih & 0xffffffff)); B("s_cselect_b32 s69, 0x%x, s69" % (ih >> 32))
        B("s_mul_i32 s3, s%d, %d" % (S_MT, 8 * MBS))
        B("s_mul_i32 s6, s%d, %d" % (S_KH, NH * 2048))
        B("s_add_u32 s3, s3, s6")
        mk_srd(B, SRD_A, 58, 59, 3, 128 * MBS)
        mk_srd(B, SRD_O, 56, 57, None, 2048 * 2048)
        B("s_lshr_b32 s%d, s%d, 1" % (S_WM, S_W)); B("s_and_b32 s%d, s%d, 1" % (S_WN, S_W))
        B("s_lshl_b32 s6, s%d, 7" % S_MT)
        B("s_lshl_b32 s3, s%d, 6" % S_WM)
        B("s_add_u32 s6, s6, s3")
        B("s_lshl_b32 s3, s%d, 5" % S_KH)
        B("s_add_u32 s6, s6, s3")
        B("v_and_b32 v32, 15, v1")
        B("v_add_u32 v%d, s6, v32" % P_TOK)
        B("v_lshlrev_b32 v%d, 2, v%d" % (P_GA, P_TOK))
        B("v_add_u32 v%d, %d, v%d" % (P_GA, WS_G, P_GA))
        B("s_lshl_b32 s3, s%d, 13" % S_WM)
        B("s_add_u32 s3, s3, %d" % AB)
        B("s_lshl_b32 s6, s%d, 12" % S_KH)
        B("s_add_u32 s%d, s3, s6" % S_M0H)
        B("v_add_u32 v%d, s%d, v%d" % (P_XRD, S_M0H, P_VL))
        B("s_sub_u32 s3, s3, s6")
        B("v_add_u32 v%d, s3, v%d" % (P_XRD2, P_VL))
        B("s_lshl_b32 s3, s%d, 11" % S_WN)
        B("s_add_u32 s%d, s%d, s3" % (S_M0H, S_M0H))
        B("s_sub_u32 s3, s%d, %d" % (S_M0H, AB))
        B("s_mul_i32 s3, s3, %d" % (MBS // 2048))
        B("v_add_u32 v%d, s3, v%d" % (P_AH, P_VL))
        B("v_lshrrev_b32 v34, 4, v1")
        B("v_bfe_u32 v32, v1, 2, 2")
        B("v_lshl_add_u32 v33, v34, 3, v32")
        B("v_lshlrev_b32 v33, 8, v33")
        B("v_and_b32 v35, 3, v1")
        B("v_lshl_add_u32 v33, v35, 3, v33")
        B("v_bfe_u32 v35, v1, 4, 1")
        B("v_lshl_add_u32 v32, v35, 2, v32")
        B("s_lshl_b32 s3, s%d, 2" % S_WN)
        for cb in range(4):
            B("s_add_u32 s6, s3, %d" % cb)
            B("v_xor_b32 v35, s6, v32")
            B("v_lshl_add_u32 v%d, v35, 5, v33" % (P_WRD + cb))
        B("v_mov_b32 v%d, 0" % P_Z0)
        B("v_lshlrev_b32 v%d, 2, v1" % P_L4)
        B("s_lshl_b32 s%d, s%d, 8" % (S_HF, S_MT))
        B("s_add_u32 s%d, s%d, %d" % (S_HF, S_HF, WS_FLGH))
        B("s_mov_b32 s46, 0x01010101")
        return groups(B, 3)

    st = {"pend": late}
    PB = 40 - D
    DSP = O("dsp", 1); DPOS = O("dpos", 2); DMARG = O("dmarg", 12)
    def tile(stage, first, dma_next, has_next, vm_extra, do_touch, extra=None, after=None):
        if extra: st["pend"] = st["pend"] + extra
        for n in range(40):
            ks, cb = divmod(n, 20)
            pre = []
            if n == PB and has_next:
                assert not st["pend"]
                pre += ["s_waitcnt lgkmcnt(0) vmcnt(%d)" % vm_extra, "s_barrier"]
                if first: pre.append(bytest)
                if dma_next: st["pend"] = dma_list(stage)
                if do_touch: st["pend"].append(touch())
                if after: st["pend"] = st["pend"] + after
            need_tags = [("w", n)] + ([("x", ks, tb) for tb in range(NTB)] if cb == 0 else [])
            if not (n == PB and has_next):
                pre.append("s_waitcnt lgkmcnt(%d)" % Q.wait_for(need_tags))
            rds = []
            def addw(m):
                if m < 40:
                    k2, c2 = divmod(m, 20)
                    for t in range(2): rds.append((wread(stage, k2, c2, m, t), ("w", m)))
                elif has_next:
                    for t in range(2): rds.append((wread(stage ^ 1, 0, m - 40, m, t), ("w", m - 40)))
            if n == PB - 2: addw(n + D); addw(n + D + 1)
            elif n == PB - 1: pass
            else: addw(n + D)
            if ks == 0 and cb in (4, 7, 10, 13):
                tb = (cb - 4) // 3
                rds.append((xread(stage, 1, 1, tb), ("x", 1, tb)))
            if has_next and n >= PB and n < PB + 4:
                tb = n - PB
                rds.append((xread(stage ^ 1, 0, 0, tb), ("x", 0, tb)))
            for s in pre: A(s)
            k = 0
            for tb in range(NTB):
                a, b = wf(n), xf(ks, tb)
                if BLK[cb][0] == "q" and BLK[cb][1] == 2: a, b = b, a
                c = "0" if (first and ks == 0) else acc(cb, tb)
                A("v_mfma_f32_16x16x32_bf16 %s, %s, %s, %s" % (acc(cb, tb), a, b, c))
                if k < len(rds):
                    A(rds[k][0]); Q.issue(rds[k][1]); k += 1
                if tb == 3:
                    while k < len(rds):
                        A(rds[k][0]); Q.issue(rds[k][1]); k += 1
                if tb == DPOS and st["pend"]:
                    left = (PB - n - 1) % 40 + 1 - DMARG
                    if DSP == 1 or (n % DSP == 0) or len(st["pend"]) * DSP >= left:
                        for s in st["pend"].pop(0): A(s)
    assert 40 % RING == 0 and D + 2 <= RING
    nt = 1 if TOUCH else 0
    tile(0, True, True, True, NPRO, False)
    A("s_mov_b32 s%d, 0" % S_CNT)
    A.label("L_k1_loop")
    if STAMP == 2:
        A("s_memtime s[100:101]"); A("s_waitcnt lgkmcnt(0)"); A("s_sub_u32 s100, s100, s80")
        A("s_mov_b32 m0, s%d" % S_CNT); A("s_nop 0"); A("v_writelane_b32 v47, s100, m0")
        A("s_add_u32 m0, s%d, 0" % (S_M0 + 1))
    tile(1, False, True, True, 0, TOUCH)
    tile(0, False, True, True, nt, False)
    A("s_add_u32 s%d, s%d, 1" % (S_CNT, S_CNT))
    A("s_cmp_lt_u32 s%d, 6" % S_CNT)
    A("s_cbranch_scc1 L_k1_loop")
    if STAMP == 2:
        for q in range(6):
            r = 82 + len(stamp.regs); stamp.regs.append(r)
            A("v_readlane_b32 s%d, v47, %d" % (r, q)); A("s_nop 1"); A("s_add_u32 s%d, s%d, s80" % (r, r))
        stamp()
        stamp.off = True
    tile(1, False, True, True, 10, False, [touch()] + gloads() + wotouch())
    tile(0, False, False, True, 0, False, wsetup(), wdma())
    tile(1, False, False, False, 0, False, rest())
    assert not st["pend"]
    stamp(); stamp.real()

    E = 2
    def pk(op, d, a, b, c=None, mods=""):
        if c is None: A("%s %s, %s, %s %s" % (op, d, a, b, mods))
        else: A("%s %s, %s, %s, %s %s" % (op, d, a, b, c, mods))
    def rsag2(op, qa, opb, qb):
        seqs = []
        for (o, q) in ((op, qa), (opb, qb)):
            seqs.append([
                "v_permlane32_swap_b32 v%d, v%d" % (q[0], q[1]),
                "v_permlane32_swap_b32 v%d, v%d" % (q[2], q[3]),
                "%s v%d, v%d, v%d" % (o, q[0], q[0], q[1]),
                "%s v%d, v%d, v%d" % (o, q[2], q[2], q[3]),
                "v_permlane16_swap_b32 v%d, v%d" % (q[0], q[2]),
                "%s v%d, v%d, v%d" % (o, q[0], q[0], q[2]),
                "v_mov_b32 v%d, v%d" % (q[2], q[0]),
                "v_permlane16_swap_b32 v%d, v%d" % (q[0], q[2]),
                "v_mov_b32 v%d, v%d" % (q[1], q[0]),
                "v_mov_b32 v%d, v%d" % (q[3], q[2]),
                "v_permlane32_swap_b32 v%d, v%d" % (q[0], q[1]),
                "v_permlane32_swap_b32 v%d, v%d" % (q[2], q[3])])
        for x, y in zip(*seqs):
            A(x); A(y)
    MX = [232, 234, 236, 238]; MN = [240, 242, 244, 246]; PB16 = 20; WP = 176
    def feature(cb0):
        for tb in range(NTB):
            for h in range(2):
                f, b = accb(cb0 + h, tb); assert f == "v"
                A("v_cvt_pk_bf16_f32 v%d, v%d, v%d" % (PB16 + 4 * tb + 2 * h, b, b + 1))
                A("v_cvt_pk_bf16_f32 v%d, v%d, v%d" % (PB16 + 4 * tb + 2 * h + 1, b + 2, b + 3))
        for tb in range(NTB):
            for fb in range(2):
                A("v_mfma_f32_16x16x32_bf16 %s, %s, %s, 0" % (acc(cb0 + fb, tb), vr(WP + 4 * fb, 4), vr(PB16 + 4 * tb, 4)))
    def feature2(cb0):
        for tb in range(NTB):
            p0 = accb(cb0, tb)[1]; p1 = accb(cb0 + 1, tb)[1]
            for step in range(4):
                for (op3, op2, d) in (("v_max3_f32", "v_max_f32", MX[tb]), ("v_min3_f32", "v_min_f32", MN[tb])):
                    if step == 0: A("%s v%d, v%d, v%d, v%d" % (op3, d, p0, p0 + 1, p0 + 2))
                    if step == 1: A("%s v%d, v%d, v%d, v%d" % (op3, d, d, p0 + 3, p1))
                    if step == 2: A("%s v%d, v%d, v%d, v%d" % (op3, d, d, p1 + 1, p1 + 2))
                    if step == 3: A("%s v%d, v%d, v%d" % (op2, d, d, p1 + 3))
        rsag2("v_max_f32", MX, "v_min_f32", MN)
        for b in MX + MN: A("v_mul_f32 v%d, s%d, v%d" % (b, S_C, b))
    def exps(cb0, tb, EM):
        for h in range(2):
            p = accb(cb0 + h, tb)[1]
            for u in range(2):
                pk("v_pk_fma_f32", vr(EM + 4 * h + 2 * u, 2), vr(p + 2 * u, 2), sr(S_C, 2), vr(MN[tb], 2),
                   "op_sel_hi:[1,1,0] neg_lo:[1,0,0] neg_hi:[1,0,0]")
                pk("v_pk_fma_f32", vr(p + 2 * u, 2), vr(p + 2 * u, 2), sr(S_C, 2), vr(MX[tb], 2),
                   "op_sel_hi:[1,1,0] neg_lo:[0,0,1] neg_hi:[0,0,1]")
        for h in range(2):
            p = accb(cb0 + h, tb)[1]
            for r in range(4):
                A("v_exp_f32 v%d, v%d" % (p + r, p + r))
                A("v_exp_f32 v%d, v%d" % (EM + 4 * h + r, EM + 4 * h + r))
    VH = 36; VS = 37
    A("v_mov_b32 v0, v30")
    A("v_and_b32 v%d, 15, v1" % VH)
    A("v_lshlrev_b32 v%d, 4, v%d" % (VH, VH))
    A("v_lshrrev_b32 v38, 5, v1")
    A("v_lshl_add_u32 v%d, v38, 8, v%d" % (VH, VH))
    A("v_bfe_u32 v38, v1, 4, 1")
    A("v_mul_u32_u24 v%d, %d, v38" % (VS, MBS))
    A("v_add_u32 v%d, v%d, v%d" % (VS, VS, VH))
    A("v_lshl_add_u32 v%d, v38, 9, v%d" % (VH, VH))
    A("s_lshl_b32 s3, s%d, 4" % S_I)
    A("s_lshl_b32 s62, s%d, 2" % S_W)
    A("s_add_u32 s62, s62, s3")
    A("s_mul_i32 s62, s62, %d" % MBS)
    A("s_mul_i32 s3, s%d, 7" % S_J)
    A("s_add_u32 s3, s3, 1")
    A("s_lshr_b32 s3, s3, 1")
    A("s_lshl_b32 s3, s3, 10")
    A("s_add_u32 s63, s62, s3")
    for tb in range(1, 4): A("s_add_u32 s%d, s63, %d" % (63 + tb, tb * MBS))
    A("s_add_u32 s67, s63, 3072")
    A("s_sub_u32 s3, s63, 512")
    A("s_bitcmp1_b32 s%d, 0" % S_J)
    A("s_cselect_b32 s67, s3, s67")
    A("s_add_u32 s76, s67, %d" % (2 * MBS))
    FREEV = [accb(6, 0)[1] + 4 * i for i in range(16)]
    def glu(fb, fi):
        gs, us = [], []
        for tb in range(4):
            out = []
            for cb in (6 + 2 * fb, 7 + 2 * fb):
                f, b = accb(cb, tb)
                if f == "a":
                    d = FREEV[fi]; fi += 1
                    for r in range(4): A("v_accvgpr_read_b32 v%d, a%d" % (d + r, b + r))
                    b = d
                out.append(b)
            gs.append(out[0]); us.append(out[1])
        for tb in range(4):
            for u in range(2): pk("v_pk_mul_f32", vr(gs[tb] + 2 * u, 2), vr(gs[tb] + 2 * u, 2), sr(S_C, 2))
        for tb in range(4):
            for r in range(4): A("v_exp_f32 v%d, -v%d" % (gs[tb] + r, gs[tb] + r))
        for tb in range(4):
            for u in range(2): pk("v_pk_add_f32", vr(gs[tb] + 2 * u, 2), vr(gs[tb] + 2 * u, 2), "1.0", None, "op_sel_hi:[1,0]")
        for tb in range(4):
            for r in range(4): A("v_rcp_f32 v%d, v%d" % (gs[tb] + r, gs[tb] + r))
        for tb in range(4):
            for u in range(2): pk("v_pk_mul_f32", vr(gs[tb] + 2 * u, 2), vr(gs[tb] + 2 * u, 2), vr(us[tb] + 2 * u, 2))
        return gs, us
    def packswap(dst, a, b):
        for (d, x) in ((dst, a), (dst + 2, b)):
            A("v_cvt_pk_bf16_f32 v%d, v%d, v%d" % (d, x, x + 1))
            A("v_cvt_pk_bf16_f32 v%d, v%d, v%d" % (d + 1, x + 2, x + 3))
    def doswap(d):
        A("v_permlane16_swap_b32 v%d, v%d" % (d, d + 2))
        A("v_permlane16_swap_b32 v%d, v%d" % (d + 1, d + 3))
    def glu_pair(p, D4):
        g0, u0 = glu(2 * p, 0)
        g1, u1 = glu(2 * p + 1, 8)
        for tb in range(4): packswap(D4[tb], g0[tb], g1[tb])
        for tb in range(4): doswap(D4[tb])
        return ["buffer_store_dwordx4 %s, v%d, s[%d:%d], s%d offen offset:%d%s" % (vr(D4[tb], 4), VH, SRD_W, SRD_W + 3, 63 + tb, p * 1024, SC) for tb in range(4)]
    def capture(fn):
        start = len(A.lines)
        r = fn()
        body = [x.strip() for x in A.lines[start:]]; del A.lines[start:]
        return body, r
    def spread(fn, stores, every):
        body, r = capture(fn)
        k = 0
        for n, ln in enumerate(body):
            if n % every == 0 and k < len(stores):
                A(stores[k]); k += 1
            A(ln)
        for x in stores[k:]: A(x)
        return r
    PKA = [PB16 + 4 * i for i in range(4)]
    PKB = [accb(10, 0)[1] + 4 * i for i in range(4)]
    PK1 = [accb(11, 0)[1] + 4 * i for i in range(4)]
    st0 = glu_pair(0, PKA)
    st1 = spread(lambda: glu_pair(1, PK1), st0, 30)
    st2 = spread(lambda: glu_pair(2, PKA), st1, 40)
    def last():
        g6, u6 = glu(6, 0)
        for tp in range(2): packswap(PKB[tp], g6[2 * tp], g6[2 * tp + 1])
        for tp in range(2): doswap(PKB[tp])
    spread(last, st2, 25)
    for tp in range(2):
        A("buffer_store_dwordx4 %s, v%d, s[%d:%d], s%d offen%s" % (vr(PKB[tp], 4), VS, SRD_W, SRD_W + 3, 67 if tp == 0 else 76, SC))
    stamp()
    def flag_group(saddr, soff):
        return ["v_mov_b32 v38, s%d" % saddr, "v_mov_b32 v39, 1", "s_mov_b64 exec, 1",
                "buffer_store_dword v39, v38, s[%d:%d], %s offen sc1" % (SRD_W, SRD_W + 3, soff), "s_mov_b64 exec, -1"]
    A("v_bfe_u32 v224, v1, 2, 2")
    A("v_lshrrev_b32 v225, 4, v1")
    A("v_and_b32 v226, 3, v1")
    A("v_lshl_add_u32 v227, v225, 2, v224")
    A("v_lshlrev_b32 v228, 6, v227")
    A("v_lshl_add_u32 v228, v226, 3, v228")
    A("v_add_u32 v228, %d, v228" % WPB)
    for fb in range(2):
        for t in range(2):
            A("ds_read_b64_tr_b16 %s, v228 offset:%d" % (vr(WP + 4 * fb + 2 * t, 2), fb * 32 + t * 1024))
    A("s_waitcnt lgkmcnt(0)")
    A("s_barrier")
    dbgld = "buffer_load_dword v47, v%d, s[%d:%d], 0 offen sc1" % (P_L4, SRD_D, SRD_D + 3)
    A(dbgld)
    feature(0)
    SP = [248, 250, 252, 254]; SM = [200, 202, 204, 206]
    VB = accb(2, 0)[1]
    assert accb(3, 0)[1] == VB + 16
    for db in range(2):
        for tb in range(4):
            s = VB + db * 16 + tb * 4
            d = VB + db * 8 + tb * 2
            A("v_cvt_pk_bf16_f32 v%d, v%d, v%d" % (d, s, s + 1))
            A("v_cvt_pk_bf16_f32 v%d, v%d, v%d" % (d + 1, s + 2, s + 3))
    feature2(0)
    A("s_lshl_b32 s61, s%d, 13" % S_W)
    A("s_add_u32 s61, s61, %d" % SCR)
    VPW = 192; VPR = 196
    A("v_and_b32 v229, 15, v1")
    A("v_lshlrev_b32 v229, 7, v229")
    A("v_xor_b32 v230, v225, v226")
    A("v_lshl_add_u32 v229, v230, 3, v229")
    A("v_add_u32 v229, s61, v229")
    for q in range(4):
        A("v_xor_b32 v230, %d, v224" % q)
        A("v_lshl_add_u32 v%d, v230, 5, v229" % (VPW + q))
    A("v_lshlrev_b32 v229, 7, v227")
    A("v_xor_b32 v230, v226, v224")
    A("v_lshl_add_u32 v229, v230, 3, v229")
    A("v_add_u32 v229, s61, v229")
    for q in range(4):
        A("v_xor_b32 v230, %d, v225" % q)
        A("v_lshl_add_u32 v%d, v230, 5, v229" % (VPR + q))
    EMR = [PB16, PB16 + 8, VB + 16, VB + 24]
    for tb in range(4):
        exps(0, tb, EMR[tb])
    t0 = 144
    for tb in range(4):
        p0 = accb(0, tb)[1]; p1 = accb(1, tb)[1]; e = EMR[tb]
        pk("v_pk_add_f32", vr(t0, 2), vr(p0, 2), vr(p0 + 2, 2))
        pk("v_pk_add_f32", vr(t0 + 2, 2), vr(e, 2), vr(e + 2, 2))
        pk("v_pk_add_f32", vr(t0, 2), vr(t0, 2), vr(p1, 2))
        pk("v_pk_add_f32", vr(t0 + 2, 2), vr(t0 + 2, 2), vr(e + 4, 2))
        pk("v_pk_add_f32", vr(t0, 2), vr(t0, 2), vr(p1 + 2, 2))
        pk("v_pk_add_f32", vr(t0 + 2, 2), vr(t0 + 2, 2), vr(e + 6, 2))
        A("v_add_f32 v%d, v%d, v%d" % (SP[tb], t0, t0 + 1))
        A("v_add_f32 v%d, v%d, v%d" % (SM[tb], t0 + 2, t0 + 3))
    rsag2("v_add_f32", SP, "v_add_f32", SM)
    for i in SP + SM: A("v_rcp_f32 v%d, v%d" % (i, i))
    HPOS = O("hpos", 0)
    def hflag():
        A("s_waitcnt vmcnt(0)")
        for x in flag_group(77, "0"): A(x)
    if HPOS == 0: hflag()
    for tb in range(4):
        srcs = [(accb(0, tb)[1], SP), (accb(1, tb)[1], SP), (EMR[tb], SM), (EMR[tb] + 4, SM)]
        for q, (p, sc) in enumerate(srcs):
            for u in range(2):
                pk("v_pk_mul_f32", vr(p + 2 * u, 2), vr(p + 2 * u, 2), vr(sc[tb], 2), None, "op_sel_hi:[1,0]")
        for q, (p, sc) in enumerate(srcs):
            A("v_cvt_pk_bf16_f32 v%d, v%d, v%d" % (p, p, p + 1))
            A("v_cvt_pk_bf16_f32 v%d, v%d, v%d" % (p + 1, p + 2, p + 3))
        for q, (p, sc) in enumerate(srcs):
            A("ds_write_b64 v%d, %s offset:%d" % (VPW + q, vr(p, 2), tb * 2048))
    if HPOS == 1: hflag()
    A("s_mov_b32 s37, 0x40000")
    A.label("L_dpoll")
    A("v_cmp_eq_u32 vcc, s46, v47")
    A("s_nop 0")
    A("s_cmp_eq_u64 vcc, -1")
    A("s_cbranch_scc1 L_dpoll_ok")
    A(dbgld)
    A("s_sub_u32 s37, s37, 1")
    A("s_waitcnt vmcnt(0)")
    A("s_cbranch_scc0 L_dpoll")
    A.label("L_dpoll_ok")
    V_RW, V_RR, V_ZS, V_ZL, V_KS, V_KL, V_PD, V_P4 = 40, 41, 42, 43, 44, 45, 46, 47
    A("v_add_u32 v%d, s61, v%d" % (V_RW, P_VL))
    A("s_lshl_b32 s3, s%d, 11" % S_W)
    A("v_add_u32 v%d, s3, v%d" % (V_KS, P_VL))
    A("v_add_u32 v%d, %d, v%d" % (V_RR, SCR, V_KS))
    A("v_lshl_add_u32 v230, v225, 2, v226")
    A("v_lshlrev_b32 v%d, 4, v230" % V_ZL)
    A("v_add_u32 v%d, 8192, v%d" % (V_ZL, V_ZL))
    ZRED = AB + 3 * ST2
    A("s_lshl_b32 s3, s%d, 10" % S_W)
    A("s_add_u32 s3, s3, %d" % ZRED)
    A("v_add_u32 v%d, s3, v%d" % (V_ZS, P_VL))
    A("v_add_u32 v229, %d, v%d" % (ZRED, P_VL))
    A("s_lshr_b32 s3, s%d, 1" % S_W)
    A("s_lshl_b32 s3, s3, 12")
    A("s_and_b32 s6, s%d, 1" % S_W)
    A("s_lshl_b32 s6, s6, 10")
    A("s_add_u32 s3, s3, s6")
    A("v_add_u32 v%d, s3, v%d" % (V_KL, P_VL))
    A("v_and_b32 v%d, 124, v%d" % (V_P4, P_L4))
    S_KVB = 60
    A("s_lshl_b32 s3, s%d, 3" % S_J)
    A("s_mul_i32 s%d, s3, 9216" % S_KVB)
    A("s_add_u32 s%d, s%d, %d" % (S_KVB, S_KVB, WS_KVP))
    A("s_mul_i32 s3, s%d, 9216" % S_I)
    A("s_add_u32 s61, s%d, s3" % S_KVB)
    A("s_add_u32 s3, s%d, 112" % S_J)
    A("s_lshl_b32 s3, s3, 10")
    A("s_add_u32 s63, s62, s3")
    for tb in range(1, 4): A("s_add_u32 s%d, s63, %d" % (63 + tb, tb * MBS))
    A("s_mov_b32 s67, 0x358637bd")
    A("s_waitcnt lgkmcnt(0)")
    APH = 64
    for fblk in range(4):
        for ks in range(2):
            for t in range(2):
                A("ds_read_b64_tr_b16 %s, v%d offset:%d" % (ar(APH + 8 * fblk + 4 * ks + 2 * t, 2), VPR + fblk, (32 * ks + 16 * t) * 128))
    A("v_mov_b32 v231, 0x3f803f80")
    for fblk in range(4):
        A("v_cmp_eq_u32 vcc, %d, v226" % fblk)
        for r in range(4):
            A("v_cndmask_b32 v%d, 0, v231, vcc" % (PB16 + 4 * fblk + r))
    stamp()

    KV = accb(0, 0)[1]; ZB = VB + 16; QE = 144; LB = 48
    side = []
    import re
    def unpack(x):
        if not x.startswith("v_pk_") or not O("unpack", 0): return [x]
        if O("unpack", 0) == 2 and not re.search(r"op_sel:\[[01,]*1", x): return [x]
        I = parse(x); n = len(I.ops) - 1
        def arr(name, dflt):
            m = re.search(name + r":\[([01,]+)\]", I.mods)
            return [int(c) for c in m.group(1).split(",")] if m else [dflt] * n
        sel = [arr("op_sel", 0), arr("op_sel_hi", 1)]; neg = [arr("neg_lo", 0), arr("neg_hi", 0)]
        def half(o, h):
            m = re.match(r"([vs])\[(\d+):\d+\]", o)
            return "%s%d" % (m.group(1), int(m.group(2)) + h) if m else o
        op = I.op.replace("v_pk_", "v_")
        res = []
        for h in range(2):
            src = [("-" if neg[h][k] else "") + half(I.ops[1 + k], sel[h][k]) for k in range(n)]
            if n == 2 and not src[1].startswith("v"): src = src[::-1]
            res.append("%s %s, %s" % (op, half(I.ops[0], h), ", ".join(src)))
        return res
    def S(fn):
        for x in capture(fn)[0]: side.extend(unpack(x))
    def kvm():
        for fblk in range(4):
            for ks in range(2):
                for db in range(2):
                    d = vr(KV + 8 * fblk + 4 * db, 4)
                    A("v_mfma_f32_16x16x32_bf16 %s, %s, %s, %s" % (d, ar(APH + 8 * fblk + 4 * ks, 4), vr(VB + db * 8 + ks * 4, 4), "0" if ks == 0 else d))
                A("v_mfma_f32_16x16x32_bf16 %s, %s, %s, %s" % (vr(ZB, 4), ar(APH + 8 * fblk + 4 * ks, 4), vr(PB16 + 4 * fblk, 4), "0" if (ks == 0 and fblk == 0) else vr(ZB, 4)))
        for b in range(8):
            A("ds_write_b128 v%d, %s offset:%d" % (V_RW, vr(KV + 4 * b, 4), b * 1024))
        A("ds_write_b128 v%d, %s" % (V_ZS, vr(ZB, 4)))
    PRE = 1
    hld = "buffer_load_dword v%d, v%d, s[%d:%d], s%d offen sc1" % (V_PD, P_L4, SRD_W, SRD_W + 3, S_HF)
    A("s_waitcnt lgkmcnt(0)")
    kvm(); feature(4)
    A("s_waitcnt lgkmcnt(0)"); A("s_barrier")
    A(hld)
    def redr():
        for w in range(4):
            A("ds_read_b128 %s, v%d offset:%d" % (vr(KV + 8 * w, 4), V_RR, w * 8192))
            A("ds_read_b128 %s, v%d offset:%d" % (vr(KV + 8 * w + 4, 4), V_RR, w * 8192 + 1024))
            A("ds_read_b128 %s, v229 offset:%d" % (vr(VB + 4 * w, 4), w * 1024))
    if PRE:
        redr(); feature2(4); A("s_waitcnt lgkmcnt(0)")
    else:
        S(redr)
        S(lambda: feature2(4))
        side.append(("lgkm",))
    def reda():
        for w in range(1, 4):
            for u in range(4): pk("v_pk_add_f32", vr(KV + 2 * u, 2), vr(KV + 2 * u, 2), vr(KV + 8 * w + 2 * u, 2))
            for u in range(2): pk("v_pk_add_f32", vr(VB + 2 * u, 2), vr(VB + 2 * u, 2), vr(VB + 4 * w + 2 * u, 2))
        A("buffer_store_dwordx4 %s, v%d, s[%d:%d], s61 offen sc1" % (vr(VB, 4), V_ZL, SRD_W, SRD_W + 3))
        A("buffer_store_dwordx4 %s, v%d, s[%d:%d], s61 offen sc1" % (vr(KV, 4), V_KS, SRD_W, SRD_W + 3))
        A("buffer_store_dwordx4 %s, v%d, s[%d:%d], s61 offen offset:1024 sc1" % (vr(KV + 4, 4), V_KS, SRD_W, SRD_W + 3))
    if PRE: reda(); stamp()
    else:
        S(reda)
        side.append(("ev", "kvst"))
    def qexp():
        for half in range(2):
            for tb in (2 * half, 2 * half + 1):
                exps(4, tb, PB16 + 8 * (tb & 1))
            for tb in (2 * half, 2 * half + 1):
                e = PB16 + 8 * (tb & 1)
                for h in range(2):
                    p = accb(4 + h, tb)[1]
                    A("v_cvt_pk_bf16_f32 v%d, v%d, v%d" % (QE + 8 * tb + 2 * h, p, p + 1))
                    A("v_cvt_pk_bf16_f32 v%d, v%d, v%d" % (QE + 8 * tb + 2 * h + 1, p + 2, p + 3))
                    A("v_cvt_pk_bf16_f32 v%d, v%d, v%d" % (QE + 8 * tb + 4 + 2 * h, e + 4 * h, e + 4 * h + 1))
                    A("v_cvt_pk_bf16_f32 v%d, v%d, v%d" % (QE + 8 * tb + 4 + 2 * h + 1, e + 4 * h + 2, e + 4 * h + 3))
    QPRE = 1
    side.append(("mark", "qdone"))
    side.append(("join", "kvl"))
    AF = LB + 12; ZQ = 64; KF = 80; AUX = 96
    def oph1():
        for i in range(1, 8):
            for u in range(6): pk("v_pk_add_f32", vr(LB + 2 * u, 2), vr(LB + 2 * u, 2), vr(LB + 12 * i + 2 * u, 2))
        for h in range(2):
            A("v_cvt_pk_bf16_f32 v%d, v%d, v%d" % (AF + 2 * h, LB + 4 * h, LB + 4 * h + 1))
            A("v_cvt_pk_bf16_f32 v%d, v%d, v%d" % (AF + 2 * h + 1, LB + 4 * h + 2, LB + 4 * h + 3))
        A("s_lshl_b32 s3, s%d, 10" % S_W)
        A("v_add_u32 v%d, %d, v%d" % (V_RR, SCR, P_VL))
        A("v_add_u32 v%d, s3, v%d" % (V_RW, V_RR))
        A("ds_write_b128 v%d, %s" % (V_RW, vr(AF, 4)))
        for fblk in range(4):
            for r in range(4):
                A("v_mov_b32_dpp v%d, v%d quad_perm:[%d,%d,%d,%d] row_mask:0xf bank_mask:0xf" % (ZQ + 4 * fblk + r, LB + 8 + r, fblk, fblk, fblk, fblk))
        for fblk in range(4):
            A("v_cvt_pk_bf16_f32 v%d, v%d, v%d" % (AUX + 2 * fblk, ZQ + 4 * fblk, ZQ + 4 * fblk + 1))
            A("v_cvt_pk_bf16_f32 v%d, v%d, v%d" % (AUX + 2 * fblk + 1, ZQ + 4 * fblk + 2, ZQ + 4 * fblk + 3))
        A("v_and_b32 v%d, 3, v1" % ZQ)
        A("v_mov_b32 v%d, 0x3f803f80" % (ZQ + 1))
    S(oph1)
    side.append(["v_cmp_eq_u32 vcc, 1, v%d" % ZQ, "v_cndmask_b32 v%d, 0, v%d, vcc" % (ZQ + 1, ZQ + 1)])
    side.append(["v_cmp_eq_u32 vcc, 0, v%d" % ZQ] + ["v_cndmask_b32 v%d, v%d, v%d, vcc" % (AUX + r, ZQ + 1, AUX + r) for r in range(8)])
    side.append(("bar",))
    S(lambda: [A("ds_read_b128 %s, v%d offset:%d" % (vr(KF + 4 * q, 4), V_RR, q * 1024)) for q in range(4)])
    NN = [48, 64, 104, 120]; NA = [136, 20, 28, 176]
    def auxm():
        for tb in range(4):
            for s in range(2):
                A("v_mfma_f32_16x16x32_bf16 %s, %s, %s, 0" % (vr(NA[tb] + 4 * s, 4), vr(AUX + 4 * s, 4), vr(QE + 8 * tb + 4 * s, 4)))
        for x in NA:
            A("v_rcp_f32 v%d, v%d" % (x + 1, x + 1))
            A("v_rcp_f32 v%d, v%d" % (x + 5, x + 5))
        for x in NA: A("v_fma_f32 v%d, v%d, v%d, s67" % (x + 2, x, x + 1))
        for x in NA: A("v_fma_f32 v%d, v%d, v%d, v%d" % (x + 2, x + 4, x + 5, x + 2))
        for x in NA: A("v_rcp_f32 v%d, v%d" % (x + 2, x + 2))
        for x in NA:
            A("v_mul_f32 v%d, v%d, v%d" % (x, x + 1, x + 2))
            A("v_mul_f32 v%d, v%d, v%d" % (x + 4, x + 5, x + 2))
    S(auxm)
    side.append(("lgkm",))
    def oph2():
        for tb in range(4):
            for s in range(2):
                for db in range(2):
                    A("v_mfma_f32_16x16x32_bf16 %s, %s, %s, 0" % (vr(NN[tb] + 8 * s + 4 * db, 4), vr(KF + 8 * s + 4 * db, 4), vr(QE + 8 * tb + 4 * s, 4)))
        for n, x in zip(NN, NA):
            for u in range(4):
                pk("v_pk_mul_f32", vr(n + 2 * u, 2), vr(n + 2 * u, 2), vr(x, 2), None, "op_sel_hi:[1,0]")
            for u in range(4):
                pk("v_pk_fma_f32", vr(n + 2 * u, 2), vr(n + 8 + 2 * u, 2), vr(x + 4, 2), vr(n + 2 * u, 2), "op_sel_hi:[1,0,1]")
            for u in range(4):
                A("v_cvt_pk_bf16_f32 v%d, v%d, v%d" % (n + 8 + u, n + 2 * u, n + 2 * u + 1))
        for n in NN: doswap(n + 8)
        for tb, n in enumerate(NN):
            A("buffer_store_dwordx4 %s, v%d, s[%d:%d], s%d offen%s" % (vr(n + 8, 4), VH, SRD_W, SRD_W + 3, 63 + tb, SC))
    S(oph2)
    side.append(("ev", "ost"))

    ACC2 = [192, 64]; VG = 48; C1 = 56; PART = 128
    def acc2(s, cb, tb): return vr(ACC2[s] + 4 * (cb * 4 + tb), 4)
    def xf2(p, tb): return ar(32 * p + 4 * tb, 4)
    def wf2(p, cb, half=None):
        b = 32 * p + 16 + 4 * cb
        return ar(b, 4) if half is None else ar(b + 2 * half, 2)
    def dma2(stage, half=False):
        L = [[m0set(0, stage), lda(0)], [lda(1)], [lda(2)], [lda(3)], [m0set(1, stage), ldw(0)], [ldw(1)], [ldw(2)], [ldw(3)]]
        if half:
            ldh = lambda n: "buffer_load_dwordx4 v%d, s[%d:%d], s%d offen offset:%d%s lds" % (P_AH, SRD_A, SRD_A + 3, S_AK, 1024 * n, DSC)
            L = [["s_add_u32 m0, s%d, %d" % (S_M0H, ST2 * stage), ldh(0)], [ldh(1)]] + L[4:]
        L[-1] += ["s_add_u32 s%d, s%d, 2048" % (S_AK, S_AK),
                  "s_add_u32 s%d, s%d, %d" % (S_WK, S_WK, 64 * 2048),
                  "s_add_u32 s%d, s%d, 1" % (S_KT, S_KT),
                  "s_cmp_eq_u32 s%d, s%d" % (S_KT, S_SW),
                  "s_cselect_b32 s%d, s%d, s%d" % (SRD_B, S_B2, SRD_B),
                  "s_cselect_b32 s%d, s%d, s%d" % (SRD_B + 1, S_B2 + 1, SRD_B + 1),
                  "s_cselect_b32 s%d, s%d, s%d" % (SRD_B + 2, S_B2 + 2, SRD_B + 2),
                  "s_cselect_b32 s%d, s%d, s%d" % (S_WK, S_WK0, S_WK),
                  "s_cselect_b32 s%d, s%d, s%d" % (S_AK, S_AK0, S_AK)]
        return L
    def reads2(stage, ks, p, half=False):
        so = stage * ST2
        def xr(tb): return "ds_read_b128 %s, v%d offset:%d" % (xf2(p, tb), P_XRD if tb < 2 else P_XRD2, so + tb * 2048 + ks * 1024)
        def wr(cb, t): return "ds_read_b64_tr_b16 %s, v%d offset:%d" % (wf2(p, cb, t), P_WRD + cb, so + (ks * 32 + 4 * t) * 256)
        R = [xr(0), wr(0, 0), wr(0, 1), xr(1)] + ([] if half else [xr(2), xr(3)])
        for cb in range(1, 4): R += [wr(cb, 0), wr(cb, 1)]
        return R
    V2 = Cnt(63)
    p2 = {"pend": [], "block": None, "events": {}, "done": set(), "bar": -1}
    RATE = O("rate", 100); LAG = O("lag", 3); RADD = O("radd", 0)
    def isvm(x): return x.startswith(("buffer_load", "buffer_store", "buffer_atomic"))
    def out(x):
        if isinstance(x, tuple): V2.tag[x[1]] = V2.n
        else:
            A(x)
            if isvm(x): V2.issue()
    def at(lag, need, fn):
        p2["events"].setdefault(p2["bar"] + lag, []).append((need, fn))
    def spin(lab, reload):
        A("s_mov_b32 s37, 0x40000")
        A.label(lab)
        A("v_cmp_eq_u32 vcc, 1, v%d" % V_PD)
        A("s_nop 0")
        A("s_cmp_eq_u64 vcc, -1")
        A("s_cbranch_scc1 %s_ok" % lab)
        A(reload)
        A("s_sub_u32 s37, s37, 1")
        A("s_waitcnt vmcnt(0)")
        A("s_cbranch_scc0 %s" % lab)
        A.label(lab + "_ok")
    kvpoll = "buffer_load_dword v%d, v%d, s[%d:%d], s%d offen sc1" % (V_PD, V_P4, SRD_W, SRD_W + 3, S_F1)
    opoll = "buffer_load_dword v%d, v%d, s[%d:%d], s%d offen sc1" % (V_PD, P_L4, SRD_W, SRD_W + 3, S_HF)
    def ev_kvst():
        V2.tag["kvst"] = V2.n
        def e2():
            for x in flag_group(45, "s%d" % S_F1): out(x)
            at(1, [], e3)
        def e3():
            out(kvpoll); out(("tag", "kvp")); at(LAG + (1 if PRE and not QPRE else 0), ["kvp"], e4)
        def e4():
            assert "qdone" in p2["done"], "q path not finished before the kv loads"
            spin("L_kvpoll", kvpoll)
            L = []
            for i in range(8):
                L.append(["buffer_load_dwordx4 %s, v%d, s[%d:%d], s%d offen sc1" % (vr(LB + 12 * i, 4), V_KL, SRD_W, SRD_W + 3, S_KVB)])
                L.append(["buffer_load_dwordx4 %s, v%d, s[%d:%d], s%d offen offset:2048 sc1" % (vr(LB + 12 * i + 4, 4), V_KL, SRD_W, SRD_W + 3, S_KVB)])
                L.append(["buffer_load_dwordx4 %s, v%d, s[%d:%d], s%d offen sc1" % (vr(LB + 12 * i + 8, 4), V_ZL, SRD_W, SRD_W + 3, S_KVB),
                          "s_add_u32 s%d, s%d, 9216" % (S_KVB, S_KVB)])
            L[-1].append(("tag", "kvl"))
            p2["pend"] += L
            at(LAG, ["kvl"], lambda: p2["done"].add("kvl"))
        if PRE: at(1, [], e3)
        else: at(LAG, ["kvst"], e2)
    def ev_ost():
        V2.tag["ost"] = V2.n
        def e6():
            for x in flag_group(77, "s47"): out(x)
            at(max(1, NPEEL - 1 - LAG - p2["bar"]), [], e7)
        def e7():
            out(opoll); out(("tag", "op")); at(LAG, ["op"], e8)
        def e8():
            spin("L_opoll", opoll); p2["done"].add("ochk"); print("o check at barrier", p2["bar"], file=sys.stderr)
            for tb in range(4):
                if tb == 2: out("s_lshl_b32 s3, s%d, 8" % S_KH); out("v_subrev_u32 v%d, s3, v%d" % (P_GA, P_GA))
                out("buffer_load_dword v%d, v%d, s[%d:%d], 0 offen offset:%d sc1" % (VG + 2 * tb, P_GA, SRD_W, SRD_W + 3, 64 * tb))
        at(LAG + O("olag", 0), ["ost"], e6)
    EV = {"kvst": ev_kvst, "ost": ev_ost}
    def cost(x): return 2 if x.startswith(TRANS + ("v_mfma",)) else 1
    def side_step(budget):
        while budget > 0 and side and p2["block"] is None:
            x = side[0]
            if isinstance(x, tuple):
                if x[0] in ("bar", "lgkm"): p2["block"] = x[0]; side.pop(0)
                elif x[0] == "ev": side.pop(0); EV[x[1]]()
                elif x[0] == "mark": side.pop(0); p2["done"].add(x[1])
                elif x[0] == "join":
                    if x[1] in p2["done"]: side.pop(0)
                    else: return
                continue
            side.pop(0)
            for y in (x if isinstance(x, list) else [x]):
                out(y); budget -= cost(y)
    def tile2(t):
        stage = t % NS; half = t >= NH; has_next = t + 1 < NT2
        aset = 0 if t < NF1 else 1
        first = t in (0, NF1, NH)
        ntb = 2 if half else 4; NG = 4 * ntb
        for ks in range(2):
            rd = reads2(stage, 1, 1, half) if ks == 0 else (reads2((stage + 1) % NS, 0, 0, t + 1 >= NH) if has_next else [])
            evs = []
            if ks == 1 and has_next:
                assert not p2["pend"]
                evs = p2["events"].pop(t, [])
                vm = V2.wait_for([("D", t + 1)] + [x for need, fn in evs for x in need])
                A("s_waitcnt lgkmcnt(0) vmcnt(%d)" % vm); A("s_barrier")
                p2["bar"] = t
                p2["block"] = None
            else:
                A("s_waitcnt lgkmcnt(0)")
                if p2["block"] == "lgkm": p2["block"] = None
            if ks == 1:
                for need, fn in evs: fn()
                if t + NS < NT2:
                    d = dma2(stage, t + NS >= NH)
                    d[-1] = d[-1] + [("tag", ("D", t + NS))]
                    p2["pend"] += d
            g = 0; k = 0
            for cb in range(4):
                for tb in range(ntb):
                    c = "0" if (first and ks == 0) else acc2(aset, cb, tb)
                    A("v_mfma_f32_16x16x32_bf16 %s, %s, %s, %s" % (acc2(aset, cb, tb), wf2(ks, cb), xf2(ks, tb), c))
                    nr = 1 if len(rd) - k <= NG - g else 2
                    busy = k < len(rd)
                    for _ in range(nr):
                        if k < len(rd): A(rd[k]); k += 1
                    left = (NG - g) + ((8 if t + 1 >= NH else 16) if ks == 1 else 0)
                    if p2["pend"] and (g % (NG // 4) == NG // 4 - 1 or len(p2["pend"]) * (NG // 4) > left + 3):
                        for _ in range(1 + (len(p2["pend"]) > left)):
                            if p2["pend"]:
                                for x in p2["pend"].pop(0): out(x)
                    side_step(p2.get("rate", RATE) + (0 if busy else 1))
                    g += 1
    A("s_mov_b32 s37, 0x40000")
    A("s_waitcnt vmcnt(3)")
    A.label("L_hpoll")
    A("v_cmp_eq_u32 vcc, 1, v%d" % V_PD)
    A("s_nop 0")
    A("s_or_b64 vcc, vcc, s[68:69]")
    A("s_cmp_eq_u64 vcc, -1")
    A("s_cbranch_scc1 L_hpoll_ok")
    A(hld)
    A("s_sub_u32 s37, s37, 1")
    A("s_waitcnt vmcnt(0)")
    A("s_cbranch_scc0 L_hpoll")
    A.label("L_hpoll_ok")
    stamp(); stamp.real()
    def adma(stg):
        return [[m0set(0, stg), lda(0)], [lda(1)], [lda(2)], [lda(3), "s_add_u32 s%d, s%d, 2048" % (S_AK, S_AK), ("tag", ("D", stg))]]
    for stg in range(2):
        for g in adma(stg):
            for x in g: out(x)
    A("s_add_u32 s%d, s%d, s47" % (S_HF, S_HF))
    qexp()
    GX = 80
    for r in range(32): A("v_accvgpr_read_b32 v%d, a%d" % (GX + r, AG + r))
    A("v_mov_b32 v112, 0"); A("v_mov_b32 v113, 0")
    for q in range(8):
        A("v_dot2c_f32_bf16 v112, v%d, v%d" % (GX + 2 * q, GX + 16 + 2 * q))
        A("v_dot2c_f32_bf16 v113, v%d, v%d" % (GX + 2 * q + 1, GX + 16 + 2 * q + 1))
    A("s_lshl_b32 s3, s%d, 8" % S_I)
    A("v_add_u32 v0, s3, v0")
    A("v_lshlrev_b32 v0, 2, v0")
    A("v_add_f32 v112, v112, v113")
    for sh in (8, 4, 2, 1):
        A("v_add_f32_dpp v112, v112, v112 row_ror:%d row_mask:0xf bank_mask:0xf" % sh)
    A("v_mov_b32 v113, v112")
    A("v_permlane16_swap_b32 v112, v113")
    A("v_add_f32 v112, v112, v113")
    A("v_mul_f32 v112, s%d, v112" % S_C)
    A("v_exp_f32 v112, -v112")
    A("v_add_f32 v112, 1.0, v112")
    A("v_rcp_f32 v112, v112")
    A("v_add_u32 v0, %d, v0" % WS_G)
    A("s_waitcnt vmcnt(4)")
    out("buffer_store_dword v112, v0, s[%d:%d], 0 offen sc1" % (SRD_W, SRD_W + 3))
    for x in flag_group(45, "s%d" % S_F1): out(x)
    ev_kvst()
    A("s_barrier")
    for x in reads2(0, 0, 0): A(x)
    stamp(); stamp.real()
    p2["pend"] = adma(2) + adma(3)
    if STAMP == 4: stamp.off = False; stamp(); stamp.off = True
    C2 = 20
    XB16 = O("xb16", 1)
    for t in range(NT2):
        if t == NPEEL:
            assert not side and not p2["events"] and "ochk" in p2["done"], (len(side), p2["events"].keys())
            stamp()
        if t == NF1:
            side.append("s_sub_u32 s3, s%d, %d" % (S_XF, WS_FLG))
            side.append("s_lshl_b32 s3, s3, 7")
            side.append("s_add_u32 s60, s3, %d" % WS_XCH)
            side.append("s_add_u32 s61, s60, 4096")
            side.append("s_xor_b32 s62, s60, 32768" if 0 else "s_xor_b32 s3, s3, 32768")
            side.append("s_add_u32 s62, s3, %d" % WS_XCH)
            side.append("s_add_u32 s63, s62, 4096")
            side.append("s_xor_b32 s64, s%d, 256" % S_XF)
            for tb in range(4): side.append("v_sub_f32 v%d, 1.0, v%d" % (C1 + 2 * tb, VG + 2 * tb))
            side.append(["s_cmp_eq_u32 s%d, 1" % S_KH, "s_cselect_b64 vcc, -1, 0"] +
                        ["v_cndmask_b32 v%d, v%d, v%d, vcc" % (C2 + 2 * tb, C1 + 2 * tb, VG + 2 * tb) for tb in range(4)])
            for cb in range(4):
                for tb in range(4):
                    for r in range(4):
                        a0 = ACC2[0] + 4 * (cb * 4 + tb) + r
                        side.append("v_mul_f32 v%d, v%d, v%d" % (a0, a0, C1 + 2 * tb))
            p2["rate"] = 1
        if t == NH:
            assert not side
            stamp()
            for tbs in ((2, 3), (0, 1)):
                for tb in tbs:
                    for cb in range(4):
                        a0 = ACC2[0] + 4 * (cb * 4 + tb); a1 = ACC2[1] + 4 * (cb * 4 + tb)
                        for u in range(2):
                            A("v_pk_fma_f32 %s, %s, %s, %s op_sel_hi:[1,0,1]" % (vr(a0 + 2 * u, 2), vr(a1 + 2 * u, 2), vr(C2 + 2 * tb, 2), vr(a0 + 2 * u, 2)))
                    if tb >= 2 and XB16:
                        for cb in range(4):
                            a0 = ACC2[0] + 4 * (cb * 4 + tb); d = 160 + 8 * (tb - 2) + 2 * cb
                            A("v_cvt_pk_bf16_f32 v%d, v%d, v%d" % (d, a0, a0 + 1))
                            A("v_cvt_pk_bf16_f32 v%d, v%d, v%d" % (d + 1, a0 + 2, a0 + 3))
                        for q in range(2):
                            out("buffer_store_dwordx4 %s, v%d, s[%d:%d], s60 offen offset:%d sc1" % (vr(160 + 8 * (tb - 2) + 4 * q, 4), P_VL, SRD_W, SRD_W + 3, (tb - 2) * 2048 + q * 1024))
                    elif tb >= 2:
                        for cb in range(4):
                            out("buffer_store_dwordx4 %s, v%d, s[%d:%d], s%d offen offset:%d sc1" % (acc2(0, cb, tb), P_VL, SRD_W, SRD_W + 3, 60 + tb - 2, cb * 1024))
            out(("tag", "xst"))
            xpoll = "buffer_load_dword v%d, v%d, s[%d:%d], s64 offen sc1" % (V_PD, P_Z0, SRD_W, SRD_W + 3)
            def x1():
                for x in flag_group(S_XF, "0"): out(x)
            def x2():
                out(xpoll); out(("tag", "xp"))
            def x3():
                spin("L_xpoll", xpoll)
                if XB16:
                    for q in range(4):
                        out("buffer_load_dwordx4 %s, v%d, s[%d:%d], s62 offen offset:%d sc1" % (vr(176 + 4 * q, 4), P_VL, SRD_W, SRD_W + 3, q * 1024))
                    return
                for tb in range(2):
                    for cb in range(4):
                        out("buffer_load_dwordx4 %s, v%d, s[%d:%d], s%d offen offset:%d sc1" % (vr(PART + 4 * (cb * 4 + tb), 4), P_VL, SRD_W, SRD_W + 3, 62 + tb, cb * 1024))
            XL = O("xlag", 2)
            at(XL, ["xst"], x1)
            p2["events"].setdefault(NT2 - 2 - O("xpl", 2), []).append(([], x2))
            p2["events"].setdefault(NT2 - 2, []).append((["xp"], x3))
        tile2(t)
        if STAMP == 3 and (t % 2 == 1) and t >= 10: stamp.off = False; stamp(); stamp.off = True
        if STAMP == 4 and t < 16: stamp.off = False; stamp(); stamp.off = True
    assert not p2["pend"] and not p2["events"]
    stamp(); stamp.real()
    VO = 49
    A("v_lshlrev_b32 v%d, 11, v%d" % (VO, P_TOK))
    A("v_bfe_u32 v51, v1, 4, 1")
    A("v_lshl_add_u32 v%d, v51, 5, v%d" % (VO, VO))
    A("v_lshrrev_b32 v51, 5, v1")
    A("v_lshl_add_u32 v%d, v51, 4, v%d" % (VO, VO))
    A("s_lshl_b32 s72, s%d, 8" % S_NT)
    A("s_lshl_b32 s3, s%d, 7" % S_WN)
    A("s_add_u32 s72, s72, s3")
    OSC = " sc1" if O("osc1", 1) else ""
    for tb in range(2):
        for cb in range(4):
            a0 = ACC2[0] + 4 * (cb * 4 + tb); a1 = ACC2[1] + 4 * (cb * 4 + tb)
            for u in range(2):
                A("v_pk_fma_f32 %s, %s, %s, %s op_sel_hi:[1,0,1]" % (vr(a0 + 2 * u, 2), vr(a1 + 2 * u, 2), vr(VG + 2 * tb, 2), vr(a0 + 2 * u, 2)))
    for tb in range(2):
        A("s_waitcnt vmcnt(%d)" % ((2 if XB16 else 4) if tb == 0 else 2))
        if XB16:
            for cb in range(4):
                for u in range(2):
                    src = 176 + 8 * tb + 2 * cb + u; pp = PART + 4 * (cb * 4 + tb) + 2 * u
                    A("v_lshlrev_b32 v%d, 16, v%d" % (pp, src))
                    A("v_and_b32 v%d, 0xffff0000, v%d" % (pp + 1, src))
        for cb in range(4):
            a0 = ACC2[0] + 4 * (cb * 4 + tb); pp = PART + 4 * (cb * 4 + tb)
            for u in range(2):
                A("v_pk_add_f32 %s, %s, %s" % (vr(a0 + 2 * u, 2), vr(a0 + 2 * u, 2), vr(pp + 2 * u, 2)))
        for cp in range(2):
            d = 28 + 8 * tb + 4 * cp
            for h in range(2):
                a0 = ACC2[0] + 4 * ((2 * cp + h) * 4 + tb)
                A("v_cvt_pk_bf16_f32 v%d, v%d, v%d" % (d + 2 * h, a0, a0 + 1))
                A("v_cvt_pk_bf16_f32 v%d, v%d, v%d" % (d + 2 * h + 1, a0 + 2, a0 + 3))
        for cp in range(2): doswap(28 + 8 * tb + 4 * cp)
        for cp in range(2):
            d = 28 + 8 * tb + 4 * cp
            A("buffer_store_dwordx4 %s, v%d, s[%d:%d], s72 offen offset:%d%s" % (vr(d, 4), VO, SRD_O, SRD_O + 3, cp * 64, OSC))
        A("s_add_u32 s72, s72, 32768")
    A.label("L_k2_out")
    stamp.finish(S_W, SRD_W, 38, "L_k1_end")
    A.label("L_k1_end")
    A("s_endpgm")
    A.label("L_code_end")
    return name, LDS

A = Asm()
n1, l1 = gen_k1(A)
hdr = ""
hdr += "; @launch grid=(256,1,1) block=(256,1,1) lds=%d\n" % l1
hdr += '.amdgcn_target "amdgcn-amd-amdhsa--gfx950"\n.text\n'
txt = hdr + A.text() + '.section .rodata,"a"\n' + kernel_desc(n1, 512, 256)
open(OUT, "w").write(txt)
```

```python
import sys
from asmlib import *
from asmlib import TRANS, parse

opts = dict(a.split("=") if "=" in a else (a, "1") for a in sys.argv[2:])
OUT = sys.argv[1]
O = lambda k, d: int(opts.get(k, d))
TOUCH = O("touch", 1)
STAMP = O("stamp", 0)
ONLY = O("only", 0)
HSC1 = O("hsc1", 0)
K2MAP = O("k2map", 0)
NH = O("nh", 32)
K2NODMA = O("k2nodma", 0); K2NOMFMA = O("k2nomfma", 0); K2NOLDS = O("k2nolds", 0); K2SEL = opts.get("k2sel", "aw")

MBS = 144 * 1024
WS_G = 0x1200000
WS_KVP = 0x1210000
WS_FLG = 0x1480000
WS_FLGH = 0x1494000
WS_FLGO = 0x1498000
WS_FLG1 = 0x1490000
WS_STAMP = 0x14A0000
WS_XCH = 0x1500000
WS_SIZE = WS_XCH + 128 * 65536
LOG2E = 0x3FB8AA3B
SC = " sc1"
INV = O("inv", 0)
DSC = " sc1" if O("dsc1", 1) else ""

class Cnt:
    def __init__(self, cap): self.n = 0; self.tag = {}; self.cap = cap
    def issue(self, tag=None, k=1):
        self.n += k
        if tag is not None: self.tag[tag] = self.n
    def wait_for(self, tags):
        last = max(self.tag[t] for t in tags)
        return min(self.n - last, self.cap)

class Stamper:
    def __init__(self, A, kidx): self.A = A; self.regs = []; self.k = kidx
    def start(self):
        if STAMP:
            self.A("s_memrealtime s[78:79]"); self.A("s_memtime s[80:81]")
    off = False
    def __call__(self, wait=True):
        if STAMP and not self.off:
            r = 82 + len(self.regs); assert r <= 99; self.regs.append(r)
            self.A("s_memtime s[100:101]")
            self.A("s_waitcnt lgkmcnt(0)")
            self.A("s_mov_b32 s%d, s100" % r)
    def real(self):
        if STAMP and not self.off:
            r = 82 + len(self.regs); assert r <= 99; self.regs.append(-r)
            self.A("s_memrealtime s[100:101]")
            self.A("s_waitcnt lgkmcnt(0)")
            self.A("s_mov_b32 s%d, s100" % r)
    def finish(self, swave, srd, T, endlabel):
        if not STAMP: return
        A = self.A
        A("s_waitcnt vmcnt(0)")
        A("s_memtime s[4:5]"); A("s_memrealtime s[6:7]")
        A("s_waitcnt lgkmcnt(0)")
        A("s_cmp_eq_u32 s%d, 0" % swave); A("s_cbranch_scc0 %s" % endlabel)
        A("s_lshl_b32 s3, s2, 7")
        A("s_add_u32 s3, s3, %d" % WS_STAMP)
        A("v_mov_b32 v%d, 0" % (T + 1))
        items = [(78, None), (6, None), (4, 80)] + [(abs(r), 80 if r > 0 else 78) for r in self.regs]
        if O("dbgstamp", 0):
            A("s_cmp_eq_u32 s2, %d" % O("dbgstamp", 0)); A("s_cbranch_scc0 %s" % endlabel)
            A("s_mov_b32 s3, 0"); srd = 48
            items = [(6, 78), (4, 80)] + items[3:17]
        for q, (s, b) in enumerate(items):
            if b is None: A("v_mov_b32 v%d, s%d" % (T, s))
            else:
                A("s_sub_u32 s5, s%d, s%d" % (s, b)); A("v_mov_b32 v%d, s5" % T)
            A("buffer_store_dword v%d, v%d, s[%d:%d], s3 offen offset:%d" % (T, T + 1, srd, srd + 3, 4 * q))

def mk_srd(A, b, lo, hi, addsgpr, size):
    if addsgpr is None:
        A("s_mov_b32 s%d, s%d" % (b, lo)); A("s_mov_b32 s%d, s%d" % (b + 1, hi))
        A("s_mov_b32 s%d, %d" % (b + 2, size))
    else:
        A("s_add_u32 s%d, s%d, s%d" % (b, lo, addsgpr)); A("s_addc_u32 s%d, s%d, 0" % (b + 1, hi))
        A("s_sub_u32 s%d, %d, s%d" % (b + 2, size, addsgpr))
    A("s_mov_b32 s%d, 0x20000" % (b + 3))


def k2ids(A, mt, nt, kh, xf):
    A("s_and_b32 s%d, s2, 1" % kh)
    if O("swap", 1): A("s_xor_b32 s%d, s%d, 1" % (kh, kh))
    A("s_bfe_u32 s%d, s2, 0x30003" % mt)
    A("s_bfe_u32 s3, s2, 0x10001")
    A("s_lshl_b32 s3, s3, 3")
    A("s_add_u32 s%d, s%d, s3" % (mt, mt))
    A("s_lshr_b32 s%d, s2, 6" % nt)
    A("s_bfe_u32 s3, s2, 0x10002")
    A("s_lshl_b32 s3, s3, 2")
    A("s_add_u32 s%d, s%d, s3" % (nt, nt))
    A("s_lshl_b32 s3, s%d, 3" % mt)
    A("s_add_u32 s3, s3, s%d" % nt)
    A("s_lshl_b32 s3, s3, 1")
    A("s_add_u32 s3, s3, s%d" % kh)
    A("s_lshl_b32 s3, s3, 2")
    A("s_add_u32 s3, s3, s26")
    A("s_lshl_b32 s%d, s3, 6" % xf)
    A("s_add_u32 s%d, s%d, %d" % (xf, xf, WS_FLG))

def gen_k1(A):
    name = "gated_mix__linear_kernel_hedgehog__glu_gated_glu__prompt_kernel"
    kernel_open(A, name)
    BK = 64
    XB = 0; QB = 32768; GB = QB + 64 * 192; UB = GB + 64 * 224 + 128
    STAGE = (UB + 64 * 224 + 255) // 256 * 256
    WPB = 2 * STAGE
    SCR = 131072
    LDS = 163840
    S_I, S_J, S_W, S_CNT, S_XK, S_QK, S_GK, S_TK, S_TSTEP = 24, 25, 26, 27, 28, 29, 30, 31, 37
    S_M0 = 32
    SRD_X, SRD_Q, SRD_G, SRD_W, SRD_T, SRD_P, SRD_D = 8, 12, 16, 20, 68, 72, 48
    S_C = 38
    V_DMA, V_XRD, V_QRD, V_GRD, V_TCH = 2, 20, 24, 28, 30
    T = 32
    NVACC = 208; V_ACC = 48
    A_X = 0; A_WR = 32; RING = 8; A_ACC = 144
    NTB = 4; NCB = 20; D = O("dd", 6)
    BLK = [("q", 1, 0), ("q", 1, 1), ("q", 2, 0), ("q", 2, 1), ("q", 0, 0), ("q", 0, 1)] + [(t, b) for b in range(7) for t in "gu"]
    def accb(cb, tb):
        b = (cb * NTB + tb) * 4
        return ("v", V_ACC + b) if b < NVACC else ("a", A_ACC + b - NVACC)
    def acc(cb, tb):
        f, b = accb(cb, tb); return "%s[%d:%d]" % (f, b, b + 3)
    def xf(p, tb): return ar(A_X + 16 * p + 4 * tb, 4)
    def wf(n, half=None):
        b = A_WR + 4 * (n % RING)
        return ar(b, 4) if half is None else ar(b + 2 * half, 2)
    stamp = Stamper(A, 0)
    VM = Cnt(63)

    A("s_load_dwordx4 s[4:7], s[0:1], 0")
    A("s_load_dwordx4 s[52:55], s[0:1], 40")
    A("s_load_dwordx4 s[56:59], s[0:1], 80")
    A("s_load_dwordx2 s[66:67], s[0:1], 16")
    A("s_load_dwordx4 s[40:43], s[0:1], 56")
    A("s_cmp_ge_u32 s2, 256")
    A("s_cbranch_scc1 L_k1_end")
    stamp.start()
    if STAMP >= 3: stamp.off = True
    if O("ctouch", 1):
        A("s_getpc_b64 s[72:73]")
        A.label("L_pc")
        A("s_mov_b32 s74, L_code_end-L_pc")
        A("s_mov_b32 s75, 0x20000")
        A("s_and_b32 s73, s73, 0xffff")
        A("v_lshrrev_b32 v%d, 6, v0" % T)
        A("v_lshlrev_b32 v%d, 9, v%d" % (T, T))
        A("v_and_b32 v%d, 63, v0" % (T + 1))
        A("v_lshl_add_u32 v%d, v%d, 7, v%d" % (T, T + 1, T))
        A("s_lshr_b32 s3, s2, 3")
        A("s_lshl_b32 s3, s3, 11")
        A("v_cmp_gt_u32 vcc, 4, v%d" % (T + 1))
        A("v_mov_b32 v%d, 0x7ffffff0" % (T + 2))
        A("v_cndmask_b32 v%d, v%d, v%d, vcc" % (T, T + 2, T))
        A("buffer_load_dword v%d, v%d, s[72:75], s3 offen" % (V_TCH + 1, T)); VM.issue()
    A("v_lshrrev_b32 v1, 6, v0")
    A("s_lshr_b32 s%d, s2, 3" % S_I)
    A("s_and_b32 s%d, s%d, 7" % (S_I, S_I))
    A("v_readfirstlane_b32 s%d, v1" % S_W)
    A("s_and_b32 s3, s2, 7")
    A("s_lshl_b32 s3, s3, 2")
    A("s_lshr_b32 s%d, s2, 6" % S_J)
    A("s_add_u32 s%d, s%d, s3" % (S_J, S_J))
    A("v_and_b32 v1, 63, v0")
    A("v_lshrrev_b32 v%d, 3, v1" % T)
    A("v_lshlrev_b32 v%d, 11, v%d" % (T, T))
    A("v_and_b32 v%d, 7, v1" % (T + 1))
    A("v_lshrrev_b32 v%d, 4, v1" % (T + 2))
    A("v_xor_b32 v%d, v%d, v%d" % (T + 1, T + 1, T + 2))
    A("v_lshl_add_u32 v%d, v%d, 4, v%d" % (T, T + 1, T))
    A("s_lshl_b32 s3, s%d, 17" % S_W)
    A("v_add_u32 v%d, s3, v%d" % (T, T))
    A("v_xor_b32 v%d, 64, v%d" % (T + 1, T))
    plan = []
    for n in range(8):
        A("v_add_u32 v%d, %d, v%d" % (V_DMA + n, n * 16384 - 1024 * (n & 3), T + (n & 1)))
        plan.append((V_DMA + n, SRD_X, S_XK, n // 4 if n % 4 == 0 else None, 1024 * (n & 3)))
    for q in range(3): plan.append((V_DMA + 8 + q, SRD_Q, S_QK, 2 if q == 0 else None, 1024 * q))
    for g in range(7): plan.append((V_DMA + 11 + g, SRD_G, S_GK, 3 + g // 4 if g % 4 == 0 else None, 1024 * (g & 3)))
    LD = len(plan)
    A("s_lshl_b32 s%d, s%d, 13" % (S_M0, S_W))
    A("s_add_u32 s%d, s%d, 4096" % (S_M0 + 1, S_M0))
    A("s_mul_i32 s%d, s%d, 3072" % (S_M0 + 2, S_W))
    A("s_add_u32 s%d, s%d, %d" % (S_M0 + 2, S_M0 + 2, QB))
    A("s_and_b32 s3, s%d, 1" % S_W)
    A("s_mul_i32 s3, s3, 7168")
    A("s_cmp_ge_u32 s%d, 2" % S_W)
    A("s_mov_b32 s60, %d" % GB)
    A("s_cselect_b32 s%d, %d, s60" % (S_M0 + 3, UB))
    A("s_add_u32 s%d, s%d, s3" % (S_M0 + 3, S_M0 + 3))
    A("s_add_u32 s%d, s%d, 4096" % (S_M0 + 4, S_M0 + 3))
    for s in (S_XK, S_QK, S_GK): A("s_mov_b32 s%d, 0" % s)
    def dma_list(stage):
        L = []
        for (v, sd, so, m0i, off) in plan:
            g = []
            if m0i is not None:
                g.append("s_mov_b32 m0, s%d" % (S_M0 + m0i) if stage == 0 else "s_add_u32 m0, s%d, %d" % (S_M0 + m0i, STAGE * stage))
            dnt = O("dnt", 0)
            g.append("buffer_load_dwordx4 v%d, s[%d:%d], s%d offen offset:%d%s lds" % (v, sd, sd + 3, so, off, " nt" if (dnt == 1 or (dnt == 2 and sd != SRD_X) or (dnt == 3 and sd == SRD_X)) else ""))
            L.append(g)
        L[-1] += ["s_add_u32 s%d, s%d, %d" % (S_XK, S_XK, BK * 2),
                  "s_add_u32 s%d, s%d, %d" % (S_GK, S_GK, BK * 7168),
                  "s_add_u32 s%d, s%d, %d" % (S_QK, S_QK, BK * 6144)]
        return L
    def emit(groups):
        for g in groups:
            for s in g: A(s)
            VM.issue()
    def rowperm(dst, src, tmp):
        A("v_and_b32 v%d, 0xfffffff3, v%d" % (dst, src))
        A("v_bfe_u32 v%d, v%d, 2, 1" % (tmp, src))
        A("v_lshl_or_b32 v%d, v%d, 3, v%d" % (dst, tmp, dst))
        A("v_bfe_u32 v%d, v%d, 3, 1" % (tmp, src))
        A("v_lshl_or_b32 v%d, v%d, 2, v%d" % (dst, tmp, dst))
    NEARLY = O("nearly", 1); NLATE = O("nlate", 1)
    XF = O("xfirst", 0)
    def touch_vec():
        if TOUCH:
            A("s_lshr_b32 s60, s2, 6")
            A("s_and_b32 s61, s%d, 1" % S_W)
            A("s_lshl_b32 s3, s60, 6")
            A("v_add_u32 v%d, s3, v1" % (T + 4))
            A("v_lshlrev_b32 v%d, 11, v%d" % (T + 4, T + 4))
            A("s_lshl_b32 s3, s61, 7")
            A("v_add_u32 v%d, s3, v%d" % (T + 4, T + 4))
            A("s_lshl_b32 s62, s%d, 4" % S_I)
            A("s_lshl_b32 s3, s61, 3")
            A("s_add_u32 s62, s62, s3")
            A("s_and_b32 s63, s%d, 28" % S_J)
            A("v_mul_u32_u24 v%d, 10923, v1" % (T + 5))
            A("v_lshrrev_b32 v%d, 16, v%d" % (T + 5, T + 5))
            A("v_mul_u32_u24 v%d, 6, v%d" % (T + 6, T + 5))
            A("v_sub_u32 v%d, v1, v%d" % (T + 6, T + 6))
            A("v_add_u32 v%d, s62, v%d" % (T + 5, T + 5))
            A("v_mul_u32_u24 v%d, 6144, v%d" % (T + 5, T + 5))
            A("v_lshrrev_b32 v%d, 1, v%d" % (T + 7, T + 6))
            A("v_lshl_add_u32 v%d, v%d, 11, v%d" % (T + 5, T + 7, T + 5))
            A("v_and_b32 v%d, 1, v%d" % (T + 6, T + 6))
            A("v_lshl_add_u32 v%d, v%d, 7, v%d" % (T + 5, T + 6, T + 5))
            A("s_lshl_b32 s3, s63, 6")
            A("v_add_u32 v%d, s3, v%d" % (T + 5, T + 5))
            A("v_mov_b32 v%d, 0x7ffffff0" % (T + 9))
            A("v_cmp_gt_u32 vcc, 48, v1")
            A("v_cndmask_b32 v%d, v%d, v%d, vcc" % (T + 5, T + 9, T + 5))
            A("v_mul_u32_u24 v%d, 9363, v1" % (T + 6))
            A("v_lshrrev_b32 v%d, 16, v%d" % (T + 6, T + 6))
            A("v_mul_u32_u24 v%d, 7, v%d" % (T + 7, T + 6))
            A("v_sub_u32 v%d, v1, v%d" % (T + 7, T + 7))
            A("v_add_u32 v%d, s62, v%d" % (T + 6, T + 6))
            A("v_mul_u32_u24 v%d, 7168, v%d" % (T + 6, T + 6))
            A("v_lshl_add_u32 v%d, v%d, 7, v%d" % (T + 6, T + 7, T + 6))
            A("s_mul_i32 s3, s63, 224")
            A("v_add_u32 v%d, s3, v%d" % (T + 6, T + 6))
            A("v_cmp_gt_u32 vcc, 56, v1")
            A("v_cndmask_b32 v%d, v%d, v%d, vcc" % (T + 6, T + 9, T + 6))
            A("s_and_b32 s3, s2, 63")
            A("s_lshl_b32 s3, s3, 1")
            A("s_add_u32 s3, s3, s61")
            A("s_lshl_b32 s3, s3, 13")
            A("v_lshlrev_b32 v%d, 7, v1" % (T + 7))
            A("v_add_u32 v%d, s3, v%d" % (T + 7, T + 7))
    if not XF: touch_vec()
    A("s_waitcnt lgkmcnt(0)")
    if O("probe", 0):
        PST = O("pstride", 21)
        A("s_bfe_u32 s64, s2, 0x30003")
        A("s_mov_b32 s72, s4"); A("s_mov_b32 s73, s5"); A("s_mov_b32 s74, %d" % (2048 * 2048))
        for cls, (lo, size) in enumerate([(6, 1024 * 6144), (52, 1024 * 7168), (54, 1024 * 7168), (58, WS_SIZE), (56, 256), (66, 65536), (40, 3584 * 2048)], 1):
            A("s_cmp_eq_u32 s64, %d" % cls)
            A("s_cselect_b32 s72, s%d, s72" % lo); A("s_cselect_b32 s73, s%d, s73" % (lo + 1)); A("s_cselect_b32 s74, %d, s74" % size)
        A("s_cmp_eq_u32 s%d, 0" % S_W)
        A("s_cselect_b32 s74, s74, 0")
        A("v_lshlrev_b32 v%d, %d, v1" % (T + 10, PST))
        A("buffer_load_dword v%d, v%d, s[72:75], 0 offen" % (V_TCH + 1, T + 10)); VM.issue()
    A("s_lshl_b32 s64, s%d, 19" % S_I)
    mk_srd(A, SRD_X, 4, 5, 64, 2048 * 2048)
    D0 = dma_list(0)
    if XF:
        emit(D0[0:8]); touch_vec()
    if TOUCH:
        def sel(cond_sgpr, val, voff, lo, hi, size, step, start):
            A("s_cmp_eq_u32 s%d, %d" % (cond_sgpr, val))
            A("s_cselect_b64 vcc, -1, 0")
            A("s_cselect_b32 s%d, s%d, s%d" % (SRD_T, lo, SRD_T))
            A("s_cselect_b32 s%d, s%d, s%d" % (SRD_T + 1, hi, SRD_T + 1))
            A("s_cselect_b32 s%d, %d, s%d" % (SRD_T + 2, size, SRD_T + 2))
            A("s_cselect_b32 s%d, %d, s%d" % (S_TSTEP, step, S_TSTEP))
            A("s_cselect_b32 s%d, %d, s%d" % (S_TK, start, S_TK))
            A("v_cndmask_b32 v%d, v%d, v%d, vcc" % (V_TCH, V_TCH, voff))
        A("s_mov_b32 s%d, s6" % SRD_T); A("s_mov_b32 s%d, s7" % (SRD_T + 1))
        A("s_mov_b32 s%d, %d" % (SRD_T + 2, 1024 * 6144)); A("s_mov_b32 s%d, 0x20000" % (SRD_T + 3))
        A("s_mov_b32 s%d, %d" % (S_TSTEP, 128 * 6144))
        A("s_mov_b32 s%d, %d" % (S_TK, 0 if NEARLY else 128 * 6144))
        A("v_mov_b32 v%d, v%d" % (V_TCH, T + 5))
        sel(60, 1, T + 6, 52, 53, 1024 * 7168, 128 * 7168, 0 if NEARLY else 128 * 7168)
        sel(60, 2, T + 6, 54, 55, 1024 * 7168, 128 * 7168, 0 if NEARLY else 128 * 7168)
        sel(60, 3, T + 7, 40, 41, 3584 * 2048, 1 << 20, (1 << 32) - (NEARLY << 20) if NEARLY else 0)
        A("s_lshr_b32 s61, s%d, 1" % S_W)
        sel(61, 0, T + 4, SRD_X, SRD_X + 1, 256 * 2048, 256, 0 if NEARLY else 256)
        def touch():
            ld = "buffer_load_dword v%d, v%d, s[%d:%d], s%d offen" % (V_TCH + 1, V_TCH, SRD_T, SRD_T + 3, S_TK)
            if O("tnt", 0) == 1:
                l1 = A.newlabel("L_t"); l2 = A.newlabel("L_t")
                return ["s_cmp_eq_u32 s%d, %d" % (S_TSTEP, 1 << 20), "s_cbranch_scc1 %s" % l1, ld, "s_branch %s" % l2, l1 + ":", ld + " nt", l2 + ":",
                        "s_add_u32 s%d, s%d, s%d" % (S_TK, S_TK, S_TSTEP)]
            return [ld + (" nt" if O("tnt", 0) == 2 else ""), "s_add_u32 s%d, s%d, s%d" % (S_TK, S_TK, S_TSTEP)]
        emit([touch() for _ in range(NEARLY)])
    if not XF: emit(D0[0:8])
    A("s_cmp_ge_u32 s%d, 2" % S_W)
    A("s_cselect_b32 s60, s54, s52")
    A("s_cselect_b32 s61, s55, s53")
    A("s_mul_i32 s3, s%d, 224" % S_J)
    mk_srd(A, SRD_G, 60, 61, 3, 1024 * 7168)
    A("s_lshl_b32 s3, s%d, 6" % S_J)
    mk_srd(A, SRD_Q, 6, 7, 3, 1024 * 6144)
    A("s_and_b32 s3, s%d, 1" % S_W)
    A("s_mul_i32 s3, s3, 448")
    A("s_and_b32 s65, s%d, 1" % S_J)
    A("s_lshl_b32 s65, s65, 1")
    for g in range(7):
        A("v_add_u32 v%d, s3, v1" % T)
        if g: A("v_add_u32 v%d, %d, v%d" % (T, 64 * g, T))
        A("v_mul_u32_u24 v%d, 4682, v%d" % (T + 1, T))
        A("v_lshrrev_b32 v%d, 16, v%d" % (T + 1, T + 1))
        A("v_mul_u32_u24 v%d, 14, v%d" % (T + 2, T + 1))
        A("v_sub_u32 v%d, v%d, v%d" % (T + 2, T, T + 2))
        A("v_add_u32 v%d, s65, v%d" % (T + 2, T + 2))
        A("v_subrev_u32 v%d, 14, v%d" % (T + 3, T + 2))
        A("v_min_u32 v%d, v%d, v%d" % (T + 2, T + 2, T + 3))
        rowperm(T + 4, T + 1, T + 3)
        A("v_mul_u32_u24 v%d, 7168, v%d" % (T + 1, T + 4))
        A("v_lshl_add_u32 v%d, v%d, 4, v%d" % (T + 1, T + 2, T + 1))
        A("v_subrev_u32 v%d, %d, v%d" % (V_DMA + 11 + g, 1024 * (g & 3), T + 1))
        emit([[x for x in D0[11 + g] if not x.startswith("s_add_u32 s")]])
    A("s_mul_i32 s3, s%d, 192" % S_W)
    for q in range(3):
        A("v_add_u32 v%d, s3, v1" % T)
        if q: A("v_add_u32 v%d, %d, v%d" % (T, 64 * q, T))
        A("v_mul_u32_u24 v%d, 5462, v%d" % (T + 1, T))
        A("v_lshrrev_b32 v%d, 16, v%d" % (T + 1, T + 1))
        A("v_mul_u32_u24 v%d, 12, v%d" % (T + 2, T + 1))
        A("v_sub_u32 v%d, v%d, v%d" % (T + 2, T, T + 2))
        A("v_bfe_u32 v%d, v%d, 2, 1" % (T + 3, T + 1))
        A("v_lshlrev_b32 v%d, 1, v%d" % (T + 3, T + 3))
        A("v_xor_b32 v%d, v%d, v%d" % (T + 2, T + 2, T + 3))
        rowperm(T + 4, T + 1, T + 3)
        A("v_mul_u32_u24 v%d, 6144, v%d" % (T + 1, T + 4))
        A("v_lshrrev_b32 v%d, 2, v%d" % (T + 3, T + 2))
        A("v_lshlrev_b32 v%d, 11, v%d" % (T + 3, T + 3))
        A("v_and_b32 v%d, 3, v%d" % (T + 2, T + 2))
        A("v_lshlrev_b32 v%d, 4, v%d" % (T + 2, T + 2))
        A("v_add3_u32 v%d, v%d, v%d, v%d" % (T + 1, T + 1, T + 2, T + 3))
        A("v_subrev_u32 v%d, %d, v%d" % (V_DMA + 8 + q, 1024 * q, T + 1))
        emit([D0[8 + q]])
    for s in D0[17][1:]: A(s)
    mk_srd(A, SRD_W, 58, 59, None, WS_SIZE)
    S_F1 = 44
    A("s_lshl_b32 s%d, s%d, 7" % (S_F1, S_J))
    A("s_add_u32 s%d, s%d, %d" % (S_F1, S_F1, WS_FLG1))
    A("s_lshl_b32 s3, s%d, 2" % S_I)
    A("s_add_u32 s3, s3, s%d" % S_W)
    A("s_lshl_b32 s45, s3, 2")
    A("s_lshr_b32 s3, s3, 1")
    A("s_lshl_b32 s3, s3, 5")
    A("s_add_u32 s3, s3, s%d" % S_J)
    A("s_lshl_b32 s3, s3, 1")
    A("s_and_b32 s60, s%d, 1" % S_W)
    A("s_add_u32 s3, s3, s60")
    A("s_lshl_b32 s3, s3, 2")
    A("s_add_u32 s77, s3, %d" % WS_FLGH)
    k2ids(A, 61, 62, 63, 64)
    A("s_add_u32 s3, s%d, s45" % S_F1)
    A("v_mov_b32 v%d, s3" % T)
    A("v_writelane_b32 v%d, s77, 1" % T)
    A("s_add_u32 s3, s77, %d" % (WS_FLGO - WS_FLGH))
    A("v_writelane_b32 v%d, s3, 2" % T)
    A("v_writelane_b32 v%d, s64, 3" % T)
    A("v_mov_b32 v%d, 0" % (T + 1))
    A("buffer_store_dword v%d, v%d, s[%d:%d], 0 offen sc1" % (T + 1, T, SRD_W, SRD_W + 3)); VM.issue()
    VM.tag["g"] = VM.n
    EARLY = O("early", 0)
    D1 = dma_list(1)
    emit(D1[:EARLY])
    A("s_lshl_b32 s3, s%d, 11" % S_J)
    mk_srd(A, SRD_P, 66, 67, 3, 65536)
    A("s_and_b32 s3, s%d, 1" % S_W)
    A("s_lshl_b32 s47, s3, 10")
    A("v_lshl_add_u32 v%d, v1, 4, s47" % (T + 3))
    late = D1[EARLY:] + [["s_add_u32 m0, s47, %d" % WPB, "buffer_load_dwordx4 v%d, s[%d:%d], 0 offen lds" % (T + 3, SRD_P, SRD_P + 3)]]
    mk_srd(A, SRD_D, 56, 57, None, 256)
    if TOUCH: late += [touch() for _ in range(NLATE)]
    A("s_load_dwordx2 s[4:5], s[0:1], 24")
    A("s_load_dwordx2 s[56:57], s[0:1], 72")
    A("v_and_b32 v%d, 15, v1" % (T + 4))
    A("v_lshlrev_b32 v%d, 7, v%d" % (T + 4, T + 4))
    A("s_lshl_b32 s3, s%d, 13" % S_W)
    A("v_add_u32 v%d, s3, v%d" % (T + 4, T + 4))
    A("v_bfe_u32 v%d, v1, 1, 3" % (T + 5))
    A("v_lshrrev_b32 v%d, 4, v1" % (T + 6))
    for ks in range(2):
        A("v_or_b32 v%d, %d, v%d" % (T + 7, ks * 4, T + 6))
        A("v_xor_b32 v%d, v%d, v%d" % (T + 7, T + 7, T + 5))
        A("v_lshl_add_u32 v%d, v%d, 4, v%d" % (V_XRD + ks, T + 7, T + 4))
        A("v_add_u32 v%d, %d, v%d" % (V_XRD + 2 + ks, STAGE, V_XRD + ks))
    A("v_bfe_u32 v%d, v1, 2, 2" % (T + 4))
    A("v_and_b32 v%d, 3, v1" % (T + 5))
    A("v_bfe_u32 v%d, v1, 4, 1" % (T + 7))
    A("v_lshrrev_b32 v%d, 5, v1" % (T + 8))
    A("v_lshl_add_u32 v%d, v%d, 4, v%d" % (T + 4, T + 8, T + 4))
    A("v_lshl_add_u32 v%d, v%d, 2, v%d" % (T + 4, T + 7, T + 4))
    A("v_lshlrev_b32 v%d, 3, v%d" % (T + 5, T + 5))
    A("v_mul_u32_u24 v%d, 192, v%d" % (T + 9, T + 4))
    A("v_add_u32 v%d, v%d, v%d" % (T + 9, T + 9, T + 5))
    for h in range(2):
        A("v_xor_b32 v%d, %d, v%d" % (T + 8, h, T + 7))
        A("v_lshl_add_u32 v%d, v%d, 5, v%d" % (T + 8, T + 8, T + 9))
        for st in range(2): A("v_add_u32 v%d, %d, v%d" % (V_QRD + st * 2 + h, QB + STAGE * st, T + 8))
    A("v_mul_u32_u24 v%d, 224, v%d" % (T + 9, T + 4))
    A("v_add_u32 v%d, v%d, v%d" % (T + 8, T + 9, T + 5))
    for st in range(2): A("v_add_u32 v%d, %d, v%d" % (V_GRD + st, GB + STAGE * st, T + 8))
    A("s_mov_b32 s%d, 0x%x" % (S_C, LOG2E)); A("s_mov_b32 s%d, 0x%x" % (S_C + 1, LOG2E))
    stamp(False)
    A("s_waitcnt vmcnt(%d) lgkmcnt(0)" % VM.wait_for(["g"]))
    A("s_barrier")
    def xread(stage, ks, p, tb):
        return "ds_read_b128 %s, v%d offset:%d" % (xf(p, tb), V_XRD + 2 * stage + ks, tb * 2048)
    def wread(stage, ks, cb, n, t):
        b = BLK[cb]
        if b[0] == "q":
            return "ds_read_b64_tr_b16 %s, v%d offset:%d" % (wf(n, t), V_QRD + stage * 2 + b[2], (ks * 32 + t * 8) * 192 + b[1] * 64)
        return "ds_read_b64_tr_b16 %s, v%d offset:%d" % (wf(n, t), V_GRD + stage, (ks * 32 + t * 8) * 224 + b[1] * 32 + (UB - GB if b[0] == "u" else 0))
    Q = Cnt(15)
    for tb in range(NTB):
        A(xread(0, 0, 0, tb)); Q.issue(("x", 0, tb))
    for n in range(D):
        for t in range(2):
            A(wread(0, 0, n, n, t)); Q.issue(("w", n))
    A("s_lshl_b32 s3, s%d, 3" % S_J)
    A("s_add_u32 s3, s3, s%d" % S_I)
    A("s_cmp_eq_u32 s%d, 0" % S_W)
    A("s_cselect_b32 s3, s3, 0x1000")
    A("v_mov_b32 v%d, s3" % (T + 5))
    A("v_mov_b32 v%d, 1" % (T + 6))
    bytest = "buffer_store_byte v%d, v%d, s[%d:%d], 0 offen sc1" % (T + 6, T + 5, SRD_D, SRD_D + 3)
    NPRO = 1 + (NLATE if TOUCH else 0)
    if STAMP: stamp(); stamp.real()


    NS = 4; ST2 = 16384; AB = 65536
    TH = O("th", 8)
    NH = (72 - TH) // 2; NF1 = 56 - NH; NT2 = NH + TH
    NPEEL = NF1 - 4
    S_MT, S_NT, S_KH, S_XF = 52, 53, 54, 55
    S_AK, S_WK, S_KT, S_SW, S_WK0, S_M0H, S_AK0 = 28, 29, 30, 31, 34, 35, 36
    SRD_A, SRD_B, SRD_O = 8, 12, 16
    S_B2 = 72; S_WM, S_WN = 42, 43; S_HF = 70
    P_DMA, P_XRD, P_WRD, P_TOK, P_GA, P_VL, P_Z0, P_L4 = 2, 10, 11, 15, 16, 17, 18, 19
    P_XRD2, P_AH = 3, 5
    def groups(B, n=2):
        L = []; i = 0
        while i < len(B.lines):
            k = n
            while i + k < len(B.lines) and ("s_addc" in B.lines[i + k] or "s_cselect" in B.lines[i + k] or "s_cselect" in "".join(B.lines[i + k + 1:i + k + 2])): k += 1
            L.append([x.strip() for x in B.lines[i:i + k]]); i += k
        return L
    def m0set(i, stage):
        return "s_add_u32 m0, s%d, %d" % (S_M0 + i, ST2 * stage) if stage else "s_mov_b32 m0, s%d" % (S_M0 + i)
    def lda(n): return "buffer_load_dwordx4 v%d, s[%d:%d], s%d offen offset:%d%s lds" % (P_DMA + (n & 2), SRD_A, SRD_A + 3, S_AK, 1024 * n, DSC)
    def ldw(n): return "buffer_load_dwordx4 v%d, s[%d:%d], s%d offen offset:%d lds" % (P_DMA + 4 + n, SRD_B, SRD_B + 3, S_WK, 1024 * n)
    def wotouch():
        B = Asm()
        mk_srd(B, 72, 4, 5, None, 1024 * 2048)
        B("s_lshr_b32 s3, s2, 3")
        B("s_lshl_b32 s3, s3, 2")
        B("s_add_u32 s3, s3, s%d" % S_W)
        B("s_lshl_b32 s3, s3, 14")
        B("s_bfe_u32 s6, s2, 0x10002")
        B("s_lshl_b32 s6, s6, 10")
        B("s_add_u32 s3, s3, s6")
        B("v_lshrrev_b32 v32, 3, v1")
        B("v_lshlrev_b32 v32, 11, v32")
        B("v_and_b32 v33, 7, v1")
        B("v_lshl_add_u32 v32, v33, 7, v32")
        B("buffer_load_dword v33, v32, s[72:75], s3 offen" + (" nt" if O("tnt", 0) else ""))
        return groups(B, 3)
    AG = 96
    def gloads():
        B = Asm()
        mk_srd(B, 72, 42, 43, None, 2048)
        B("v_and_b32 v34, 31, v1")
        B("v_lshlrev_b32 v34, 6, v34")
        B("v_lshrrev_b32 v35, 5, v1")
        B("s_lshl_b32 s3, s%d, 6" % S_W)
        B("s_lshl_b32 s6, s%d, 1" % S_J)
        B("s_add_u32 s3, s3, s6")
        B("v_add_u32 v30, s3, v35")
        B("v_lshl_add_u32 v35, v30, 11, v34")
        L = groups(B, 3)
        for q in range(4):
            L.append(["buffer_load_dwordx4 %s, v35, s[%d:%d], 0 offen offset:%d" % (ar(AG + 4 * q, 4), SRD_X, SRD_X + 3, 16 * q)])
            L.append(["buffer_load_dwordx4 %s, v34, s[72:75], 0 offen offset:%d" % (ar(AG + 16 + 4 * q, 4), 16 * q)])
        return L
    def wsetup():
        B = Asm()
        k2ids(B, S_MT, S_NT, S_KH, S_XF)
        B("v_lshrrev_b32 v32, 4, v1")
        B("v_and_b32 v33, 15, v1")
        B("v_lshlrev_b32 v34, 1, v32")
        B("v_xor_b32 v33, v33, v34")
        B("s_lshl_b32 s3, s%d, 4" % S_W)
        B("v_add_u32 v32, s3, v32")
        B("v_lshlrev_b32 v32, 11, v32")
        B("v_lshl_add_u32 v32, v33, 4, v32")
        B("v_xor_b32 v33, 128, v32")
        for n in range(4):
            B("v_add_u32 v%d, %d, v%d" % (P_DMA + 4 + n, n * 4 * 2048 - 1024 * n, 32 + (n >> 1)))
        B("s_lshl_b32 s%d, s%d, 12" % (S_M0 + 1, S_W))
        B("s_add_u32 s%d, s%d, %d" % (S_M0, S_M0 + 1, AB))
        B("s_mul_i32 s3, s%d, %d" % (S_KH, NH * 64 * 2048))
        B("s_lshl_b32 s6, s%d, 8" % S_NT)
        B("s_add_u32 s3, s3, s6")
        B("s_add_u32 s%d, s40, s3\ns_addc_u32 s%d, s41, 0" % (SRD_B, SRD_B + 1))
        B("s_sub_u32 s%d, %d, s3" % (SRD_B + 2, 3584 * 2048))
        B("s_mov_b32 s%d, 0" % S_WK)
        return groups(B, 3)
    def wdma():
        L = []
        for stg in range(NS):
            for n in range(4):
                g = ([m0set(1, stg)] if n == 0 else []) + [ldw(n)]
                if n == 3: g.append("s_add_u32 s%d, s%d, %d" % (S_WK, S_WK, 64 * 2048))
                L.append(g)
        return L
    def rest():
        B = Asm()
        B("s_mov_b32 s47, %d" % (WS_FLGO - WS_FLGH))
        B("s_lshl_b32 s6, s%d, 8" % S_NT)
        B("s_add_u32 s%d, s4, s6\ns_addc_u32 s%d, s5, 0" % (S_B2, S_B2 + 1))
        B("s_sub_u32 s%d, %d, s6" % (S_B2 + 2, 1024 * 2048))
        B("v_lshlrev_b32 v%d, 4, v1" % P_VL)
        B("s_mul_i32 s3, s%d, %d" % (S_W, 2 * MBS))
        B("v_add_u32 v%d, s3, v%d" % (P_DMA, P_VL))
        B("v_add_u32 v%d, %d, v%d" % (P_DMA + 2, MBS - 2048, P_DMA))
        B("s_mov_b32 s%d, 0" % S_AK); B("s_mov_b32 s%d, %d" % (S_KT, NS))
        jh = (64 * NH - 1) // 112; jf = 64 * NH // 112
        full = (1 << 64) - 1
        ih = full ^ ((1 << (2 * jh + 2)) - 1); if_ = (1 << (2 * jf)) - 1
        B("s_mov_b32 s68, 0x%x" % (if_ & 0xffffffff)); B("s_mov_b32 s69, 0x%x" % (if_ >> 32))
        B("s_cmp_eq_u32 s%d, 0" % S_KH)
        B("s_cselect_b32 s%d, %d, %d" % (S_SW, NH, NF1))
        B("s_cselect_b32 s%d, %d, 0" % (S_WK0, (16 - TH) * 64 * 2048))
        B("s_mov_b32 s%d, %d" % (S_AK0, NF1 * 2048))
        B("s_cselect_b32 s%d, %d, s%d" % (S_AK0, (72 - TH) * 2048, S_AK0))
        B("s_cselect_b32 s68, 0x%x, s68" % (ih & 0xffffffff)); B("s_cselect_b32 s69, 0x%x, s69" % (ih >> 32))
        B("s_mul_i32 s3, s%d, %d" % (S_MT, 8 * MBS))
        B("s_mul_i32 s6, s%d, %d" % (S_KH, NH * 2048))
        B("s_add_u32 s3, s3, s6")
        mk_srd(B, SRD_A, 58, 59, 3, 128 * MBS)
        mk_srd(B, SRD_O, 56, 57, None, 2048 * 2048)
        B("s_lshr_b32 s%d, s%d, 1" % (S_WM, S_W)); B("s_and_b32 s%d, s%d, 1" % (S_WN, S_W))
        B("s_lshl_b32 s6, s%d, 7" % S_MT)
        B("s_lshl_b32 s3, s%d, 6" % S_WM)
        B("s_add_u32 s6, s6, s3")
        B("s_lshl_b32 s3, s%d, 5" % S_KH)
        B("s_add_u32 s6, s6, s3")
        B("v_and_b32 v32, 15, v1")
        B("v_add_u32 v%d, s6, v32" % P_TOK)
        B("v_lshlrev_b32 v%d, 2, v%d" % (P_GA, P_TOK))
        B("v_add_u32 v%d, %d, v%d" % (P_GA, WS_G, P_GA))
        B("s_lshl_b32 s3, s%d, 13" % S_WM)
        B("s_add_u32 s3, s3, %d" % AB)
        B("s_lshl_b32 s6, s%d, 12" % S_KH)
        B("s_add_u32 s%d, s3, s6" % S_M0H)
        B("v_add_u32 v%d, s%d, v%d" % (P_XRD, S_M0H, P_VL))
        B("s_sub_u32 s3, s3, s6")
        B("v_add_u32 v%d, s3, v%d" % (P_XRD2, P_VL))
        B("s_lshl_b32 s3, s%d, 11" % S_WN)
        B("s_add_u32 s%d, s%d, s3" % (S_M0H, S_M0H))
        B("s_sub_u32 s3, s%d, %d" % (S_M0H, AB))
        B("s_mul_i32 s3, s3, %d" % (MBS // 2048))
        B("v_add_u32 v%d, s3, v%d" % (P_AH, P_VL))
        B("v_lshrrev_b32 v34, 4, v1")
        B("v_bfe_u32 v32, v1, 2, 2")
        B("v_lshl_add_u32 v33, v34, 3, v32")
        B("v_lshlrev_b32 v33, 8, v33")
        B("v_and_b32 v35, 3, v1")
        B("v_lshl_add_u32 v33, v35, 3, v33")
        B("v_bfe_u32 v35, v1, 4, 1")
        B("v_lshl_add_u32 v32, v35, 2, v32")
        B("s_lshl_b32 s3, s%d, 2" % S_WN)
        for cb in range(4):
            B("s_add_u32 s6, s3, %d" % cb)
            B("v_xor_b32 v35, s6, v32")
            B("v_lshl_add_u32 v%d, v35, 5, v33" % (P_WRD + cb))
        B("v_mov_b32 v%d, 0" % P_Z0)
        B("v_lshlrev_b32 v%d, 2, v1" % P_L4)
        B("s_lshl_b32 s%d, s%d, 8" % (S_HF, S_MT))
        B("s_add_u32 s%d, s%d, %d" % (S_HF, S_HF, WS_FLGH))
        B("s_mov_b32 s46, 0x01010101")
        return groups(B, 3)

    st = {"pend": late}
    PB = 40 - D
    DSP = O("dsp", 1); DPOS = O("dpos", 2); DMARG = O("dmarg", 12)
    def tile(stage, first, dma_next, has_next, vm_extra, do_touch, extra=None, after=None):
        if extra: st["pend"] = st["pend"] + extra
        for n in range(40):
            ks, cb = divmod(n, 20)
            pre = []
            if n == PB and has_next:
                assert not st["pend"]
                pre += ["s_waitcnt lgkmcnt(0) vmcnt(%d)" % vm_extra, "s_barrier"]
                if first: pre.append(bytest)
                if dma_next: st["pend"] = dma_list(stage)
                if do_touch: st["pend"].append(touch())
                if after: st["pend"] = st["pend"] + after
            need_tags = [("w", n)] + ([("x", ks, tb) for tb in range(NTB)] if cb == 0 else [])
            if not (n == PB and has_next):
                pre.append("s_waitcnt lgkmcnt(%d)" % Q.wait_for(need_tags))
            rds = []
            def addw(m):
                if m < 40:
                    k2, c2 = divmod(m, 20)
                    for t in range(2): rds.append((wread(stage, k2, c2, m, t), ("w", m)))
                elif has_next:
                    for t in range(2): rds.append((wread(stage ^ 1, 0, m - 40, m, t), ("w", m - 40)))
            if n == PB - 2: addw(n + D); addw(n + D + 1)
            elif n == PB - 1: pass
            else: addw(n + D)
            if ks == 0 and cb in (4, 7, 10, 13):
                tb = (cb - 4) // 3
                rds.append((xread(stage, 1, 1, tb), ("x", 1, tb)))
            if has_next and n >= PB and n < PB + 4:
                tb = n - PB
                rds.append((xread(stage ^ 1, 0, 0, tb), ("x", 0, tb)))
            for s in pre: A(s)
            k = 0
            for tb in range(NTB):
                a, b = wf(n), xf(ks, tb)
                if BLK[cb][0] == "q" and BLK[cb][1] == 2: a, b = b, a
                c = "0" if (first and ks == 0) else acc(cb, tb)
                A("v_mfma_f32_16x16x32_bf16 %s, %s, %s, %s" % (acc(cb, tb), a, b, c))
                if k < len(rds):
                    A(rds[k][0]); Q.issue(rds[k][1]); k += 1
                if tb == 3:
                    while k < len(rds):
                        A(rds[k][0]); Q.issue(rds[k][1]); k += 1
                if tb == DPOS and st["pend"]:
                    left = (PB - n - 1) % 40 + 1 - DMARG
                    if DSP == 1 or (n % DSP == 0) or len(st["pend"]) * DSP >= left:
                        for s in st["pend"].pop(0): A(s)
    assert 40 % RING == 0 and D + 2 <= RING
    nt = 1 if TOUCH else 0
    tile(0, True, True, True, NPRO, False)
    A("s_mov_b32 s%d, 0" % S_CNT)
    A.label("L_k1_loop")
    if STAMP == 2:
        A("s_memtime s[100:101]"); A("s_waitcnt lgkmcnt(0)"); A("s_sub_u32 s100, s100, s80")
        A("s_mov_b32 m0, s%d" % S_CNT); A("s_nop 0"); A("v_writelane_b32 v47, s100, m0")
        A("s_add_u32 m0, s%d, 0" % (S_M0 + 1))
    tile(1, False, True, True, 0, TOUCH)
    tile(0, False, True, True, nt, False)
    A("s_add_u32 s%d, s%d, 1" % (S_CNT, S_CNT))
    A("s_cmp_lt_u32 s%d, 6" % S_CNT)
    A("s_cbranch_scc1 L_k1_loop")
    if STAMP == 2:
        for q in range(6):
            r = 82 + len(stamp.regs); stamp.regs.append(r)
            A("v_readlane_b32 s%d, v47, %d" % (r, q)); A("s_nop 1"); A("s_add_u32 s%d, s%d, s80" % (r, r))
        stamp()
        stamp.off = True
    tile(1, False, True, True, 10, False, [touch()] + gloads() + wotouch())
    tile(0, False, False, True, 0, False, wsetup(), wdma())
    tile(1, False, False, False, 0, False, rest())
    assert not st["pend"]
    stamp(); stamp.real()

    E = 2
    def pk(op, d, a, b, c=None, mods=""):
        if c is None: A("%s %s, %s, %s %s" % (op, d, a, b, mods))
        else: A("%s %s, %s, %s, %s %s" % (op, d, a, b, c, mods))
    def rsag2(op, qa, opb, qb):
        seqs = []
        for (o, q) in ((op, qa), (opb, qb)):
            seqs.append([
                "v_permlane32_swap_b32 v%d, v%d" % (q[0], q[1]),
                "v_permlane32_swap_b32 v%d, v%d" % (q[2], q[3]),
                "%s v%d, v%d, v%d" % (o, q[0], q[0], q[1]),
                "%s v%d, v%d, v%d" % (o, q[2], q[2], q[3]),
                "v_permlane16_swap_b32 v%d, v%d" % (q[0], q[2]),
                "%s v%d, v%d, v%d" % (o, q[0], q[0], q[2]),
                "v_mov_b32 v%d, v%d" % (q[2], q[0]),
                "v_permlane16_swap_b32 v%d, v%d" % (q[0], q[2]),
                "v_mov_b32 v%d, v%d" % (q[1], q[0]),
                "v_mov_b32 v%d, v%d" % (q[3], q[2]),
                "v_permlane32_swap_b32 v%d, v%d" % (q[0], q[1]),
                "v_permlane32_swap_b32 v%d, v%d" % (q[2], q[3])])
        for x, y in zip(*seqs):
            A(x); A(y)
    MX = [232, 234, 236, 238]; MN = [240, 242, 244, 246]; PB16 = 20; WP = 176
    def feature(cb0):
        for tb in range(NTB):
            for h in range(2):
                f, b = accb(cb0 + h, tb); assert f == "v"
                A("v_cvt_pk_bf16_f32 v%d, v%d, v%d" % (PB16 + 4 * tb + 2 * h, b, b + 1))
                A("v_cvt_pk_bf16_f32 v%d, v%d, v%d" % (PB16 + 4 * tb + 2 * h + 1, b + 2, b + 3))
        for tb in range(NTB):
            for fb in range(2):
                A("v_mfma_f32_16x16x32_bf16 %s, %s, %s, 0" % (acc(cb0 + fb, tb), vr(WP + 4 * fb, 4), vr(PB16 + 4 * tb, 4)))
    def feature2(cb0):
        for tb in range(NTB):
            p0 = accb(cb0, tb)[1]; p1 = accb(cb0 + 1, tb)[1]
            for step in range(4):
                for (op3, op2, d) in (("v_max3_f32", "v_max_f32", MX[tb]), ("v_min3_f32", "v_min_f32", MN[tb])):
                    if step == 0: A("%s v%d, v%d, v%d, v%d" % (op3, d, p0, p0 + 1, p0 + 2))
                    if step == 1: A("%s v%d, v%d, v%d, v%d" % (op3, d, d, p0 + 3, p1))
                    if step == 2: A("%s v%d, v%d, v%d, v%d" % (op3, d, d, p1 + 1, p1 + 2))
                    if step == 3: A("%s v%d, v%d, v%d" % (op2, d, d, p1 + 3))
        rsag2("v_max_f32", MX, "v_min_f32", MN)
        for b in MX + MN: A("v_mul_f32 v%d, s%d, v%d" % (b, S_C, b))
    def exps(cb0, tb, EM):
        for h in range(2):
            p = accb(cb0 + h, tb)[1]
            for u in range(2):
                pk("v_pk_fma_f32", vr(EM + 4 * h + 2 * u, 2), vr(p + 2 * u, 2), sr(S_C, 2), vr(MN[tb], 2),
                   "op_sel_hi:[1,1,0] neg_lo:[1,0,0] neg_hi:[1,0,0]")
                pk("v_pk_fma_f32", vr(p + 2 * u, 2), vr(p + 2 * u, 2), sr(S_C, 2), vr(MX[tb], 2),
                   "op_sel_hi:[1,1,0] neg_lo:[0,0,1] neg_hi:[0,0,1]")
        for h in range(2):
            p = accb(cb0 + h, tb)[1]
            for r in range(4):
                A("v_exp_f32 v%d, v%d" % (p + r, p + r))
                A("v_exp_f32 v%d, v%d" % (EM + 4 * h + r, EM + 4 * h + r))
    VH = 36; VS = 37
    A("v_mov_b32 v0, v30")
    A("v_and_b32 v%d, 15, v1" % VH)
    A("v_lshlrev_b32 v%d, 4, v%d" % (VH, VH))
    A("v_lshrrev_b32 v38, 5, v1")
    A("v_lshl_add_u32 v%d, v38, 8, v%d" % (VH, VH))
    A("v_bfe_u32 v38, v1, 4, 1")
    A("v_mul_u32_u24 v%d, %d, v38" % (VS, MBS))
    A("v_add_u32 v%d, v%d, v%d" % (VS, VS, VH))
    A("v_lshl_add_u32 v%d, v38, 9, v%d" % (VH, VH))
    A("s_lshl_b32 s3, s%d, 4" % S_I)
    A("s_lshl_b32 s62, s%d, 2" % S_W)
    A("s_add_u32 s62, s62, s3")
    A("s_mul_i32 s62, s62, %d" % MBS)
    A("s_mul_i32 s3, s%d, 7" % S_J)
    A("s_add_u32 s3, s3, 1")
    A("s_lshr_b32 s3, s3, 1")
    A("s_lshl_b32 s3, s3, 10")
    A("s_add_u32 s63, s62, s3")
    for tb in range(1, 4): A("s_add_u32 s%d, s63, %d" % (63 + tb, tb * MBS))
    A("s_add_u32 s67, s63, 3072")
    A("s_sub_u32 s3, s63, 512")
    A("s_bitcmp1_b32 s%d, 0" % S_J)
    A("s_cselect_b32 s67, s3, s67")
    A("s_add_u32 s76, s67, %d" % (2 * MBS))
    FREEV = [accb(6, 0)[1] + 4 * i for i in range(16)]
    def glu(fb, fi):
        gs, us = [], []
        for tb in range(4):
            out = []
            for cb in (6 + 2 * fb, 7 + 2 * fb):
                f, b = accb(cb, tb)
                if f == "a":
                    d = FREEV[fi]; fi += 1
                    for r in range(4): A("v_accvgpr_read_b32 v%d, a%d" % (d + r, b + r))
                    b = d
                out.append(b)
            gs.append(out[0]); us.append(out[1])
        for tb in range(4):
            for u in range(2): pk("v_pk_mul_f32", vr(gs[tb] + 2 * u, 2), vr(gs[tb] + 2 * u, 2), sr(S_C, 2))
        for tb in range(4):
            for r in range(4): A("v_exp_f32 v%d, -v%d" % (gs[tb] + r, gs[tb] + r))
        for tb in range(4):
            for u in range(2): pk("v_pk_add_f32", vr(gs[tb] + 2 * u, 2), vr(gs[tb] + 2 * u, 2), "1.0", None, "op_sel_hi:[1,0]")
        for tb in range(4):
            for r in range(4): A("v_rcp_f32 v%d, v%d" % (gs[tb] + r, gs[tb] + r))
        for tb in range(4):
            for u in range(2): pk("v_pk_mul_f32", vr(gs[tb] + 2 * u, 2), vr(gs[tb] + 2 * u, 2), vr(us[tb] + 2 * u, 2))
        return gs, us
    def packswap(dst, a, b):
        for (d, x) in ((dst, a), (dst + 2, b)):
            A("v_cvt_pk_bf16_f32 v%d, v%d, v%d" % (d, x, x + 1))
            A("v_cvt_pk_bf16_f32 v%d, v%d, v%d" % (d + 1, x + 2, x + 3))
    def doswap(d):
        A("v_permlane16_swap_b32 v%d, v%d" % (d, d + 2))
        A("v_permlane16_swap_b32 v%d, v%d" % (d + 1, d + 3))
    def glu_pair(p, D4):
        g0, u0 = glu(2 * p, 0)
        g1, u1 = glu(2 * p + 1, 8)
        for tb in range(4): packswap(D4[tb], g0[tb], g1[tb])
        for tb in range(4): doswap(D4[tb])
        return ["buffer_store_dwordx4 %s, v%d, s[%d:%d], s%d offen offset:%d%s" % (vr(D4[tb], 4), VH, SRD_W, SRD_W + 3, 63 + tb, p * 1024, SC) for tb in range(4)]
    def capture(fn):
        start = len(A.lines)
        r = fn()
        body = [x.strip() for x in A.lines[start:]]; del A.lines[start:]
        return body, r
    def spread(fn, stores, every):
        body, r = capture(fn)
        k = 0
        for n, ln in enumerate(body):
            if n % every == 0 and k < len(stores):
                A(stores[k]); k += 1
            A(ln)
        for x in stores[k:]: A(x)
        return r
    PKA = [PB16 + 4 * i for i in range(4)]
    PKB = [accb(10, 0)[1] + 4 * i for i in range(4)]
    PK1 = [accb(11, 0)[1] + 4 * i for i in range(4)]
    st0 = glu_pair(0, PKA)
    st1 = spread(lambda: glu_pair(1, PK1), st0, 30)
    st2 = spread(lambda: glu_pair(2, PKA), st1, 40)
    def last():
        g6, u6 = glu(6, 0)
        for tp in range(2): packswap(PKB[tp], g6[2 * tp], g6[2 * tp + 1])
        for tp in range(2): doswap(PKB[tp])
    spread(last, st2, 25)
    for tp in range(2):
        A("buffer_store_dwordx4 %s, v%d, s[%d:%d], s%d offen%s" % (vr(PKB[tp], 4), VS, SRD_W, SRD_W + 3, 67 if tp == 0 else 76, SC))
    stamp()
    def flag_group(saddr, soff):
        return ["v_mov_b32 v38, s%d" % saddr, "v_mov_b32 v39, 1", "s_mov_b64 exec, 1",
                "buffer_store_dword v39, v38, s[%d:%d], %s offen sc1" % (SRD_W, SRD_W + 3, soff), "s_mov_b64 exec, -1"]
    A("v_bfe_u32 v224, v1, 2, 2")
    A("v_lshrrev_b32 v225, 4, v1")
    A("v_and_b32 v226, 3, v1")
    A("v_lshl_add_u32 v227, v225, 2, v224")
    A("v_lshlrev_b32 v228, 6, v227")
    A("v_lshl_add_u32 v228, v226, 3, v228")
    A("v_add_u32 v228, %d, v228" % WPB)
    for fb in range(2):
        for t in range(2):
            A("ds_read_b64_tr_b16 %s, v228 offset:%d" % (vr(WP + 4 * fb + 2 * t, 2), fb * 32 + t * 1024))
    A("s_waitcnt lgkmcnt(0)")
    A("s_barrier")
    dbgld = "buffer_load_dword v47, v%d, s[%d:%d], 0 offen sc1" % (P_L4, SRD_D, SRD_D + 3)
    A(dbgld)
    feature(0)
    SP = [248, 250, 252, 254]; SM = [200, 202, 204, 206]
    VB = accb(2, 0)[1]
    assert accb(3, 0)[1] == VB + 16
    for db in range(2):
        for tb in range(4):
            s = VB + db * 16 + tb * 4
            d = VB + db * 8 + tb * 2
            A("v_cvt_pk_bf16_f32 v%d, v%d, v%d" % (d, s, s + 1))
            A("v_cvt_pk_bf16_f32 v%d, v%d, v%d" % (d + 1, s + 2, s + 3))
    feature2(0)
    A("s_lshl_b32 s61, s%d, 13" % S_W)
    A("s_add_u32 s61, s61, %d" % SCR)
    VPW = 192; VPR = 196
    A("v_and_b32 v229, 15, v1")
    A("v_lshlrev_b32 v229, 7, v229")
    A("v_xor_b32 v230, v225, v226")
    A("v_lshl_add_u32 v229, v230, 3, v229")
    A("v_add_u32 v229, s61, v229")
    for q in range(4):
        A("v_xor_b32 v230, %d, v224" % q)
        A("v_lshl_add_u32 v%d, v230, 5, v229" % (VPW + q))
    A("v_lshlrev_b32 v229, 7, v227")
    A("v_xor_b32 v230, v226, v224")
    A("v_lshl_add_u32 v229, v230, 3, v229")
    A("v_add_u32 v229, s61, v229")
    for q in range(4):
        A("v_xor_b32 v230, %d, v225" % q)
        A("v_lshl_add_u32 v%d, v230, 5, v229" % (VPR + q))
    EMR = [PB16, PB16 + 8, VB + 16, VB + 24]
    for tb in range(4):
        exps(0, tb, EMR[tb])
    t0 = 144
    for tb in range(4):
        p0 = accb(0, tb)[1]; p1 = accb(1, tb)[1]; e = EMR[tb]
        pk("v_pk_add_f32", vr(t0, 2), vr(p0, 2), vr(p0 + 2, 2))
        pk("v_pk_add_f32", vr(t0 + 2, 2), vr(e, 2), vr(e + 2, 2))
        pk("v_pk_add_f32", vr(t0, 2), vr(t0, 2), vr(p1, 2))
        pk("v_pk_add_f32", vr(t0 + 2, 2), vr(t0 + 2, 2), vr(e + 4, 2))
        pk("v_pk_add_f32", vr(t0, 2), vr(t0, 2), vr(p1 + 2, 2))
        pk("v_pk_add_f32", vr(t0 + 2, 2), vr(t0 + 2, 2), vr(e + 6, 2))
        A("v_add_f32 v%d, v%d, v%d" % (SP[tb], t0, t0 + 1))
        A("v_add_f32 v%d, v%d, v%d" % (SM[tb], t0 + 2, t0 + 3))
    rsag2("v_add_f32", SP, "v_add_f32", SM)
    for i in SP + SM: A("v_rcp_f32 v%d, v%d" % (i, i))
    HPOS = O("hpos", 0)
    def hflag():
        A("s_waitcnt vmcnt(0)")
        for x in flag_group(77, "0"): A(x)
    if HPOS == 0: hflag()
    for tb in range(4):
        srcs = [(accb(0, tb)[1], SP), (accb(1, tb)[1], SP), (EMR[tb], SM), (EMR[tb] + 4, SM)]
        for q, (p, sc) in enumerate(srcs):
            for u in range(2):
                pk("v_pk_mul_f32", vr(p + 2 * u, 2), vr(p + 2 * u, 2), vr(sc[tb], 2), None, "op_sel_hi:[1,0]")
        for q, (p, sc) in enumerate(srcs):
            A("v_cvt_pk_bf16_f32 v%d, v%d, v%d" % (p, p, p + 1))
            A("v_cvt_pk_bf16_f32 v%d, v%d, v%d" % (p + 1, p + 2, p + 3))
        for q, (p, sc) in enumerate(srcs):
            A("ds_write_b64 v%d, %s offset:%d" % (VPW + q, vr(p, 2), tb * 2048))
    if HPOS == 1: hflag()
    A("s_mov_b32 s37, 0x40000")
    A.label("L_dpoll")
    A("v_cmp_eq_u32 vcc, s46, v47")
    A("s_nop 0")
    A("s_cmp_eq_u64 vcc, -1")
    A("s_cbranch_scc1 L_dpoll_ok")
    A(dbgld)
    A("s_sub_u32 s37, s37, 1")
    A("s_waitcnt vmcnt(0)")
    A("s_cbranch_scc0 L_dpoll")
    A.label("L_dpoll_ok")
    V_RW, V_RR, V_ZS, V_ZL, V_KS, V_KL, V_PD, V_P4 = 40, 41, 42, 43, 44, 45, 46, 47
    A("v_add_u32 v%d, s61, v%d" % (V_RW, P_VL))
    A("s_lshl_b32 s3, s%d, 11" % S_W)
    A("v_add_u32 v%d, s3, v%d" % (V_KS, P_VL))
    A("v_add_u32 v%d, %d, v%d" % (V_RR, SCR, V_KS))
    A("v_lshl_add_u32 v230, v225, 2, v226")
    A("v_lshlrev_b32 v%d, 4, v230" % V_ZL)
    A("v_add_u32 v%d, 8192, v%d" % (V_ZL, V_ZL))
    ZRED = AB + 3 * ST2
    A("s_lshl_b32 s3, s%d, 10" % S_W)
    A("s_add_u32 s3, s3, %d" % ZRED)
    A("v_add_u32 v%d, s3, v%d" % (V_ZS, P_VL))
    A("v_add_u32 v229, %d, v%d" % (ZRED, P_VL))
    A("s_lshr_b32 s3, s%d, 1" % S_W)
    A("s_lshl_b32 s3, s3, 12")
    A("s_and_b32 s6, s%d, 1" % S_W)
    A("s_lshl_b32 s6, s6, 10")
    A("s_add_u32 s3, s3, s6")
    A("v_add_u32 v%d, s3, v%d" % (V_KL, P_VL))
    A("v_and_b32 v%d, 124, v%d" % (V_P4, P_L4))
    S_KVB = 60
    A("s_lshl_b32 s3, s%d, 3" % S_J)
    A("s_mul_i32 s%d, s3, 9216" % S_KVB)
    A("s_add_u32 s%d, s%d, %d" % (S_KVB, S_KVB, WS_KVP))
    A("s_mul_i32 s3, s%d, 9216" % S_I)
    A("s_add_u32 s61, s%d, s3" % S_KVB)
    A("s_add_u32 s3, s%d, 112" % S_J)
    A("s_lshl_b32 s3, s3, 10")
    A("s_add_u32 s63, s62, s3")
    for tb in range(1, 4): A("s_add_u32 s%d, s63, %d" % (63 + tb, tb * MBS))
    A("s_mov_b32 s67, 0x358637bd")
    A("s_waitcnt lgkmcnt(0)")
    APH = 64
    for fblk in range(4):
        for ks in range(2):
            for t in range(2):
                A("ds_read_b64_tr_b16 %s, v%d offset:%d" % (ar(APH + 8 * fblk + 4 * ks + 2 * t, 2), VPR + fblk, (32 * ks + 16 * t) * 128))
    A("v_mov_b32 v231, 0x3f803f80")
    for fblk in range(4):
        A("v_cmp_eq_u32 vcc, %d, v226" % fblk)
        for r in range(4):
            A("v_cndmask_b32 v%d, 0, v231, vcc" % (PB16 + 4 * fblk + r))
    stamp()

    KV = accb(0, 0)[1]; ZB = VB + 16; QE = 144; LB = 48
    side = []
    import re
    def unpack(x):
        if not x.startswith("v_pk_") or not O("unpack", 0): return [x]
        if O("unpack", 0) == 2 and not re.search(r"op_sel:\[[01,]*1", x): return [x]
        I = parse(x); n = len(I.ops) - 1
        def arr(name, dflt):
            m = re.search(name + r":\[([01,]+)\]", I.mods)
            return [int(c) for c in m.group(1).split(",")] if m else [dflt] * n
        sel = [arr("op_sel", 0), arr("op_sel_hi", 1)]; neg = [arr("neg_lo", 0), arr("neg_hi", 0)]
        def half(o, h):
            m = re.match(r"([vs])\[(\d+):\d+\]", o)
            return "%s%d" % (m.group(1), int(m.group(2)) + h) if m else o
        op = I.op.replace("v_pk_", "v_")
        res = []
        for h in range(2):
            src = [("-" if neg[h][k] else "") + half(I.ops[1 + k], sel[h][k]) for k in range(n)]
            if n == 2 and not src[1].startswith("v"): src = src[::-1]
            res.append("%s %s, %s" % (op, half(I.ops[0], h), ", ".join(src)))
        return res
    def S(fn):
        for x in capture(fn)[0]: side.extend(unpack(x))
    def kvm():
        for fblk in range(4):
            for ks in range(2):
                for db in range(2):
                    d = vr(KV + 8 * fblk + 4 * db, 4)
                    A("v_mfma_f32_16x16x32_bf16 %s, %s, %s, %s" % (d, ar(APH + 8 * fblk + 4 * ks, 4), vr(VB + db * 8 + ks * 4, 4), "0" if ks == 0 else d))
                A("v_mfma_f32_16x16x32_bf16 %s, %s, %s, %s" % (vr(ZB, 4), ar(APH + 8 * fblk + 4 * ks, 4), vr(PB16 + 4 * fblk, 4), "0" if (ks == 0 and fblk == 0) else vr(ZB, 4)))
        for b in range(8):
            A("ds_write_b128 v%d, %s offset:%d" % (V_RW, vr(KV + 4 * b, 4), b * 1024))
        A("ds_write_b128 v%d, %s" % (V_ZS, vr(ZB, 4)))
    PRE = 1
    hld = "buffer_load_dword v%d, v%d, s[%d:%d], s%d offen sc1" % (V_PD, P_L4, SRD_W, SRD_W + 3, S_HF)
    A("s_waitcnt lgkmcnt(0)")
    kvm(); feature(4)
    A("s_waitcnt lgkmcnt(0)"); A("s_barrier")
    A(hld)
    def redr():
        for w in range(4):
            A("ds_read_b128 %s, v%d offset:%d" % (vr(KV + 8 * w, 4), V_RR, w * 8192))
            A("ds_read_b128 %s, v%d offset:%d" % (vr(KV + 8 * w + 4, 4), V_RR, w * 8192 + 1024))
            A("ds_read_b128 %s, v229 offset:%d" % (vr(VB + 4 * w, 4), w * 1024))
    if PRE:
        redr(); feature2(4); A("s_waitcnt lgkmcnt(0)")
    else:
        S(redr)
        S(lambda: feature2(4))
        side.append(("lgkm",))
    def reda():
        for w in range(1, 4):
            for u in range(4): pk("v_pk_add_f32", vr(KV + 2 * u, 2), vr(KV + 2 * u, 2), vr(KV + 8 * w + 2 * u, 2))
            for u in range(2): pk("v_pk_add_f32", vr(VB + 2 * u, 2), vr(VB + 2 * u, 2), vr(VB + 4 * w + 2 * u, 2))
        A("buffer_store_dwordx4 %s, v%d, s[%d:%d], s61 offen sc1" % (vr(VB, 4), V_ZL, SRD_W, SRD_W + 3))
        A("buffer_store_dwordx4 %s, v%d, s[%d:%d], s61 offen sc1" % (vr(KV, 4), V_KS, SRD_W, SRD_W + 3))
        A("buffer_store_dwordx4 %s, v%d, s[%d:%d], s61 offen offset:1024 sc1" % (vr(KV + 4, 4), V_KS, SRD_W, SRD_W + 3))
    if PRE: reda(); stamp()
    else:
        S(reda)
        side.append(("ev", "kvst"))
    def qexp():
        for half in range(2):
            for tb in (2 * half, 2 * half + 1):
                exps(4, tb, PB16 + 8 * (tb & 1))
            for tb in (2 * half, 2 * half + 1):
                e = PB16 + 8 * (tb & 1)
                for h in range(2):
                    p = accb(4 + h, tb)[1]
                    A("v_cvt_pk_bf16_f32 v%d, v%d, v%d" % (QE + 8 * tb + 2 * h, p, p + 1))
                    A("v_cvt_pk_bf16_f32 v%d, v%d, v%d" % (QE + 8 * tb + 2 * h + 1, p + 2, p + 3))
                    A("v_cvt_pk_bf16_f32 v%d, v%d, v%d" % (QE + 8 * tb + 4 + 2 * h, e + 4 * h, e + 4 * h + 1))
                    A("v_cvt_pk_bf16_f32 v%d, v%d, v%d" % (QE + 8 * tb + 4 + 2 * h + 1, e + 4 * h + 2, e + 4 * h + 3))
    QPRE = 1
    side.append(("mark", "qdone"))
    side.append(("join", "kvl"))
    AF = LB + 12; ZQ = 64; KF = 80; AUX = 96
    def oph1():
        for i in range(1, 8):
            for u in range(6): pk("v_pk_add_f32", vr(LB + 2 * u, 2), vr(LB + 2 * u, 2), vr(LB + 12 * i + 2 * u, 2))
        for h in range(2):
            A("v_cvt_pk_bf16_f32 v%d, v%d, v%d" % (AF + 2 * h, LB + 4 * h, LB + 4 * h + 1))
            A("v_cvt_pk_bf16_f32 v%d, v%d, v%d" % (AF + 2 * h + 1, LB + 4 * h + 2, LB + 4 * h + 3))
        A("s_lshl_b32 s3, s%d, 10" % S_W)
        A("v_add_u32 v%d, %d, v%d" % (V_RR, SCR, P_VL))
        A("v_add_u32 v%d, s3, v%d" % (V_RW, V_RR))
        A("ds_write_b128 v%d, %s" % (V_RW, vr(AF, 4)))
        for fblk in range(4):
            for r in range(4):
                A("v_mov_b32_dpp v%d, v%d quad_perm:[%d,%d,%d,%d] row_mask:0xf bank_mask:0xf" % (ZQ + 4 * fblk + r, LB + 8 + r, fblk, fblk, fblk, fblk))
        for fblk in range(4):
            A("v_cvt_pk_bf16_f32 v%d, v%d, v%d" % (AUX + 2 * fblk, ZQ + 4 * fblk, ZQ + 4 * fblk + 1))
            A("v_cvt_pk_bf16_f32 v%d, v%d, v%d" % (AUX + 2 * fblk + 1, ZQ + 4 * fblk + 2, ZQ + 4 * fblk + 3))
        A("v_and_b32 v%d, 3, v1" % ZQ)
        A("v_mov_b32 v%d, 0x3f803f80" % (ZQ + 1))
    S(oph1)
    side.append(["v_cmp_eq_u32 vcc, 1, v%d" % ZQ, "v_cndmask_b32 v%d, 0, v%d, vcc" % (ZQ + 1, ZQ + 1)])
    side.append(["v_cmp_eq_u32 vcc, 0, v%d" % ZQ] + ["v_cndmask_b32 v%d, v%d, v%d, vcc" % (AUX + r, ZQ + 1, AUX + r) for r in range(8)])
    side.append(("bar",))
    S(lambda: [A("ds_read_b128 %s, v%d offset:%d" % (vr(KF + 4 * q, 4), V_RR, q * 1024)) for q in range(4)])
    NN = [48, 64, 104, 120]; NA = [136, 20, 28, 176]
    def auxm():
        for tb in range(4):
            for s in range(2):
                A("v_mfma_f32_16x16x32_bf16 %s, %s, %s, 0" % (vr(NA[tb] + 4 * s, 4), vr(AUX + 4 * s, 4), vr(QE + 8 * tb + 4 * s, 4)))
        for x in NA:
            A("v_rcp_f32 v%d, v%d" % (x + 1, x + 1))
            A("v_rcp_f32 v%d, v%d" % (x + 5, x + 5))
        for x in NA: A("v_fma_f32 v%d, v%d, v%d, s67" % (x + 2, x, x + 1))
        for x in NA: A("v_fma_f32 v%d, v%d, v%d, v%d" % (x + 2, x + 4, x + 5, x + 2))
        for x in NA: A("v_rcp_f32 v%d, v%d" % (x + 2, x + 2))
        for x in NA:
            A("v_mul_f32 v%d, v%d, v%d" % (x, x + 1, x + 2))
            A("v_mul_f32 v%d, v%d, v%d" % (x + 4, x + 5, x + 2))
    S(auxm)
    side.append(("lgkm",))
    def oph2():
        for tb in range(4):
            for s in range(2):
                for db in range(2):
                    A("v_mfma_f32_16x16x32_bf16 %s, %s, %s, 0" % (vr(NN[tb] + 8 * s + 4 * db, 4), vr(KF + 8 * s + 4 * db, 4), vr(QE + 8 * tb + 4 * s, 4)))
        for n, x in zip(NN, NA):
            for u in range(4):
                pk("v_pk_mul_f32", vr(n + 2 * u, 2), vr(n + 2 * u, 2), vr(x, 2), None, "op_sel_hi:[1,0]")
            for u in range(4):
                pk("v_pk_fma_f32", vr(n + 2 * u, 2), vr(n + 8 + 2 * u, 2), vr(x + 4, 2), vr(n + 2 * u, 2), "op_sel_hi:[1,0,1]")
            for u in range(4):
                A("v_cvt_pk_bf16_f32 v%d, v%d, v%d" % (n + 8 + u, n + 2 * u, n + 2 * u + 1))
        for n in NN: doswap(n + 8)
        for tb, n in enumerate(NN):
            A("buffer_store_dwordx4 %s, v%d, s[%d:%d], s%d offen%s" % (vr(n + 8, 4), VH, SRD_W, SRD_W + 3, 63 + tb, SC))
    S(oph2)
    side.append(("ev", "ost"))

    ACC2 = [192, 64]; VG = 48; C1 = 56; PART = 128
    def acc2(s, cb, tb): return vr(ACC2[s] + 4 * (cb * 4 + tb), 4)
    def xf2(p, tb): return ar(32 * p + 4 * tb, 4)
    def wf2(p, cb, half=None):
        b = 32 * p + 16 + 4 * cb
        return ar(b, 4) if half is None else ar(b + 2 * half, 2)
    def dma2(stage, half=False):
        L = [[m0set(0, stage), lda(0)], [lda(1)], [lda(2)], [lda(3)], [m0set(1, stage), ldw(0)], [ldw(1)], [ldw(2)], [ldw(3)]]
        if half:
            ldh = lambda n: "buffer_load_dwordx4 v%d, s[%d:%d], s%d offen offset:%d%s lds" % (P_AH, SRD_A, SRD_A + 3, S_AK, 1024 * n, DSC)
            L = [["s_add_u32 m0, s%d, %d" % (S_M0H, ST2 * stage), ldh(0)], [ldh(1)]] + L[4:]
        L[-1] += ["s_add_u32 s%d, s%d, 2048" % (S_AK, S_AK),
                  "s_add_u32 s%d, s%d, %d" % (S_WK, S_WK, 64 * 2048),
                  "s_add_u32 s%d, s%d, 1" % (S_KT, S_KT),
                  "s_cmp_eq_u32 s%d, s%d" % (S_KT, S_SW),
                  "s_cselect_b32 s%d, s%d, s%d" % (SRD_B, S_B2, SRD_B),
                  "s_cselect_b32 s%d, s%d, s%d" % (SRD_B + 1, S_B2 + 1, SRD_B + 1),
                  "s_cselect_b32 s%d, s%d, s%d" % (SRD_B + 2, S_B2 + 2, SRD_B + 2),
                  "s_cselect_b32 s%d, s%d, s%d" % (S_WK, S_WK0, S_WK),
                  "s_cselect_b32 s%d, s%d, s%d" % (S_AK, S_AK0, S_AK)]
        return L
    def reads2(stage, ks, p, half=False):
        so = stage * ST2
        def xr(tb): return "ds_read_b128 %s, v%d offset:%d" % (xf2(p, tb), P_XRD if tb < 2 else P_XRD2, so + tb * 2048 + ks * 1024)
        def wr(cb, t): return "ds_read_b64_tr_b16 %s, v%d offset:%d" % (wf2(p, cb, t), P_WRD + cb, so + (ks * 32 + 4 * t) * 256)
        R = [xr(0), wr(0, 0), wr(0, 1), xr(1)] + ([] if half else [xr(2), xr(3)])
        for cb in range(1, 4): R += [wr(cb, 0), wr(cb, 1)]
        return R
    V2 = Cnt(63)
    p2 = {"pend": [], "block": None, "events": {}, "done": set(), "bar": -1}
    RATE = O("rate", 100); LAG = O("lag", 3); RADD = O("radd", 0)
    def isvm(x): return x.startswith(("buffer_load", "buffer_store", "buffer_atomic"))
    def out(x):
        if isinstance(x, tuple): V2.tag[x[1]] = V2.n
        else:
            A(x)
            if isvm(x): V2.issue()
    def at(lag, need, fn):
        p2["events"].setdefault(p2["bar"] + lag, []).append((need, fn))
    def spin(lab, reload):
        A("s_mov_b32 s37, 0x40000")
        A.label(lab)
        A("v_cmp_eq_u32 vcc, 1, v%d" % V_PD)
        A("s_nop 0")
        A("s_cmp_eq_u64 vcc, -1")
        A("s_cbranch_scc1 %s_ok" % lab)
        A(reload)
        A("s_sub_u32 s37, s37, 1")
        A("s_waitcnt vmcnt(0)")
        A("s_cbranch_scc0 %s" % lab)
        A.label(lab + "_ok")
    kvpoll = "buffer_load_dword v%d, v%d, s[%d:%d], s%d offen sc1" % (V_PD, V_P4, SRD_W, SRD_W + 3, S_F1)
    opoll = "buffer_load_dword v%d, v%d, s[%d:%d], s%d offen sc1" % (V_PD, P_L4, SRD_W, SRD_W + 3, S_HF)
    def ev_kvst():
        V2.tag["kvst"] = V2.n
        def e2():
            for x in flag_group(45, "s%d" % S_F1): out(x)
            at(1, [], e3)
        def e3():
            out(kvpoll); out(("tag", "kvp")); at(LAG + (1 if PRE and not QPRE else 0), ["kvp"], e4)
        def e4():
            assert "qdone" in p2["done"], "q path not finished before the kv loads"
            spin("L_kvpoll", kvpoll)
            L = []
            for i in range(8):
                L.append(["buffer_load_dwordx4 %s, v%d, s[%d:%d], s%d offen sc1" % (vr(LB + 12 * i, 4), V_KL, SRD_W, SRD_W + 3, S_KVB)])
                L.append(["buffer_load_dwordx4 %s, v%d, s[%d:%d], s%d offen offset:2048 sc1" % (vr(LB + 12 * i + 4, 4), V_KL, SRD_W, SRD_W + 3, S_KVB)])
                L.append(["buffer_load_dwordx4 %s, v%d, s[%d:%d], s%d offen sc1" % (vr(LB + 12 * i + 8, 4), V_ZL, SRD_W, SRD_W + 3, S_KVB),
                          "s_add_u32 s%d, s%d, 9216" % (S_KVB, S_KVB)])
            L[-1].append(("tag", "kvl"))
            p2["pend"] += L
            at(LAG, ["kvl"], lambda: p2["done"].add("kvl"))
        if PRE: at(1, [], e3)
        else: at(LAG, ["kvst"], e2)
    def ev_ost():
        V2.tag["ost"] = V2.n
        def e6():
            for x in flag_group(77, "s47"): out(x)
            at(max(1, NPEEL - 1 - LAG - p2["bar"]), [], e7)
        def e7():
            out(opoll); out(("tag", "op")); at(LAG, ["op"], e8)
        def e8():
            spin("L_opoll", opoll); p2["done"].add("ochk"); print("o check at barrier", p2["bar"], file=sys.stderr)
            for tb in range(4):
                if tb == 2: out("s_lshl_b32 s3, s%d, 8" % S_KH); out("v_subrev_u32 v%d, s3, v%d" % (P_GA, P_GA))
                out("buffer_load_dword v%d, v%d, s[%d:%d], 0 offen offset:%d sc1" % (VG + 2 * tb, P_GA, SRD_W, SRD_W + 3, 64 * tb))
        at(LAG + O("olag", 0), ["ost"], e6)
    EV = {"kvst": ev_kvst, "ost": ev_ost}
    def cost(x): return 2 if x.startswith(TRANS + ("v_mfma",)) else 1
    def side_step(budget):
        while budget > 0 and side and p2["block"] is None:
            x = side[0]
            if isinstance(x, tuple):
                if x[0] in ("bar", "lgkm"): p2["block"] = x[0]; side.pop(0)
                elif x[0] == "ev": side.pop(0); EV[x[1]]()
                elif x[0] == "mark": side.pop(0); p2["done"].add(x[1])
                elif x[0] == "join":
                    if x[1] in p2["done"]: side.pop(0)
                    else: return
                continue
            side.pop(0)
            for y in (x if isinstance(x, list) else [x]):
                out(y); budget -= cost(y)
    def tile2(t):
        stage = t % NS; half = t >= NH; has_next = t + 1 < NT2
        aset = 0 if t < NF1 else 1
        first = t in (0, NF1, NH)
        ntb = 2 if half else 4; NG = 4 * ntb
        for ks in range(2):
            rd = reads2(stage, 1, 1, half) if ks == 0 else (reads2((stage + 1) % NS, 0, 0, t + 1 >= NH) if has_next else [])
            evs = []
            if ks == 1 and has_next:
                assert not p2["pend"]
                evs = p2["events"].pop(t, [])
                vm = V2.wait_for([("D", t + 1)] + [x for need, fn in evs for x in need])
                A("s_waitcnt lgkmcnt(0) vmcnt(%d)" % vm); A("s_barrier")
                p2["bar"] = t
                p2["block"] = None
            else:
                A("s_waitcnt lgkmcnt(0)")
                if p2["block"] == "lgkm": p2["block"] = None
            if ks == 1:
                for need, fn in evs: fn()
                if t + NS < NT2:
                    d = dma2(stage, t + NS >= NH)
                    d[-1] = d[-1] + [("tag", ("D", t + NS))]
                    p2["pend"] += d
            g = 0; k = 0
            for cb in range(4):
                for tb in range(ntb):
                    c = "0" if (first and ks == 0) else acc2(aset, cb, tb)
                    A("v_mfma_f32_16x16x32_bf16 %s, %s, %s, %s" % (acc2(aset, cb, tb), wf2(ks, cb), xf2(ks, tb), c))
                    nr = 1 if len(rd) - k <= NG - g else 2
                    busy = k < len(rd)
                    for _ in range(nr):
                        if k < len(rd): A(rd[k]); k += 1
                    left = (NG - g) + ((8 if t + 1 >= NH else 16) if ks == 1 else 0)
                    if p2["pend"] and (g % (NG // 4) == NG // 4 - 1 or len(p2["pend"]) * (NG // 4) > left + 3):
                        for _ in range(1 + (len(p2["pend"]) > left)):
                            if p2["pend"]:
                                for x in p2["pend"].pop(0): out(x)
                    side_step(p2.get("rate", RATE) + (0 if busy else 1))
                    g += 1
    A("s_mov_b32 s37, 0x40000")
    A("s_waitcnt vmcnt(3)")
    A.label("L_hpoll")
    A("v_cmp_eq_u32 vcc, 1, v%d" % V_PD)
    A("s_nop 0")
    A("s_or_b64 vcc, vcc, s[68:69]")
    A("s_cmp_eq_u64 vcc, -1")
    A("s_cbranch_scc1 L_hpoll_ok")
    A(hld)
    A("s_sub_u32 s37, s37, 1")
    A("s_waitcnt vmcnt(0)")
    A("s_cbranch_scc0 L_hpoll")
    A.label("L_hpoll_ok")
    stamp(); stamp.real()
    def adma(stg):
        return [[m0set(0, stg), lda(0)], [lda(1)], [lda(2)], [lda(3), "s_add_u32 s%d, s%d, 2048" % (S_AK, S_AK), ("tag", ("D", stg))]]
    for stg in range(2):
        for g in adma(stg):
            for x in g: out(x)
    A("s_add_u32 s%d, s%d, s47" % (S_HF, S_HF))
    qexp()
    GX = 80
    for r in range(32): A("v_accvgpr_read_b32 v%d, a%d" % (GX + r, AG + r))
    A("v_mov_b32 v112, 0"); A("v_mov_b32 v113, 0")
    for q in range(8):
        A("v_dot2c_f32_bf16 v112, v%d, v%d" % (GX + 2 * q, GX + 16 + 2 * q))
        A("v_dot2c_f32_bf16 v113, v%d, v%d" % (GX + 2 * q + 1, GX + 16 + 2 * q + 1))
    A("s_lshl_b32 s3, s%d, 8" % S_I)
    A("v_add_u32 v0, s3, v0")
    A("v_lshlrev_b32 v0, 2, v0")
    A("v_add_f32 v112, v112, v113")
    for sh in (8, 4, 2, 1):
        A("v_add_f32_dpp v112, v112, v112 row_ror:%d row_mask:0xf bank_mask:0xf" % sh)
    A("v_mov_b32 v113, v112")
    A("v_permlane16_swap_b32 v112, v113")
    A("v_add_f32 v112, v112, v113")
    A("v_mul_f32 v112, s%d, v112" % S_C)
    A("v_exp_f32 v112, -v112")
    A("v_add_f32 v112, 1.0, v112")
    A("v_rcp_f32 v112, v112")
    A("v_add_u32 v0, %d, v0" % WS_G)
    A("s_waitcnt vmcnt(4)")
    out("buffer_store_dword v112, v0, s[%d:%d], 0 offen sc1" % (SRD_W, SRD_W + 3))
    for x in flag_group(45, "s%d" % S_F1): out(x)
    ev_kvst()
    A("s_barrier")
    for x in reads2(0, 0, 0): A(x)
    stamp(); stamp.real()
    p2["pend"] = adma(2) + adma(3)
    if STAMP == 4: stamp.off = False; stamp(); stamp.off = True
    C2 = 20
    XB16 = O("xb16", 1)
    for t in range(NT2):
        if t == NPEEL:
            assert not side and not p2["events"] and "ochk" in p2["done"], (len(side), p2["events"].keys())
            stamp()
        if t == NF1:
            side.append("s_sub_u32 s3, s%d, %d" % (S_XF, WS_FLG))
            side.append("s_lshl_b32 s3, s3, 7")
            side.append("s_add_u32 s60, s3, %d" % WS_XCH)
            side.append("s_add_u32 s61, s60, 4096")
            side.append("s_xor_b32 s62, s60, 32768" if 0 else "s_xor_b32 s3, s3, 32768")
            side.append("s_add_u32 s62, s3, %d" % WS_XCH)
            side.append("s_add_u32 s63, s62, 4096")
            side.append("s_xor_b32 s64, s%d, 256" % S_XF)
            for tb in range(4): side.append("v_sub_f32 v%d, 1.0, v%d" % (C1 + 2 * tb, VG + 2 * tb))
            side.append(["s_cmp_eq_u32 s%d, 1" % S_KH, "s_cselect_b64 vcc, -1, 0"] +
                        ["v_cndmask_b32 v%d, v%d, v%d, vcc" % (C2 + 2 * tb, C1 + 2 * tb, VG + 2 * tb) for tb in range(4)])
            for cb in range(4):
                for tb in range(4):
                    for r in range(4):
                        a0 = ACC2[0] + 4 * (cb * 4 + tb) + r
                        side.append("v_mul_f32 v%d, v%d, v%d" % (a0, a0, C1 + 2 * tb))
            p2["rate"] = 1
        if t == NH:
            assert not side
            stamp()
            for tbs in ((2, 3), (0, 1)):
                for tb in tbs:
                    for cb in range(4):
                        a0 = ACC2[0] + 4 * (cb * 4 + tb); a1 = ACC2[1] + 4 * (cb * 4 + tb)
                        for u in range(2):
                            A("v_pk_fma_f32 %s, %s, %s, %s op_sel_hi:[1,0,1]" % (vr(a0 + 2 * u, 2), vr(a1 + 2 * u, 2), vr(C2 + 2 * tb, 2), vr(a0 + 2 * u, 2)))
                    if tb >= 2 and XB16:
                        for cb in range(4):
                            a0 = ACC2[0] + 4 * (cb * 4 + tb); d = 160 + 8 * (tb - 2) + 2 * cb
                            A("v_cvt_pk_bf16_f32 v%d, v%d, v%d" % (d, a0, a0 + 1))
                            A("v_cvt_pk_bf16_f32 v%d, v%d, v%d" % (d + 1, a0 + 2, a0 + 3))
                        for q in range(2):
                            out("buffer_store_dwordx4 %s, v%d, s[%d:%d], s60 offen offset:%d sc1" % (vr(160 + 8 * (tb - 2) + 4 * q, 4), P_VL, SRD_W, SRD_W + 3, (tb - 2) * 2048 + q * 1024))
                    elif tb >= 2:
                        for cb in range(4):
                            out("buffer_store_dwordx4 %s, v%d, s[%d:%d], s%d offen offset:%d sc1" % (acc2(0, cb, tb), P_VL, SRD_W, SRD_W + 3, 60 + tb - 2, cb * 1024))
            out(("tag", "xst"))
            xpoll = "buffer_load_dword v%d, v%d, s[%d:%d], s64 offen sc1" % (V_PD, P_Z0, SRD_W, SRD_W + 3)
            def x1():
                for x in flag_group(S_XF, "0"): out(x)
            def x2():
                out(xpoll); out(("tag", "xp"))
            def x3():
                spin("L_xpoll", xpoll)
                if XB16:
                    for q in range(4):
                        out("buffer_load_dwordx4 %s, v%d, s[%d:%d], s62 offen offset:%d sc1" % (vr(176 + 4 * q, 4), P_VL, SRD_W, SRD_W + 3, q * 1024))
                    return
                for tb in range(2):
                    for cb in range(4):
                        out("buffer_load_dwordx4 %s, v%d, s[%d:%d], s%d offen offset:%d sc1" % (vr(PART + 4 * (cb * 4 + tb), 4), P_VL, SRD_W, SRD_W + 3, 62 + tb, cb * 1024))
            XL = O("xlag", 2)
            at(XL, ["xst"], x1)
            p2["events"].setdefault(NT2 - 2 - O("xpl", 2), []).append(([], x2))
            p2["events"].setdefault(NT2 - 2, []).append((["xp"], x3))
        tile2(t)
        if STAMP == 3 and (t % 2 == 1) and t >= 10: stamp.off = False; stamp(); stamp.off = True
        if STAMP == 4 and t < 16: stamp.off = False; stamp(); stamp.off = True
    assert not p2["pend"] and not p2["events"]
    stamp(); stamp.real()
    VO = 49
    A("v_lshlrev_b32 v%d, 11, v%d" % (VO, P_TOK))
    A("v_bfe_u32 v51, v1, 4, 1")
    A("v_lshl_add_u32 v%d, v51, 5, v%d" % (VO, VO))
    A("v_lshrrev_b32 v51, 5, v1")
    A("v_lshl_add_u32 v%d, v51, 4, v%d" % (VO, VO))
    FULLN = O("fulln", 1)
    if FULLN:
        A("v_bfe_u32 v51, v1, 3, 1")
        A("v_mul_u32_u24 v53, %d, v51" % (8 * 2048 - 64))
        A("v_sub_u32 v%d, v%d, v53" % (VO, VO))
        A("v_cmp_eq_u32 vcc, 0, v51")
    A("s_lshl_b32 s72, s%d, 8" % S_NT)
    A("s_lshl_b32 s3, s%d, 7" % S_WN)
    A("s_add_u32 s72, s72, s3")
    A("s_add_u32 s73, s72, %d" % (8 * 2048))
    OSC = " sc1" if O("osc1", 1) else ""
    for tb in range(2):
        for cb in range(4):
            a0 = ACC2[0] + 4 * (cb * 4 + tb); a1 = ACC2[1] + 4 * (cb * 4 + tb)
            for u in range(2):
                A("v_pk_fma_f32 %s, %s, %s, %s op_sel_hi:[1,0,1]" % (vr(a0 + 2 * u, 2), vr(a1 + 2 * u, 2), vr(VG + 2 * tb, 2), vr(a0 + 2 * u, 2)))
    for tb in range(2):
        A("s_waitcnt vmcnt(%d)" % ((2 if XB16 else 4) if tb == 0 else 2))
        if XB16:
            for cb in range(4):
                for u in range(2):
                    src = 176 + 8 * tb + 2 * cb + u; pp = PART + 4 * (cb * 4 + tb) + 2 * u
                    A("v_lshlrev_b32 v%d, 16, v%d" % (pp, src))
                    A("v_and_b32 v%d, 0xffff0000, v%d" % (pp + 1, src))
        for cb in range(4):
            a0 = ACC2[0] + 4 * (cb * 4 + tb); pp = PART + 4 * (cb * 4 + tb)
            for u in range(2):
                A("v_pk_add_f32 %s, %s, %s" % (vr(a0 + 2 * u, 2), vr(a0 + 2 * u, 2), vr(pp + 2 * u, 2)))
        for cp in range(2):
            d = 28 + 8 * tb + 4 * cp
            for h in range(2):
                a0 = ACC2[0] + 4 * ((2 * cp + h) * 4 + tb)
                A("v_cvt_pk_bf16_f32 v%d, v%d, v%d" % (d + 2 * h, a0, a0 + 1))
                A("v_cvt_pk_bf16_f32 v%d, v%d, v%d" % (d + 2 * h + 1, a0 + 2, a0 + 3))
        for cp in range(2): doswap(28 + 8 * tb + 4 * cp)
        if FULLN:
            d0 = 28 + 8 * tb; d1 = d0 + 4; e0 = 128 + 8 * tb; e1 = e0 + 4
            for r in range(4):
                A("v_cndmask_b32_dpp v%d, v%d, v%d, vcc row_ror:8 row_mask:0xf bank_mask:0xf" % (e0 + r, d1 + r, d0 + r))
            A("s_not_b64 vcc, vcc")
            for r in range(4):
                A("v_cndmask_b32_dpp v%d, v%d, v%d, vcc row_ror:8 row_mask:0xf bank_mask:0xf" % (e1 + r, d0 + r, d1 + r))
            A("s_not_b64 vcc, vcc")
            A("buffer_store_dwordx4 %s, v%d, s[%d:%d], s72 offen%s" % (vr(e0, 4), VO, SRD_O, SRD_O + 3, OSC))
            A("buffer_store_dwordx4 %s, v%d, s[%d:%d], s73 offen%s" % (vr(e1, 4), VO, SRD_O, SRD_O + 3, OSC))
            A("s_add_u32 s73, s73, 32768")
        else:
            for cp in range(2):
                d = 28 + 8 * tb + 4 * cp
                A("buffer_store_dwordx4 %s, v%d, s[%d:%d], s72 offen offset:%d%s" % (vr(d, 4), VO, SRD_O, SRD_O + 3, cp * 64, OSC))
        A("s_add_u32 s72, s72, 32768")
    A.label("L_k2_out")
    stamp.finish(S_W, SRD_W, 38, "L_k1_end")
    A.label("L_k1_end")
    A("s_endpgm")
    A.label("L_code_end")
    return name, LDS

A = Asm()
n1, l1 = gen_k1(A)
hdr = ""
hdr += "; @launch grid=(256,1,1) block=(256,1,1) lds=%d\n" % l1
hdr += '.amdgcn_target "amdgcn-amd-amdhsa--gfx950"\n.text\n'
txt = hdr + A.text() + '.section .rodata,"a"\n' + kernel_desc(n1, 512, 256)
open(OUT, "w").write(txt)
```

```python
import sys
from asmlib import *
from asmlib import TRANS, parse

opts = dict(a.split("=") if "=" in a else (a, "1") for a in sys.argv[2:])
OUT = sys.argv[1]
O = lambda k, d: int(opts.get(k, d))
TOUCH = O("touch", 1)
STAMP = O("stamp", 0)
ONLY = O("only", 0)
HSC1 = O("hsc1", 0)
K2MAP = O("k2map", 0)
NH = O("nh", 32)
K2NODMA = O("k2nodma", 0); K2NOMFMA = O("k2nomfma", 0); K2NOLDS = O("k2nolds", 0); K2SEL = opts.get("k2sel", "aw")

MBS = 144 * 1024
WS_G = 0x1200000
WS_KVP = 0x1210000
WS_FLG = 0x1480000
WS_FLGH = 0x1494000
WS_FLGO = 0x1498000
WS_FLG1 = 0x1490000
WS_STAMP = 0x14A0000
WS_XCH = 0x1500000
WS_SIZE = WS_XCH + 128 * 65536
LOG2E = 0x3FB8AA3B
SC = " sc1"
INV = O("inv", 0)
DSC = " sc1" if O("dsc1", 1) else ""

class Cnt:
    def __init__(self, cap): self.n = 0; self.tag = {}; self.cap = cap
    def issue(self, tag=None, k=1):
        self.n += k
        if tag is not None: self.tag[tag] = self.n
    def wait_for(self, tags):
        last = max(self.tag[t] for t in tags)
        return min(self.n - last, self.cap)

class Stamper:
    def __init__(self, A, kidx): self.A = A; self.regs = []; self.k = kidx
    def start(self):
        if STAMP:
            self.A("s_memrealtime s[78:79]"); self.A("s_memtime s[80:81]")
    off = False
    def __call__(self, wait=True):
        if STAMP and not self.off:
            r = 82 + len(self.regs); assert r <= 99; self.regs.append(r)
            self.A("s_memtime s[100:101]")
            self.A("s_waitcnt lgkmcnt(0)")
            self.A("s_mov_b32 s%d, s100" % r)
    def real(self):
        if STAMP and not self.off:
            r = 82 + len(self.regs); assert r <= 99; self.regs.append(-r)
            self.A("s_memrealtime s[100:101]")
            self.A("s_waitcnt lgkmcnt(0)")
            self.A("s_mov_b32 s%d, s100" % r)
    def finish(self, swave, srd, T, endlabel):
        if not STAMP: return
        A = self.A
        A("s_waitcnt vmcnt(0)")
        A("s_memtime s[4:5]"); A("s_memrealtime s[6:7]")
        A("s_waitcnt lgkmcnt(0)")
        A("s_cmp_eq_u32 s%d, 0" % swave); A("s_cbranch_scc0 %s" % endlabel)
        A("s_lshl_b32 s3, s2, 7")
        A("s_add_u32 s3, s3, %d" % WS_STAMP)
        A("v_mov_b32 v%d, 0" % (T + 1))
        items = [(78, None), (6, None), (4, 80)] + [(abs(r), 80 if r > 0 else 78) for r in self.regs]
        if O("dbgstamp", 0):
            A("s_cmp_eq_u32 s2, %d" % O("dbgstamp", 0)); A("s_cbranch_scc0 %s" % endlabel)
            A("s_mov_b32 s3, 0"); srd = 48
            items = [(6, 78), (4, 80)] + items[3:17]
        for q, (s, b) in enumerate(items):
            if b is None: A("v_mov_b32 v%d, s%d" % (T, s))
            else:
                A("s_sub_u32 s5, s%d, s%d" % (s, b)); A("v_mov_b32 v%d, s5" % T)
            A("buffer_store_dword v%d, v%d, s[%d:%d], s3 offen offset:%d" % (T, T + 1, srd, srd + 3, 4 * q))

def mk_srd(A, b, lo, hi, addsgpr, size):
    if addsgpr is None:
        A("s_mov_b32 s%d, s%d" % (b, lo)); A("s_mov_b32 s%d, s%d" % (b + 1, hi))
        A("s_mov_b32 s%d, %d" % (b + 2, size))
    else:
        A("s_add_u32 s%d, s%d, s%d" % (b, lo, addsgpr)); A("s_addc_u32 s%d, s%d, 0" % (b + 1, hi))
        A("s_sub_u32 s%d, %d, s%d" % (b + 2, size, addsgpr))
    A("s_mov_b32 s%d, 0x20000" % (b + 3))


def k2ids(A, mt, nt, kh, xf):
    A("s_and_b32 s%d, s2, 1" % kh)
    if O("swap", 1): A("s_xor_b32 s%d, s%d, 1" % (kh, kh))
    A("s_bfe_u32 s%d, s2, 0x30003" % mt)
    A("s_bfe_u32 s3, s2, 0x10001")
    A("s_lshl_b32 s3, s3, 3")
    A("s_add_u32 s%d, s%d, s3" % (mt, mt))
    A("s_lshr_b32 s%d, s2, 6" % nt)
    A("s_bfe_u32 s3, s2, 0x10002")
    A("s_lshl_b32 s3, s3, 2")
    A("s_add_u32 s%d, s%d, s3" % (nt, nt))
    A("s_lshl_b32 s3, s%d, 3" % mt)
    A("s_add_u32 s3, s3, s%d" % nt)
    A("s_lshl_b32 s3, s3, 1")
    A("s_add_u32 s3, s3, s%d" % kh)
    A("s_lshl_b32 s3, s3, 2")
    A("s_add_u32 s3, s3, s26")
    A("s_lshl_b32 s%d, s3, 6" % xf)
    A("s_add_u32 s%d, s%d, %d" % (xf, xf, WS_FLG))

def gen_k1(A):
    name = "gated_mix__linear_kernel_hedgehog__glu_gated_glu__prompt_kernel"
    kernel_open(A, name)
    BK = 64
    XB = 0; QB = 32768; GB = QB + 64 * 192; UB = GB + 64 * 224 + 128
    STAGE = (UB + 64 * 224 + 255) // 256 * 256
    WPB = 2 * STAGE
    SCR = 131072
    LDS = 163840
    S_I, S_J, S_W, S_CNT, S_XK, S_QK, S_GK, S_TK, S_TSTEP = 24, 25, 26, 27, 28, 29, 30, 31, 37
    S_M0 = 32
    SRD_X, SRD_Q, SRD_G, SRD_W, SRD_T, SRD_P, SRD_D = 8, 12, 16, 20, 68, 72, 48
    S_C = 38
    V_DMA, V_XRD, V_QRD, V_GRD, V_TCH = 2, 20, 24, 28, 30
    T = 32
    NVACC = 208; V_ACC = 48
    A_X = 0; A_WR = 32; RING = 8; A_ACC = 144
    NTB = 4; NCB = 20; D = O("dd", 6)
    BLK = [("q", 1, 0), ("q", 1, 1), ("q", 2, 0), ("q", 2, 1), ("q", 0, 0), ("q", 0, 1)] + [(t, b) for b in range(7) for t in "gu"]
    RSW = O("regswap", 0)
    def accb(cb, tb):
        b = (cb * NTB + tb) * 4
        if RSW == 3: return ("v", 112 + b) if b < 144 else ("a", b - 144)
        if RSW == 4: return ("v", 80 + b) if b < 176 else ("a", 32 + b - 176)
        if RSW == 5: return ("v", 80 + b) if b < 176 else ("a", 64 + b - 176)
        if RSW: return ("a", b) if b < 256 else ("v", 192 + b - 256)
        return ("v", V_ACC + b) if b < NVACC else ("a", A_ACC + b - NVACC)
    def acc(cb, tb):
        f, b = accb(cb, tb); return "%s[%d:%d]" % (f, b, b + 3)
    fr = (lambda b, n: vr(48 + b, n)) if RSW else ar
    def xf(p, tb):
        if RSW == 4: return ar(16 * p + 4 * tb, 4)
        return fr(A_X + 16 * p + 4 * tb, 4)
    def wf(n, half=None):
        b = A_WR + 4 * (n % RING)
        f = fr
        if RSW == 4: b -= 32
        if RSW == 5: f = ar
        return f(b, 4) if half is None else f(b + 2 * half, 2)
    stamp = Stamper(A, 0)
    VM = Cnt(63)

    A("s_load_dwordx4 s[4:7], s[0:1], 0")
    A("s_load_dwordx4 s[52:55], s[0:1], 40")
    A("s_load_dwordx4 s[56:59], s[0:1], 80")
    A("s_load_dwordx2 s[66:67], s[0:1], 16")
    A("s_load_dwordx4 s[40:43], s[0:1], 56")
    A("s_cmp_ge_u32 s2, 256")
    A("s_cbranch_scc1 L_k1_end")
    stamp.start()
    if STAMP >= 3: stamp.off = True
    if O("ctouch", 1):
        A("s_getpc_b64 s[72:73]")
        A.label("L_pc")
        A("s_mov_b32 s74, L_code_end-L_pc")
        A("s_mov_b32 s75, 0x20000")
        A("s_and_b32 s73, s73, 0xffff")
        A("v_lshrrev_b32 v%d, 6, v0" % T)
        A("v_lshlrev_b32 v%d, 9, v%d" % (T, T))
        A("v_and_b32 v%d, 63, v0" % (T + 1))
        A("v_lshl_add_u32 v%d, v%d, 7, v%d" % (T, T + 1, T))
        A("s_lshr_b32 s3, s2, 3")
        A("s_lshl_b32 s3, s3, 11")
        A("v_cmp_gt_u32 vcc, 4, v%d" % (T + 1))
        A("v_mov_b32 v%d, 0x7ffffff0" % (T + 2))
        A("v_cndmask_b32 v%d, v%d, v%d, vcc" % (T, T + 2, T))
        A("buffer_load_dword v%d, v%d, s[72:75], s3 offen" % (V_TCH + 1, T)); VM.issue()
    A("v_lshrrev_b32 v1, 6, v0")
    A("s_lshr_b32 s%d, s2, 3" % S_I)
    A("s_and_b32 s%d, s%d, 7" % (S_I, S_I))
    A("v_readfirstlane_b32 s%d, v1" % S_W)
    A("s_and_b32 s3, s2, 7")
    A("s_lshl_b32 s3, s3, 2")
    A("s_lshr_b32 s%d, s2, 6" % S_J)
    A("s_add_u32 s%d, s%d, s3" % (S_J, S_J))
    A("v_and_b32 v1, 63, v0")
    A("v_lshrrev_b32 v%d, 3, v1" % T)
    A("v_lshlrev_b32 v%d, 11, v%d" % (T, T))
    A("v_and_b32 v%d, 7, v1" % (T + 1))
    A("v_lshrrev_b32 v%d, 4, v1" % (T + 2))
    A("v_xor_b32 v%d, v%d, v%d" % (T + 1, T + 1, T + 2))
    A("v_lshl_add_u32 v%d, v%d, 4, v%d" % (T, T + 1, T))
    A("s_lshl_b32 s3, s%d, 17" % S_W)
    A("v_add_u32 v%d, s3, v%d" % (T, T))
    A("v_xor_b32 v%d, 64, v%d" % (T + 1, T))
    plan = []
    for n in range(8):
        A("v_add_u32 v%d, %d, v%d" % (V_DMA + n, n * 16384 - 1024 * (n & 3), T + (n & 1)))
        plan.append((V_DMA + n, SRD_X, S_XK, n // 4 if n % 4 == 0 else None, 1024 * (n & 3)))
    for q in range(3): plan.append((V_DMA + 8 + q, SRD_Q, S_QK, 2 if q == 0 else None, 1024 * q))
    for g in range(7): plan.append((V_DMA + 11 + g, SRD_G, S_GK, 3 + g // 4 if g % 4 == 0 else None, 1024 * (g & 3)))
    LD = len(plan)
    A("s_lshl_b32 s%d, s%d, 13" % (S_M0, S_W))
    A("s_add_u32 s%d, s%d, 4096" % (S_M0 + 1, S_M0))
    A("s_mul_i32 s%d, s%d, 3072" % (S_M0 + 2, S_W))
    A("s_add_u32 s%d, s%d, %d" % (S_M0 + 2, S_M0 + 2, QB))
    A("s_and_b32 s3, s%d, 1" % S_W)
    A("s_mul_i32 s3, s3, 7168")
    A("s_cmp_ge_u32 s%d, 2" % S_W)
    A("s_mov_b32 s60, %d" % GB)
    A("s_cselect_b32 s%d, %d, s60" % (S_M0 + 3, UB))
    A("s_add_u32 s%d, s%d, s3" % (S_M0 + 3, S_M0 + 3))
    A("s_add_u32 s%d, s%d, 4096" % (S_M0 + 4, S_M0 + 3))
    for s in (S_XK, S_QK, S_GK): A("s_mov_b32 s%d, 0" % s)
    def dma_list(stage):
        L = []
        for (v, sd, so, m0i, off) in plan:
            g = []
            if m0i is not None:
                g.append("s_mov_b32 m0, s%d" % (S_M0 + m0i) if stage == 0 else "s_add_u32 m0, s%d, %d" % (S_M0 + m0i, STAGE * stage))
            dnt = O("dnt", 0)
            g.append("buffer_load_dwordx4 v%d, s[%d:%d], s%d offen offset:%d%s lds" % (v, sd, sd + 3, so, off, " nt" if (dnt == 1 or (dnt == 2 and sd != SRD_X) or (dnt == 3 and sd == SRD_X)) else ""))
            L.append(g)
        L[-1] += ["s_add_u32 s%d, s%d, %d" % (S_XK, S_XK, BK * 2),
                  "s_add_u32 s%d, s%d, %d" % (S_GK, S_GK, BK * 7168),
                  "s_add_u32 s%d, s%d, %d" % (S_QK, S_QK, BK * 6144)]
        return L
    def emit(groups):
        for g in groups:
            for s in g: A(s)
            VM.issue()
    def rowperm(dst, src, tmp):
        A("v_and_b32 v%d, 0xfffffff3, v%d" % (dst, src))
        A("v_bfe_u32 v%d, v%d, 2, 1" % (tmp, src))
        A("v_lshl_or_b32 v%d, v%d, 3, v%d" % (dst, tmp, dst))
        A("v_bfe_u32 v%d, v%d, 3, 1" % (tmp, src))
        A("v_lshl_or_b32 v%d, v%d, 2, v%d" % (dst, tmp, dst))
    NEARLY = O("nearly", 1); NLATE = O("nlate", 1)
    XF = O("xfirst", 1)
    def touch_vec():
        if TOUCH:
            A("s_lshr_b32 s60, s2, 6")
            A("s_and_b32 s61, s%d, 1" % S_W)
            A("s_lshl_b32 s3, s60, 6")
            A("v_add_u32 v%d, s3, v1" % (T + 4))
            A("v_lshlrev_b32 v%d, 11, v%d" % (T + 4, T + 4))
            A("s_lshl_b32 s3, s61, 7")
            A("v_add_u32 v%d, s3, v%d" % (T + 4, T + 4))
            A("s_lshl_b32 s62, s%d, 4" % S_I)
            A("s_lshl_b32 s3, s61, 3")
            A("s_add_u32 s62, s62, s3")
            A("s_and_b32 s63, s%d, 28" % S_J)
            A("v_mul_u32_u24 v%d, 10923, v1" % (T + 5))
            A("v_lshrrev_b32 v%d, 16, v%d" % (T + 5, T + 5))
            A("v_mul_u32_u24 v%d, 6, v%d" % (T + 6, T + 5))
            A("v_sub_u32 v%d, v1, v%d" % (T + 6, T + 6))
            A("v_add_u32 v%d, s62, v%d" % (T + 5, T + 5))
            A("v_mul_u32_u24 v%d, 6144, v%d" % (T + 5, T + 5))
            A("v_lshrrev_b32 v%d, 1, v%d" % (T + 7, T + 6))
            A("v_lshl_add_u32 v%d, v%d, 11, v%d" % (T + 5, T + 7, T + 5))
            A("v_and_b32 v%d, 1, v%d" % (T + 6, T + 6))
            A("v_lshl_add_u32 v%d, v%d, 7, v%d" % (T + 5, T + 6, T + 5))
            A("s_lshl_b32 s3, s63, 6")
            A("v_add_u32 v%d, s3, v%d" % (T + 5, T + 5))
            A("v_mov_b32 v%d, 0x7ffffff0" % (T + 9))
            A("v_cmp_gt_u32 vcc, 48, v1")
            A("v_cndmask_b32 v%d, v%d, v%d, vcc" % (T + 5, T + 9, T + 5))
            A("v_mul_u32_u24 v%d, 9363, v1" % (T + 6))
            A("v_lshrrev_b32 v%d, 16, v%d" % (T + 6, T + 6))
            A("v_mul_u32_u24 v%d, 7, v%d" % (T + 7, T + 6))
            A("v_sub_u32 v%d, v1, v%d" % (T + 7, T + 7))
            A("v_add_u32 v%d, s62, v%d" % (T + 6, T + 6))
            A("v_mul_u32_u24 v%d, 7168, v%d" % (T + 6, T + 6))
            A("v_lshl_add_u32 v%d, v%d, 7, v%d" % (T + 6, T + 7, T + 6))
            A("s_mul_i32 s3, s63, 224")
            A("v_add_u32 v%d, s3, v%d" % (T + 6, T + 6))
            A("v_cmp_gt_u32 vcc, 56, v1")
            A("v_cndmask_b32 v%d, v%d, v%d, vcc" % (T + 6, T + 9, T + 6))
            A("s_and_b32 s3, s2, 63")
            A("s_lshl_b32 s3, s3, 1")
            A("s_add_u32 s3, s3, s61")
            A("s_lshl_b32 s3, s3, 13")
            A("v_lshlrev_b32 v%d, 7, v1" % (T + 7))
            A("v_add_u32 v%d, s3, v%d" % (T + 7, T + 7))
    if not XF: touch_vec()
    A("s_waitcnt lgkmcnt(0)")
    if O("probe", 0):
        PST = O("pstride", 21)
        A("s_bfe_u32 s64, s2, 0x30003")
        A("s_mov_b32 s72, s4"); A("s_mov_b32 s73, s5"); A("s_mov_b32 s74, %d" % (2048 * 2048))
        for cls, (lo, size) in enumerate([(6, 1024 * 6144), (52, 1024 * 7168), (54, 1024 * 7168), (58, WS_SIZE), (56, 256), (66, 65536), (40, 3584 * 2048)], 1):
            A("s_cmp_eq_u32 s64, %d" % cls)
            A("s_cselect_b32 s72, s%d, s72" % lo); A("s_cselect_b32 s73, s%d, s73" % (lo + 1)); A("s_cselect_b32 s74, %d, s74" % size)
        A("s_cmp_eq_u32 s%d, 0" % S_W)
        A("s_cselect_b32 s74, s74, 0")
        A("v_lshlrev_b32 v%d, %d, v1" % (T + 10, PST))
        A("buffer_load_dword v%d, v%d, s[72:75], 0 offen" % (V_TCH + 1, T + 10)); VM.issue()
    A("s_lshl_b32 s64, s%d, 19" % S_I)
    mk_srd(A, SRD_X, 4, 5, 64, 2048 * 2048)
    D0 = dma_list(0)
    if XF:
        emit(D0[0:8]); touch_vec()
    if TOUCH:
        def sel(cond_sgpr, val, voff, lo, hi, size, step, start):
            A("s_cmp_eq_u32 s%d, %d" % (cond_sgpr, val))
            A("s_cselect_b64 vcc, -1, 0")
            A("s_cselect_b32 s%d, s%d, s%d" % (SRD_T, lo, SRD_T))
            A("s_cselect_b32 s%d, s%d, s%d" % (SRD_T + 1, hi, SRD_T + 1))
            A("s_cselect_b32 s%d, %d, s%d" % (SRD_T + 2, size, SRD_T + 2))
            A("s_cselect_b32 s%d, %d, s%d" % (S_TSTEP, step, S_TSTEP))
            A("s_cselect_b32 s%d, %d, s%d" % (S_TK, start, S_TK))
            A("v_cndmask_b32 v%d, v%d, v%d, vcc" % (V_TCH, V_TCH, voff))
        A("s_mov_b32 s%d, s6" % SRD_T); A("s_mov_b32 s%d, s7" % (SRD_T + 1))
        A("s_mov_b32 s%d, %d" % (SRD_T + 2, 1024 * 6144)); A("s_mov_b32 s%d, 0x20000" % (SRD_T + 3))
        A("s_mov_b32 s%d, %d" % (S_TSTEP, 128 * 6144))
        A("s_mov_b32 s%d, %d" % (S_TK, 0 if NEARLY else 128 * 6144))
        A("v_mov_b32 v%d, v%d" % (V_TCH, T + 5))
        sel(60, 1, T + 6, 52, 53, 1024 * 7168, 128 * 7168, 0 if NEARLY else 128 * 7168)
        sel(60, 2, T + 6, 54, 55, 1024 * 7168, 128 * 7168, 0 if NEARLY else 128 * 7168)
        sel(60, 3, T + 7, 40, 41, 3584 * 2048, 1 << 20, (1 << 32) - (NEARLY << 20) if NEARLY else 0)
        A("s_lshr_b32 s61, s%d, 1" % S_W)
        sel(61, 0, T + 4, SRD_X, SRD_X + 1, 256 * 2048, 256, 0 if NEARLY else 256)
        def touch():
            ld = "buffer_load_dword v%d, v%d, s[%d:%d], s%d offen" % (V_TCH + 1, V_TCH, SRD_T, SRD_T + 3, S_TK)
            if O("tnt", 0) == 1:
                l1 = A.newlabel("L_t"); l2 = A.newlabel("L_t")
                return ["s_cmp_eq_u32 s%d, %d" % (S_TSTEP, 1 << 20), "s_cbranch_scc1 %s" % l1, ld, "s_branch %s" % l2, l1 + ":", ld + " nt", l2 + ":",
                        "s_add_u32 s%d, s%d, s%d" % (S_TK, S_TK, S_TSTEP)]
            return [ld + (" nt" if O("tnt", 0) == 2 else ""), "s_add_u32 s%d, s%d, s%d" % (S_TK, S_TK, S_TSTEP)]
        emit([touch() for _ in range(NEARLY)])
    if not XF: emit(D0[0:8])
    A("s_cmp_ge_u32 s%d, 2" % S_W)
    A("s_cselect_b32 s60, s54, s52")
    A("s_cselect_b32 s61, s55, s53")
    A("s_mul_i32 s3, s%d, 224" % S_J)
    mk_srd(A, SRD_G, 60, 61, 3, 1024 * 7168)
    A("s_lshl_b32 s3, s%d, 6" % S_J)
    mk_srd(A, SRD_Q, 6, 7, 3, 1024 * 6144)
    A("s_and_b32 s3, s%d, 1" % S_W)
    A("s_mul_i32 s3, s3, 448")
    A("s_and_b32 s65, s%d, 1" % S_J)
    A("s_lshl_b32 s65, s65, 1")
    for g in range(7):
        A("v_add_u32 v%d, s3, v1" % T)
        if g: A("v_add_u32 v%d, %d, v%d" % (T, 64 * g, T))
        A("v_mul_u32_u24 v%d, 4682, v%d" % (T + 1, T))
        A("v_lshrrev_b32 v%d, 16, v%d" % (T + 1, T + 1))
        A("v_mul_u32_u24 v%d, 14, v%d" % (T + 2, T + 1))
        A("v_sub_u32 v%d, v%d, v%d" % (T + 2, T, T + 2))
        A("v_add_u32 v%d, s65, v%d" % (T + 2, T + 2))
        A("v_subrev_u32 v%d, 14, v%d" % (T + 3, T + 2))
        A("v_min_u32 v%d, v%d, v%d" % (T + 2, T + 2, T + 3))
        rowperm(T + 4, T + 1, T + 3)
        A("v_mul_u32_u24 v%d, 7168, v%d" % (T + 1, T + 4))
        A("v_lshl_add_u32 v%d, v%d, 4, v%d" % (T + 1, T + 2, T + 1))
        A("v_subrev_u32 v%d, %d, v%d" % (V_DMA + 11 + g, 1024 * (g & 3), T + 1))
        emit([[x for x in D0[11 + g] if not x.startswith("s_add_u32 s")]])
    A("s_mul_i32 s3, s%d, 192" % S_W)
    for q in range(3):
        A("v_add_u32 v%d, s3, v1" % T)
        if q: A("v_add_u32 v%d, %d, v%d" % (T, 64 * q, T))
        A("v_mul_u32_u24 v%d, 5462, v%d" % (T + 1, T))
        A("v_lshrrev_b32 v%d, 16, v%d" % (T + 1, T + 1))
        A("v_mul_u32_u24 v%d, 12, v%d" % (T + 2, T + 1))
        A("v_sub_u32 v%d, v%d, v%d" % (T + 2, T, T + 2))
        A("v_bfe_u32 v%d, v%d, 2, 1" % (T + 3, T + 1))
        A("v_lshlrev_b32 v%d, 1, v%d" % (T + 3, T + 3))
        A("v_xor_b32 v%d, v%d, v%d" % (T + 2, T + 2, T + 3))
        rowperm(T + 4, T + 1, T + 3)
        A("v_mul_u32_u24 v%d, 6144, v%d" % (T + 1, T + 4))
        A("v_lshrrev_b32 v%d, 2, v%d" % (T + 3, T + 2))
        A("v_lshlrev_b32 v%d, 11, v%d" % (T + 3, T + 3))
        A("v_and_b32 v%d, 3, v%d" % (T + 2, T + 2))
        A("v_lshlrev_b32 v%d, 4, v%d" % (T + 2, T + 2))
        A("v_add3_u32 v%d, v%d, v%d, v%d" % (T + 1, T + 1, T + 2, T + 3))
        A("v_subrev_u32 v%d, %d, v%d" % (V_DMA + 8 + q, 1024 * q, T + 1))
        emit([D0[8 + q]])
    for s in D0[17][1:]: A(s)
    mk_srd(A, SRD_W, 58, 59, None, WS_SIZE)
    S_F1 = 44
    A("s_lshl_b32 s%d, s%d, 7" % (S_F1, S_J))
    A("s_add_u32 s%d, s%d, %d" % (S_F1, S_F1, WS_FLG1))
    A("s_lshl_b32 s3, s%d, 2" % S_I)
    A("s_add_u32 s3, s3, s%d" % S_W)
    A("s_lshl_b32 s45, s3, 2")
    A("s_lshr_b32 s3, s3, 1")
    A("s_lshl_b32 s3, s3, 5")
    A("s_add_u32 s3, s3, s%d" % S_J)
    A("s_lshl_b32 s3, s3, 1")
    A("s_and_b32 s60, s%d, 1" % S_W)
    A("s_add_u32 s3, s3, s60")
    A("s_lshl_b32 s3, s3, 2")
    A("s_add_u32 s77, s3, %d" % WS_FLGH)
    k2ids(A, 61, 62, 63, 64)
    A("s_add_u32 s3, s%d, s45" % S_F1)
    A("v_mov_b32 v%d, s3" % T)
    A("v_writelane_b32 v%d, s77, 1" % T)
    A("s_add_u32 s3, s77, %d" % (WS_FLGO - WS_FLGH))
    A("v_writelane_b32 v%d, s3, 2" % T)
    A("v_writelane_b32 v%d, s64, 3" % T)
    A("v_mov_b32 v%d, 0" % (T + 1))
    A("buffer_store_dword v%d, v%d, s[%d:%d], 0 offen sc1" % (T + 1, T, SRD_W, SRD_W + 3)); VM.issue()
    VM.tag["g"] = VM.n
    EARLY = O("early", 0)
    D1 = dma_list(1)
    emit(D1[:EARLY])
    A("s_lshl_b32 s3, s%d, 11" % S_J)
    mk_srd(A, SRD_P, 66, 67, 3, 65536)
    A("s_and_b32 s3, s%d, 1" % S_W)
    A("s_lshl_b32 s47, s3, 10")
    A("v_lshl_add_u32 v%d, v1, 4, s47" % (T + 3))
    late = D1[EARLY:] + [["s_add_u32 m0, s47, %d" % WPB, "buffer_load_dwordx4 v%d, s[%d:%d], 0 offen lds" % (T + 3, SRD_P, SRD_P + 3)]]
    mk_srd(A, SRD_D, 56, 57, None, 256)
    if TOUCH: late += [touch() for _ in range(NLATE)]
    A("s_load_dwordx2 s[4:5], s[0:1], 24")
    A("s_load_dwordx2 s[56:57], s[0:1], 72")
    A("v_and_b32 v%d, 15, v1" % (T + 4))
    A("v_lshlrev_b32 v%d, 7, v%d" % (T + 4, T + 4))
    A("s_lshl_b32 s3, s%d, 13" % S_W)
    A("v_add_u32 v%d, s3, v%d" % (T + 4, T + 4))
    A("v_bfe_u32 v%d, v1, 1, 3" % (T + 5))
    A("v_lshrrev_b32 v%d, 4, v1" % (T + 6))
    for ks in range(2):
        A("v_or_b32 v%d, %d, v%d" % (T + 7, ks * 4, T + 6))
        A("v_xor_b32 v%d, v%d, v%d" % (T + 7, T + 7, T + 5))
        A("v_lshl_add_u32 v%d, v%d, 4, v%d" % (V_XRD + ks, T + 7, T + 4))
        A("v_add_u32 v%d, %d, v%d" % (V_XRD + 2 + ks, STAGE, V_XRD + ks))
    A("v_bfe_u32 v%d, v1, 2, 2" % (T + 4))
    A("v_and_b32 v%d, 3, v1" % (T + 5))
    A("v_bfe_u32 v%d, v1, 4, 1" % (T + 7))
    A("v_lshrrev_b32 v%d, 5, v1" % (T + 8))
    A("v_lshl_add_u32 v%d, v%d, 4, v%d" % (T + 4, T + 8, T + 4))
    A("v_lshl_add_u32 v%d, v%d, 2, v%d" % (T + 4, T + 7, T + 4))
    A("v_lshlrev_b32 v%d, 3, v%d" % (T + 5, T + 5))
    A("v_mul_u32_u24 v%d, 192, v%d" % (T + 9, T + 4))
    A("v_add_u32 v%d, v%d, v%d" % (T + 9, T + 9, T + 5))
    for h in range(2):
        A("v_xor_b32 v%d, %d, v%d" % (T + 8, h, T + 7))
        A("v_lshl_add_u32 v%d, v%d, 5, v%d" % (T + 8, T + 8, T + 9))
        for st in range(2): A("v_add_u32 v%d, %d, v%d" % (V_QRD + st * 2 + h, QB + STAGE * st, T + 8))
    A("v_mul_u32_u24 v%d, 224, v%d" % (T + 9, T + 4))
    A("v_add_u32 v%d, v%d, v%d" % (T + 8, T + 9, T + 5))
    for st in range(2): A("v_add_u32 v%d, %d, v%d" % (V_GRD + st, GB + STAGE * st, T + 8))
    A("s_mov_b32 s%d, 0x%x" % (S_C, LOG2E)); A("s_mov_b32 s%d, 0x%x" % (S_C + 1, LOG2E))
    stamp(False)
    A("s_waitcnt vmcnt(%d) lgkmcnt(0)" % VM.wait_for(["g"]))
    A("s_barrier")
    def xread(stage, ks, p, tb):
        return "ds_read_b128 %s, v%d offset:%d" % (xf(p, tb), V_XRD + 2 * stage + ks, tb * 2048)
    def wread(stage, ks, cb, n, t):
        b = BLK[cb]
        if b[0] == "q":
            return "ds_read_b64_tr_b16 %s, v%d offset:%d" % (wf(n, t), V_QRD + stage * 2 + b[2], (ks * 32 + t * 8) * 192 + b[1] * 64)
        return "ds_read_b64_tr_b16 %s, v%d offset:%d" % (wf(n, t), V_GRD + stage, (ks * 32 + t * 8) * 224 + b[1] * 32 + (UB - GB if b[0] == "u" else 0))
    Q = Cnt(15)
    for tb in range(NTB):
        A(xread(0, 0, 0, tb)); Q.issue(("x", 0, tb))
    for n in range(D):
        for t in range(2):
            A(wread(0, 0, n, n, t)); Q.issue(("w", n))
    A("s_lshl_b32 s3, s%d, 3" % S_J)
    A("s_add_u32 s3, s3, s%d" % S_I)
    A("s_cmp_eq_u32 s%d, 0" % S_W)
    A("s_cselect_b32 s3, s3, 0x1000")
    A("v_mov_b32 v%d, s3" % (T + 5))
    A("v_mov_b32 v%d, 1" % (T + 6))
    bytest = "buffer_store_byte v%d, v%d, s[%d:%d], 0 offen sc1" % (T + 6, T + 5, SRD_D, SRD_D + 3)
    NPRO = 1 + (NLATE if TOUCH else 0)
    if STAMP: stamp(); stamp.real()


    NS = 4; ST2 = 16384; AB = 65536
    TH = O("th", 8)
    NH = (72 - TH) // 2; NF1 = 56 - NH; NT2 = NH + TH
    NPEEL = NF1 - 4
    S_MT, S_NT, S_KH, S_XF = 52, 53, 54, 55
    S_AK, S_WK, S_KT, S_SW, S_WK0, S_M0H, S_AK0 = 28, 29, 30, 31, 34, 35, 36
    SRD_A, SRD_B, SRD_O = 8, 12, 16
    S_B2 = 72; S_WM, S_WN = 42, 43; S_HF = 70
    P_DMA, P_XRD, P_WRD, P_TOK, P_GA, P_VL, P_Z0, P_L4 = 2, 10, 11, 15, 16, 17, 18, 19
    P_XRD2, P_AH = 3, 5
    def groups(B, n=2):
        L = []; i = 0
        while i < len(B.lines):
            k = n
            while i + k < len(B.lines) and ("s_addc" in B.lines[i + k] or "s_cselect" in B.lines[i + k] or "s_cselect" in "".join(B.lines[i + k + 1:i + k + 2])): k += 1
            L.append([x.strip() for x in B.lines[i:i + k]]); i += k
        return L
    def m0set(i, stage):
        return "s_add_u32 m0, s%d, %d" % (S_M0 + i, ST2 * stage) if stage else "s_mov_b32 m0, s%d" % (S_M0 + i)
    def lda(n): return "buffer_load_dwordx4 v%d, s[%d:%d], s%d offen offset:%d%s lds" % (P_DMA + (n & 2), SRD_A, SRD_A + 3, S_AK, 1024 * n, DSC)
    def ldw(n): return "buffer_load_dwordx4 v%d, s[%d:%d], s%d offen offset:%d lds" % (P_DMA + 4 + n, SRD_B, SRD_B + 3, S_WK, 1024 * n)
    def wotouch():
        B = Asm()
        mk_srd(B, 72, 4, 5, None, 1024 * 2048)
        B("s_lshr_b32 s3, s2, 3")
        B("s_lshl_b32 s3, s3, 2")
        B("s_add_u32 s3, s3, s%d" % S_W)
        B("s_lshl_b32 s3, s3, 14")
        B("s_bfe_u32 s6, s2, 0x10002")
        B("s_lshl_b32 s6, s6, 10")
        B("s_add_u32 s3, s3, s6")
        B("v_lshrrev_b32 v32, 3, v1")
        B("v_lshlrev_b32 v32, 11, v32")
        B("v_and_b32 v33, 7, v1")
        B("v_lshl_add_u32 v32, v33, 7, v32")
        B("buffer_load_dword v33, v32, s[72:75], s3 offen" + (" nt" if O("tnt", 0) else ""))
        return groups(B, 3)
    AG = 96
    def gloads():
        B = Asm()
        mk_srd(B, 72, 42, 43, None, 2048)
        B("v_and_b32 v34, 31, v1")
        B("v_lshlrev_b32 v34, 4, v34")
        B("v_lshrrev_b32 v35, 5, v1")
        B("s_lshl_b32 s3, s%d, 6" % S_W)
        B("s_lshl_b32 s6, s%d, 1" % S_J)
        B("s_add_u32 s3, s3, s6")
        B("v_add_u32 v30, s3, v35")
        B("v_lshl_add_u32 v35, v30, 11, v34")
        L = groups(B, 3)
        for q in range(4):
            L.append(["buffer_load_dwordx4 %s, v35, s[%d:%d], 0 offen offset:%d" % (ar(AG + 4 * q, 4), SRD_X, SRD_X + 3, 512 * q)])
            L.append(["buffer_load_dwordx4 %s, v34, s[72:75], 0 offen offset:%d" % (ar(AG + 16 + 4 * q, 4), 512 * q)])
        return L
    def wsetup():
        B = Asm()
        k2ids(B, S_MT, S_NT, S_KH, S_XF)
        B("v_lshrrev_b32 v32, 4, v1")
        B("v_and_b32 v33, 15, v1")
        B("v_lshlrev_b32 v34, 1, v32")
        B("v_xor_b32 v33, v33, v34")
        B("s_lshl_b32 s3, s%d, 4" % S_W)
        B("v_add_u32 v32, s3, v32")
        B("v_lshlrev_b32 v32, 11, v32")
        B("v_lshl_add_u32 v32, v33, 4, v32")
        B("v_xor_b32 v33, 128, v32")
        for n in range(4):
            B("v_add_u32 v%d, %d, v%d" % (P_DMA + 4 + n, n * 4 * 2048 - 1024 * n, 32 + (n >> 1)))
        B("s_lshl_b32 s%d, s%d, 12" % (S_M0 + 1, S_W))
        B("s_add_u32 s%d, s%d, %d" % (S_M0, S_M0 + 1, AB))
        B("s_mul_i32 s3, s%d, %d" % (S_KH, NH * 64 * 2048))
        B("s_lshl_b32 s6, s%d, 8" % S_NT)
        B("s_add_u32 s3, s3, s6")
        B("s_add_u32 s%d, s40, s3\ns_addc_u32 s%d, s41, 0" % (SRD_B, SRD_B + 1))
        B("s_sub_u32 s%d, %d, s3" % (SRD_B + 2, 3584 * 2048))
        B("s_mov_b32 s%d, 0" % S_WK)
        return groups(B, 3)
    def wdma():
        L = []
        for stg in range(NS):
            for n in range(4):
                g = ([m0set(1, stg)] if n == 0 else []) + [ldw(n)]
                if n == 3: g.append("s_add_u32 s%d, s%d, %d" % (S_WK, S_WK, 64 * 2048))
                L.append(g)
        return L
    def rest():
        B = Asm()
        B("s_mov_b32 s47, %d" % (WS_FLGO - WS_FLGH))
        B("s_lshl_b32 s6, s%d, 8" % S_NT)
        B("s_add_u32 s%d, s4, s6\ns_addc_u32 s%d, s5, 0" % (S_B2, S_B2 + 1))
        B("s_sub_u32 s%d, %d, s6" % (S_B2 + 2, 1024 * 2048))
        B("v_lshlrev_b32 v%d, 4, v1" % P_VL)
        B("s_mul_i32 s3, s%d, %d" % (S_W, 2 * MBS))
        B("v_add_u32 v%d, s3, v%d" % (P_DMA, P_VL))
        B("v_add_u32 v%d, %d, v%d" % (P_DMA + 2, MBS - 2048, P_DMA))
        B("s_mov_b32 s%d, 0" % S_AK); B("s_mov_b32 s%d, %d" % (S_KT, NS))
        jh = (64 * NH - 1) // 112; jf = 64 * NH // 112
        full = (1 << 64) - 1
        ih = full ^ ((1 << (2 * jh + 2)) - 1); if_ = (1 << (2 * jf)) - 1
        B("s_mov_b32 s68, 0x%x" % (if_ & 0xffffffff)); B("s_mov_b32 s69, 0x%x" % (if_ >> 32))
        B("s_cmp_eq_u32 s%d, 0" % S_KH)
        B("s_cselect_b32 s%d, %d, %d" % (S_SW, NH, NF1))
        B("s_cselect_b32 s%d, %d, 0" % (S_WK0, (16 - TH) * 64 * 2048))
        B("s_mov_b32 s%d, %d" % (S_AK0, NF1 * 2048))
        B("s_cselect_b32 s%d, %d, s%d" % (S_AK0, (72 - TH) * 2048, S_AK0))
        B("s_cselect_b32 s68, 0x%x, s68" % (ih & 0xffffffff)); B("s_cselect_b32 s69, 0x%x, s69" % (ih >> 32))
        B("s_mul_i32 s3, s%d, %d" % (S_MT, 8 * MBS))
        B("s_mul_i32 s6, s%d, %d" % (S_KH, NH * 2048))
        B("s_add_u32 s3, s3, s6")
        mk_srd(B, SRD_A, 58, 59, 3, 128 * MBS)
        mk_srd(B, SRD_O, 56, 57, None, 2048 * 2048)
        B("s_lshr_b32 s%d, s%d, 1" % (S_WM, S_W)); B("s_and_b32 s%d, s%d, 1" % (S_WN, S_W))
        B("s_lshl_b32 s6, s%d, 7" % S_MT)
        B("s_lshl_b32 s3, s%d, 6" % S_WM)
        B("s_add_u32 s6, s6, s3")
        B("s_lshl_b32 s3, s%d, 5" % S_KH)
        B("s_add_u32 s6, s6, s3")
        B("v_and_b32 v32, 15, v1")
        B("v_add_u32 v%d, s6, v32" % P_TOK)
        B("v_lshlrev_b32 v%d, 2, v%d" % (P_GA, P_TOK))
        B("v_add_u32 v%d, %d, v%d" % (P_GA, WS_G, P_GA))
        B("s_lshl_b32 s3, s%d, 13" % S_WM)
        B("s_add_u32 s3, s3, %d" % AB)
        B("s_lshl_b32 s6, s%d, 12" % S_KH)
        B("s_add_u32 s%d, s3, s6" % S_M0H)
        B("v_add_u32 v%d, s%d, v%d" % (P_XRD, S_M0H, P_VL))
        B("s_sub_u32 s3, s3, s6")
        B("v_add_u32 v%d, s3, v%d" % (P_XRD2, P_VL))
        B("s_lshl_b32 s3, s%d, 11" % S_WN)
        B("s_add_u32 s%d, s%d, s3" % (S_M0H, S_M0H))
        B("s_sub_u32 s3, s%d, %d" % (S_M0H, AB))
        B("s_mul_i32 s3, s3, %d" % (MBS // 2048))
        B("v_add_u32 v%d, s3, v%d" % (P_AH, P_VL))
        B("v_lshrrev_b32 v34, 4, v1")
        B("v_bfe_u32 v32, v1, 2, 2")
        B("v_lshl_add_u32 v33, v34, 3, v32")
        B("v_lshlrev_b32 v33, 8, v33")
        B("v_and_b32 v35, 3, v1")
        B("v_lshl_add_u32 v33, v35, 3, v33")
        B("v_bfe_u32 v35, v1, 4, 1")
        B("v_lshl_add_u32 v32, v35, 2, v32")
        B("s_lshl_b32 s3, s%d, 2" % S_WN)
        for cb in range(4):
            B("s_add_u32 s6, s3, %d" % cb)
            B("v_xor_b32 v35, s6, v32")
            B("v_lshl_add_u32 v%d, v35, 5, v33" % (P_WRD + cb))
        B("v_mov_b32 v%d, 0" % P_Z0)
        B("v_lshlrev_b32 v%d, 2, v1" % P_L4)
        B("s_lshl_b32 s%d, s%d, 8" % (S_HF, S_MT))
        B("s_add_u32 s%d, s%d, %d" % (S_HF, S_HF, WS_FLGH))
        B("s_mov_b32 s46, 0x01010101")
        return groups(B, 3)

    st = {"pend": late}
    PB = 40 - D
    DSP = O("dsp", 1); DPOS = O("dpos", 2); DMARG = O("dmarg", 12)
    def tile(stage, first, dma_next, has_next, vm_extra, do_touch, extra=None, after=None):
        if extra: st["pend"] = st["pend"] + extra
        for n in range(40):
            ks, cb = divmod(n, 20)
            pre = []
            if n == PB and has_next:
                assert not st["pend"]
                pre += ["s_waitcnt lgkmcnt(0) vmcnt(%d)" % vm_extra, "s_barrier"]
                if first: pre.append(bytest)
                if dma_next: st["pend"] = dma_list(stage)
                if do_touch: st["pend"].append(touch())
                if after: st["pend"] = st["pend"] + after
            need_tags = [("w", n)] + ([("x", ks, tb) for tb in range(NTB)] if cb == 0 else [])
            if not (n == PB and has_next):
                pre.append("s_waitcnt lgkmcnt(%d)" % Q.wait_for(need_tags))
            rds = []
            def addw(m):
                if m < 40:
                    k2, c2 = divmod(m, 20)
                    for t in range(2): rds.append((wread(stage, k2, c2, m, t), ("w", m)))
                elif has_next:
                    for t in range(2): rds.append((wread(stage ^ 1, 0, m - 40, m, t), ("w", m - 40)))
            if n == PB - 2: addw(n + D); addw(n + D + 1)
            elif n == PB - 1: pass
            else: addw(n + D)
            if ks == 0 and cb in (4, 7, 10, 13):
                tb = (cb - 4) // 3
                rds.append((xread(stage, 1, 1, tb), ("x", 1, tb)))
            if has_next and n >= PB and n < PB + 4:
                tb = n - PB
                rds.append((xread(stage ^ 1, 0, 0, tb), ("x", 0, tb)))
            for s in pre: A(s)
            k = 0
            for tb in range(NTB):
                a, b = wf(n), xf(ks, tb)
                if BLK[cb][0] == "q" and BLK[cb][1] == 2: a, b = b, a
                c = "0" if (first and ks == 0) else acc(cb, tb)
                A("v_mfma_f32_16x16x32_bf16 %s, %s, %s, %s" % (acc(cb, tb), a, b, c))
                if k < len(rds):
                    A(rds[k][0]); Q.issue(rds[k][1]); k += 1
                if tb == 3:
                    while k < len(rds):
                        A(rds[k][0]); Q.issue(rds[k][1]); k += 1
                if tb == DPOS and st["pend"]:
                    left = (PB - n - 1) % 40 + 1 - DMARG
                    if DSP == 1 or (n % DSP == 0) or len(st["pend"]) * DSP >= left:
                        for s in st["pend"].pop(0): A(s)
    assert 40 % RING == 0 and D + 2 <= RING
    nt = 1 if TOUCH else 0
    tile(0, True, True, True, NPRO, False)
    A("s_mov_b32 s%d, 0" % S_CNT)
    A.label("L_k1_loop")
    if STAMP == 2:
        A("s_memtime s[100:101]"); A("s_waitcnt lgkmcnt(0)"); A("s_sub_u32 s100, s100, s80")
        A("s_mov_b32 m0, s%d" % S_CNT); A("s_nop 0"); A("v_writelane_b32 v47, s100, m0")
        A("s_add_u32 m0, s%d, 0" % (S_M0 + 1))
    tile(1, False, True, True, 0, TOUCH)
    tile(0, False, True, True, nt, False)
    A("s_add_u32 s%d, s%d, 1" % (S_CNT, S_CNT))
    A("s_cmp_lt_u32 s%d, 6" % S_CNT)
    A("s_cbranch_scc1 L_k1_loop")
    if STAMP == 2:
        for q in range(6):
            r = 82 + len(stamp.regs); stamp.regs.append(r)
            A("v_readlane_b32 s%d, v47, %d" % (r, q)); A("s_nop 1"); A("s_add_u32 s%d, s%d, s80" % (r, r))
        stamp()
        stamp.off = True
    tile(1, False, True, True, 10, False, [touch()] + ([] if RSW else gloads()) + wotouch())
    tile(0, False, False, True, 0, False, wsetup(), wdma())
    tile(1, False, False, False, 0, False, rest())
    assert not st["pend"]
    stamp(); stamp.real()

    if O("k1only", 0):
        stamp.finish(S_W, SRD_W, 38, "L_k1_end")
        A.label("L_k1_end"); A("s_endpgm"); A.label("L_code_end")
        return name, LDS
    E = 2
    def pk(op, d, a, b, c=None, mods=""):
        if c is None: A("%s %s, %s, %s %s" % (op, d, a, b, mods))
        else: A("%s %s, %s, %s, %s %s" % (op, d, a, b, c, mods))
    def rsag2(op, qa, opb, qb):
        seqs = []
        for (o, q) in ((op, qa), (opb, qb)):
            seqs.append([
                "v_permlane32_swap_b32 v%d, v%d" % (q[0], q[1]),
                "v_permlane32_swap_b32 v%d, v%d" % (q[2], q[3]),
                "%s v%d, v%d, v%d" % (o, q[0], q[0], q[1]),
                "%s v%d, v%d, v%d" % (o, q[2], q[2], q[3]),
                "v_permlane16_swap_b32 v%d, v%d" % (q[0], q[2]),
                "%s v%d, v%d, v%d" % (o, q[0], q[0], q[2]),
                "v_mov_b32 v%d, v%d" % (q[2], q[0]),
                "v_permlane16_swap_b32 v%d, v%d" % (q[0], q[2]),
                "v_mov_b32 v%d, v%d" % (q[1], q[0]),
                "v_mov_b32 v%d, v%d" % (q[3], q[2]),
                "v_permlane32_swap_b32 v%d, v%d" % (q[0], q[1]),
                "v_permlane32_swap_b32 v%d, v%d" % (q[2], q[3])])
        for x, y in zip(*seqs):
            A(x); A(y)
    MX = [232, 234, 236, 238]; MN = [240, 242, 244, 246]; PB16 = 20; WP = 176
    def feature(cb0):
        for tb in range(NTB):
            for h in range(2):
                f, b = accb(cb0 + h, tb); assert f == "v"
                A("v_cvt_pk_bf16_f32 v%d, v%d, v%d" % (PB16 + 4 * tb + 2 * h, b, b + 1))
                A("v_cvt_pk_bf16_f32 v%d, v%d, v%d" % (PB16 + 4 * tb + 2 * h + 1, b + 2, b + 3))
        for tb in range(NTB):
            for fb in range(2):
                A("v_mfma_f32_16x16x32_bf16 %s, %s, %s, 0" % (acc(cb0 + fb, tb), vr(WP + 4 * fb, 4), vr(PB16 + 4 * tb, 4)))
    def feature2(cb0):
        for tb in range(NTB):
            p0 = accb(cb0, tb)[1]; p1 = accb(cb0 + 1, tb)[1]
            for step in range(4):
                for (op3, op2, d) in (("v_max3_f32", "v_max_f32", MX[tb]), ("v_min3_f32", "v_min_f32", MN[tb])):
                    if step == 0: A("%s v%d, v%d, v%d, v%d" % (op3, d, p0, p0 + 1, p0 + 2))
                    if step == 1: A("%s v%d, v%d, v%d, v%d" % (op3, d, d, p0 + 3, p1))
                    if step == 2: A("%s v%d, v%d, v%d, v%d" % (op3, d, d, p1 + 1, p1 + 2))
                    if step == 3: A("%s v%d, v%d, v%d" % (op2, d, d, p1 + 3))
        rsag2("v_max_f32", MX, "v_min_f32", MN)
        for b in MX + MN: A("v_mul_f32 v%d, s%d, v%d" % (b, S_C, b))
    def exps(cb0, tb, EM):
        for h in range(2):
            p = accb(cb0 + h, tb)[1]
            for u in range(2):
                pk("v_pk_fma_f32", vr(EM + 4 * h + 2 * u, 2), vr(p + 2 * u, 2), sr(S_C, 2), vr(MN[tb], 2),
                   "op_sel_hi:[1,1,0] neg_lo:[1,0,0] neg_hi:[1,0,0]")
                pk("v_pk_fma_f32", vr(p + 2 * u, 2), vr(p + 2 * u, 2), sr(S_C, 2), vr(MX[tb], 2),
                   "op_sel_hi:[1,1,0] neg_lo:[0,0,1] neg_hi:[0,0,1]")
        for h in range(2):
            p = accb(cb0 + h, tb)[1]
            for r in range(4):
                A("v_exp_f32 v%d, v%d" % (p + r, p + r))
                A("v_exp_f32 v%d, v%d" % (EM + 4 * h + r, EM + 4 * h + r))
    VH = 36; VS = 37
    A("v_mov_b32 v0, v30")
    A("v_and_b32 v%d, 15, v1" % VH)
    A("v_lshlrev_b32 v%d, 4, v%d" % (VH, VH))
    A("v_lshrrev_b32 v38, 5, v1")
    A("v_lshl_add_u32 v%d, v38, 8, v%d" % (VH, VH))
    A("v_bfe_u32 v38, v1, 4, 1")
    A("v_mul_u32_u24 v%d, %d, v38" % (VS, MBS))
    A("v_add_u32 v%d, v%d, v%d" % (VS, VS, VH))
    A("v_lshl_add_u32 v%d, v38, 9, v%d" % (VH, VH))
    A("s_lshl_b32 s3, s%d, 4" % S_I)
    A("s_lshl_b32 s62, s%d, 2" % S_W)
    A("s_add_u32 s62, s62, s3")
    A("s_mul_i32 s62, s62, %d" % MBS)
    A("s_mul_i32 s3, s%d, 7" % S_J)
    A("s_add_u32 s3, s3, 1")
    A("s_lshr_b32 s3, s3, 1")
    A("s_lshl_b32 s3, s3, 10")
    A("s_add_u32 s63, s62, s3")
    for tb in range(1, 4): A("s_add_u32 s%d, s63, %d" % (63 + tb, tb * MBS))
    A("s_add_u32 s67, s63, 3072")
    A("s_sub_u32 s3, s63, 512")
    A("s_bitcmp1_b32 s%d, 0" % S_J)
    A("s_cselect_b32 s67, s3, s67")
    A("s_add_u32 s76, s67, %d" % (2 * MBS))
    FREEV = [accb(6, 0)[1] + 4 * i for i in range(16)]
    def glu(fb, fi):
        gs, us = [], []
        for tb in range(4):
            out = []
            for cb in (6 + 2 * fb, 7 + 2 * fb):
                f, b = accb(cb, tb)
                if f == "a":
                    d = FREEV[fi]; fi += 1
                    for r in range(4): A("v_accvgpr_read_b32 v%d, a%d" % (d + r, b + r))
                    b = d
                out.append(b)
            gs.append(out[0]); us.append(out[1])
        for tb in range(4):
            for u in range(2): pk("v_pk_mul_f32", vr(gs[tb] + 2 * u, 2), vr(gs[tb] + 2 * u, 2), sr(S_C, 2))
        for tb in range(4):
            for r in range(4): A("v_exp_f32 v%d, -v%d" % (gs[tb] + r, gs[tb] + r))
        for tb in range(4):
            for u in range(2): pk("v_pk_add_f32", vr(gs[tb] + 2 * u, 2), vr(gs[tb] + 2 * u, 2), "1.0", None, "op_sel_hi:[1,0]")
        for tb in range(4):
            for r in range(4): A("v_rcp_f32 v%d, v%d" % (gs[tb] + r, gs[tb] + r))
        for tb in range(4):
            for u in range(2): pk("v_pk_mul_f32", vr(gs[tb] + 2 * u, 2), vr(gs[tb] + 2 * u, 2), vr(us[tb] + 2 * u, 2))
        return gs, us
    def packswap(dst, a, b):
        for (d, x) in ((dst, a), (dst + 2, b)):
            A("v_cvt_pk_bf16_f32 v%d, v%d, v%d" % (d, x, x + 1))
            A("v_cvt_pk_bf16_f32 v%d, v%d, v%d" % (d + 1, x + 2, x + 3))
    def doswap(d):
        A("v_permlane16_swap_b32 v%d, v%d" % (d, d + 2))
        A("v_permlane16_swap_b32 v%d, v%d" % (d + 1, d + 3))
    def glu_pair(p, D4):
        g0, u0 = glu(2 * p, 0)
        g1, u1 = glu(2 * p + 1, 8)
        for tb in range(4): packswap(D4[tb], g0[tb], g1[tb])
        for tb in range(4): doswap(D4[tb])
        return ["buffer_store_dwordx4 %s, v%d, s[%d:%d], s%d offen offset:%d%s" % (vr(D4[tb], 4), VH, SRD_W, SRD_W + 3, 63 + tb, p * 1024, SC) for tb in range(4)]
    def capture(fn):
        start = len(A.lines)
        r = fn()
        body = [x.strip() for x in A.lines[start:]]; del A.lines[start:]
        return body, r
    def spread(fn, stores, every):
        body, r = capture(fn)
        k = 0
        for n, ln in enumerate(body):
            if n % every == 0 and k < len(stores):
                A(stores[k]); k += 1
            A(ln)
        for x in stores[k:]: A(x)
        return r
    PKA = [PB16 + 4 * i for i in range(4)]
    PKB = [accb(10, 0)[1] + 4 * i for i in range(4)]
    PK1 = [accb(11, 0)[1] + 4 * i for i in range(4)]
    st0 = glu_pair(0, PKA)
    st1 = spread(lambda: glu_pair(1, PK1), st0, 30)
    st2 = spread(lambda: glu_pair(2, PKA), st1, 40)
    def last():
        g6, u6 = glu(6, 0)
        for tp in range(2): packswap(PKB[tp], g6[2 * tp], g6[2 * tp + 1])
        for tp in range(2): doswap(PKB[tp])
    spread(last, st2, 25)
    for tp in range(2):
        A("buffer_store_dwordx4 %s, v%d, s[%d:%d], s%d offen%s" % (vr(PKB[tp], 4), VS, SRD_W, SRD_W + 3, 67 if tp == 0 else 76, SC))
    stamp()
    def flag_group(saddr, soff):
        return ["v_mov_b32 v38, s%d" % saddr, "v_mov_b32 v39, 1", "s_mov_b64 exec, 1",
                "buffer_store_dword v39, v38, s[%d:%d], %s offen sc1" % (SRD_W, SRD_W + 3, soff), "s_mov_b64 exec, -1"]
    A("v_bfe_u32 v224, v1, 2, 2")
    A("v_lshrrev_b32 v225, 4, v1")
    A("v_and_b32 v226, 3, v1")
    A("v_lshl_add_u32 v227, v225, 2, v224")
    A("v_lshlrev_b32 v228, 6, v227")
    A("v_lshl_add_u32 v228, v226, 3, v228")
    A("v_add_u32 v228, %d, v228" % WPB)
    for fb in range(2):
        for t in range(2):
            A("ds_read_b64_tr_b16 %s, v228 offset:%d" % (vr(WP + 4 * fb + 2 * t, 2), fb * 32 + t * 1024))
    A("s_waitcnt lgkmcnt(0)")
    A("s_barrier")
    dbgld = "buffer_load_dword v47, v%d, s[%d:%d], 0 offen sc1" % (P_L4, SRD_D, SRD_D + 3)
    A(dbgld)
    feature(0)
    SP = [248, 250, 252, 254]; SM = [200, 202, 204, 206]
    VB = accb(2, 0)[1]
    assert accb(3, 0)[1] == VB + 16
    for db in range(2):
        for tb in range(4):
            s = VB + db * 16 + tb * 4
            d = VB + db * 8 + tb * 2
            A("v_cvt_pk_bf16_f32 v%d, v%d, v%d" % (d, s, s + 1))
            A("v_cvt_pk_bf16_f32 v%d, v%d, v%d" % (d + 1, s + 2, s + 3))
    feature2(0)
    A("s_lshl_b32 s61, s%d, 13" % S_W)
    A("s_add_u32 s61, s61, %d" % SCR)
    VPW = 192; VPR = 196
    A("v_and_b32 v229, 15, v1")
    A("v_lshlrev_b32 v229, 7, v229")
    A("v_xor_b32 v230, v225, v226")
    A("v_lshl_add_u32 v229, v230, 3, v229")
    A("v_add_u32 v229, s61, v229")
    for q in range(4):
        A("v_xor_b32 v230, %d, v224" % q)
        A("v_lshl_add_u32 v%d, v230, 5, v229" % (VPW + q))
    A("v_lshlrev_b32 v229, 7, v227")
    A("v_xor_b32 v230, v226, v224")
    A("v_lshl_add_u32 v229, v230, 3, v229")
    A("v_add_u32 v229, s61, v229")
    for q in range(4):
        A("v_xor_b32 v230, %d, v225" % q)
        A("v_lshl_add_u32 v%d, v230, 5, v229" % (VPR + q))
    EMR = [PB16, PB16 + 8, VB + 16, VB + 24]
    for tb in range(4):
        exps(0, tb, EMR[tb])
    t0 = 144
    for tb in range(4):
        p0 = accb(0, tb)[1]; p1 = accb(1, tb)[1]; e = EMR[tb]
        pk("v_pk_add_f32", vr(t0, 2), vr(p0, 2), vr(p0 + 2, 2))
        pk("v_pk_add_f32", vr(t0 + 2, 2), vr(e, 2), vr(e + 2, 2))
        pk("v_pk_add_f32", vr(t0, 2), vr(t0, 2), vr(p1, 2))
        pk("v_pk_add_f32", vr(t0 + 2, 2), vr(t0 + 2, 2), vr(e + 4, 2))
        pk("v_pk_add_f32", vr(t0, 2), vr(t0, 2), vr(p1 + 2, 2))
        pk("v_pk_add_f32", vr(t0 + 2, 2), vr(t0 + 2, 2), vr(e + 6, 2))
        A("v_add_f32 v%d, v%d, v%d" % (SP[tb], t0, t0 + 1))
        A("v_add_f32 v%d, v%d, v%d" % (SM[tb], t0 + 2, t0 + 3))
    rsag2("v_add_f32", SP, "v_add_f32", SM)
    for i in SP + SM: A("v_rcp_f32 v%d, v%d" % (i, i))
    HPOS = O("hpos", 0)
    def hflag():
        A("s_waitcnt vmcnt(0)")
        for x in flag_group(77, "0"): A(x)
    if HPOS == 0: hflag()
    for tb in range(4):
        srcs = [(accb(0, tb)[1], SP), (accb(1, tb)[1], SP), (EMR[tb], SM), (EMR[tb] + 4, SM)]
        for q, (p, sc) in enumerate(srcs):
            for u in range(2):
                pk("v_pk_mul_f32", vr(p + 2 * u, 2), vr(p + 2 * u, 2), vr(sc[tb], 2), None, "op_sel_hi:[1,0]")
        for q, (p, sc) in enumerate(srcs):
            A("v_cvt_pk_bf16_f32 v%d, v%d, v%d" % (p, p, p + 1))
            A("v_cvt_pk_bf16_f32 v%d, v%d, v%d" % (p + 1, p + 2, p + 3))
        for q, (p, sc) in enumerate(srcs):
            A("ds_write_b64 v%d, %s offset:%d" % (VPW + q, vr(p, 2), tb * 2048))
    if HPOS == 1: hflag()
    A("s_mov_b32 s37, 0x40000")
    A.label("L_dpoll")
    A("v_cmp_eq_u32 vcc, s46, v47")
    A("s_nop 0")
    A("s_cmp_eq_u64 vcc, -1")
    A("s_cbranch_scc1 L_dpoll_ok")
    A(dbgld)
    A("s_sub_u32 s37, s37, 1")
    A("s_waitcnt vmcnt(0)")
    A("s_cbranch_scc0 L_dpoll")
    A.label("L_dpoll_ok")
    V_RW, V_RR, V_ZS, V_ZL, V_KS, V_KL, V_PD, V_P4 = 40, 41, 42, 43, 44, 45, 46, 47
    A("v_add_u32 v%d, s61, v%d" % (V_RW, P_VL))
    A("s_lshl_b32 s3, s%d, 11" % S_W)
    A("v_add_u32 v%d, s3, v%d" % (V_KS, P_VL))
    A("v_add_u32 v%d, %d, v%d" % (V_RR, SCR, V_KS))
    A("v_lshl_add_u32 v230, v225, 2, v226")
    A("v_lshlrev_b32 v%d, 4, v230" % V_ZL)
    A("v_add_u32 v%d, 8192, v%d" % (V_ZL, V_ZL))
    ZRED = AB + 3 * ST2
    A("s_lshl_b32 s3, s%d, 10" % S_W)
    A("s_add_u32 s3, s3, %d" % ZRED)
    A("v_add_u32 v%d, s3, v%d" % (V_ZS, P_VL))
    A("v_add_u32 v229, %d, v%d" % (ZRED, P_VL))
    A("s_lshr_b32 s3, s%d, 1" % S_W)
    A("s_lshl_b32 s3, s3, 12")
    A("s_and_b32 s6, s%d, 1" % S_W)
    A("s_lshl_b32 s6, s6, 10")
    A("s_add_u32 s3, s3, s6")
    A("v_add_u32 v%d, s3, v%d" % (V_KL, P_VL))
    A("v_and_b32 v%d, 124, v%d" % (V_P4, P_L4))
    S_KVB = 60
    A("s_lshl_b32 s3, s%d, 3" % S_J)
    A("s_mul_i32 s%d, s3, 9216" % S_KVB)
    A("s_add_u32 s%d, s%d, %d" % (S_KVB, S_KVB, WS_KVP))
    A("s_mul_i32 s3, s%d, 9216" % S_I)
    A("s_add_u32 s61, s%d, s3" % S_KVB)
    A("s_add_u32 s3, s%d, 112" % S_J)
    A("s_lshl_b32 s3, s3, 10")
    A("s_add_u32 s63, s62, s3")
    for tb in range(1, 4): A("s_add_u32 s%d, s63, %d" % (63 + tb, tb * MBS))
    A("s_mov_b32 s67, 0x358637bd")
    A("s_waitcnt lgkmcnt(0)")
    APH = 64
    for fblk in range(4):
        for ks in range(2):
            for t in range(2):
                A("ds_read_b64_tr_b16 %s, v%d offset:%d" % (ar(APH + 8 * fblk + 4 * ks + 2 * t, 2), VPR + fblk, (32 * ks + 16 * t) * 128))
    A("v_mov_b32 v231, 0x3f803f80")
    for fblk in range(4):
        A("v_cmp_eq_u32 vcc, %d, v226" % fblk)
        for r in range(4):
            A("v_cndmask_b32 v%d, 0, v231, vcc" % (PB16 + 4 * fblk + r))
    stamp()

    KV = accb(0, 0)[1]; ZB = VB + 16; QE = 144; LB = 48
    side = []
    import re
    def unpack(x):
        if not x.startswith("v_pk_") or not O("unpack", 0): return [x]
        if O("unpack", 0) == 2 and not re.search(r"op_sel:\[[01,]*1", x): return [x]
        I = parse(x); n = len(I.ops) - 1
        def arr(name, dflt):
            m = re.search(name + r":\[([01,]+)\]", I.mods)
            return [int(c) for c in m.group(1).split(",")] if m else [dflt] * n
        sel = [arr("op_sel", 0), arr("op_sel_hi", 1)]; neg = [arr("neg_lo", 0), arr("neg_hi", 0)]
        def half(o, h):
            m = re.match(r"([vs])\[(\d+):\d+\]", o)
            return "%s%d" % (m.group(1), int(m.group(2)) + h) if m else o
        op = I.op.replace("v_pk_", "v_")
        res = []
        for h in range(2):
            src = [("-" if neg[h][k] else "") + half(I.ops[1 + k], sel[h][k]) for k in range(n)]
            if n == 2 and not src[1].startswith("v"): src = src[::-1]
            res.append("%s %s, %s" % (op, half(I.ops[0], h), ", ".join(src)))
        return res
    def S(fn):
        for x in capture(fn)[0]: side.extend(unpack(x))
    def kvm():
        for fblk in range(4):
            for ks in range(2):
                for db in range(2):
                    d = vr(KV + 8 * fblk + 4 * db, 4)
                    A("v_mfma_f32_16x16x32_bf16 %s, %s, %s, %s" % (d, ar(APH + 8 * fblk + 4 * ks, 4), vr(VB + db * 8 + ks * 4, 4), "0" if ks == 0 else d))
                A("v_mfma_f32_16x16x32_bf16 %s, %s, %s, %s" % (vr(ZB, 4), ar(APH + 8 * fblk + 4 * ks, 4), vr(PB16 + 4 * fblk, 4), "0" if (ks == 0 and fblk == 0) else vr(ZB, 4)))
        for b in range(8):
            A("ds_write_b128 v%d, %s offset:%d" % (V_RW, vr(KV + 4 * b, 4), b * 1024))
        A("ds_write_b128 v%d, %s" % (V_ZS, vr(ZB, 4)))
    PRE = 1
    hld = "buffer_load_dword v%d, v%d, s[%d:%d], s%d offen sc1" % (V_PD, P_L4, SRD_W, SRD_W + 3, S_HF)
    A("s_waitcnt lgkmcnt(0)")
    kvm(); feature(4)
    A("s_waitcnt lgkmcnt(0)"); A("s_barrier")
    A(hld)
    def redr():
        for w in range(4):
            A("ds_read_b128 %s, v%d offset:%d" % (vr(KV + 8 * w, 4), V_RR, w * 8192))
            A("ds_read_b128 %s, v%d offset:%d" % (vr(KV + 8 * w + 4, 4), V_RR, w * 8192 + 1024))
            A("ds_read_b128 %s, v229 offset:%d" % (vr(VB + 4 * w, 4), w * 1024))
    if PRE:
        redr(); feature2(4); A("s_waitcnt lgkmcnt(0)")
    else:
        S(redr)
        S(lambda: feature2(4))
        side.append(("lgkm",))
    def reda():
        for w in range(1, 4):
            for u in range(4): pk("v_pk_add_f32", vr(KV + 2 * u, 2), vr(KV + 2 * u, 2), vr(KV + 8 * w + 2 * u, 2))
            for u in range(2): pk("v_pk_add_f32", vr(VB + 2 * u, 2), vr(VB + 2 * u, 2), vr(VB + 4 * w + 2 * u, 2))
        A("buffer_store_dwordx4 %s, v%d, s[%d:%d], s61 offen sc1" % (vr(VB, 4), V_ZL, SRD_W, SRD_W + 3))
        A("buffer_store_dwordx4 %s, v%d, s[%d:%d], s61 offen sc1" % (vr(KV, 4), V_KS, SRD_W, SRD_W + 3))
        A("buffer_store_dwordx4 %s, v%d, s[%d:%d], s61 offen offset:1024 sc1" % (vr(KV + 4, 4), V_KS, SRD_W, SRD_W + 3))
    if PRE: reda(); stamp()
    else:
        S(reda)
        side.append(("ev", "kvst"))
    def qexp():
        for half in range(2):
            for tb in (2 * half, 2 * half + 1):
                exps(4, tb, PB16 + 8 * (tb & 1))
            for tb in (2 * half, 2 * half + 1):
                e = PB16 + 8 * (tb & 1)
                for h in range(2):
                    p = accb(4 + h, tb)[1]
                    A("v_cvt_pk_bf16_f32 v%d, v%d, v%d" % (QE + 8 * tb + 2 * h, p, p + 1))
                    A("v_cvt_pk_bf16_f32 v%d, v%d, v%d" % (QE + 8 * tb + 2 * h + 1, p + 2, p + 3))
                    A("v_cvt_pk_bf16_f32 v%d, v%d, v%d" % (QE + 8 * tb + 4 + 2 * h, e + 4 * h, e + 4 * h + 1))
                    A("v_cvt_pk_bf16_f32 v%d, v%d, v%d" % (QE + 8 * tb + 4 + 2 * h + 1, e + 4 * h + 2, e + 4 * h + 3))
    QPRE = 1
    side.append(("mark", "qdone"))
    side.append(("join", "kvl"))
    AF = LB + 12; ZQ = 64; KF = 80; AUX = 96
    def oph1():
        for i in range(1, 8):
            for u in range(6): pk("v_pk_add_f32", vr(LB + 2 * u, 2), vr(LB + 2 * u, 2), vr(LB + 12 * i + 2 * u, 2))
        for h in range(2):
            A("v_cvt_pk_bf16_f32 v%d, v%d, v%d" % (AF + 2 * h, LB + 4 * h, LB + 4 * h + 1))
            A("v_cvt_pk_bf16_f32 v%d, v%d, v%d" % (AF + 2 * h + 1, LB + 4 * h + 2, LB + 4 * h + 3))
        A("s_lshl_b32 s3, s%d, 10" % S_W)
        A("v_add_u32 v%d, %d, v%d" % (V_RR, SCR, P_VL))
        A("v_add_u32 v%d, s3, v%d" % (V_RW, V_RR))
        A("ds_write_b128 v%d, %s" % (V_RW, vr(AF, 4)))
        for fblk in range(4):
            for r in range(4):
                A("v_mov_b32_dpp v%d, v%d quad_perm:[%d,%d,%d,%d] row_mask:0xf bank_mask:0xf" % (ZQ + 4 * fblk + r, LB + 8 + r, fblk, fblk, fblk, fblk))
        for fblk in range(4):
            A("v_cvt_pk_bf16_f32 v%d, v%d, v%d" % (AUX + 2 * fblk, ZQ + 4 * fblk, ZQ + 4 * fblk + 1))
            A("v_cvt_pk_bf16_f32 v%d, v%d, v%d" % (AUX + 2 * fblk + 1, ZQ + 4 * fblk + 2, ZQ + 4 * fblk + 3))
        A("v_and_b32 v%d, 3, v1" % ZQ)
        A("v_mov_b32 v%d, 0x3f803f80" % (ZQ + 1))
    S(oph1)
    side.append(["v_cmp_eq_u32 vcc, 1, v%d" % ZQ, "v_cndmask_b32 v%d, 0, v%d, vcc" % (ZQ + 1, ZQ + 1)])
    side.append(["v_cmp_eq_u32 vcc, 0, v%d" % ZQ] + ["v_cndmask_b32 v%d, v%d, v%d, vcc" % (AUX + r, ZQ + 1, AUX + r) for r in range(8)])
    side.append(("bar",))
    S(lambda: [A("ds_read_b128 %s, v%d offset:%d" % (vr(KF + 4 * q, 4), V_RR, q * 1024)) for q in range(4)])
    NN = [48, 64, 104, 120]; NA = [136, 20, 28, 176]
    def auxm():
        for tb in range(4):
            for s in range(2):
                A("v_mfma_f32_16x16x32_bf16 %s, %s, %s, 0" % (vr(NA[tb] + 4 * s, 4), vr(AUX + 4 * s, 4), vr(QE + 8 * tb + 4 * s, 4)))
        for x in NA:
            A("v_rcp_f32 v%d, v%d" % (x + 1, x + 1))
            A("v_rcp_f32 v%d, v%d" % (x + 5, x + 5))
        for x in NA: A("v_fma_f32 v%d, v%d, v%d, s67" % (x + 2, x, x + 1))
        for x in NA: A("v_fma_f32 v%d, v%d, v%d, v%d" % (x + 2, x + 4, x + 5, x + 2))
        for x in NA: A("v_rcp_f32 v%d, v%d" % (x + 2, x + 2))
        for x in NA:
            A("v_mul_f32 v%d, v%d, v%d" % (x, x + 1, x + 2))
            A("v_mul_f32 v%d, v%d, v%d" % (x + 4, x + 5, x + 2))
    S(auxm)
    side.append(("lgkm",))
    def oph2():
        for tb in range(4):
            for s in range(2):
                for db in range(2):
                    A("v_mfma_f32_16x16x32_bf16 %s, %s, %s, 0" % (vr(NN[tb] + 8 * s + 4 * db, 4), vr(KF + 8 * s + 4 * db, 4), vr(QE + 8 * tb + 4 * s, 4)))
        for n, x in zip(NN, NA):
            for u in range(4):
                pk("v_pk_mul_f32", vr(n + 2 * u, 2), vr(n + 2 * u, 2), vr(x, 2), None, "op_sel_hi:[1,0]")
            for u in range(4):
                pk("v_pk_fma_f32", vr(n + 2 * u, 2), vr(n + 8 + 2 * u, 2), vr(x + 4, 2), vr(n + 2 * u, 2), "op_sel_hi:[1,0,1]")
            for u in range(4):
                A("v_cvt_pk_bf16_f32 v%d, v%d, v%d" % (n + 8 + u, n + 2 * u, n + 2 * u + 1))
        for n in NN: doswap(n + 8)
        for tb, n in enumerate(NN):
            A("buffer_store_dwordx4 %s, v%d, s[%d:%d], s%d offen%s" % (vr(n + 8, 4), VH, SRD_W, SRD_W + 3, 63 + tb, SC))
    S(oph2)
    side.append(("ev", "ost"))

    ACC2 = [192, 64]; VG = 48; C1 = 56; PART = 128
    def acc2(s, cb, tb): return vr(ACC2[s] + 4 * (cb * 4 + tb), 4)
    def xf2(p, tb): return ar(32 * p + 4 * tb, 4)
    def wf2(p, cb, half=None):
        b = 32 * p + 16 + 4 * cb
        return ar(b, 4) if half is None else ar(b + 2 * half, 2)
    def dma2(stage, half=False):
        L = [[m0set(0, stage), lda(0)], [lda(1)], [lda(2)], [lda(3)], [m0set(1, stage), ldw(0)], [ldw(1)], [ldw(2)], [ldw(3)]]
        if half:
            ldh = lambda n: "buffer_load_dwordx4 v%d, s[%d:%d], s%d offen offset:%d%s lds" % (P_AH, SRD_A, SRD_A + 3, S_AK, 1024 * n, DSC)
            L = [["s_add_u32 m0, s%d, %d" % (S_M0H, ST2 * stage), ldh(0)], [ldh(1)]] + L[4:]
        L[-1] += ["s_add_u32 s%d, s%d, 2048" % (S_AK, S_AK),
                  "s_add_u32 s%d, s%d, %d" % (S_WK, S_WK, 64 * 2048),
                  "s_add_u32 s%d, s%d, 1" % (S_KT, S_KT),
                  "s_cmp_eq_u32 s%d, s%d" % (S_KT, S_SW),
                  "s_cselect_b32 s%d, s%d, s%d" % (SRD_B, S_B2, SRD_B),
                  "s_cselect_b32 s%d, s%d, s%d" % (SRD_B + 1, S_B2 + 1, SRD_B + 1),
                  "s_cselect_b32 s%d, s%d, s%d" % (SRD_B + 2, S_B2 + 2, SRD_B + 2),
                  "s_cselect_b32 s%d, s%d, s%d" % (S_WK, S_WK0, S_WK),
                  "s_cselect_b32 s%d, s%d, s%d" % (S_AK, S_AK0, S_AK)]
        return L
    def reads2(stage, ks, p, half=False):
        so = stage * ST2
        def xr(tb): return "ds_read_b128 %s, v%d offset:%d" % (xf2(p, tb), P_XRD if tb < 2 else P_XRD2, so + tb * 2048 + ks * 1024)
        def wr(cb, t): return "ds_read_b64_tr_b16 %s, v%d offset:%d" % (wf2(p, cb, t), P_WRD + cb, so + (ks * 32 + 4 * t) * 256)
        R = [xr(0), wr(0, 0), wr(0, 1), xr(1)] + ([] if half else [xr(2), xr(3)])
        for cb in range(1, 4): R += [wr(cb, 0), wr(cb, 1)]
        return R
    V2 = Cnt(63)
    p2 = {"pend": [], "block": None, "events": {}, "done": set(), "bar": -1}
    RATE = O("rate", 100); LAG = O("lag", 3); RADD = O("radd", 0)
    def isvm(x): return x.startswith(("buffer_load", "buffer_store", "buffer_atomic"))
    def out(x):
        if isinstance(x, tuple): V2.tag[x[1]] = V2.n
        else:
            A(x)
            if isvm(x): V2.issue()
    def at(lag, need, fn):
        p2["events"].setdefault(p2["bar"] + lag, []).append((need, fn))
    def spin(lab, reload):
        A("s_mov_b32 s37, 0x40000")
        A.label(lab)
        A("v_cmp_eq_u32 vcc, 1, v%d" % V_PD)
        A("s_nop 0")
        A("s_cmp_eq_u64 vcc, -1")
        A("s_cbranch_scc1 %s_ok" % lab)
        A(reload)
        A("s_sub_u32 s37, s37, 1")
        A("s_waitcnt vmcnt(0)")
        A("s_cbranch_scc0 %s" % lab)
        A.label(lab + "_ok")
    kvpoll = "buffer_load_dword v%d, v%d, s[%d:%d], s%d offen sc1" % (V_PD, V_P4, SRD_W, SRD_W + 3, S_F1)
    opoll = "buffer_load_dword v%d, v%d, s[%d:%d], s%d offen sc1" % (V_PD, P_L4, SRD_W, SRD_W + 3, S_HF)
    def ev_kvst():
        V2.tag["kvst"] = V2.n
        def e2():
            for x in flag_group(45, "s%d" % S_F1): out(x)
            at(1, [], e3)
        def e3():
            out(kvpoll); out(("tag", "kvp")); at(LAG + (1 if PRE and not QPRE else 0), ["kvp"], e4)
        def e4():
            assert "qdone" in p2["done"], "q path not finished before the kv loads"
            spin("L_kvpoll", kvpoll)
            L = []
            for i in range(8):
                L.append(["buffer_load_dwordx4 %s, v%d, s[%d:%d], s%d offen sc1" % (vr(LB + 12 * i, 4), V_KL, SRD_W, SRD_W + 3, S_KVB)])
                L.append(["buffer_load_dwordx4 %s, v%d, s[%d:%d], s%d offen offset:2048 sc1" % (vr(LB + 12 * i + 4, 4), V_KL, SRD_W, SRD_W + 3, S_KVB)])
                L.append(["buffer_load_dwordx4 %s, v%d, s[%d:%d], s%d offen sc1" % (vr(LB + 12 * i + 8, 4), V_ZL, SRD_W, SRD_W + 3, S_KVB),
                          "s_add_u32 s%d, s%d, 9216" % (S_KVB, S_KVB)])
            L[-1].append(("tag", "kvl"))
            p2["pend"] += L
            at(LAG, ["kvl"], lambda: p2["done"].add("kvl"))
        if PRE: at(1, [], e3)
        else: at(LAG, ["kvst"], e2)
    def ev_ost():
        V2.tag["ost"] = V2.n
        def e6():
            for x in flag_group(77, "s47"): out(x)
            at(max(1, NPEEL - 1 - LAG - p2["bar"]), [], e7)
        def e7():
            out(opoll); out(("tag", "op")); at(LAG, ["op"], e8)
        def e8():
            spin("L_opoll", opoll); p2["done"].add("ochk"); print("o check at barrier", p2["bar"], file=sys.stderr)
            for tb in range(4):
                if tb == 2: out("s_lshl_b32 s3, s%d, 8" % S_KH); out("v_subrev_u32 v%d, s3, v%d" % (P_GA, P_GA))
                out("buffer_load_dword v%d, v%d, s[%d:%d], 0 offen offset:%d sc1" % (VG + 2 * tb, P_GA, SRD_W, SRD_W + 3, 64 * tb))
        at(LAG + O("olag", 0), ["ost"], e6)
    EV = {"kvst": ev_kvst, "ost": ev_ost}
    def cost(x): return 2 if x.startswith(TRANS + ("v_mfma",)) else 1
    def side_step(budget):
        while budget > 0 and side and p2["block"] is None:
            x = side[0]
            if isinstance(x, tuple):
                if x[0] in ("bar", "lgkm"): p2["block"] = x[0]; side.pop(0)
                elif x[0] == "ev": side.pop(0); EV[x[1]]()
                elif x[0] == "mark": side.pop(0); p2["done"].add(x[1])
                elif x[0] == "join":
                    if x[1] in p2["done"]: side.pop(0)
                    else: return
                continue
            side.pop(0)
            for y in (x if isinstance(x, list) else [x]):
                out(y); budget -= cost(y)
    def tile2(t):
        stage = t % NS; half = t >= NH; has_next = t + 1 < NT2
        aset = 0 if t < NF1 else 1
        first = t in (0, NF1, NH)
        ntb = 2 if half else 4; NG = 4 * ntb
        for ks in range(2):
            rd = reads2(stage, 1, 1, half) if ks == 0 else (reads2((stage + 1) % NS, 0, 0, t + 1 >= NH) if has_next else [])
            evs = []
            if ks == 1 and has_next:
                assert not p2["pend"]
                evs = p2["events"].pop(t, [])
                vm = V2.wait_for([("D", t + 1)] + [x for need, fn in evs for x in need])
                A("s_waitcnt lgkmcnt(0) vmcnt(%d)" % vm); A("s_barrier")
                p2["bar"] = t
                p2["block"] = None
            else:
                A("s_waitcnt lgkmcnt(0)")
                if p2["block"] == "lgkm": p2["block"] = None
            if ks == 1:
                for need, fn in evs: fn()
                if t + NS < NT2:
                    d = dma2(stage, t + NS >= NH)
                    d[-1] = d[-1] + [("tag", ("D", t + NS))]
                    p2["pend"] += d
            g = 0; k = 0
            for cb in range(4):
                for tb in range(ntb):
                    c = "0" if (first and ks == 0) else acc2(aset, cb, tb)
                    A("v_mfma_f32_16x16x32_bf16 %s, %s, %s, %s" % (acc2(aset, cb, tb), wf2(ks, cb), xf2(ks, tb), c))
                    nr = 1 if len(rd) - k <= NG - g else 2
                    busy = k < len(rd)
                    for _ in range(nr):
                        if k < len(rd): A(rd[k]); k += 1
                    left = (NG - g) + ((8 if t + 1 >= NH else 16) if ks == 1 else 0)
                    if p2["pend"] and (g % (NG // 4) == NG // 4 - 1 or len(p2["pend"]) * (NG // 4) > left + 3):
                        for _ in range(1 + (len(p2["pend"]) > left)):
                            if p2["pend"]:
                                for x in p2["pend"].pop(0): out(x)
                    side_step(p2.get("rate", RATE) + (0 if busy else 1))
                    g += 1
    A("s_mov_b32 s37, 0x40000")
    A("s_waitcnt vmcnt(3)")
    A.label("L_hpoll")
    A("v_cmp_eq_u32 vcc, 1, v%d" % V_PD)
    A("s_nop 0")
    A("s_or_b64 vcc, vcc, s[68:69]")
    A("s_cmp_eq_u64 vcc, -1")
    A("s_cbranch_scc1 L_hpoll_ok")
    A(hld)
    A("s_sub_u32 s37, s37, 1")
    A("s_waitcnt vmcnt(0)")
    A("s_cbranch_scc0 L_hpoll")
    A.label("L_hpoll_ok")
    stamp(); stamp.real()
    def adma(stg):
        return [[m0set(0, stg), lda(0)], [lda(1)], [lda(2)], [lda(3), "s_add_u32 s%d, s%d, 2048" % (S_AK, S_AK), ("tag", ("D", stg))]]
    for stg in range(2):
        for g in adma(stg):
            for x in g: out(x)
    A("s_add_u32 s%d, s%d, s47" % (S_HF, S_HF))
    qexp()
    GX = 80
    for r in range(32): A("v_accvgpr_read_b32 v%d, a%d" % (GX + r, AG + r))
    A("v_mov_b32 v112, 0"); A("v_mov_b32 v113, 0")
    for q in range(8):
        A("v_dot2c_f32_bf16 v112, v%d, v%d" % (GX + 2 * q, GX + 16 + 2 * q))
        A("v_dot2c_f32_bf16 v113, v%d, v%d" % (GX + 2 * q + 1, GX + 16 + 2 * q + 1))
    A("s_lshl_b32 s3, s%d, 8" % S_I)
    A("v_add_u32 v0, s3, v0")
    A("v_lshlrev_b32 v0, 2, v0")
    A("v_add_f32 v112, v112, v113")
    for sh in (8, 4, 2, 1):
        A("v_add_f32_dpp v112, v112, v112 row_ror:%d row_mask:0xf bank_mask:0xf" % sh)
    A("v_mov_b32 v113, v112")
    A("v_permlane16_swap_b32 v112, v113")
    A("v_add_f32 v112, v112, v113")
    A("v_mul_f32 v112, s%d, v112" % S_C)
    A("v_exp_f32 v112, -v112")
    A("v_add_f32 v112, 1.0, v112")
    A("v_rcp_f32 v112, v112")
    A("v_add_u32 v0, %d, v0" % WS_G)
    A("s_waitcnt vmcnt(4)")
    out("buffer_store_dword v112, v0, s[%d:%d], 0 offen sc1" % (SRD_W, SRD_W + 3))
    for x in flag_group(45, "s%d" % S_F1): out(x)
    ev_kvst()
    A("s_barrier")
    for x in reads2(0, 0, 0): A(x)
    stamp(); stamp.real()
    p2["pend"] = adma(2) + adma(3)
    if STAMP == 4: stamp.off = False; stamp(); stamp.off = True
    C2 = 20
    XB16 = O("xb16", 1)
    for t in range(NT2):
        if t == NPEEL:
            assert not side and not p2["events"] and "ochk" in p2["done"], (len(side), p2["events"].keys())
            stamp()
        if t == NF1:
            side.append("s_sub_u32 s3, s%d, %d" % (S_XF, WS_FLG))
            side.append("s_lshl_b32 s3, s3, 7")
            side.append("s_add_u32 s60, s3, %d" % WS_XCH)
            side.append("s_add_u32 s61, s60, 4096")
            side.append("s_xor_b32 s62, s60, 32768" if 0 else "s_xor_b32 s3, s3, 32768")
            side.append("s_add_u32 s62, s3, %d" % WS_XCH)
            side.append("s_add_u32 s63, s62, 4096")
            side.append("s_xor_b32 s64, s%d, 256" % S_XF)
            for tb in range(4): side.append("v_sub_f32 v%d, 1.0, v%d" % (C1 + 2 * tb, VG + 2 * tb))
            side.append(["s_cmp_eq_u32 s%d, 1" % S_KH, "s_cselect_b64 vcc, -1, 0"] +
                        ["v_cndmask_b32 v%d, v%d, v%d, vcc" % (C2 + 2 * tb, C1 + 2 * tb, VG + 2 * tb) for tb in range(4)])
            for cb in range(4):
                for tb in range(4):
                    for r in range(4):
                        a0 = ACC2[0] + 4 * (cb * 4 + tb) + r
                        side.append("v_mul_f32 v%d, v%d, v%d" % (a0, a0, C1 + 2 * tb))
            p2["rate"] = 1
        if t == NH:
            assert not side
            stamp()
            for tbs in ((2, 3), (0, 1)):
                for tb in tbs:
                    for cb in range(4):
                        a0 = ACC2[0] + 4 * (cb * 4 + tb); a1 = ACC2[1] + 4 * (cb * 4 + tb)
                        for u in range(2):
                            A("v_pk_fma_f32 %s, %s, %s, %s op_sel_hi:[1,0,1]" % (vr(a0 + 2 * u, 2), vr(a1 + 2 * u, 2), vr(C2 + 2 * tb, 2), vr(a0 + 2 * u, 2)))
                    if tb >= 2 and XB16:
                        for cb in range(4):
                            a0 = ACC2[0] + 4 * (cb * 4 + tb); d = 160 + 8 * (tb - 2) + 2 * cb
                            A("v_cvt_pk_bf16_f32 v%d, v%d, v%d" % (d, a0, a0 + 1))
                            A("v_cvt_pk_bf16_f32 v%d, v%d, v%d" % (d + 1, a0 + 2, a0 + 3))
                        for q in range(2):
                            out("buffer_store_dwordx4 %s, v%d, s[%d:%d], s60 offen offset:%d sc1" % (vr(160 + 8 * (tb - 2) + 4 * q, 4), P_VL, SRD_W, SRD_W + 3, (tb - 2) * 2048 + q * 1024))
                    elif tb >= 2:
                        for cb in range(4):
                            out("buffer_store_dwordx4 %s, v%d, s[%d:%d], s%d offen offset:%d sc1" % (acc2(0, cb, tb), P_VL, SRD_W, SRD_W + 3, 60 + tb - 2, cb * 1024))
            out(("tag", "xst"))
            xpoll = "buffer_load_dword v%d, v%d, s[%d:%d], s64 offen sc1" % (V_PD, P_Z0, SRD_W, SRD_W + 3)
            def x1():
                for x in flag_group(S_XF, "0"): out(x)
            def x2():
                out(xpoll); out(("tag", "xp"))
            def x3():
                spin("L_xpoll", xpoll)
                if XB16:
                    for q in range(4):
                        out("buffer_load_dwordx4 %s, v%d, s[%d:%d], s62 offen offset:%d sc1" % (vr(176 + 4 * q, 4), P_VL, SRD_W, SRD_W + 3, q * 1024))
                    return
                for tb in range(2):
                    for cb in range(4):
                        out("buffer_load_dwordx4 %s, v%d, s[%d:%d], s%d offen offset:%d sc1" % (vr(PART + 4 * (cb * 4 + tb), 4), P_VL, SRD_W, SRD_W + 3, 62 + tb, cb * 1024))
            XL = O("xlag", 2)
            at(XL, ["xst"], x1)
            p2["events"].setdefault(NT2 - 2 - O("xpl", 2), []).append(([], x2))
            p2["events"].setdefault(NT2 - 2, []).append((["xp"], x3))
        tile2(t)
        if STAMP == 3 and (t % 2 == 1) and t >= 10: stamp.off = False; stamp(); stamp.off = True
        if STAMP == 4 and t < 16: stamp.off = False; stamp(); stamp.off = True
    assert not p2["pend"] and not p2["events"]
    stamp(); stamp.real()
    VO = 49
    A("v_lshlrev_b32 v%d, 11, v%d" % (VO, P_TOK))
    A("v_bfe_u32 v51, v1, 4, 1")
    A("v_lshl_add_u32 v%d, v51, 5, v%d" % (VO, VO))
    A("v_lshrrev_b32 v51, 5, v1")
    A("v_lshl_add_u32 v%d, v51, 4, v%d" % (VO, VO))
    FULLN = O("fulln", 1)
    if FULLN:
        A("v_bfe_u32 v51, v1, 3, 1")
        A("v_mul_u32_u24 v53, %d, v51" % (8 * 2048 - 64))
        A("v_sub_u32 v%d, v%d, v53" % (VO, VO))
        A("v_cmp_eq_u32 vcc, 0, v51")
    A("s_lshl_b32 s72, s%d, 8" % S_NT)
    A("s_lshl_b32 s3, s%d, 7" % S_WN)
    A("s_add_u32 s72, s72, s3")
    A("s_add_u32 s73, s72, %d" % (8 * 2048))
    OSC = " sc1" if O("osc1", 1) else ""
    for tb in range(2):
        for cb in range(4):
            a0 = ACC2[0] + 4 * (cb * 4 + tb); a1 = ACC2[1] + 4 * (cb * 4 + tb)
            for u in range(2):
                A("v_pk_fma_f32 %s, %s, %s, %s op_sel_hi:[1,0,1]" % (vr(a0 + 2 * u, 2), vr(a1 + 2 * u, 2), vr(VG + 2 * tb, 2), vr(a0 + 2 * u, 2)))
    for tb in range(2):
        A("s_waitcnt vmcnt(%d)" % ((2 if XB16 else 4) if tb == 0 else 2))
        if XB16:
            for cb in range(4):
                for u in range(2):
                    src = 176 + 8 * tb + 2 * cb + u; pp = PART + 4 * (cb * 4 + tb) + 2 * u
                    A("v_lshlrev_b32 v%d, 16, v%d" % (pp, src))
                    A("v_and_b32 v%d, 0xffff0000, v%d" % (pp + 1, src))
        for cb in range(4):
            a0 = ACC2[0] + 4 * (cb * 4 + tb); pp = PART + 4 * (cb * 4 + tb)
            for u in range(2):
                A("v_pk_add_f32 %s, %s, %s" % (vr(a0 + 2 * u, 2), vr(a0 + 2 * u, 2), vr(pp + 2 * u, 2)))
        for cp in range(2):
            d = 28 + 8 * tb + 4 * cp
            for h in range(2):
                a0 = ACC2[0] + 4 * ((2 * cp + h) * 4 + tb)
                A("v_cvt_pk_bf16_f32 v%d, v%d, v%d" % (d + 2 * h, a0, a0 + 1))
                A("v_cvt_pk_bf16_f32 v%d, v%d, v%d" % (d + 2 * h + 1, a0 + 2, a0 + 3))
        for cp in range(2): doswap(28 + 8 * tb + 4 * cp)
        if FULLN:
            d0 = 28 + 8 * tb; d1 = d0 + 4; e0 = 128 + 8 * tb; e1 = e0 + 4
            for r in range(4):
                A("v_cndmask_b32_dpp v%d, v%d, v%d, vcc row_ror:8 row_mask:0xf bank_mask:0xf" % (e0 + r, d1 + r, d0 + r))
            A("s_not_b64 vcc, vcc")
            for r in range(4):
                A("v_cndmask_b32_dpp v%d, v%d, v%d, vcc row_ror:8 row_mask:0xf bank_mask:0xf" % (e1 + r, d0 + r, d1 + r))
            A("s_not_b64 vcc, vcc")
            A("buffer_store_dwordx4 %s, v%d, s[%d:%d], s72 offen%s" % (vr(e0, 4), VO, SRD_O, SRD_O + 3, OSC))
            A("buffer_store_dwordx4 %s, v%d, s[%d:%d], s73 offen%s" % (vr(e1, 4), VO, SRD_O, SRD_O + 3, OSC))
            A("s_add_u32 s73, s73, 32768")
        else:
            for cp in range(2):
                d = 28 + 8 * tb + 4 * cp
                A("buffer_store_dwordx4 %s, v%d, s[%d:%d], s72 offen offset:%d%s" % (vr(d, 4), VO, SRD_O, SRD_O + 3, cp * 64, OSC))
        A("s_add_u32 s72, s72, 32768")
    A.label("L_k2_out")
    stamp.finish(S_W, SRD_W, 38, "L_k1_end")
    A.label("L_k1_end")
    A("s_endpgm")
    A.label("L_code_end")
    return name, LDS

A = Asm()
n1, l1 = gen_k1(A)
hdr = ""
hdr += "; @launch grid=(256,1,1) block=(256,1,1) lds=%d\n" % l1
hdr += '.amdgcn_target "amdgcn-amd-amdhsa--gfx950"\n.text\n'
txt = hdr + A.text() + '.section .rodata,"a"\n' + kernel_desc(n1, 512, 256)
open(OUT, "w").write(txt)
```

```python
import sys
from asmlib import *
from asmlib import TRANS, parse

opts = dict(a.split("=") if "=" in a else (a, "1") for a in sys.argv[2:])
OUT = sys.argv[1]
O = lambda k, d: int(opts.get(k, d))
TOUCH = O("touch", 1)
STAMP = O("stamp", 0)
ONLY = O("only", 0)
HSC1 = O("hsc1", 0)
K2MAP = O("k2map", 0)
NH = O("nh", 32)
K2NODMA = O("k2nodma", 0); K2NOMFMA = O("k2nomfma", 0); K2NOLDS = O("k2nolds", 0); K2SEL = opts.get("k2sel", "aw")

MBS = 144 * 1024
WS_G = 0x1200000
WS_KVP = 0x1210000
WS_FLG = 0x1480000
WS_FLGH = 0x1494000
WS_FLGO = 0x1498000
WS_FLG1 = 0x1490000
WS_STAMP = 0x14A0000
WS_XCH = 0x1500000
WS_SIZE = WS_XCH + 128 * 65536
LOG2E = 0x3FB8AA3B
SC = " sc1"
INV = O("inv", 0)
DSC = " sc1" if O("dsc1", 1) else ""

class Cnt:
    def __init__(self, cap): self.n = 0; self.tag = {}; self.cap = cap
    def issue(self, tag=None, k=1):
        self.n += k
        if tag is not None: self.tag[tag] = self.n
    def wait_for(self, tags):
        last = max(self.tag[t] for t in tags)
        return min(self.n - last, self.cap)

class Stamper:
    def __init__(self, A, kidx): self.A = A; self.regs = []; self.k = kidx
    def start(self):
        if STAMP:
            self.A("s_memrealtime s[78:79]"); self.A("s_memtime s[80:81]")
    off = False
    def __call__(self, wait=True):
        if STAMP and not self.off:
            r = 82 + len(self.regs); assert r <= 99; self.regs.append(r)
            self.A("s_memtime s[100:101]")
            self.A("s_waitcnt lgkmcnt(0)")
            self.A("s_mov_b32 s%d, s100" % r)
    def real(self):
        if STAMP and not self.off:
            r = 82 + len(self.regs); assert r <= 99; self.regs.append(-r)
            self.A("s_memrealtime s[100:101]")
            self.A("s_waitcnt lgkmcnt(0)")
            self.A("s_mov_b32 s%d, s100" % r)
    def finish(self, swave, srd, T, endlabel):
        if not STAMP: return
        A = self.A
        A("s_waitcnt vmcnt(0)")
        A("s_memtime s[4:5]"); A("s_memrealtime s[6:7]")
        A("s_waitcnt lgkmcnt(0)")
        A("s_cmp_eq_u32 s%d, 0" % swave); A("s_cbranch_scc0 %s" % endlabel)
        A("s_lshl_b32 s3, s2, 7")
        A("s_add_u32 s3, s3, %d" % WS_STAMP)
        A("v_mov_b32 v%d, 0" % (T + 1))
        items = [(78, None), (6, None), (4, 80)] + [(abs(r), 80 if r > 0 else 78) for r in self.regs]
        if O("dbgstamp", 0):
            A("s_cmp_eq_u32 s2, %d" % O("dbgstamp", 0)); A("s_cbranch_scc0 %s" % endlabel)
            A("s_mov_b32 s3, 0"); srd = 48
            items = [(6, 78), (4, 80)] + items[3:17]
        for q, (s, b) in enumerate(items):
            if b is None: A("v_mov_b32 v%d, s%d" % (T, s))
            else:
                A("s_sub_u32 s5, s%d, s%d" % (s, b)); A("v_mov_b32 v%d, s5" % T)
            A("buffer_store_dword v%d, v%d, s[%d:%d], s3 offen offset:%d" % (T, T + 1, srd, srd + 3, 4 * q))

def mk_srd(A, b, lo, hi, addsgpr, size):
    if addsgpr is None:
        A("s_mov_b32 s%d, s%d" % (b, lo)); A("s_mov_b32 s%d, s%d" % (b + 1, hi))
        A("s_mov_b32 s%d, %d" % (b + 2, size))
    else:
        A("s_add_u32 s%d, s%d, s%d" % (b, lo, addsgpr)); A("s_addc_u32 s%d, s%d, 0" % (b + 1, hi))
        A("s_sub_u32 s%d, %d, s%d" % (b + 2, size, addsgpr))
    A("s_mov_b32 s%d, 0x20000" % (b + 3))


def k2ids(A, mt, nt, kh, xf):
    A("s_and_b32 s%d, s2, 1" % kh)
    if O("swap", 1): A("s_xor_b32 s%d, s%d, 1" % (kh, kh))
    A("s_bfe_u32 s%d, s2, 0x30003" % mt)
    A("s_bfe_u32 s3, s2, 0x10001")
    A("s_lshl_b32 s3, s3, 3")
    A("s_add_u32 s%d, s%d, s3" % (mt, mt))
    A("s_lshr_b32 s%d, s2, 6" % nt)
    A("s_bfe_u32 s3, s2, 0x10002")
    A("s_lshl_b32 s3, s3, 2")
    A("s_add_u32 s%d, s%d, s3" % (nt, nt))
    A("s_lshl_b32 s3, s%d, 3" % mt)
    A("s_add_u32 s3, s3, s%d" % nt)
    A("s_lshl_b32 s3, s3, 1")
    A("s_add_u32 s3, s3, s%d" % kh)
    A("s_lshl_b32 s3, s3, 2")
    A("s_add_u32 s3, s3, s26")
    A("s_lshl_b32 s%d, s3, 6" % xf)
    A("s_add_u32 s%d, s%d, %d" % (xf, xf, WS_FLG))

def gen_k1(A):
    name = "gated_mix__linear_kernel_hedgehog__glu_gated_glu__prompt_kernel"
    kernel_open(A, name)
    BK = 64
    XB = 0; QB = 32768; GB = QB + 64 * 192; UB = GB + 64 * 224 + 128
    STAGE = (UB + 64 * 224 + 255) // 256 * 256
    WPB = 2 * STAGE
    SCR = 131072
    LDS = 163840
    S_I, S_J, S_W, S_CNT, S_XK, S_QK, S_GK, S_TK, S_TSTEP = 24, 25, 26, 27, 28, 29, 30, 31, 37
    S_M0 = 32
    SRD_X, SRD_Q, SRD_G, SRD_W, SRD_T, SRD_P, SRD_D = 8, 12, 16, 20, 68, 72, 48
    S_C = 38
    V_DMA, V_XRD, V_QRD, V_GRD, V_TCH = 2, 20, 24, 28, 30
    T = 32
    NVACC = 208; V_ACC = 48
    A_X = 0; A_WR = 32; RING = 8; A_ACC = 144
    NTB = 4; NCB = 20; D = O("dd", 6)
    BLK = [("q", 1, 0), ("q", 1, 1), ("q", 2, 0), ("q", 2, 1), ("q", 0, 0), ("q", 0, 1)] + [(t, b) for b in range(7) for t in "gu"]
    RSW = O("regswap", 0)
    def accb(cb, tb):
        b = (cb * NTB + tb) * 4
        if RSW == 3: return ("v", 112 + b) if b < 144 else ("a", b - 144)
        if RSW == 4: return ("v", 80 + b) if b < 176 else ("a", 32 + b - 176)
        if RSW == 5: return ("v", 80 + b) if b < 176 else ("a", 64 + b - 176)
        if RSW: return ("a", b) if b < 256 else ("v", 192 + b - 256)
        return ("v", V_ACC + b) if b < NVACC else ("a", A_ACC + b - NVACC)
    def acc(cb, tb):
        f, b = accb(cb, tb); return "%s[%d:%d]" % (f, b, b + 3)
    fr = (lambda b, n: vr(48 + b, n)) if RSW else ar
    def xf(p, tb):
        if RSW == 4: return ar(16 * p + 4 * tb, 4)
        return fr(A_X + 16 * p + 4 * tb, 4)
    def wf(n, half=None):
        b = A_WR + 4 * (n % RING)
        f = fr
        if RSW == 4: b -= 32
        if RSW == 5: f = ar
        return f(b, 4) if half is None else f(b + 2 * half, 2)
    stamp = Stamper(A, 0)
    VM = Cnt(63)

    A("s_load_dwordx4 s[4:7], s[0:1], 0")
    A("s_load_dwordx4 s[52:55], s[0:1], 40")
    A("s_load_dwordx4 s[56:59], s[0:1], 80")
    A("s_load_dwordx2 s[66:67], s[0:1], 16")
    A("s_load_dwordx4 s[40:43], s[0:1], 56")
    A("s_cmp_ge_u32 s2, 256")
    A("s_cbranch_scc1 L_k1_end")
    stamp.start()
    if STAMP >= 3: stamp.off = True
    if O("ctouch", 1):
        A("s_getpc_b64 s[72:73]")
        A.label("L_pc")
        A("s_mov_b32 s74, L_code_end-L_pc")
        A("s_mov_b32 s75, 0x20000")
        A("s_and_b32 s73, s73, 0xffff")
        A("v_lshrrev_b32 v%d, 6, v0" % T)
        A("v_lshlrev_b32 v%d, 9, v%d" % (T, T))
        A("v_and_b32 v%d, 63, v0" % (T + 1))
        A("v_lshl_add_u32 v%d, v%d, 7, v%d" % (T, T + 1, T))
        A("s_lshr_b32 s3, s2, 3")
        A("s_lshl_b32 s3, s3, 11")
        A("v_cmp_gt_u32 vcc, 4, v%d" % (T + 1))
        A("v_mov_b32 v%d, 0x7ffffff0" % (T + 2))
        A("v_cndmask_b32 v%d, v%d, v%d, vcc" % (T, T + 2, T))
        A("buffer_load_dword v%d, v%d, s[72:75], s3 offen" % (V_TCH + 1, T)); VM.issue()
    A("v_lshrrev_b32 v1, 6, v0")
    A("s_lshr_b32 s%d, s2, 3" % S_I)
    A("s_and_b32 s%d, s%d, 7" % (S_I, S_I))
    A("v_readfirstlane_b32 s%d, v1" % S_W)
    A("s_and_b32 s3, s2, 7")
    A("s_lshl_b32 s3, s3, 2")
    A("s_lshr_b32 s%d, s2, 6" % S_J)
    A("s_add_u32 s%d, s%d, s3" % (S_J, S_J))
    A("v_and_b32 v1, 63, v0")
    A("v_lshrrev_b32 v%d, 3, v1" % T)
    A("v_lshlrev_b32 v%d, 11, v%d" % (T, T))
    A("v_and_b32 v%d, 7, v1" % (T + 1))
    A("v_lshrrev_b32 v%d, 4, v1" % (T + 2))
    A("v_xor_b32 v%d, v%d, v%d" % (T + 1, T + 1, T + 2))
    A("v_lshl_add_u32 v%d, v%d, 4, v%d" % (T, T + 1, T))
    A("s_lshl_b32 s3, s%d, 17" % S_W)
    A("v_add_u32 v%d, s3, v%d" % (T, T))
    A("v_xor_b32 v%d, 64, v%d" % (T + 1, T))
    plan = []
    for n in range(8):
        A("v_add_u32 v%d, %d, v%d" % (V_DMA + n, n * 16384 - 1024 * (n & 3), T + (n & 1)))
        plan.append((V_DMA + n, SRD_X, S_XK, n // 4 if n % 4 == 0 else None, 1024 * (n & 3)))
    for q in range(3): plan.append((V_DMA + 8 + q, SRD_Q, S_QK, 2 if q == 0 else None, 1024 * q))
    for g in range(7): plan.append((V_DMA + 11 + g, SRD_G, S_GK, 3 + g // 4 if g % 4 == 0 else None, 1024 * (g & 3)))
    LD = len(plan)
    A("s_lshl_b32 s%d, s%d, 13" % (S_M0, S_W))
    A("s_add_u32 s%d, s%d, 4096" % (S_M0 + 1, S_M0))
    A("s_mul_i32 s%d, s%d, 3072" % (S_M0 + 2, S_W))
    A("s_add_u32 s%d, s%d, %d" % (S_M0 + 2, S_M0 + 2, QB))
    A("s_and_b32 s3, s%d, 1" % S_W)
    A("s_mul_i32 s3, s3, 7168")
    A("s_cmp_ge_u32 s%d, 2" % S_W)
    A("s_mov_b32 s60, %d" % GB)
    A("s_cselect_b32 s%d, %d, s60" % (S_M0 + 3, UB))
    A("s_add_u32 s%d, s%d, s3" % (S_M0 + 3, S_M0 + 3))
    A("s_add_u32 s%d, s%d, 4096" % (S_M0 + 4, S_M0 + 3))
    for s in (S_XK, S_QK, S_GK): A("s_mov_b32 s%d, 0" % s)
    def dma_list(stage):
        L = []
        for (v, sd, so, m0i, off) in plan:
            g = []
            if m0i is not None:
                g.append("s_mov_b32 m0, s%d" % (S_M0 + m0i) if stage == 0 else "s_add_u32 m0, s%d, %d" % (S_M0 + m0i, STAGE * stage))
            dnt = O("dnt", 0)
            g.append("buffer_load_dwordx4 v%d, s[%d:%d], s%d offen offset:%d%s lds" % (v, sd, sd + 3, so, off, " nt" if (dnt == 1 or (dnt == 2 and sd != SRD_X) or (dnt == 3 and sd == SRD_X)) else ""))
            L.append(g)
        L[-1] += ["s_add_u32 s%d, s%d, %d" % (S_XK, S_XK, BK * 2),
                  "s_add_u32 s%d, s%d, %d" % (S_GK, S_GK, BK * 7168),
                  "s_add_u32 s%d, s%d, %d" % (S_QK, S_QK, BK * 6144)]
        return L
    def emit(groups):
        for g in groups:
            for s in g: A(s)
            VM.issue()
    def rowperm(dst, src, tmp):
        A("v_and_b32 v%d, 0xfffffff3, v%d" % (dst, src))
        A("v_bfe_u32 v%d, v%d, 2, 1" % (tmp, src))
        A("v_lshl_or_b32 v%d, v%d, 3, v%d" % (dst, tmp, dst))
        A("v_bfe_u32 v%d, v%d, 3, 1" % (tmp, src))
        A("v_lshl_or_b32 v%d, v%d, 2, v%d" % (dst, tmp, dst))
    NEARLY = O("nearly", 1); NLATE = O("nlate", 1)
    XF = O("xfirst", 1)
    def touch_vec():
        if TOUCH:
            A("s_lshr_b32 s60, s2, 6")
            A("s_and_b32 s61, s%d, 1" % S_W)
            A("s_lshl_b32 s3, s60, 6")
            A("v_add_u32 v%d, s3, v1" % (T + 4))
            A("v_lshlrev_b32 v%d, 11, v%d" % (T + 4, T + 4))
            A("s_lshl_b32 s3, s61, 7")
            A("v_add_u32 v%d, s3, v%d" % (T + 4, T + 4))
            A("s_lshl_b32 s62, s%d, 4" % S_I)
            A("s_lshl_b32 s3, s61, 3")
            A("s_add_u32 s62, s62, s3")
            A("s_and_b32 s63, s%d, 28" % S_J)
            A("v_mul_u32_u24 v%d, 10923, v1" % (T + 5))
            A("v_lshrrev_b32 v%d, 16, v%d" % (T + 5, T + 5))
            A("v_mul_u32_u24 v%d, 6, v%d" % (T + 6, T + 5))
            A("v_sub_u32 v%d, v1, v%d" % (T + 6, T + 6))
            A("v_add_u32 v%d, s62, v%d" % (T + 5, T + 5))
            A("v_mul_u32_u24 v%d, 6144, v%d" % (T + 5, T + 5))
            A("v_lshrrev_b32 v%d, 1, v%d" % (T + 7, T + 6))
            A("v_lshl_add_u32 v%d, v%d, 11, v%d" % (T + 5, T + 7, T + 5))
            A("v_and_b32 v%d, 1, v%d" % (T + 6, T + 6))
            A("v_lshl_add_u32 v%d, v%d, 7, v%d" % (T + 5, T + 6, T + 5))
            A("s_lshl_b32 s3, s63, 6")
            A("v_add_u32 v%d, s3, v%d" % (T + 5, T + 5))
            A("v_mov_b32 v%d, 0x7ffffff0" % (T + 9))
            A("v_cmp_gt_u32 vcc, 48, v1")
            A("v_cndmask_b32 v%d, v%d, v%d, vcc" % (T + 5, T + 9, T + 5))
            A("v_mul_u32_u24 v%d, 9363, v1" % (T + 6))
            A("v_lshrrev_b32 v%d, 16, v%d" % (T + 6, T + 6))
            A("v_mul_u32_u24 v%d, 7, v%d" % (T + 7, T + 6))
            A("v_sub_u32 v%d, v1, v%d" % (T + 7, T + 7))
            A("v_add_u32 v%d, s62, v%d" % (T + 6, T + 6))
            A("v_mul_u32_u24 v%d, 7168, v%d" % (T + 6, T + 6))
            A("v_lshl_add_u32 v%d, v%d, 7, v%d" % (T + 6, T + 7, T + 6))
            A("s_mul_i32 s3, s63, 224")
            A("v_add_u32 v%d, s3, v%d" % (T + 6, T + 6))
            A("v_cmp_gt_u32 vcc, 56, v1")
            A("v_cndmask_b32 v%d, v%d, v%d, vcc" % (T + 6, T + 9, T + 6))
            A("s_and_b32 s3, s2, 63")
            A("s_lshl_b32 s3, s3, 1")
            A("s_add_u32 s3, s3, s61")
            A("s_lshl_b32 s3, s3, 13")
            A("v_lshlrev_b32 v%d, 7, v1" % (T + 7))
            A("v_add_u32 v%d, s3, v%d" % (T + 7, T + 7))
    if not XF: touch_vec()
    A("s_waitcnt lgkmcnt(0)")
    if O("probe", 0):
        PST = O("pstride", 21)
        A("s_bfe_u32 s64, s2, 0x30003")
        A("s_mov_b32 s72, s4"); A("s_mov_b32 s73, s5"); A("s_mov_b32 s74, %d" % (2048 * 2048))
        for cls, (lo, size) in enumerate([(6, 1024 * 6144), (52, 1024 * 7168), (54, 1024 * 7168), (58, WS_SIZE), (56, 256), (66, 65536), (40, 3584 * 2048)], 1):
            A("s_cmp_eq_u32 s64, %d" % cls)
            A("s_cselect_b32 s72, s%d, s72" % lo); A("s_cselect_b32 s73, s%d, s73" % (lo + 1)); A("s_cselect_b32 s74, %d, s74" % size)
        A("s_cmp_eq_u32 s%d, 0" % S_W)
        A("s_cselect_b32 s74, s74, 0")
        A("v_lshlrev_b32 v%d, %d, v1" % (T + 10, PST))
        A("buffer_load_dword v%d, v%d, s[72:75], 0 offen" % (V_TCH + 1, T + 10)); VM.issue()
    A("s_lshl_b32 s64, s%d, 19" % S_I)
    mk_srd(A, SRD_X, 4, 5, 64, 2048 * 2048)
    D0 = dma_list(0)
    if XF:
        emit(D0[0:8]); touch_vec()
    if TOUCH:
        def sel(cond_sgpr, val, voff, lo, hi, size, step, start):
            A("s_cmp_eq_u32 s%d, %d" % (cond_sgpr, val))
            A("s_cselect_b64 vcc, -1, 0")
            A("s_cselect_b32 s%d, s%d, s%d" % (SRD_T, lo, SRD_T))
            A("s_cselect_b32 s%d, s%d, s%d" % (SRD_T + 1, hi, SRD_T + 1))
            A("s_cselect_b32 s%d, %d, s%d" % (SRD_T + 2, size, SRD_T + 2))
            A("s_cselect_b32 s%d, %d, s%d" % (S_TSTEP, step, S_TSTEP))
            A("s_cselect_b32 s%d, %d, s%d" % (S_TK, start, S_TK))
            A("v_cndmask_b32 v%d, v%d, v%d, vcc" % (V_TCH, V_TCH, voff))
        A("s_mov_b32 s%d, s6" % SRD_T); A("s_mov_b32 s%d, s7" % (SRD_T + 1))
        A("s_mov_b32 s%d, %d" % (SRD_T + 2, 1024 * 6144)); A("s_mov_b32 s%d, 0x20000" % (SRD_T + 3))
        A("s_mov_b32 s%d, %d" % (S_TSTEP, 128 * 6144))
        A("s_mov_b32 s%d, %d" % (S_TK, 0 if NEARLY else 128 * 6144))
        A("v_mov_b32 v%d, v%d" % (V_TCH, T + 5))
        sel(60, 1, T + 6, 52, 53, 1024 * 7168, 128 * 7168, 0 if NEARLY else 128 * 7168)
        sel(60, 2, T + 6, 54, 55, 1024 * 7168, 128 * 7168, 0 if NEARLY else 128 * 7168)
        sel(60, 3, T + 7, 40, 41, 3584 * 2048, 1 << 20, (1 << 32) - (NEARLY << 20) if NEARLY else 0)
        A("s_lshr_b32 s61, s%d, 1" % S_W)
        sel(61, 0, T + 4, SRD_X, SRD_X + 1, 256 * 2048, 256, 0 if NEARLY else 256)
        def touch():
            ld = "buffer_load_dword v%d, v%d, s[%d:%d], s%d offen" % (V_TCH + 1, V_TCH, SRD_T, SRD_T + 3, S_TK)
            if O("tnt", 0) == 1:
                l1 = A.newlabel("L_t"); l2 = A.newlabel("L_t")
                return ["s_cmp_eq_u32 s%d, %d" % (S_TSTEP, 1 << 20), "s_cbranch_scc1 %s" % l1, ld, "s_branch %s" % l2, l1 + ":", ld + " nt", l2 + ":",
                        "s_add_u32 s%d, s%d, s%d" % (S_TK, S_TK, S_TSTEP)]
            return [ld + (" nt" if O("tnt", 0) == 2 else ""), "s_add_u32 s%d, s%d, s%d" % (S_TK, S_TK, S_TSTEP)]
        T2 = O("t2", 0)
        def mtouch(mask):
            return ["s_bitcmp1_b32 s%d, s%d" % (mask, S_CNT), "s_cselect_b32 s%d, s76, 0" % (SRD_T + 2), "s_cselect_b32 s6, s%d, 0" % S_TSTEP,
                    "buffer_load_dword v%d, v%d, s[%d:%d], s%d offen" % (V_TCH + 1, V_TCH, SRD_T, SRD_T + 3, S_TK),
                    "s_add_u32 s%d, s%d, s6" % (S_TK, S_TK)]
        if T2:
            J0 = O("j0", 2); EX = O("ex", -1)
            A("s_mov_b32 s76, s%d" % (SRD_T + 2))
            A("s_cmp_eq_u32 s%d, %d" % (S_TSTEP, 1 << 20))
            A("s_cselect_b32 s46, %d, -1" % (((1 << 8) - 1) & ~((1 << J0) - 1)))
            A("s_cselect_b32 s62, s46, %d" % ((1 << EX) if EX >= 0 else 0))
            A("s_cselect_b32 s%d, %d, s%d" % (S_TK, (1 << 32) - ((NEARLY + NLATE) << 20), S_TK))
        emit([touch() for _ in range(NEARLY)])
    if not XF: emit(D0[0:8])
    A("s_cmp_ge_u32 s%d, 2" % S_W)
    A("s_cselect_b32 s60, s54, s52")
    A("s_cselect_b32 s61, s55, s53")
    A("s_mul_i32 s3, s%d, 224" % S_J)
    mk_srd(A, SRD_G, 60, 61, 3, 1024 * 7168)
    A("s_lshl_b32 s3, s%d, 6" % S_J)
    mk_srd(A, SRD_Q, 6, 7, 3, 1024 * 6144)
    A("s_and_b32 s3, s%d, 1" % S_W)
    A("s_mul_i32 s3, s3, 448")
    A("s_and_b32 s65, s%d, 1" % S_J)
    A("s_lshl_b32 s65, s65, 1")
    for g in range(7):
        A("v_add_u32 v%d, s3, v1" % T)
        if g: A("v_add_u32 v%d, %d, v%d" % (T, 64 * g, T))
        A("v_mul_u32_u24 v%d, 4682, v%d" % (T + 1, T))
        A("v_lshrrev_b32 v%d, 16, v%d" % (T + 1, T + 1))
        A("v_mul_u32_u24 v%d, 14, v%d" % (T + 2, T + 1))
        A("v_sub_u32 v%d, v%d, v%d" % (T + 2, T, T + 2))
        A("v_add_u32 v%d, s65, v%d" % (T + 2, T + 2))
        A("v_subrev_u32 v%d, 14, v%d" % (T + 3, T + 2))
        A("v_min_u32 v%d, v%d, v%d" % (T + 2, T + 2, T + 3))
        rowperm(T + 4, T + 1, T + 3)
        A("v_mul_u32_u24 v%d, 7168, v%d" % (T + 1, T + 4))
        A("v_lshl_add_u32 v%d, v%d, 4, v%d" % (T + 1, T + 2, T + 1))
        A("v_subrev_u32 v%d, %d, v%d" % (V_DMA + 11 + g, 1024 * (g & 3), T + 1))
        emit([[x for x in D0[11 + g] if not x.startswith("s_add_u32 s")]])
    A("s_mul_i32 s3, s%d, 192" % S_W)
    for q in range(3):
        A("v_add_u32 v%d, s3, v1" % T)
        if q: A("v_add_u32 v%d, %d, v%d" % (T, 64 * q, T))
        A("v_mul_u32_u24 v%d, 5462, v%d" % (T + 1, T))
        A("v_lshrrev_b32 v%d, 16, v%d" % (T + 1, T + 1))
        A("v_mul_u32_u24 v%d, 12, v%d" % (T + 2, T + 1))
        A("v_sub_u32 v%d, v%d, v%d" % (T + 2, T, T + 2))
        A("v_bfe_u32 v%d, v%d, 2, 1" % (T + 3, T + 1))
        A("v_lshlrev_b32 v%d, 1, v%d" % (T + 3, T + 3))
        A("v_xor_b32 v%d, v%d, v%d" % (T + 2, T + 2, T + 3))
        rowperm(T + 4, T + 1, T + 3)
        A("v_mul_u32_u24 v%d, 6144, v%d" % (T + 1, T + 4))
        A("v_lshrrev_b32 v%d, 2, v%d" % (T + 3, T + 2))
        A("v_lshlrev_b32 v%d, 11, v%d" % (T + 3, T + 3))
        A("v_and_b32 v%d, 3, v%d" % (T + 2, T + 2))
        A("v_lshlrev_b32 v%d, 4, v%d" % (T + 2, T + 2))
        A("v_add3_u32 v%d, v%d, v%d, v%d" % (T + 1, T + 1, T + 2, T + 3))
        A("v_subrev_u32 v%d, %d, v%d" % (V_DMA + 8 + q, 1024 * q, T + 1))
        emit([D0[8 + q]])
    for s in D0[17][1:]: A(s)
    mk_srd(A, SRD_W, 58, 59, None, WS_SIZE)
    S_F1 = 44
    A("s_lshl_b32 s%d, s%d, 7" % (S_F1, S_J))
    A("s_add_u32 s%d, s%d, %d" % (S_F1, S_F1, WS_FLG1))
    A("s_lshl_b32 s3, s%d, 2" % S_I)
    A("s_add_u32 s3, s3, s%d" % S_W)
    A("s_lshl_b32 s45, s3, 2")
    A("s_lshr_b32 s3, s3, 1")
    A("s_lshl_b32 s3, s3, 5")
    A("s_add_u32 s3, s3, s%d" % S_J)
    A("s_lshl_b32 s3, s3, 1")
    A("s_and_b32 s60, s%d, 1" % S_W)
    A("s_add_u32 s3, s3, s60")
    A("s_lshl_b32 s3, s3, 2")
    A("s_add_u32 s77, s3, %d" % WS_FLGH)
    k2ids(A, 61, 62, 63, 64)
    A("s_add_u32 s3, s%d, s45" % S_F1)
    A("v_mov_b32 v%d, s3" % T)
    A("v_writelane_b32 v%d, s77, 1" % T)
    A("s_add_u32 s3, s77, %d" % (WS_FLGO - WS_FLGH))
    A("v_writelane_b32 v%d, s3, 2" % T)
    A("v_writelane_b32 v%d, s64, 3" % T)
    A("v_mov_b32 v%d, 0" % (T + 1))
    A("buffer_store_dword v%d, v%d, s[%d:%d], 0 offen sc1" % (T + 1, T, SRD_W, SRD_W + 3)); VM.issue()
    VM.tag["g"] = VM.n
    EARLY = O("early", 0)
    D1 = dma_list(1)
    emit(D1[:EARLY])
    A("s_lshl_b32 s3, s%d, 11" % S_J)
    mk_srd(A, SRD_P, 66, 67, 3, 65536)
    A("s_and_b32 s3, s%d, 1" % S_W)
    A("s_lshl_b32 s47, s3, 10")
    A("v_lshl_add_u32 v%d, v1, 4, s47" % (T + 3))
    late = D1[EARLY:] + [["s_add_u32 m0, s47, %d" % WPB, "buffer_load_dwordx4 v%d, s[%d:%d], 0 offen lds" % (T + 3, SRD_P, SRD_P + 3)]]
    mk_srd(A, SRD_D, 56, 57, None, 256)
    if TOUCH: late += [touch() for _ in range(NLATE)]
    A("s_load_dwordx2 s[4:5], s[0:1], 24")
    A("s_load_dwordx2 s[56:57], s[0:1], 72")
    A("v_and_b32 v%d, 15, v1" % (T + 4))
    A("v_lshlrev_b32 v%d, 7, v%d" % (T + 4, T + 4))
    A("s_lshl_b32 s3, s%d, 13" % S_W)
    A("v_add_u32 v%d, s3, v%d" % (T + 4, T + 4))
    A("v_bfe_u32 v%d, v1, 1, 3" % (T + 5))
    A("v_lshrrev_b32 v%d, 4, v1" % (T + 6))
    for ks in range(2):
        A("v_or_b32 v%d, %d, v%d" % (T + 7, ks * 4, T + 6))
        A("v_xor_b32 v%d, v%d, v%d" % (T + 7, T + 7, T + 5))
        A("v_lshl_add_u32 v%d, v%d, 4, v%d" % (V_XRD + ks, T + 7, T + 4))
        A("v_add_u32 v%d, %d, v%d" % (V_XRD + 2 + ks, STAGE, V_XRD + ks))
    A("v_bfe_u32 v%d, v1, 2, 2" % (T + 4))
    A("v_and_b32 v%d, 3, v1" % (T + 5))
    A("v_bfe_u32 v%d, v1, 4, 1" % (T + 7))
    A("v_lshrrev_b32 v%d, 5, v1" % (T + 8))
    A("v_lshl_add_u32 v%d, v%d, 4, v%d" % (T + 4, T + 8, T + 4))
    A("v_lshl_add_u32 v%d, v%d, 2, v%d" % (T + 4, T + 7, T + 4))
    A("v_lshlrev_b32 v%d, 3, v%d" % (T + 5, T + 5))
    A("v_mul_u32_u24 v%d, 192, v%d" % (T + 9, T + 4))
    A("v_add_u32 v%d, v%d, v%d" % (T + 9, T + 9, T + 5))
    for h in range(2):
        A("v_xor_b32 v%d, %d, v%d" % (T + 8, h, T + 7))
        A("v_lshl_add_u32 v%d, v%d, 5, v%d" % (T + 8, T + 8, T + 9))
        for st in range(2): A("v_add_u32 v%d, %d, v%d" % (V_QRD + st * 2 + h, QB + STAGE * st, T + 8))
    A("v_mul_u32_u24 v%d, 224, v%d" % (T + 9, T + 4))
    A("v_add_u32 v%d, v%d, v%d" % (T + 8, T + 9, T + 5))
    for st in range(2): A("v_add_u32 v%d, %d, v%d" % (V_GRD + st, GB + STAGE * st, T + 8))
    A("s_mov_b32 s%d, 0x%x" % (S_C, LOG2E)); A("s_mov_b32 s%d, 0x%x" % (S_C + 1, LOG2E))
    stamp(False)
    A("s_waitcnt vmcnt(%d) lgkmcnt(0)" % VM.wait_for(["g"]))
    A("s_barrier")
    def xread(stage, ks, p, tb):
        return "ds_read_b128 %s, v%d offset:%d" % (xf(p, tb), V_XRD + 2 * stage + ks, tb * 2048)
    def wread(stage, ks, cb, n, t):
        b = BLK[cb]
        if b[0] == "q":
            return "ds_read_b64_tr_b16 %s, v%d offset:%d" % (wf(n, t), V_QRD + stage * 2 + b[2], (ks * 32 + t * 8) * 192 + b[1] * 64)
        return "ds_read_b64_tr_b16 %s, v%d offset:%d" % (wf(n, t), V_GRD + stage, (ks * 32 + t * 8) * 224 + b[1] * 32 + (UB - GB if b[0] == "u" else 0))
    Q = Cnt(15)
    for tb in range(NTB):
        A(xread(0, 0, 0, tb)); Q.issue(("x", 0, tb))
    for n in range(D):
        for t in range(2):
            A(wread(0, 0, n, n, t)); Q.issue(("w", n))
    A("s_lshl_b32 s3, s%d, 3" % S_J)
    A("s_add_u32 s3, s3, s%d" % S_I)
    A("s_cmp_eq_u32 s%d, 0" % S_W)
    A("s_cselect_b32 s3, s3, 0x1000")
    A("v_mov_b32 v%d, s3" % (T + 5))
    A("v_mov_b32 v%d, 1" % (T + 6))
    bytest = "buffer_store_byte v%d, v%d, s[%d:%d], 0 offen sc1" % (T + 6, T + 5, SRD_D, SRD_D + 3)
    NPRO = 1 + (NLATE if TOUCH else 0)
    if STAMP: stamp(); stamp.real()


    NS = 4; ST2 = 16384; AB = 65536
    TH = O("th", 8)
    NH = (72 - TH) // 2; NF1 = 56 - NH; NT2 = NH + TH
    NPEEL = NF1 - 4
    S_MT, S_NT, S_KH, S_XF = 52, 53, 54, 55
    S_AK, S_WK, S_KT, S_SW, S_WK0, S_M0H, S_AK0 = 28, 29, 30, 31, 34, 35, 36
    SRD_A, SRD_B, SRD_O = 8, 12, 16
    S_B2 = 72; S_WM, S_WN = 42, 43; S_HF = 70
    P_DMA, P_XRD, P_WRD, P_TOK, P_GA, P_VL, P_Z0, P_L4 = 2, 10, 11, 15, 16, 17, 18, 19
    P_XRD2, P_AH = 3, 5
    def groups(B, n=2):
        L = []; i = 0
        while i < len(B.lines):
            k = n
            while i + k < len(B.lines) and ("s_addc" in B.lines[i + k] or "s_cselect" in B.lines[i + k] or "s_cselect" in "".join(B.lines[i + k + 1:i + k + 2])): k += 1
            L.append([x.strip() for x in B.lines[i:i + k]]); i += k
        return L
    def m0set(i, stage):
        return "s_add_u32 m0, s%d, %d" % (S_M0 + i, ST2 * stage) if stage else "s_mov_b32 m0, s%d" % (S_M0 + i)
    def lda(n): return "buffer_load_dwordx4 v%d, s[%d:%d], s%d offen offset:%d%s lds" % (P_DMA + (n & 2), SRD_A, SRD_A + 3, S_AK, 1024 * n, DSC)
    def ldw(n): return "buffer_load_dwordx4 v%d, s[%d:%d], s%d offen offset:%d lds" % (P_DMA + 4 + n, SRD_B, SRD_B + 3, S_WK, 1024 * n)
    def wotouch():
        B = Asm()
        mk_srd(B, 72, 4, 5, None, 1024 * 2048)
        B("s_lshr_b32 s3, s2, 3")
        B("s_lshl_b32 s3, s3, 2")
        B("s_add_u32 s3, s3, s%d" % S_W)
        B("s_lshl_b32 s3, s3, 14")
        B("s_bfe_u32 s6, s2, 0x10002")
        B("s_lshl_b32 s6, s6, 10")
        B("s_add_u32 s3, s3, s6")
        B("v_lshrrev_b32 v32, 3, v1")
        B("v_lshlrev_b32 v32, 11, v32")
        B("v_and_b32 v33, 7, v1")
        B("v_lshl_add_u32 v32, v33, 7, v32")
        B("buffer_load_dword v33, v32, s[72:75], s3 offen" + (" nt" if O("tnt", 0) else ""))
        return groups(B, 3)
    AG = 96
    def gloads():
        B = Asm()
        mk_srd(B, 72, 42, 43, None, 2048)
        B("v_and_b32 v34, 31, v1")
        B("v_lshlrev_b32 v34, 4, v34")
        B("v_lshrrev_b32 v35, 5, v1")
        B("s_lshl_b32 s3, s%d, 6" % S_W)
        B("s_lshl_b32 s6, s%d, 1" % S_J)
        B("s_add_u32 s3, s3, s6")
        B("v_add_u32 v30, s3, v35")
        B("v_lshl_add_u32 v35, v30, 11, v34")
        L = groups(B, 3)
        for q in range(4):
            L.append(["buffer_load_dwordx4 %s, v35, s[%d:%d], 0 offen offset:%d" % (ar(AG + 4 * q, 4), SRD_X, SRD_X + 3, 512 * q)])
            L.append(["buffer_load_dwordx4 %s, v34, s[72:75], 0 offen offset:%d" % (ar(AG + 16 + 4 * q, 4), 512 * q)])
        return L
    def wsetup():
        B = Asm()
        k2ids(B, S_MT, S_NT, S_KH, S_XF)
        B("v_lshrrev_b32 v32, 4, v1")
        B("v_and_b32 v33, 15, v1")
        B("v_lshlrev_b32 v34, 1, v32")
        B("v_xor_b32 v33, v33, v34")
        B("s_lshl_b32 s3, s%d, 4" % S_W)
        B("v_add_u32 v32, s3, v32")
        B("v_lshlrev_b32 v32, 11, v32")
        B("v_lshl_add_u32 v32, v33, 4, v32")
        B("v_xor_b32 v33, 128, v32")
        for n in range(4):
            B("v_add_u32 v%d, %d, v%d" % (P_DMA + 4 + n, n * 4 * 2048 - 1024 * n, 32 + (n >> 1)))
        B("s_lshl_b32 s%d, s%d, 12" % (S_M0 + 1, S_W))
        B("s_add_u32 s%d, s%d, %d" % (S_M0, S_M0 + 1, AB))
        B("s_mul_i32 s3, s%d, %d" % (S_KH, NH * 64 * 2048))
        B("s_lshl_b32 s6, s%d, 8" % S_NT)
        B("s_add_u32 s3, s3, s6")
        B("s_add_u32 s%d, s40, s3\ns_addc_u32 s%d, s41, 0" % (SRD_B, SRD_B + 1))
        B("s_sub_u32 s%d, %d, s3" % (SRD_B + 2, 3584 * 2048))
        B("s_mov_b32 s%d, 0" % S_WK)
        return groups(B, 3)
    def wdma():
        L = []
        for stg in range(NS):
            for n in range(4):
                g = ([m0set(1, stg)] if n == 0 else []) + [ldw(n)]
                if n == 3: g.append("s_add_u32 s%d, s%d, %d" % (S_WK, S_WK, 64 * 2048))
                L.append(g)
        return L
    def rest():
        B = Asm()
        B("s_mov_b32 s47, %d" % (WS_FLGO - WS_FLGH))
        B("s_lshl_b32 s6, s%d, 8" % S_NT)
        B("s_add_u32 s%d, s4, s6\ns_addc_u32 s%d, s5, 0" % (S_B2, S_B2 + 1))
        B("s_sub_u32 s%d, %d, s6" % (S_B2 + 2, 1024 * 2048))
        B("v_lshlrev_b32 v%d, 4, v1" % P_VL)
        B("s_mul_i32 s3, s%d, %d" % (S_W, 2 * MBS))
        B("v_add_u32 v%d, s3, v%d" % (P_DMA, P_VL))
        B("v_add_u32 v%d, %d, v%d" % (P_DMA + 2, MBS - 2048, P_DMA))
        B("s_mov_b32 s%d, 0" % S_AK); B("s_mov_b32 s%d, %d" % (S_KT, NS))
        jh = (64 * NH - 1) // 112; jf = 64 * NH // 112
        full = (1 << 64) - 1
        ih = full ^ ((1 << (2 * jh + 2)) - 1); if_ = (1 << (2 * jf)) - 1
        B("s_mov_b32 s68, 0x%x" % (if_ & 0xffffffff)); B("s_mov_b32 s69, 0x%x" % (if_ >> 32))
        B("s_cmp_eq_u32 s%d, 0" % S_KH)
        B("s_cselect_b32 s%d, %d, %d" % (S_SW, NH, NF1))
        B("s_cselect_b32 s%d, %d, 0" % (S_WK0, (16 - TH) * 64 * 2048))
        B("s_mov_b32 s%d, %d" % (S_AK0, NF1 * 2048))
        B("s_cselect_b32 s%d, %d, s%d" % (S_AK0, (72 - TH) * 2048, S_AK0))
        B("s_cselect_b32 s68, 0x%x, s68" % (ih & 0xffffffff)); B("s_cselect_b32 s69, 0x%x, s69" % (ih >> 32))
        B("s_mul_i32 s3, s%d, %d" % (S_MT, 8 * MBS))
        B("s_mul_i32 s6, s%d, %d" % (S_KH, NH * 2048))
        B("s_add_u32 s3, s3, s6")
        mk_srd(B, SRD_A, 58, 59, 3, 128 * MBS)
        mk_srd(B, SRD_O, 56, 57, None, 2048 * 2048)
        B("s_lshr_b32 s%d, s%d, 1" % (S_WM, S_W)); B("s_and_b32 s%d, s%d, 1" % (S_WN, S_W))
        B("s_lshl_b32 s6, s%d, 7" % S_MT)
        B("s_lshl_b32 s3, s%d, 6" % S_WM)
        B("s_add_u32 s6, s6, s3")
        B("s_lshl_b32 s3, s%d, 5" % S_KH)
        B("s_add_u32 s6, s6, s3")
        B("v_and_b32 v32, 15, v1")
        B("v_add_u32 v%d, s6, v32" % P_TOK)
        B("v_lshlrev_b32 v%d, 2, v%d" % (P_GA, P_TOK))
        B("v_add_u32 v%d, %d, v%d" % (P_GA, WS_G, P_GA))
        B("s_lshl_b32 s3, s%d, 13" % S_WM)
        B("s_add_u32 s3, s3, %d" % AB)
        B("s_lshl_b32 s6, s%d, 12" % S_KH)
        B("s_add_u32 s%d, s3, s6" % S_M0H)
        B("v_add_u32 v%d, s%d, v%d" % (P_XRD, S_M0H, P_VL))
        B("s_sub_u32 s3, s3, s6")
        B("v_add_u32 v%d, s3, v%d" % (P_XRD2, P_VL))
        B("s_lshl_b32 s3, s%d, 11" % S_WN)
        B("s_add_u32 s%d, s%d, s3" % (S_M0H, S_M0H))
        B("s_sub_u32 s3, s%d, %d" % (S_M0H, AB))
        B("s_mul_i32 s3, s3, %d" % (MBS // 2048))
        B("v_add_u32 v%d, s3, v%d" % (P_AH, P_VL))
        B("v_lshrrev_b32 v34, 4, v1")
        B("v_bfe_u32 v32, v1, 2, 2")
        B("v_lshl_add_u32 v33, v34, 3, v32")
        B("v_lshlrev_b32 v33, 8, v33")
        B("v_and_b32 v35, 3, v1")
        B("v_lshl_add_u32 v33, v35, 3, v33")
        B("v_bfe_u32 v35, v1, 4, 1")
        B("v_lshl_add_u32 v32, v35, 2, v32")
        B("s_lshl_b32 s3, s%d, 2" % S_WN)
        for cb in range(4):
            B("s_add_u32 s6, s3, %d" % cb)
            B("v_xor_b32 v35, s6, v32")
            B("v_lshl_add_u32 v%d, v35, 5, v33" % (P_WRD + cb))
        B("v_mov_b32 v%d, 0" % P_Z0)
        B("v_lshlrev_b32 v%d, 2, v1" % P_L4)
        B("s_lshl_b32 s%d, s%d, 8" % (S_HF, S_MT))
        B("s_add_u32 s%d, s%d, %d" % (S_HF, S_HF, WS_FLGH))
        B("s_mov_b32 s46, 0x01010101")
        return groups(B, 3)

    st = {"pend": late}
    PB = 40 - D
    DSP = O("dsp", 1); DPOS = O("dpos", 2); DMARG = O("dmarg", 12)
    def tile(stage, first, dma_next, has_next, vm_extra, do_touch, extra=None, after=None):
        if extra: st["pend"] = st["pend"] + extra
        for n in range(40):
            ks, cb = divmod(n, 20)
            pre = []
            if n == PB and has_next:
                assert not st["pend"]
                pre += ["s_waitcnt lgkmcnt(0) vmcnt(%d)" % vm_extra, "s_barrier"]
                if first: pre.append(bytest)
                if dma_next: st["pend"] = dma_list(stage)
                if do_touch and T2: st["pend"] += [mtouch(46), mtouch(98)]
                elif do_touch: st["pend"].append(touch())
                if after: st["pend"] = st["pend"] + after
            need_tags = [("w", n)] + ([("x", ks, tb) for tb in range(NTB)] if cb == 0 else [])
            if not (n == PB and has_next):
                pre.append("s_waitcnt lgkmcnt(%d)" % Q.wait_for(need_tags))
            rds = []
            def addw(m):
                if m < 40:
                    k2, c2 = divmod(m, 20)
                    for t in range(2): rds.append((wread(stage, k2, c2, m, t), ("w", m)))
                elif has_next:
                    for t in range(2): rds.append((wread(stage ^ 1, 0, m - 40, m, t), ("w", m - 40)))
            if n == PB - 2: addw(n + D); addw(n + D + 1)
            elif n == PB - 1: pass
            else: addw(n + D)
            if ks == 0 and cb in (4, 7, 10, 13):
                tb = (cb - 4) // 3
                rds.append((xread(stage, 1, 1, tb), ("x", 1, tb)))
            if has_next and n >= PB and n < PB + 4:
                tb = n - PB
                rds.append((xread(stage ^ 1, 0, 0, tb), ("x", 0, tb)))
            for s in pre: A(s)
            k = 0
            for tb in range(NTB):
                a, b = wf(n), xf(ks, tb)
                if BLK[cb][0] == "q" and BLK[cb][1] == 2: a, b = b, a
                c = "0" if (first and ks == 0) else acc(cb, tb)
                A("v_mfma_f32_16x16x32_bf16 %s, %s, %s, %s" % (acc(cb, tb), a, b, c))
                if k < len(rds):
                    A(rds[k][0]); Q.issue(rds[k][1]); k += 1
                if tb == 3:
                    while k < len(rds):
                        A(rds[k][0]); Q.issue(rds[k][1]); k += 1
                if tb == DPOS and st["pend"]:
                    left = (PB - n - 1) % 40 + 1 - DMARG
                    if DSP == 1 or (n % DSP == 0) or len(st["pend"]) * DSP >= left:
                        for s in st["pend"].pop(0): A(s)
    assert 40 % RING == 0 and D + 2 <= RING
    nt = (2 if T2 else 1) if TOUCH else 0
    tile(0, True, True, True, NPRO, bool(O("tpos", 0)))
    A("s_mov_b32 s%d, 0" % S_CNT)
    A.label("L_k1_loop")
    if STAMP == 2:
        A("s_memtime s[100:101]"); A("s_waitcnt lgkmcnt(0)"); A("s_sub_u32 s100, s100, s80")
        A("s_mov_b32 m0, s%d" % S_CNT); A("s_nop 0"); A("v_writelane_b32 v47, s100, m0")
        A("s_add_u32 m0, s%d, 0" % (S_M0 + 1))
    TPOS = O("tpos", 0)
    if TPOS:
        tile(1, False, True, True, nt, False)
        tile(0, False, True, True, 0, TOUCH)
    else:
        tile(1, False, True, True, 0, TOUCH)
        tile(0, False, True, True, nt, False)
    A("s_add_u32 s%d, s%d, 1" % (S_CNT, S_CNT))
    A("s_cmp_lt_u32 s%d, 6" % S_CNT)
    A("s_cbranch_scc1 L_k1_loop")
    if STAMP == 2:
        for q in range(6):
            r = 82 + len(stamp.regs); stamp.regs.append(r)
            A("v_readlane_b32 s%d, v47, %d" % (r, q)); A("s_nop 1"); A("s_add_u32 s%d, s%d, s80" % (r, r))
        stamp()
        stamp.off = True
    tile(1, False, True, True, 10 + O("tpos", 0), False, [touch()] + ([] if RSW else gloads()) + wotouch())
    tile(0, False, False, True, 0, False, wsetup(), wdma())
    tile(1, False, False, False, 0, False, rest())
    assert not st["pend"]
    stamp(); stamp.real()

    if O("k1only", 0):
        stamp.finish(S_W, SRD_W, 38, "L_k1_end")
        A.label("L_k1_end"); A("s_endpgm"); A.label("L_code_end")
        return name, LDS
    E = 2
    def pk(op, d, a, b, c=None, mods=""):
        if c is None: A("%s %s, %s, %s %s" % (op, d, a, b, mods))
        else: A("%s %s, %s, %s, %s %s" % (op, d, a, b, c, mods))
    def rsag2(op, qa, opb, qb):
        seqs = []
        for (o, q) in ((op, qa), (opb, qb)):
            seqs.append([
                "v_permlane32_swap_b32 v%d, v%d" % (q[0], q[1]),
                "v_permlane32_swap_b32 v%d, v%d" % (q[2], q[3]),
                "%s v%d, v%d, v%d" % (o, q[0], q[0], q[1]),
                "%s v%d, v%d, v%d" % (o, q[2], q[2], q[3]),
                "v_permlane16_swap_b32 v%d, v%d" % (q[0], q[2]),
                "%s v%d, v%d, v%d" % (o, q[0], q[0], q[2]),
                "v_mov_b32 v%d, v%d" % (q[2], q[0]),
                "v_permlane16_swap_b32 v%d, v%d" % (q[0], q[2]),
                "v_mov_b32 v%d, v%d" % (q[1], q[0]),
                "v_mov_b32 v%d, v%d" % (q[3], q[2]),
                "v_permlane32_swap_b32 v%d, v%d" % (q[0], q[1]),
                "v_permlane32_swap_b32 v%d, v%d" % (q[2], q[3])])
        for x, y in zip(*seqs):
            A(x); A(y)
    MX = [232, 234, 236, 238]; MN = [240, 242, 244, 246]; PB16 = 20; WP = 176
    def feature(cb0):
        for tb in range(NTB):
            for h in range(2):
                f, b = accb(cb0 + h, tb); assert f == "v"
                A("v_cvt_pk_bf16_f32 v%d, v%d, v%d" % (PB16 + 4 * tb + 2 * h, b, b + 1))
                A("v_cvt_pk_bf16_f32 v%d, v%d, v%d" % (PB16 + 4 * tb + 2 * h + 1, b + 2, b + 3))
        for tb in range(NTB):
            for fb in range(2):
                A("v_mfma_f32_16x16x32_bf16 %s, %s, %s, 0" % (acc(cb0 + fb, tb), vr(WP + 4 * fb, 4), vr(PB16 + 4 * tb, 4)))
    def feature2(cb0):
        for tb in range(NTB):
            p0 = accb(cb0, tb)[1]; p1 = accb(cb0 + 1, tb)[1]
            for step in range(4):
                for (op3, op2, d) in (("v_max3_f32", "v_max_f32", MX[tb]), ("v_min3_f32", "v_min_f32", MN[tb])):
                    if step == 0: A("%s v%d, v%d, v%d, v%d" % (op3, d, p0, p0 + 1, p0 + 2))
                    if step == 1: A("%s v%d, v%d, v%d, v%d" % (op3, d, d, p0 + 3, p1))
                    if step == 2: A("%s v%d, v%d, v%d, v%d" % (op3, d, d, p1 + 1, p1 + 2))
                    if step == 3: A("%s v%d, v%d, v%d" % (op2, d, d, p1 + 3))
        rsag2("v_max_f32", MX, "v_min_f32", MN)
        for b in MX + MN: A("v_mul_f32 v%d, s%d, v%d" % (b, S_C, b))
    def exps(cb0, tb, EM):
        for h in range(2):
            p = accb(cb0 + h, tb)[1]
            for u in range(2):
                pk("v_pk_fma_f32", vr(EM + 4 * h + 2 * u, 2), vr(p + 2 * u, 2), sr(S_C, 2), vr(MN[tb], 2),
                   "op_sel_hi:[1,1,0] neg_lo:[1,0,0] neg_hi:[1,0,0]")
                pk("v_pk_fma_f32", vr(p + 2 * u, 2), vr(p + 2 * u, 2), sr(S_C, 2), vr(MX[tb], 2),
                   "op_sel_hi:[1,1,0] neg_lo:[0,0,1] neg_hi:[0,0,1]")
        for h in range(2):
            p = accb(cb0 + h, tb)[1]
            for r in range(4):
                A("v_exp_f32 v%d, v%d" % (p + r, p + r))
                A("v_exp_f32 v%d, v%d" % (EM + 4 * h + r, EM + 4 * h + r))
    VH = 36; VS = 37
    A("v_mov_b32 v0, v30")
    A("v_and_b32 v%d, 15, v1" % VH)
    A("v_lshlrev_b32 v%d, 4, v%d" % (VH, VH))
    A("v_lshrrev_b32 v38, 5, v1")
    A("v_lshl_add_u32 v%d, v38, 8, v%d" % (VH, VH))
    A("v_bfe_u32 v38, v1, 4, 1")
    A("v_mul_u32_u24 v%d, %d, v38" % (VS, MBS))
    A("v_add_u32 v%d, v%d, v%d" % (VS, VS, VH))
    A("v_lshl_add_u32 v%d, v38, 9, v%d" % (VH, VH))
    A("s_lshl_b32 s3, s%d, 4" % S_I)
    A("s_lshl_b32 s62, s%d, 2" % S_W)
    A("s_add_u32 s62, s62, s3")
    A("s_mul_i32 s62, s62, %d" % MBS)
    A("s_mul_i32 s3, s%d, 7" % S_J)
    A("s_add_u32 s3, s3, 1")
    A("s_lshr_b32 s3, s3, 1")
    A("s_lshl_b32 s3, s3, 10")
    A("s_add_u32 s63, s62, s3")
    for tb in range(1, 4): A("s_add_u32 s%d, s63, %d" % (63 + tb, tb * MBS))
    A("s_add_u32 s67, s63, 3072")
    A("s_sub_u32 s3, s63, 512")
    A("s_bitcmp1_b32 s%d, 0" % S_J)
    A("s_cselect_b32 s67, s3, s67")
    A("s_add_u32 s76, s67, %d" % (2 * MBS))
    FREEV = [accb(6, 0)[1] + 4 * i for i in range(16)]
    def glu(fb, fi):
        gs, us = [], []
        for tb in range(4):
            out = []
            for cb in (6 + 2 * fb, 7 + 2 * fb):
                f, b = accb(cb, tb)
                if f == "a":
                    d = FREEV[fi]; fi += 1
                    for r in range(4): A("v_accvgpr_read_b32 v%d, a%d" % (d + r, b + r))
                    b = d
                out.append(b)
            gs.append(out[0]); us.append(out[1])
        for tb in range(4):
            for u in range(2): pk("v_pk_mul_f32", vr(gs[tb] + 2 * u, 2), vr(gs[tb] + 2 * u, 2), sr(S_C, 2))
        for tb in range(4):
            for r in range(4): A("v_exp_f32 v%d, -v%d" % (gs[tb] + r, gs[tb] + r))
        for tb in range(4):
            for u in range(2): pk("v_pk_add_f32", vr(gs[tb] + 2 * u, 2), vr(gs[tb] + 2 * u, 2), "1.0", None, "op_sel_hi:[1,0]")
        for tb in range(4):
            for r in range(4): A("v_rcp_f32 v%d, v%d" % (gs[tb] + r, gs[tb] + r))
        for tb in range(4):
            for u in range(2): pk("v_pk_mul_f32", vr(gs[tb] + 2 * u, 2), vr(gs[tb] + 2 * u, 2), vr(us[tb] + 2 * u, 2))
        return gs, us
    def packswap(dst, a, b):
        for (d, x) in ((dst, a), (dst + 2, b)):
            A("v_cvt_pk_bf16_f32 v%d, v%d, v%d" % (d, x, x + 1))
            A("v_cvt_pk_bf16_f32 v%d, v%d, v%d" % (d + 1, x + 2, x + 3))
    def doswap(d):
        A("v_permlane16_swap_b32 v%d, v%d" % (d, d + 2))
        A("v_permlane16_swap_b32 v%d, v%d" % (d + 1, d + 3))
    def glu_pair(p, D4):
        g0, u0 = glu(2 * p, 0)
        g1, u1 = glu(2 * p + 1, 8)
        for tb in range(4): packswap(D4[tb], g0[tb], g1[tb])
        for tb in range(4): doswap(D4[tb])
        return ["buffer_store_dwordx4 %s, v%d, s[%d:%d], s%d offen offset:%d%s" % (vr(D4[tb], 4), VH, SRD_W, SRD_W + 3, 63 + tb, p * 1024, SC) for tb in range(4)]
    def capture(fn):
        start = len(A.lines)
        r = fn()
        body = [x.strip() for x in A.lines[start:]]; del A.lines[start:]
        return body, r
    def spread(fn, stores, every):
        body, r = capture(fn)
        k = 0
        for n, ln in enumerate(body):
            if n % every == 0 and k < len(stores):
                A(stores[k]); k += 1
            A(ln)
        for x in stores[k:]: A(x)
        return r
    PKA = [PB16 + 4 * i for i in range(4)]
    PKB = [accb(10, 0)[1] + 4 * i for i in range(4)]
    PK1 = [accb(11, 0)[1] + 4 * i for i in range(4)]
    st0 = glu_pair(0, PKA)
    st1 = spread(lambda: glu_pair(1, PK1), st0, 30)
    st2 = spread(lambda: glu_pair(2, PKA), st1, 40)
    def last():
        g6, u6 = glu(6, 0)
        for tp in range(2): packswap(PKB[tp], g6[2 * tp], g6[2 * tp + 1])
        for tp in range(2): doswap(PKB[tp])
    spread(last, st2, 25)
    for tp in range(2):
        A("buffer_store_dwordx4 %s, v%d, s[%d:%d], s%d offen%s" % (vr(PKB[tp], 4), VS, SRD_W, SRD_W + 3, 67 if tp == 0 else 76, SC))
    stamp()
    def flag_group(saddr, soff):
        return ["v_mov_b32 v38, s%d" % saddr, "v_mov_b32 v39, 1", "s_mov_b64 exec, 1",
                "buffer_store_dword v39, v38, s[%d:%d], %s offen sc1" % (SRD_W, SRD_W + 3, soff), "s_mov_b64 exec, -1"]
    A("v_bfe_u32 v224, v1, 2, 2")
    A("v_lshrrev_b32 v225, 4, v1")
    A("v_and_b32 v226, 3, v1")
    A("v_lshl_add_u32 v227, v225, 2, v224")
    A("v_lshlrev_b32 v228, 6, v227")
    A("v_lshl_add_u32 v228, v226, 3, v228")
    A("v_add_u32 v228, %d, v228" % WPB)
    for fb in range(2):
        for t in range(2):
            A("ds_read_b64_tr_b16 %s, v228 offset:%d" % (vr(WP + 4 * fb + 2 * t, 2), fb * 32 + t * 1024))
    A("s_waitcnt lgkmcnt(0)")
    A("s_barrier")
    dbgld = "buffer_load_dword v47, v%d, s[%d:%d], 0 offen sc1" % (P_L4, SRD_D, SRD_D + 3)
    A(dbgld)
    feature(0)
    SP = [248, 250, 252, 254]; SM = [200, 202, 204, 206]
    VB = accb(2, 0)[1]
    assert accb(3, 0)[1] == VB + 16
    for db in range(2):
        for tb in range(4):
            s = VB + db * 16 + tb * 4
            d = VB + db * 8 + tb * 2
            A("v_cvt_pk_bf16_f32 v%d, v%d, v%d" % (d, s, s + 1))
            A("v_cvt_pk_bf16_f32 v%d, v%d, v%d" % (d + 1, s + 2, s + 3))
    feature2(0)
    A("s_lshl_b32 s61, s%d, 13" % S_W)
    A("s_add_u32 s61, s61, %d" % SCR)
    VPW = 192; VPR = 196
    A("v_and_b32 v229, 15, v1")
    A("v_lshlrev_b32 v229, 7, v229")
    A("v_xor_b32 v230, v225, v226")
    A("v_lshl_add_u32 v229, v230, 3, v229")
    A("v_add_u32 v229, s61, v229")
    for q in range(4):
        A("v_xor_b32 v230, %d, v224" % q)
        A("v_lshl_add_u32 v%d, v230, 5, v229" % (VPW + q))
    A("v_lshlrev_b32 v229, 7, v227")
    A("v_xor_b32 v230, v226, v224")
    A("v_lshl_add_u32 v229, v230, 3, v229")
    A("v_add_u32 v229, s61, v229")
    for q in range(4):
        A("v_xor_b32 v230, %d, v225" % q)
        A("v_lshl_add_u32 v%d, v230, 5, v229" % (VPR + q))
    EMR = [PB16, PB16 + 8, VB + 16, VB + 24]
    for tb in range(4):
        exps(0, tb, EMR[tb])
    t0 = 144
    for tb in range(4):
        p0 = accb(0, tb)[1]; p1 = accb(1, tb)[1]; e = EMR[tb]
        pk("v_pk_add_f32", vr(t0, 2), vr(p0, 2), vr(p0 + 2, 2))
        pk("v_pk_add_f32", vr(t0 + 2, 2), vr(e, 2), vr(e + 2, 2))
        pk("v_pk_add_f32", vr(t0, 2), vr(t0, 2), vr(p1, 2))
        pk("v_pk_add_f32", vr(t0 + 2, 2), vr(t0 + 2, 2), vr(e + 4, 2))
        pk("v_pk_add_f32", vr(t0, 2), vr(t0, 2), vr(p1 + 2, 2))
        pk("v_pk_add_f32", vr(t0 + 2, 2), vr(t0 + 2, 2), vr(e + 6, 2))
        A("v_add_f32 v%d, v%d, v%d" % (SP[tb], t0, t0 + 1))
        A("v_add_f32 v%d, v%d, v%d" % (SM[tb], t0 + 2, t0 + 3))
    rsag2("v_add_f32", SP, "v_add_f32", SM)
    for i in SP + SM: A("v_rcp_f32 v%d, v%d" % (i, i))
    HPOS = O("hpos", 0)
    def hflag():
        A("s_waitcnt vmcnt(0)")
        for x in flag_group(77, "0"): A(x)
    if HPOS == 0: hflag()
    for tb in range(4):
        srcs = [(accb(0, tb)[1], SP), (accb(1, tb)[1], SP), (EMR[tb], SM), (EMR[tb] + 4, SM)]
        for q, (p, sc) in enumerate(srcs):
            for u in range(2):
                pk("v_pk_mul_f32", vr(p + 2 * u, 2), vr(p + 2 * u, 2), vr(sc[tb], 2), None, "op_sel_hi:[1,0]")
        for q, (p, sc) in enumerate(srcs):
            A("v_cvt_pk_bf16_f32 v%d, v%d, v%d" % (p, p, p + 1))
            A("v_cvt_pk_bf16_f32 v%d, v%d, v%d" % (p + 1, p + 2, p + 3))
        for q, (p, sc) in enumerate(srcs):
            A("ds_write_b64 v%d, %s offset:%d" % (VPW + q, vr(p, 2), tb * 2048))
    if HPOS == 1: hflag()
    A("s_mov_b32 s37, 0x40000")
    A.label("L_dpoll")
    A("v_cmp_eq_u32 vcc, s46, v47")
    A("s_nop 0")
    A("s_cmp_eq_u64 vcc, -1")
    A("s_cbranch_scc1 L_dpoll_ok")
    A(dbgld)
    A("s_sub_u32 s37, s37, 1")
    A("s_waitcnt vmcnt(0)")
    A("s_cbranch_scc0 L_dpoll")
    A.label("L_dpoll_ok")
    V_RW, V_RR, V_ZS, V_ZL, V_KS, V_KL, V_PD, V_P4 = 40, 41, 42, 43, 44, 45, 46, 47
    A("v_add_u32 v%d, s61, v%d" % (V_RW, P_VL))
    A("s_lshl_b32 s3, s%d, 11" % S_W)
    A("v_add_u32 v%d, s3, v%d" % (V_KS, P_VL))
    A("v_add_u32 v%d, %d, v%d" % (V_RR, SCR, V_KS))
    A("v_lshl_add_u32 v230, v225, 2, v226")
    A("v_lshlrev_b32 v%d, 4, v230" % V_ZL)
    A("v_add_u32 v%d, 8192, v%d" % (V_ZL, V_ZL))
    ZRED = AB + 3 * ST2
    A("s_lshl_b32 s3, s%d, 10" % S_W)
    A("s_add_u32 s3, s3, %d" % ZRED)
    A("v_add_u32 v%d, s3, v%d" % (V_ZS, P_VL))
    A("v_add_u32 v229, %d, v%d" % (ZRED, P_VL))
    A("s_lshr_b32 s3, s%d, 1" % S_W)
    A("s_lshl_b32 s3, s3, 12")
    A("s_and_b32 s6, s%d, 1" % S_W)
    A("s_lshl_b32 s6, s6, 10")
    A("s_add_u32 s3, s3, s6")
    A("v_add_u32 v%d, s3, v%d" % (V_KL, P_VL))
    A("v_and_b32 v%d, 124, v%d" % (V_P4, P_L4))
    S_KVB = 60
    A("s_lshl_b32 s3, s%d, 3" % S_J)
    A("s_mul_i32 s%d, s3, 9216" % S_KVB)
    A("s_add_u32 s%d, s%d, %d" % (S_KVB, S_KVB, WS_KVP))
    A("s_mul_i32 s3, s%d, 9216" % S_I)
    A("s_add_u32 s61, s%d, s3" % S_KVB)
    A("s_add_u32 s3, s%d, 112" % S_J)
    A("s_lshl_b32 s3, s3, 10")
    A("s_add_u32 s63, s62, s3")
    for tb in range(1, 4): A("s_add_u32 s%d, s63, %d" % (63 + tb, tb * MBS))
    A("s_mov_b32 s67, 0x358637bd")
    A("s_waitcnt lgkmcnt(0)")
    APH = 64
    for fblk in range(4):
        for ks in range(2):
            for t in range(2):
                A("ds_read_b64_tr_b16 %s, v%d offset:%d" % (ar(APH + 8 * fblk + 4 * ks + 2 * t, 2), VPR + fblk, (32 * ks + 16 * t) * 128))
    A("v_mov_b32 v231, 0x3f803f80")
    for fblk in range(4):
        A("v_cmp_eq_u32 vcc, %d, v226" % fblk)
        for r in range(4):
            A("v_cndmask_b32 v%d, 0, v231, vcc" % (PB16 + 4 * fblk + r))
    stamp()

    KV = accb(0, 0)[1]; ZB = VB + 16; QE = 144; LB = 48
    side = []
    import re
    def unpack(x):
        if not x.startswith("v_pk_") or not O("unpack", 0): return [x]
        if O("unpack", 0) == 2 and not re.search(r"op_sel:\[[01,]*1", x): return [x]
        I = parse(x); n = len(I.ops) - 1
        def arr(name, dflt):
            m = re.search(name + r":\[([01,]+)\]", I.mods)
            return [int(c) for c in m.group(1).split(",")] if m else [dflt] * n
        sel = [arr("op_sel", 0), arr("op_sel_hi", 1)]; neg = [arr("neg_lo", 0), arr("neg_hi", 0)]
        def half(o, h):
            m = re.match(r"([vs])\[(\d+):\d+\]", o)
            return "%s%d" % (m.group(1), int(m.group(2)) + h) if m else o
        op = I.op.replace("v_pk_", "v_")
        res = []
        for h in range(2):
            src = [("-" if neg[h][k] else "") + half(I.ops[1 + k], sel[h][k]) for k in range(n)]
            if n == 2 and not src[1].startswith("v"): src = src[::-1]
            res.append("%s %s, %s" % (op, half(I.ops[0], h), ", ".join(src)))
        return res
    def S(fn):
        for x in capture(fn)[0]: side.extend(unpack(x))
    def kvm():
        for fblk in range(4):
            for ks in range(2):
                for db in range(2):
                    d = vr(KV + 8 * fblk + 4 * db, 4)
                    A("v_mfma_f32_16x16x32_bf16 %s, %s, %s, %s" % (d, ar(APH + 8 * fblk + 4 * ks, 4), vr(VB + db * 8 + ks * 4, 4), "0" if ks == 0 else d))
                A("v_mfma_f32_16x16x32_bf16 %s, %s, %s, %s" % (vr(ZB, 4), ar(APH + 8 * fblk + 4 * ks, 4), vr(PB16 + 4 * fblk, 4), "0" if (ks == 0 and fblk == 0) else vr(ZB, 4)))
        for b in range(8):
            A("ds_write_b128 v%d, %s offset:%d" % (V_RW, vr(KV + 4 * b, 4), b * 1024))
        A("ds_write_b128 v%d, %s" % (V_ZS, vr(ZB, 4)))
    PRE = 1
    hld = "buffer_load_dword v%d, v%d, s[%d:%d], s%d offen sc1" % (V_PD, P_L4, SRD_W, SRD_W + 3, S_HF)
    A("s_waitcnt lgkmcnt(0)")
    kvm(); feature(4)
    A("s_waitcnt lgkmcnt(0)"); A("s_barrier")
    A(hld)
    def redr():
        for w in range(4):
            A("ds_read_b128 %s, v%d offset:%d" % (vr(KV + 8 * w, 4), V_RR, w * 8192))
            A("ds_read_b128 %s, v%d offset:%d" % (vr(KV + 8 * w + 4, 4), V_RR, w * 8192 + 1024))
            A("ds_read_b128 %s, v229 offset:%d" % (vr(VB + 4 * w, 4), w * 1024))
    if PRE:
        redr(); feature2(4); A("s_waitcnt lgkmcnt(0)")
    else:
        S(redr)
        S(lambda: feature2(4))
        side.append(("lgkm",))
    def reda():
        for w in range(1, 4):
            for u in range(4): pk("v_pk_add_f32", vr(KV + 2 * u, 2), vr(KV + 2 * u, 2), vr(KV + 8 * w + 2 * u, 2))
            for u in range(2): pk("v_pk_add_f32", vr(VB + 2 * u, 2), vr(VB + 2 * u, 2), vr(VB + 4 * w + 2 * u, 2))
        A("buffer_store_dwordx4 %s, v%d, s[%d:%d], s61 offen sc1" % (vr(VB, 4), V_ZL, SRD_W, SRD_W + 3))
        A("buffer_store_dwordx4 %s, v%d, s[%d:%d], s61 offen sc1" % (vr(KV, 4), V_KS, SRD_W, SRD_W + 3))
        A("buffer_store_dwordx4 %s, v%d, s[%d:%d], s61 offen offset:1024 sc1" % (vr(KV + 4, 4), V_KS, SRD_W, SRD_W + 3))
    if PRE: reda(); stamp()
    else:
        S(reda)
        side.append(("ev", "kvst"))
    def qexp():
        for half in range(2):
            for tb in (2 * half, 2 * half + 1):
                exps(4, tb, PB16 + 8 * (tb & 1))
            for tb in (2 * half, 2 * half + 1):
                e = PB16 + 8 * (tb & 1)
                for h in range(2):
                    p = accb(4 + h, tb)[1]
                    A("v_cvt_pk_bf16_f32 v%d, v%d, v%d" % (QE + 8 * tb + 2 * h, p, p + 1))
                    A("v_cvt_pk_bf16_f32 v%d, v%d, v%d" % (QE + 8 * tb + 2 * h + 1, p + 2, p + 3))
                    A("v_cvt_pk_bf16_f32 v%d, v%d, v%d" % (QE + 8 * tb + 4 + 2 * h, e + 4 * h, e + 4 * h + 1))
                    A("v_cvt_pk_bf16_f32 v%d, v%d, v%d" % (QE + 8 * tb + 4 + 2 * h + 1, e + 4 * h + 2, e + 4 * h + 3))
    QPRE = 1
    side.append(("mark", "qdone"))
    side.append(("join", "kvl"))
    AF = LB + 12; ZQ = 64; KF = 80; AUX = 96
    def oph1():
        for i in range(1, 8):
            for u in range(6): pk("v_pk_add_f32", vr(LB + 2 * u, 2), vr(LB + 2 * u, 2), vr(LB + 12 * i + 2 * u, 2))
        for h in range(2):
            A("v_cvt_pk_bf16_f32 v%d, v%d, v%d" % (AF + 2 * h, LB + 4 * h, LB + 4 * h + 1))
            A("v_cvt_pk_bf16_f32 v%d, v%d, v%d" % (AF + 2 * h + 1, LB + 4 * h + 2, LB + 4 * h + 3))
        A("s_lshl_b32 s3, s%d, 10" % S_W)
        A("v_add_u32 v%d, %d, v%d" % (V_RR, SCR, P_VL))
        A("v_add_u32 v%d, s3, v%d" % (V_RW, V_RR))
        A("ds_write_b128 v%d, %s" % (V_RW, vr(AF, 4)))
        for fblk in range(4):
            for r in range(4):
                A("v_mov_b32_dpp v%d, v%d quad_perm:[%d,%d,%d,%d] row_mask:0xf bank_mask:0xf" % (ZQ + 4 * fblk + r, LB + 8 + r, fblk, fblk, fblk, fblk))
        for fblk in range(4):
            A("v_cvt_pk_bf16_f32 v%d, v%d, v%d" % (AUX + 2 * fblk, ZQ + 4 * fblk, ZQ + 4 * fblk + 1))
            A("v_cvt_pk_bf16_f32 v%d, v%d, v%d" % (AUX + 2 * fblk + 1, ZQ + 4 * fblk + 2, ZQ + 4 * fblk + 3))
        A("v_and_b32 v%d, 3, v1" % ZQ)
        A("v_mov_b32 v%d, 0x3f803f80" % (ZQ + 1))
    S(oph1)
    side.append(["v_cmp_eq_u32 vcc, 1, v%d" % ZQ, "v_cndmask_b32 v%d, 0, v%d, vcc" % (ZQ + 1, ZQ + 1)])
    side.append(["v_cmp_eq_u32 vcc, 0, v%d" % ZQ] + ["v_cndmask_b32 v%d, v%d, v%d, vcc" % (AUX + r, ZQ + 1, AUX + r) for r in range(8)])
    side.append(("bar",))
    S(lambda: [A("ds_read_b128 %s, v%d offset:%d" % (vr(KF + 4 * q, 4), V_RR, q * 1024)) for q in range(4)])
    NN = [48, 64, 104, 120]; NA = [136, 20, 28, 176]
    def auxm():
        for tb in range(4):
            for s in range(2):
                A("v_mfma_f32_16x16x32_bf16 %s, %s, %s, 0" % (vr(NA[tb] + 4 * s, 4), vr(AUX + 4 * s, 4), vr(QE + 8 * tb + 4 * s, 4)))
        for x in NA:
            A("v_rcp_f32 v%d, v%d" % (x + 1, x + 1))
            A("v_rcp_f32 v%d, v%d" % (x + 5, x + 5))
        for x in NA: A("v_fma_f32 v%d, v%d, v%d, s67" % (x + 2, x, x + 1))
        for x in NA: A("v_fma_f32 v%d, v%d, v%d, v%d" % (x + 2, x + 4, x + 5, x + 2))
        for x in NA: A("v_rcp_f32 v%d, v%d" % (x + 2, x + 2))
        for x in NA:
            A("v_mul_f32 v%d, v%d, v%d" % (x, x + 1, x + 2))
            A("v_mul_f32 v%d, v%d, v%d" % (x + 4, x + 5, x + 2))
    S(auxm)
    side.append(("lgkm",))
    def oph2():
        for tb in range(4):
            for s in range(2):
                for db in range(2):
                    A("v_mfma_f32_16x16x32_bf16 %s, %s, %s, 0" % (vr(NN[tb] + 8 * s + 4 * db, 4), vr(KF + 8 * s + 4 * db, 4), vr(QE + 8 * tb + 4 * s, 4)))
        for n, x in zip(NN, NA):
            for u in range(4):
                pk("v_pk_mul_f32", vr(n + 2 * u, 2), vr(n + 2 * u, 2), vr(x, 2), None, "op_sel_hi:[1,0]")
            for u in range(4):
                pk("v_pk_fma_f32", vr(n + 2 * u, 2), vr(n + 8 + 2 * u, 2), vr(x + 4, 2), vr(n + 2 * u, 2), "op_sel_hi:[1,0,1]")
            for u in range(4):
                A("v_cvt_pk_bf16_f32 v%d, v%d, v%d" % (n + 8 + u, n + 2 * u, n + 2 * u + 1))
        for n in NN: doswap(n + 8)
        for tb, n in enumerate(NN):
            A("buffer_store_dwordx4 %s, v%d, s[%d:%d], s%d offen%s" % (vr(n + 8, 4), VH, SRD_W, SRD_W + 3, 63 + tb, SC))
    S(oph2)
    side.append(("ev", "ost"))

    ACC2 = [192, 64]; VG = 48; C1 = 56; PART = 128
    def acc2(s, cb, tb): return vr(ACC2[s] + 4 * (cb * 4 + tb), 4)
    def xf2(p, tb): return ar(32 * p + 4 * tb, 4)
    def wf2(p, cb, half=None):
        b = 32 * p + 16 + 4 * cb
        return ar(b, 4) if half is None else ar(b + 2 * half, 2)
    def dma2(stage, half=False):
        L = [[m0set(0, stage), lda(0)], [lda(1)], [lda(2)], [lda(3)], [m0set(1, stage), ldw(0)], [ldw(1)], [ldw(2)], [ldw(3)]]
        if half:
            ldh = lambda n: "buffer_load_dwordx4 v%d, s[%d:%d], s%d offen offset:%d%s lds" % (P_AH, SRD_A, SRD_A + 3, S_AK, 1024 * n, DSC)
            L = [["s_add_u32 m0, s%d, %d" % (S_M0H, ST2 * stage), ldh(0)], [ldh(1)]] + L[4:]
        L[-1] += ["s_add_u32 s%d, s%d, 2048" % (S_AK, S_AK),
                  "s_add_u32 s%d, s%d, %d" % (S_WK, S_WK, 64 * 2048),
                  "s_add_u32 s%d, s%d, 1" % (S_KT, S_KT),
                  "s_cmp_eq_u32 s%d, s%d" % (S_KT, S_SW),
                  "s_cselect_b32 s%d, s%d, s%d" % (SRD_B, S_B2, SRD_B),
                  "s_cselect_b32 s%d, s%d, s%d" % (SRD_B + 1, S_B2 + 1, SRD_B + 1),
                  "s_cselect_b32 s%d, s%d, s%d" % (SRD_B + 2, S_B2 + 2, SRD_B + 2),
                  "s_cselect_b32 s%d, s%d, s%d" % (S_WK, S_WK0, S_WK),
                  "s_cselect_b32 s%d, s%d, s%d" % (S_AK, S_AK0, S_AK)]
        return L
    def reads2(stage, ks, p, half=False):
        so = stage * ST2
        def xr(tb): return "ds_read_b128 %s, v%d offset:%d" % (xf2(p, tb), P_XRD if tb < 2 else P_XRD2, so + tb * 2048 + ks * 1024)
        def wr(cb, t): return "ds_read_b64_tr_b16 %s, v%d offset:%d" % (wf2(p, cb, t), P_WRD + cb, so + (ks * 32 + 4 * t) * 256)
        R = [xr(0), wr(0, 0), wr(0, 1), xr(1)] + ([] if half else [xr(2), xr(3)])
        for cb in range(1, 4): R += [wr(cb, 0), wr(cb, 1)]
        return R
    V2 = Cnt(63)
    p2 = {"pend": [], "block": None, "events": {}, "done": set(), "bar": -1}
    RATE = O("rate", 100); LAG = O("lag", 3); RADD = O("radd", 0)
    def isvm(x): return x.startswith(("buffer_load", "buffer_store", "buffer_atomic"))
    def out(x):
        if isinstance(x, tuple): V2.tag[x[1]] = V2.n
        else:
            A(x)
            if isvm(x): V2.issue()
    def at(lag, need, fn):
        p2["events"].setdefault(p2["bar"] + lag, []).append((need, fn))
    def spin(lab, reload):
        A("s_mov_b32 s37, 0x40000")
        A.label(lab)
        A("v_cmp_eq_u32 vcc, 1, v%d" % V_PD)
        A("s_nop 0")
        A("s_cmp_eq_u64 vcc, -1")
        A("s_cbranch_scc1 %s_ok" % lab)
        A(reload)
        A("s_sub_u32 s37, s37, 1")
        A("s_waitcnt vmcnt(0)")
        A("s_cbranch_scc0 %s" % lab)
        A.label(lab + "_ok")
    kvpoll = "buffer_load_dword v%d, v%d, s[%d:%d], s%d offen sc1" % (V_PD, V_P4, SRD_W, SRD_W + 3, S_F1)
    opoll = "buffer_load_dword v%d, v%d, s[%d:%d], s%d offen sc1" % (V_PD, P_L4, SRD_W, SRD_W + 3, S_HF)
    def ev_kvst():
        V2.tag["kvst"] = V2.n
        def e2():
            for x in flag_group(45, "s%d" % S_F1): out(x)
            at(1, [], e3)
        def e3():
            out(kvpoll); out(("tag", "kvp")); at(LAG + (1 if PRE and not QPRE else 0), ["kvp"], e4)
        def e4():
            assert "qdone" in p2["done"], "q path not finished before the kv loads"
            spin("L_kvpoll", kvpoll)
            L = []
            for i in range(8):
                L.append(["buffer_load_dwordx4 %s, v%d, s[%d:%d], s%d offen sc1" % (vr(LB + 12 * i, 4), V_KL, SRD_W, SRD_W + 3, S_KVB)])
                L.append(["buffer_load_dwordx4 %s, v%d, s[%d:%d], s%d offen offset:2048 sc1" % (vr(LB + 12 * i + 4, 4), V_KL, SRD_W, SRD_W + 3, S_KVB)])
                L.append(["buffer_load_dwordx4 %s, v%d, s[%d:%d], s%d offen sc1" % (vr(LB + 12 * i + 8, 4), V_ZL, SRD_W, SRD_W + 3, S_KVB),
                          "s_add_u32 s%d, s%d, 9216" % (S_KVB, S_KVB)])
            L[-1].append(("tag", "kvl"))
            p2["pend"] += L
            at(LAG, ["kvl"], lambda: p2["done"].add("kvl"))
        if PRE: at(1, [], e3)
        else: at(LAG, ["kvst"], e2)
    def ev_ost():
        V2.tag["ost"] = V2.n
        def e6():
            for x in flag_group(77, "s47"): out(x)
            at(max(1, NPEEL - 1 - LAG - p2["bar"]), [], e7)
        def e7():
            out(opoll); out(("tag", "op")); at(LAG, ["op"], e8)
        def e8():
            spin("L_opoll", opoll); p2["done"].add("ochk"); print("o check at barrier", p2["bar"], file=sys.stderr)
            for tb in range(4):
                if tb == 2: out("s_lshl_b32 s3, s%d, 8" % S_KH); out("v_subrev_u32 v%d, s3, v%d" % (P_GA, P_GA))
                out("buffer_load_dword v%d, v%d, s[%d:%d], 0 offen offset:%d sc1" % (VG + 2 * tb, P_GA, SRD_W, SRD_W + 3, 64 * tb))
        at(LAG + O("olag", 0), ["ost"], e6)
    EV = {"kvst": ev_kvst, "ost": ev_ost}
    def cost(x): return 2 if x.startswith(TRANS + ("v_mfma",)) else 1
    def side_step(budget):
        while budget > 0 and side and p2["block"] is None:
            x = side[0]
            if isinstance(x, tuple):
                if x[0] in ("bar", "lgkm"): p2["block"] = x[0]; side.pop(0)
                elif x[0] == "ev": side.pop(0); EV[x[1]]()
                elif x[0] == "mark": side.pop(0); p2["done"].add(x[1])
                elif x[0] == "join":
                    if x[1] in p2["done"]: side.pop(0)
                    else: return
                continue
            side.pop(0)
            for y in (x if isinstance(x, list) else [x]):
                out(y); budget -= cost(y)
    def tile2(t):
        stage = t % NS; half = t >= NH; has_next = t + 1 < NT2
        aset = 0 if t < NF1 else 1
        first = t in (0, NF1, NH)
        ntb = 2 if half else 4; NG = 4 * ntb
        for ks in range(2):
            rd = reads2(stage, 1, 1, half) if ks == 0 else (reads2((stage + 1) % NS, 0, 0, t + 1 >= NH) if has_next else [])
            evs = []
            if ks == 1 and has_next:
                assert not p2["pend"]
                evs = p2["events"].pop(t, [])
                vm = V2.wait_for([("D", t + 1)] + [x for need, fn in evs for x in need])
                A("s_waitcnt lgkmcnt(0) vmcnt(%d)" % vm); A("s_barrier")
                p2["bar"] = t
                p2["block"] = None
            else:
                A("s_waitcnt lgkmcnt(0)")
                if p2["block"] == "lgkm": p2["block"] = None
            if ks == 1:
                for need, fn in evs: fn()
                if t + NS < NT2:
                    d = dma2(stage, t + NS >= NH)
                    d[-1] = d[-1] + [("tag", ("D", t + NS))]
                    p2["pend"] += d
            g = 0; k = 0
            for cb in range(4):
                for tb in range(ntb):
                    c = "0" if (first and ks == 0) else acc2(aset, cb, tb)
                    A("v_mfma_f32_16x16x32_bf16 %s, %s, %s, %s" % (acc2(aset, cb, tb), wf2(ks, cb), xf2(ks, tb), c))
                    nr = 1 if len(rd) - k <= NG - g else 2
                    busy = k < len(rd)
                    for _ in range(nr):
                        if k < len(rd): A(rd[k]); k += 1
                    left = (NG - g) + ((8 if t + 1 >= NH else 16) if ks == 1 else 0)
                    if p2["pend"] and (g % (NG // 4) == NG // 4 - 1 or len(p2["pend"]) * (NG // 4) > left + 3):
                        for _ in range(1 + (len(p2["pend"]) > left)):
                            if p2["pend"]:
                                for x in p2["pend"].pop(0): out(x)
                    side_step(p2.get("rate", RATE) + (0 if busy else 1))
                    g += 1
    A("s_mov_b32 s37, 0x40000")
    A("s_waitcnt vmcnt(3)")
    A.label("L_hpoll")
    A("v_cmp_eq_u32 vcc, 1, v%d" % V_PD)
    A("s_nop 0")
    A("s_or_b64 vcc, vcc, s[68:69]")
    A("s_cmp_eq_u64 vcc, -1")
    A("s_cbranch_scc1 L_hpoll_ok")
    A(hld)
    A("s_sub_u32 s37, s37, 1")
    A("s_waitcnt vmcnt(0)")
    A("s_cbranch_scc0 L_hpoll")
    A.label("L_hpoll_ok")
    stamp(); stamp.real()
    def adma(stg):
        return [[m0set(0, stg), lda(0)], [lda(1)], [lda(2)], [lda(3), "s_add_u32 s%d, s%d, 2048" % (S_AK, S_AK), ("tag", ("D", stg))]]
    for stg in range(2):
        for g in adma(stg):
            for x in g: out(x)
    A("s_add_u32 s%d, s%d, s47" % (S_HF, S_HF))
    qexp()
    GX = 80
    for r in range(32): A("v_accvgpr_read_b32 v%d, a%d" % (GX + r, AG + r))
    A("v_mov_b32 v112, 0"); A("v_mov_b32 v113, 0")
    for q in range(8):
        A("v_dot2c_f32_bf16 v112, v%d, v%d" % (GX + 2 * q, GX + 16 + 2 * q))
        A("v_dot2c_f32_bf16 v113, v%d, v%d" % (GX + 2 * q + 1, GX + 16 + 2 * q + 1))
    A("s_lshl_b32 s3, s%d, 8" % S_I)
    A("v_add_u32 v0, s3, v0")
    A("v_lshlrev_b32 v0, 2, v0")
    A("v_add_f32 v112, v112, v113")
    for sh in (8, 4, 2, 1):
        A("v_add_f32_dpp v112, v112, v112 row_ror:%d row_mask:0xf bank_mask:0xf" % sh)
    A("v_mov_b32 v113, v112")
    A("v_permlane16_swap_b32 v112, v113")
    A("v_add_f32 v112, v112, v113")
    A("v_mul_f32 v112, s%d, v112" % S_C)
    A("v_exp_f32 v112, -v112")
    A("v_add_f32 v112, 1.0, v112")
    A("v_rcp_f32 v112, v112")
    A("v_add_u32 v0, %d, v0" % WS_G)
    A("s_waitcnt vmcnt(4)")
    out("buffer_store_dword v112, v0, s[%d:%d], 0 offen sc1" % (SRD_W, SRD_W + 3))
    for x in flag_group(45, "s%d" % S_F1): out(x)
    ev_kvst()
    A("s_barrier")
    for x in reads2(0, 0, 0): A(x)
    stamp(); stamp.real()
    p2["pend"] = adma(2) + adma(3)
    if STAMP == 4: stamp.off = False; stamp(); stamp.off = True
    C2 = 20
    XB16 = O("xb16", 1)
    for t in range(NT2):
        if t == NPEEL:
            assert not side and not p2["events"] and "ochk" in p2["done"], (len(side), p2["events"].keys())
            stamp()
        if t == NF1:
            side.append("s_sub_u32 s3, s%d, %d" % (S_XF, WS_FLG))
            side.append("s_lshl_b32 s3, s3, 7")
            side.append("s_add_u32 s60, s3, %d" % WS_XCH)
            side.append("s_add_u32 s61, s60, 4096")
            side.append("s_xor_b32 s62, s60, 32768" if 0 else "s_xor_b32 s3, s3, 32768")
            side.append("s_add_u32 s62, s3, %d" % WS_XCH)
            side.append("s_add_u32 s63, s62, 4096")
            side.append("s_xor_b32 s64, s%d, 256" % S_XF)
            for tb in range(4): side.append("v_sub_f32 v%d, 1.0, v%d" % (C1 + 2 * tb, VG + 2 * tb))
            side.append(["s_cmp_eq_u32 s%d, 1" % S_KH, "s_cselect_b64 vcc, -1, 0"] +
                        ["v_cndmask_b32 v%d, v%d, v%d, vcc" % (C2 + 2 * tb, C1 + 2 * tb, VG + 2 * tb) for tb in range(4)])
            for cb in range(4):
                for tb in range(4):
                    for r in range(4):
                        a0 = ACC2[0] + 4 * (cb * 4 + tb) + r
                        side.append("v_mul_f32 v%d, v%d, v%d" % (a0, a0, C1 + 2 * tb))
            p2["rate"] = 1
        if t == NH:
            assert not side
            stamp()
            for tbs in ((2, 3), (0, 1)):
                for tb in tbs:
                    for cb in range(4):
                        a0 = ACC2[0] + 4 * (cb * 4 + tb); a1 = ACC2[1] + 4 * (cb * 4 + tb)
                        for u in range(2):
                            A("v_pk_fma_f32 %s, %s, %s, %s op_sel_hi:[1,0,1]" % (vr(a0 + 2 * u, 2), vr(a1 + 2 * u, 2), vr(C2 + 2 * tb, 2), vr(a0 + 2 * u, 2)))
                    if tb >= 2 and XB16:
                        for cb in range(4):
                            a0 = ACC2[0] + 4 * (cb * 4 + tb); d = 160 + 8 * (tb - 2) + 2 * cb
                            A("v_cvt_pk_bf16_f32 v%d, v%d, v%d" % (d, a0, a0 + 1))
                            A("v_cvt_pk_bf16_f32 v%d, v%d, v%d" % (d + 1, a0 + 2, a0 + 3))
                        for q in range(2):
                            out("buffer_store_dwordx4 %s, v%d, s[%d:%d], s60 offen offset:%d sc1" % (vr(160 + 8 * (tb - 2) + 4 * q, 4), P_VL, SRD_W, SRD_W + 3, (tb - 2) * 2048 + q * 1024))
                    elif tb >= 2:
                        for cb in range(4):
                            out("buffer_store_dwordx4 %s, v%d, s[%d:%d], s%d offen offset:%d sc1" % (acc2(0, cb, tb), P_VL, SRD_W, SRD_W + 3, 60 + tb - 2, cb * 1024))
            out(("tag", "xst"))
            xpoll = "buffer_load_dword v%d, v%d, s[%d:%d], s64 offen sc1" % (V_PD, P_Z0, SRD_W, SRD_W + 3)
            def x1():
                for x in flag_group(S_XF, "0"): out(x)
            def x2():
                out(xpoll); out(("tag", "xp"))
            def x3():
                spin("L_xpoll", xpoll)
                if XB16:
                    for q in range(4):
                        out("buffer_load_dwordx4 %s, v%d, s[%d:%d], s62 offen offset:%d sc1" % (vr(176 + 4 * q, 4), P_VL, SRD_W, SRD_W + 3, q * 1024))
                    return
                for tb in range(2):
                    for cb in range(4):
                        out("buffer_load_dwordx4 %s, v%d, s[%d:%d], s%d offen offset:%d sc1" % (vr(PART + 4 * (cb * 4 + tb), 4), P_VL, SRD_W, SRD_W + 3, 62 + tb, cb * 1024))
            XL = O("xlag", 2)
            at(XL, ["xst"], x1)
            p2["events"].setdefault(NT2 - 2 - O("xpl", 2), []).append(([], x2))
            p2["events"].setdefault(NT2 - 2, []).append((["xp"], x3))
        tile2(t)
        if STAMP == 3 and (t % 2 == 1) and t >= 10: stamp.off = False; stamp(); stamp.off = True
        if STAMP == 4 and t < 16: stamp.off = False; stamp(); stamp.off = True
    assert not p2["pend"] and not p2["events"]
    stamp(); stamp.real()
    VO = 49
    A("v_lshlrev_b32 v%d, 11, v%d" % (VO, P_TOK))
    A("v_bfe_u32 v51, v1, 4, 1")
    A("v_lshl_add_u32 v%d, v51, 5, v%d" % (VO, VO))
    A("v_lshrrev_b32 v51, 5, v1")
    A("v_lshl_add_u32 v%d, v51, 4, v%d" % (VO, VO))
    FULLN = O("fulln", 1)
    if FULLN:
        A("v_bfe_u32 v51, v1, 3, 1")
        A("v_mul_u32_u24 v53, %d, v51" % (8 * 2048 - 64))
        A("v_sub_u32 v%d, v%d, v53" % (VO, VO))
        A("v_cmp_eq_u32 vcc, 0, v51")
    A("s_lshl_b32 s72, s%d, 8" % S_NT)
    A("s_lshl_b32 s3, s%d, 7" % S_WN)
    A("s_add_u32 s72, s72, s3")
    A("s_add_u32 s73, s72, %d" % (8 * 2048))
    OSC = " sc1" if O("osc1", 1) else ""
    for tb in range(2):
        for cb in range(4):
            a0 = ACC2[0] + 4 * (cb * 4 + tb); a1 = ACC2[1] + 4 * (cb * 4 + tb)
            for u in range(2):
                A("v_pk_fma_f32 %s, %s, %s, %s op_sel_hi:[1,0,1]" % (vr(a0 + 2 * u, 2), vr(a1 + 2 * u, 2), vr(VG + 2 * tb, 2), vr(a0 + 2 * u, 2)))
    for tb in range(2):
        A("s_waitcnt vmcnt(%d)" % ((2 if XB16 else 4) if tb == 0 else 2))
        if XB16:
            for cb in range(4):
                for u in range(2):
                    src = 176 + 8 * tb + 2 * cb + u; pp = PART + 4 * (cb * 4 + tb) + 2 * u
                    A("v_lshlrev_b32 v%d, 16, v%d" % (pp, src))
                    A("v_and_b32 v%d, 0xffff0000, v%d" % (pp + 1, src))
        for cb in range(4):
            a0 = ACC2[0] + 4 * (cb * 4 + tb); pp = PART + 4 * (cb * 4 + tb)
            for u in range(2):
                A("v_pk_add_f32 %s, %s, %s" % (vr(a0 + 2 * u, 2), vr(a0 + 2 * u, 2), vr(pp + 2 * u, 2)))
        for cp in range(2):
            d = 28 + 8 * tb + 4 * cp
            for h in range(2):
                a0 = ACC2[0] + 4 * ((2 * cp + h) * 4 + tb)
                A("v_cvt_pk_bf16_f32 v%d, v%d, v%d" % (d + 2 * h, a0, a0 + 1))
                A("v_cvt_pk_bf16_f32 v%d, v%d, v%d" % (d + 2 * h + 1, a0 + 2, a0 + 3))
        for cp in range(2): doswap(28 + 8 * tb + 4 * cp)
        if FULLN:
            d0 = 28 + 8 * tb; d1 = d0 + 4; e0 = 128 + 8 * tb; e1 = e0 + 4
            for r in range(4):
                A("v_cndmask_b32_dpp v%d, v%d, v%d, vcc row_ror:8 row_mask:0xf bank_mask:0xf" % (e0 + r, d1 + r, d0 + r))
            A("s_not_b64 vcc, vcc")
            for r in range(4):
                A("v_cndmask_b32_dpp v%d, v%d, v%d, vcc row_ror:8 row_mask:0xf bank_mask:0xf" % (e1 + r, d0 + r, d1 + r))
            A("s_not_b64 vcc, vcc")
            A("buffer_store_dwordx4 %s, v%d, s[%d:%d], s72 offen%s" % (vr(e0, 4), VO, SRD_O, SRD_O + 3, OSC))
            A("buffer_store_dwordx4 %s, v%d, s[%d:%d], s73 offen%s" % (vr(e1, 4), VO, SRD_O, SRD_O + 3, OSC))
            A("s_add_u32 s73, s73, 32768")
        else:
            for cp in range(2):
                d = 28 + 8 * tb + 4 * cp
                A("buffer_store_dwordx4 %s, v%d, s[%d:%d], s72 offen offset:%d%s" % (vr(d, 4), VO, SRD_O, SRD_O + 3, cp * 64, OSC))
        A("s_add_u32 s72, s72, 32768")
    A.label("L_k2_out")
    stamp.finish(S_W, SRD_W, 38, "L_k1_end")
    A.label("L_k1_end")
    A("s_endpgm")
    A.label("L_code_end")
    return name, LDS

A = Asm()
n1, l1 = gen_k1(A)
hdr = ""
hdr += "; @launch grid=(256,1,1) block=(256,1,1) lds=%d\n" % l1
hdr += '.amdgcn_target "amdgcn-amd-amdhsa--gfx950"\n.text\n'
txt = hdr + A.text() + '.section .rodata,"a"\n' + kernel_desc(n1, 512, 256)
open(OUT, "w").write(txt)
```

```python
import sys
from asmlib import *
from asmlib import TRANS, parse

opts = dict(a.split("=") if "=" in a else (a, "1") for a in sys.argv[2:])
OUT = sys.argv[1]
O = lambda k, d: int(opts.get(k, d))
TOUCH = O("touch", 1)
STAMP = O("stamp", 0)
ONLY = O("only", 0)
HSC1 = O("hsc1", 0)
K2MAP = O("k2map", 0)
NH = O("nh", 32)
K2NODMA = O("k2nodma", 0); K2NOMFMA = O("k2nomfma", 0); K2NOLDS = O("k2nolds", 0); K2SEL = opts.get("k2sel", "aw")

MBS = 144 * 1024 + O("mpad", 0)
WS_G = 0x14B0000
WS_KVP = 0x2000000
WS_FLG = 0x1480000
WS_FLGH = 0x1494000
WS_FLGO = 0x1498000
WS_FLG1 = 0x1490000
WS_STAMP = 0x14A0000
WS_XCH = 0x1500000
WS_SIZE = 0x2000000 + 32 * 8 * 9216
LOG2E = 0x3FB8AA3B
SC = " sc1"
INV = O("inv", 0)
DSC = " sc1" if O("dsc1", 1) else ""

class Cnt:
    def __init__(self, cap): self.n = 0; self.tag = {}; self.cap = cap
    def issue(self, tag=None, k=1):
        self.n += k
        if tag is not None: self.tag[tag] = self.n
    def wait_for(self, tags):
        last = max(self.tag[t] for t in tags)
        return min(self.n - last, self.cap)

class Stamper:
    def __init__(self, A, kidx): self.A = A; self.regs = []; self.k = kidx
    def start(self):
        if STAMP:
            self.A("s_memrealtime s[78:79]"); self.A("s_memtime s[80:81]")
    off = False
    def __call__(self, wait=True):
        if STAMP and not self.off:
            r = 82 + len(self.regs); assert r <= 99; self.regs.append(r)
            self.A("s_memtime s[100:101]")
            self.A("s_waitcnt lgkmcnt(0)")
            self.A("s_mov_b32 s%d, s100" % r)
    def real(self):
        if STAMP and not self.off:
            r = 82 + len(self.regs); assert r <= 99; self.regs.append(-r)
            self.A("s_memrealtime s[100:101]")
            self.A("s_waitcnt lgkmcnt(0)")
            self.A("s_mov_b32 s%d, s100" % r)
    def finish(self, swave, srd, T, endlabel):
        if not STAMP: return
        A = self.A
        A("s_waitcnt vmcnt(0)")
        A("s_memtime s[4:5]"); A("s_memrealtime s[6:7]")
        A("s_waitcnt lgkmcnt(0)")
        A("s_cmp_eq_u32 s%d, 0" % swave); A("s_cbranch_scc0 %s" % endlabel)
        A("s_lshl_b32 s3, s2, 7")
        A("s_add_u32 s3, s3, %d" % WS_STAMP)
        A("v_mov_b32 v%d, 0" % (T + 1))
        items = [(78, None), (6, None), (4, 80)] + [(abs(r), 80 if r > 0 else 78) for r in self.regs]
        if O("dbgstamp", 0):
            A("s_cmp_eq_u32 s2, %d" % O("dbgstamp", 0)); A("s_cbranch_scc0 %s" % endlabel)
            A("s_mov_b32 s3, 0"); srd = 48
            items = [(6, 78), (4, 80)] + items[3:17]
        for q, (s, b) in enumerate(items):
            if b is None: A("v_mov_b32 v%d, s%d" % (T, s))
            else:
                A("s_sub_u32 s5, s%d, s%d" % (s, b)); A("v_mov_b32 v%d, s5" % T)
            A("buffer_store_dword v%d, v%d, s[%d:%d], s3 offen offset:%d" % (T, T + 1, srd, srd + 3, 4 * q))

def mk_srd(A, b, lo, hi, addsgpr, size):
    if addsgpr is None:
        A("s_mov_b32 s%d, s%d" % (b, lo)); A("s_mov_b32 s%d, s%d" % (b + 1, hi))
        A("s_mov_b32 s%d, %d" % (b + 2, size))
    else:
        A("s_add_u32 s%d, s%d, s%d" % (b, lo, addsgpr)); A("s_addc_u32 s%d, s%d, 0" % (b + 1, hi))
        A("s_sub_u32 s%d, %d, s%d" % (b + 2, size, addsgpr))
    A("s_mov_b32 s%d, 0x20000" % (b + 3))


def k2ids(A, mt, nt, kh, xf):
    A("s_and_b32 s%d, s2, 1" % kh)
    if O("swap", 1): A("s_xor_b32 s%d, s%d, 1" % (kh, kh))
    A("s_bfe_u32 s%d, s2, 0x30003" % mt)
    A("s_bfe_u32 s3, s2, 0x10001")
    A("s_lshl_b32 s3, s3, 3")
    A("s_add_u32 s%d, s%d, s3" % (mt, mt))
    A("s_lshr_b32 s%d, s2, 6" % nt)
    A("s_bfe_u32 s3, s2, 0x10002")
    A("s_lshl_b32 s3, s3, 2")
    A("s_add_u32 s%d, s%d, s3" % (nt, nt))
    A("s_lshl_b32 s3, s%d, 3" % mt)
    A("s_add_u32 s3, s3, s%d" % nt)
    A("s_lshl_b32 s3, s3, 1")
    A("s_add_u32 s3, s3, s%d" % kh)
    A("s_lshl_b32 s3, s3, 2")
    A("s_add_u32 s3, s3, s26")
    A("s_lshl_b32 s%d, s3, 6" % xf)
    A("s_add_u32 s%d, s%d, %d" % (xf, xf, WS_FLG))

def gen(A):
    name = "gated_mix__linear_kernel_hedgehog__glu_gated_glu__prompt_kernel"
    kernel_open(A, name)
    BK = 64
    QB = 32768; GB = QB + 64 * 192; UB = GB + 64 * 224 + 128
    STAGE = (UB + 64 * 224 + 255) // 256 * 256
    WPB = 2 * STAGE; SCR = 131072; LDS = 163840
    S_I, S_J, S_W, S_CNT, S_XK, S_WK1, S_TK, S_TSTEP = 24, 25, 26, 27, 28, 29, 31, 37
    S_M0 = 32
    SRD_X, SRD_1, SRD_W, SRD_T, SRD_P, SRD_D = 8, 12, 20, 68, 72, 48
    S_C = 38; S_F1 = 44
    V_DMA, V_XRD, V_QRD, V_GRD, V_TCH, T = 2, 11, 15, 19, 21, 23
    V_ACC = 32; RING = 5; D = 3; NTB = 4; NCB = 10; NSL = 20
    BLKS = [[("q", 1, 0), ("q", 1, 1), ("q", 2, 0), ("q", 2, 1), ("q", 0, 0), ("q", 0, 1)] + [(t, b) for b in (0, 1) for t in "gu"],
            [(t, b) for b in (2, 3, 4, 5, 6) for t in "gu"]]
    def accr(cb, tb): return V_ACC + 4 * (cb * NTB + tb)
    def acc(cb, tb): return vr(accr(cb, tb), 4)
    def xf(p, tb): return ar(16 * p + 4 * tb, 4)
    def wf(n, half=None):
        b = 32 + 4 * (n % RING)
        return ar(b, 4) if half is None else ar(b + 2 * half, 2)
    stamp = Stamper(A, 0)
    NBAR = [0, 0]
    cur = {"c": 0, "mul": 1}
    def BAR():
        A("s_barrier"); NBAR[cur["c"]] += cur["mul"]
    def pk(op, d, a, b, c=None, mods=""):
        if c is None: A("%s %s, %s, %s %s" % (op, d, a, b, mods))
        else: A("%s %s, %s, %s, %s %s" % (op, d, a, b, c, mods))
    def groups(B, n=2):
        L = []; i = 0
        while i < len(B.lines):
            k = n
            while i + k < len(B.lines) and ("s_addc" in B.lines[i + k] or "s_cselect" in B.lines[i + k] or "s_cselect" in "".join(B.lines[i + k + 1:i + k + 2])): k += 1
            L.append([x.strip() for x in B.lines[i:i + k]]); i += k
        return L
    def capture(fn):
        start = len(A.lines)
        r = fn()
        body = [x.strip() for x in A.lines[start:]]; del A.lines[start:]
        return body, r
    def rowperm(dst, src, tmp):
        A("v_and_b32 v%d, 0xfffffff3, v%d" % (dst, src))
        A("v_bfe_u32 v%d, v%d, 2, 1" % (tmp, src))
        A("v_lshl_or_b32 v%d, v%d, 3, v%d" % (dst, tmp, dst))
        A("v_bfe_u32 v%d, v%d, 3, 1" % (tmp, src))
        A("v_lshl_or_b32 v%d, v%d, 2, v%d" % (dst, tmp, dst))

    A("s_load_dwordx4 s[4:7], s[0:1], 0")
    A("s_load_dwordx4 s[52:55], s[0:1], 40")
    A("s_load_dwordx4 s[56:59], s[0:1], 80")
    A("s_load_dwordx2 s[66:67], s[0:1], 16")
    A("s_load_dwordx4 s[40:43], s[0:1], 56")
    A("s_cmp_ge_u32 s2, 256")
    A("s_cbranch_scc1 L_end")
    stamp.start()
    if STAMP >= 2: stamp.off = True
    A("s_getpc_b64 s[72:73]")
    A.label("L_pc")
    A("s_mov_b32 s74, L_code_end-L_pc")
    A("s_mov_b32 s75, 0x20000")
    A("s_and_b32 s73, s73, 0xffff")
    A("v_lshrrev_b32 v%d, 6, v0" % T)
    A("v_and_b32 v1, 63, v0")
    A("v_readfirstlane_b32 s30, v%d" % T)
    A("v_mul_u32_u24 v%d, 384, v%d" % (T, T))
    A("v_lshl_add_u32 v%d, v1, 7, v%d" % (T, T))
    A("s_lshr_b32 s3, s2, 3")
    A("s_mul_i32 s3, s3, 3072")
    A("v_cmp_gt_u32 vcc, 3, v1")
    A("v_mov_b32 v%d, 0x7ffffff0" % (T + 2))
    A("v_cndmask_b32 v%d, v%d, v%d, vcc" % (T, T + 2, T))
    A("buffer_load_dword v%d, v%d, s[72:75], s3 offen" % (V_TCH + 1, T))
    A("s_lshr_b32 s%d, s2, 3" % S_I)
    A("s_and_b32 s%d, s%d, 7" % (S_I, S_I))
    A("s_and_b32 s3, s2, 7")
    A("s_lshl_b32 s3, s3, 2")
    A("s_lshr_b32 s%d, s2, 6" % S_J)
    A("s_add_u32 s%d, s%d, s3" % (S_J, S_J))
    A("s_and_b32 s%d, s30, 3" % S_W)
    A("v_lshrrev_b32 v%d, 3, v1" % T)
    A("v_lshlrev_b32 v%d, 11, v%d" % (T, T))
    A("v_and_b32 v%d, 7, v1" % (T + 1))
    A("v_lshrrev_b32 v%d, 4, v1" % (T + 2))
    A("v_xor_b32 v%d, v%d, v%d" % (T + 1, T + 1, T + 2))
    A("v_lshl_add_u32 v%d, v%d, 4, v%d" % (T, T + 1, T))
    A("s_lshl_b32 s3, s%d, 17" % S_W)
    A("v_add_u32 v%d, s3, v%d" % (T, T))
    A("v_xor_b32 v%d, 64, v%d" % (T + 1, T))
    A("s_lshl_b32 s%d, s%d, 13" % (S_M0, S_W))
    A("s_add_u32 s%d, s%d, 4096" % (S_M0 + 1, S_M0))
    A("s_mov_b32 s%d, 0" % S_XK); A("s_mov_b32 s%d, 0" % S_WK1)
    A("s_lshl_b32 s64, s%d, 19" % S_I)
    A("s_mov_b32 s%d, 0x%x" % (S_C, LOG2E)); A("s_mov_b32 s%d, 0x%x" % (S_C + 1, LOG2E))
    A("s_cmp_ge_u32 s30, 4")
    A("s_cbranch_scc1 L_classG")

    st = {}
    def xread(stage, ks, p, tb):
        return "ds_read_b128 %s, v%d offset:%d" % (xf(p, tb), V_XRD + 2 * stage + ks, tb * 2048)
    def wread(stage, ks, cb, n, t):
        b = st["blk"][cb]
        if b[0] == "q":
            return "ds_read_b64_tr_b16 %s, v%d offset:%d" % (wf(n, t), V_QRD + stage * 2 + b[2], (ks * 32 + t * 8) * 192 + b[1] * 64)
        return "ds_read_b64_tr_b16 %s, v%d offset:%d" % (wf(n, t), V_GRD + stage, (ks * 32 + t * 8) * 224 + b[1] * 32 + (UB - GB if b[0] == "u" else 0))
    def dma_list(stage):
        L = []
        for (v, sd, so, m0i, off) in st["plan"]:
            g = []
            if m0i is not None:
                g.append("s_mov_b32 m0, s%d" % (S_M0 + m0i) if stage == 0 else "s_add_u32 m0, s%d, %d" % (S_M0 + m0i, STAGE * stage))
            g.append("buffer_load_dwordx4 v%d, s[%d:%d], s%d offen offset:%d lds" % (v, sd, sd + 3, so, off))
            L.append(g)
        L[-1] += ["s_add_u32 s%d, s%d, %d" % (S_XK, S_XK, BK * 2), "s_add_u32 s%d, s%d, %d" % (S_WK1, S_WK1, BK * st["pitch"])]
        return L
    def flags_and_reads(cn):
        mk_srd(A, SRD_W, 58, 59, None, WS_SIZE)
        A("s_lshl_b32 s3, s%d, 2" % S_I)
        A("s_add_u32 s3, s3, s%d" % S_W)
        A("s_lshl_b32 s45, s3, 2")
        A("s_lshr_b32 s3, s3, 1")
        A("s_lshl_b32 s3, s3, 5")
        A("s_add_u32 s3, s3, s%d" % S_J)
        A("s_lshl_b32 s3, s3, 1")
        A("s_and_b32 s60, s%d, 1" % S_W)
        A("s_add_u32 s3, s3, s60")
        A("s_lshl_b32 s65, s3, 2")
        A("s_add_u32 s65, s65, %d" % WS_FLGO)
        A("s_lshl_b32 s77, s3, 3")
        A("s_add_u32 s77, s77, %d" % (WS_FLGH + 4 * cn))
        A("v_mov_b32 v%d, s77" % T)
        if cn == 0:
            A("s_lshl_b32 s%d, s%d, 7" % (S_F1, S_J))
            A("s_add_u32 s%d, s%d, %d" % (S_F1, S_F1, WS_FLG1))
            A("s_add_u32 s3, s%d, s45" % S_F1)
            A("v_writelane_b32 v%d, s3, 1" % T)
            A("v_writelane_b32 v%d, s65, 2" % T)
        else:
            k2ids(A, S_MT, S_NT, S_KH, S_XF)
            A("v_writelane_b32 v%d, s%d, 1" % (T, S_XF))
        A("v_mov_b32 v%d, 0" % (T + 1))
        A("buffer_store_dword v%d, v%d, s[%d:%d], 0 offen sc1" % (T + 1, T, SRD_W, SRD_W + 3))
        A("v_and_b32 v%d, 15, v1" % (T + 4))
        A("v_lshlrev_b32 v%d, 7, v%d" % (T + 4, T + 4))
        A("v_add_u32 v%d, s%d, v%d" % (T + 4, S_M0, T + 4))
        A("v_bfe_u32 v%d, v1, 1, 3" % (T + 5))
        A("v_lshrrev_b32 v%d, 4, v1" % (T + 6))
        for ks in range(2):
            A("v_or_b32 v%d, %d, v%d" % (T + 7, ks * 4, T + 6))
            A("v_xor_b32 v%d, v%d, v%d" % (T + 7, T + 7, T + 5))
            A("v_lshl_add_u32 v%d, v%d, 4, v%d" % (V_XRD + ks, T + 7, T + 4))
            A("v_add_u32 v%d, %d, v%d" % (V_XRD + 2 + ks, STAGE, V_XRD + ks))
        A("v_bfe_u32 v%d, v1, 2, 2" % (T + 4))
        A("v_and_b32 v%d, 3, v1" % (T + 5))
        A("v_bfe_u32 v%d, v1, 4, 1" % (T + 7))
        A("v_lshrrev_b32 v%d, 5, v1" % (T + 8))
        A("v_lshl_add_u32 v%d, v%d, 4, v%d" % (T + 4, T + 8, T + 4))
        A("v_lshl_add_u32 v%d, v%d, 2, v%d" % (T + 4, T + 7, T + 4))
        A("v_lshlrev_b32 v%d, 3, v%d" % (T + 5, T + 5))
        if cn == 0:
            A("v_mul_u32_u24 v%d, 192, v%d" % (T + 6, T + 4))
            A("v_add_u32 v%d, v%d, v%d" % (T + 6, T + 6, T + 5))
            for h in range(2):
                A("v_xor_b32 v%d, %d, v%d" % (T + 8, h, T + 7))
                A("v_lshl_add_u32 v%d, v%d, 5, v%d" % (T + 8, T + 8, T + 6))
                for sg in range(2): A("v_add_u32 v%d, %d, v%d" % (V_QRD + sg * 2 + h, QB + STAGE * sg, T + 8))
        A("v_mul_u32_u24 v%d, 224, v%d" % (T + 6, T + 4))
        A("v_add_u32 v%d, v%d, v%d" % (T + 8, T + 6, T + 5))
        for sg in range(2): A("v_add_u32 v%d, %d, v%d" % (V_GRD + sg, GB + STAGE * sg, T + 8))
    PB = NSL - D
    def tile(stage, first, dma_next, has_next, vm_extra, do_touch, extra=None, after=None, hook=None):
        Q = st["Q"]; BLK = st["blk"]
        if extra: st["pend"] = st["pend"] + extra
        for n in range(NSL):
            ks, cb = divmod(n, NCB)
            if n == PB and has_next:
                assert not st["pend"]
                A("s_waitcnt lgkmcnt(0) vmcnt(%d)" % vm_extra); BAR()
                if hook: A(hook)
                if dma_next: st["pend"] = dma_list(stage)
                if do_touch: st["pend"].append(st["touch"]())
                if after: st["pend"] = st["pend"] + after
            else:
                A("s_waitcnt lgkmcnt(%d)" % Q.wait_for([("w", n)] + ([("x", ks, tb) for tb in range(NTB)] if cb == 0 else [])))
            rds = []
            def addw(m):
                if m < NSL:
                    k2, c2 = divmod(m, NCB)
                    for t in range(2): rds.append((wread(stage, k2, c2, m, t), ("w", m)))
                elif has_next:
                    for t in range(2): rds.append((wread(stage ^ 1, 0, m - NSL, m, t), ("w", m - NSL)))
            if n == PB - 2: addw(n + D); addw(n + D + 1)
            elif n == PB - 1: pass
            else: addw(n + D)
            if ks == 0 and cb in (1, 3, 5, 7):
                rds.append((xread(stage, 1, 1, cb // 2), ("x", 1, cb // 2)))
            if has_next and n in (PB, PB + 1):
                for tb in (2 * (n - PB), 2 * (n - PB) + 1): rds.append((xread(stage ^ 1, 0, 0, tb), ("x", 0, tb)))
            k = 0
            for tb in range(NTB):
                a, b = wf(n), xf(ks, tb)
                if BLK[cb][0] == "q" and BLK[cb][1] == 2: a, b = b, a
                c = "0" if (first and ks == 0) else acc(cb, tb)
                A("v_mfma_f32_16x16x32_bf16 %s, %s, %s, %s" % (acc(cb, tb), a, b, c))
                if k < len(rds):
                    A(rds[k][0]); Q.issue(rds[k][1]); k += 1
                if tb in st["dpos"] and st["pend"] and (tb == st["dpos"][0] or len(st["pend"]) > (PB - n - 1) % NSL):
                    for s in st["pend"].pop(0): A(s)
    def k1_loop(cn, late, npro, hook0, ex13, vm13, ex14, af14, ex15):
        st["blk"] = BLKS[cn]; st["pend"] = late; Q = st["Q"] = Cnt(15); st["dpos"] = (O("dp0", 2), O("dp1", 3))
        A("s_waitcnt vmcnt(0) lgkmcnt(0)"); BAR()
        for tb in range(NTB):
            A(xread(0, 0, 0, tb)); Q.issue(("x", 0, tb))
        for n in range(D):
            for t in range(2):
                A(wread(0, 0, n, n, t)); Q.issue(("w", n))
        stamp(); stamp.real()
        tile(0, True, True, True, npro, False, hook=hook0)
        A("s_mov_b32 s%d, 0" % S_CNT)
        A.label("L_k1_loop%d" % cn)
        cur["mul"] = 6
        tile(1, False, True, True, 0, cn == 1)
        tile(0, False, True, True, cn, False)
        cur["mul"] = 1
        A("s_add_u32 s%d, s%d, 1" % (S_CNT, S_CNT))
        A("s_cmp_lt_u32 s%d, 6" % S_CNT)
        A("s_cbranch_scc1 L_k1_loop%d" % cn)
        tile(1, False, True, True, vm13, False, ex13)
        tile(0, False, False, True, 0, False, ex14, af14, hook=("s_setprio %d" % O("gfirst", 2)) if cn == 1 else None)
        tile(1, False, False, False, 0, False, ex15)
        assert not st["pend"]
        stamp(); stamp.real()
    S_MT, S_NT, S_KH, S_XF = 52, 53, 54, 55
    NS = 4; ST2 = 16384; AB = 65536
    TH = O("th", 8); NH = (72 - TH) // 2; NF1 = 56 - NH; NT2 = NH + TH; ODL = NF1 - 4; KCH = O("kch", 3)
    T0 = O("t0", 0)
    S_AK, S_WK, S_KT, S_SW, S_WK0, S_M0H, S_AK0 = 28, 29, 30, 31, 34, 35, 36
    SRD_A, SRD_B, SRD_O = 8, 12, 16
    S_B2 = 16; S_WM, S_WN = 42, 43; S_HF = 70; S_OF = 71
    P_A0, P_A1, P_AH, P_W, P_VL, P_L4 = 2, 3, 4, 5, 9, 10
    def m0set(i, stage):
        return "s_add_u32 m0, s%d, %d" % (S_M0 + i, ST2 * stage) if stage else "s_mov_b32 m0, s%d" % (S_M0 + i)
    RA = [P_A0, P_A1]; RW = [P_W + n for n in range(4)]
    def lda(n): return "buffer_load_dwordx4 v%d, s[%d:%d], s%d offen offset:%d sc1 lds" % (RA[n >> 1], SRD_A, SRD_A + 3, S_AK, 1024 * n)
    def ldw(n): return "buffer_load_dwordx4 v%d, s[%d:%d], s%d offen offset:%d lds" % (RW[n], SRD_B, SRD_B + 3, S_WK, 1024 * n)
    def wotouch():
        B = Asm()
        mk_srd(B, 72, 4, 5, None, 1024 * 2048)
        B("s_lshr_b32 s3, s2, 3")
        B("s_lshl_b32 s3, s3, 2")
        B("s_add_u32 s3, s3, s%d" % S_W)
        B("s_lshl_b32 s3, s3, 14")
        B("s_bfe_u32 s6, s2, 0x10002")
        B("s_lshl_b32 s6, s6, 10")
        B("s_add_u32 s3, s3, s6")
        B("v_lshrrev_b32 v25, 3, v1")
        B("v_lshlrev_b32 v25, 11, v25")
        B("v_and_b32 v26, 7, v1")
        B("v_lshl_add_u32 v25, v26, 7, v25")
        B("buffer_load_dword v26, v25, s[72:75], s3 offen")
        return groups(B, 3)
    def otouch(cn):
        if not O("otouch", 0): return []
        B = Asm()
        B("s_lshl_b32 s62, s45, 0")
        B("s_mul_i32 s62, s62, %d" % MBS)
        B("s_mul_i32 s3, s%d, 7" % S_J)
        B("s_add_u32 s3, s3, 1")
        B("s_lshr_b32 s3, s3, 1")
        B("s_lshl_b32 s3, s3, 10")
        B("s_add_u32 s63, s62, s3")
        B("v_lshrrev_b32 v25, 4, v1")
        B("v_mul_u32_u24 v25, %d, v25" % MBS)
        if cn == 1:
            B("v_and_b32 v26, 15, v1")
            B("v_lshl_add_u32 v25, v26, 7, v25")
            B("buffer_load_dword v26, v25, s[%d:%d], s63 offen offset:1024" % (SRD_W, SRD_W + 3))
            B("s_add_u32 s64, s63, 3072")
            B("s_sub_u32 s3, s63, 512")
            B("s_bitcmp1_b32 s%d, 0" % S_J)
            B("s_cselect_b32 s64, s3, s64")
            B("v_and_b32 v25, 0xfffff9ff, v25")
            B("buffer_load_dword v26, v25, s[%d:%d], s64 offen" % (SRD_W, SRD_W + 3))
        else:
            B("v_and_b32 v26, 7, v1")
            B("v_lshl_add_u32 v25, v26, 7, v25")
            B("s_add_u32 s3, s%d, 112" % S_J)
            B("s_lshl_b32 s3, s3, 10")
            B("s_add_u32 s3, s3, s62")
            B("s_sub_u32 s3, s3, s63")
            B("v_bfe_u32 v26, v1, 3, 1")
            B("v_mul_lo_u32 v26, v26, s3")
            B("v_add_u32 v25, v25, v26")
            B("buffer_load_dword v26, v25, s[%d:%d], s63 offen" % (SRD_W, SRD_W + 3))
        return groups(B, 4)
    def wsetup(t=27, ids=True):
        B = Asm()
        if ids: k2ids(B, S_MT, S_NT, S_KH, S_XF)
        B("v_lshrrev_b32 v%d, 4, v1" % t)
        B("v_and_b32 v%d, 15, v1" % (t + 1))
        B("v_lshlrev_b32 v%d, 1, v%d" % (t + 2, t))
        B("v_xor_b32 v%d, v%d, v%d" % (t + 1, t + 1, t + 2))
        B("s_lshl_b32 s3, s%d, 4" % S_W)
        B("v_add_u32 v%d, s3, v%d" % (t, t))
        B("v_lshlrev_b32 v%d, 11, v%d" % (t, t))
        B("v_lshl_add_u32 v%d, v%d, 4, v%d" % (t, t + 1, t))
        B("v_xor_b32 v%d, 128, v%d" % (t + 1, t))
        for n in range(4):
            B("v_add_u32 v%d, %d, v%d" % (RW[n], n * 4 * 2048 - 1024 * n, t + (n >> 1)))
        B("s_lshl_b32 s%d, s%d, 12" % (S_M0 + 1, S_W))
        B("s_add_u32 s%d, s%d, %d" % (S_M0, S_M0 + 1, AB))
        B("s_mul_i32 s3, s%d, %d" % (S_KH, NH * 64 * 2048))
        B("s_lshl_b32 s6, s%d, 8" % S_NT)
        B("s_add_u32 s3, s3, s6")
        B("s_add_u32 s%d, s40, s3\ns_addc_u32 s%d, s41, 0" % (SRD_B, SRD_B + 1))
        B("s_sub_u32 s%d, %d, s3" % (SRD_B + 2, 3584 * 2048))
        B("s_mov_b32 s%d, 0x20000" % (SRD_B + 3))
        B("s_mov_b32 s%d, %d" % (S_WK, 0 if ids else NS * 64 * 2048))
        return groups(B, 4)
    def wdma():
        L = []
        for stg in range(NS):
            for n in range(4):
                g = ([m0set(1, stg)] if n == 0 else []) + [ldw(n)]
                if n == 3: g.append("s_add_u32 s%d, s%d, %d" % (S_WK, S_WK, 64 * 2048))
                L.append(g)
        return L
    def prest():
        B = Asm()
        B("s_mov_b32 s19, s65")
        B("s_lshl_b32 s6, s%d, 8" % S_NT)
        B("s_add_u32 s%d, s4, s6\ns_addc_u32 s%d, s5, 0" % (S_B2, S_B2 + 1))
        B("s_sub_u32 s%d, %d, s6" % (S_B2 + 2, 1024 * 2048))
        B("v_lshlrev_b32 v%d, 4, v1" % P_VL)
        B("s_mul_i32 s3, s%d, %d" % (S_W, 2 * MBS))
        B("v_add_u32 v%d, s3, v%d" % (P_A0, P_VL))
        B("v_add_u32 v%d, %d, v%d" % (P_A1, MBS - 2048, P_A0))
        B("s_mov_b32 s%d, %d" % (S_AK, (T0 + NS) * 2048)); B("s_mov_b32 s%d, %d" % (S_KT, T0 + NS))
        B("s_mov_b32 s%d, %d" % (S_WK, (T0 + NS) * 64 * 2048))
        B("s_cmp_eq_u32 s%d, 0" % S_KH)
        B("s_cselect_b32 s%d, %d, %d" % (S_SW, NH, NF1))
        B("s_cselect_b32 s%d, %d, 0" % (S_WK0, (16 - TH) * 64 * 2048))
        B("s_mov_b32 s%d, %d" % (S_AK0, NF1 * 2048))
        B("s_cselect_b32 s%d, %d, s%d" % (S_AK0, (72 - TH) * 2048, S_AK0))
        B("s_mul_i32 s3, s%d, %d" % (S_MT, 8 * MBS))
        B("s_mul_i32 s6, s%d, %d" % (S_KH, NH * 2048))
        B("s_add_u32 s3, s3, s6")
        mk_srd(B, SRD_A, 58, 59, 3, 128 * MBS)
        B("s_lshr_b32 s3, s%d, 1" % S_W)
        B("s_lshl_b32 s3, s3, 1")
        B("s_add_u32 s3, s3, s%d" % S_KH)
        B("s_lshl_b32 s3, s3, 1")
        B("s_and_b32 s6, s%d, 1" % S_W)
        B("s_add_u32 s3, s3, s6")
        B("s_lshl_b32 s%d, s3, 11" % S_M0H)
        B("s_add_u32 s%d, s%d, %d" % (S_M0H, S_M0H, AB))
        B("s_mul_i32 s3, s3, %d" % MBS)
        B("v_add_u32 v%d, s3, v%d" % (P_AH, P_VL))
        B("v_lshlrev_b32 v%d, 2, v1" % P_L4)
        B("s_lshl_b32 s47, s%d, 8" % S_MT)
        B("s_add_u32 s47, s47, %d" % WS_FLGO)
        B("s_mov_b32 s46, 0x01010101")
        return groups(B, 5)
    def packswap(dst, a, b):
        for (d, x) in ((dst, a), (dst + 2, b)):
            A("v_cvt_pk_bf16_f32 v%d, v%d, v%d" % (d, x, x + 1))
            A("v_cvt_pk_bf16_f32 v%d, v%d, v%d" % (d + 1, x + 2, x + 3))
    def doswap(d):
        A("v_permlane16_swap_b32 v%d, v%d" % (d, d + 2))
        A("v_permlane16_swap_b32 v%d, v%d" % (d + 1, d + 3))
    def spread(fn, stores, every):
        body, r = capture(fn)
        k = 0
        for n, ln in enumerate(body):
            if n % every == 0 and k < len(stores):
                A(stores[k]); k += 1
            A(ln)
        for x in stores[k:]: A(x)
        return r
    def glu(cb):
        gs = [accr(cb, tb) for tb in range(4)]; us = [accr(cb + 1, tb) for tb in range(4)]
        for x in gs:
            for u in range(2): pk("v_pk_mul_f32", vr(x + 2 * u, 2), vr(x + 2 * u, 2), sr(S_C, 2))
        for x in gs:
            for r in range(4): A("v_exp_f32 v%d, -v%d" % (x + r, x + r))
        for x in gs:
            for u in range(2): pk("v_pk_add_f32", vr(x + 2 * u, 2), vr(x + 2 * u, 2), "1.0", None, "op_sel_hi:[1,0]")
        for x in gs:
            for r in range(4): A("v_rcp_f32 v%d, v%d" % (x + r, x + r))
        for x, y in zip(gs, us):
            for u in range(2): pk("v_pk_mul_f32", vr(x + 2 * u, 2), vr(x + 2 * u, 2), vr(y + 2 * u, 2))
        return gs, us
    def glu_pair(cb, p, VH):
        g0, u0 = glu(cb); g1, u1 = glu(cb + 2)
        for tb in range(4): packswap(u0[tb], g0[tb], g1[tb])
        for tb in range(4): doswap(u0[tb])
        return ["buffer_store_dwordx4 %s, v%d, s[%d:%d], s%d offen offset:%d sc1" % (vr(u0[tb], 4), VH, SRD_W, SRD_W + 3, 63 + tb, p * 1024) for tb in range(4)]
    def hsetup(VH, VS, tmp):
        A("v_and_b32 v%d, 15, v1" % VH)
        A("v_lshlrev_b32 v%d, 4, v%d" % (VH, VH))
        A("v_lshrrev_b32 v%d, 5, v1" % tmp)
        A("v_lshl_add_u32 v%d, v%d, 8, v%d" % (VH, tmp, VH))
        A("v_bfe_u32 v%d, v1, 4, 1" % tmp)
        if VS:
            A("v_mul_u32_u24 v%d, %d, v%d" % (VS, MBS, tmp))
            A("v_add_u32 v%d, v%d, v%d" % (VS, VS, VH))
        A("v_lshl_add_u32 v%d, v%d, 9, v%d" % (VH, tmp, VH))
        A("s_lshl_b32 s3, s%d, 4" % S_I)
        A("s_lshl_b32 s62, s%d, 2" % S_W)
        A("s_add_u32 s62, s62, s3")
        A("s_mul_i32 s62, s62, %d" % MBS)
        A("s_mul_i32 s3, s%d, 7" % S_J)
        A("s_add_u32 s3, s3, 1")
        A("s_lshr_b32 s3, s3, 1")
        A("s_lshl_b32 s3, s3, 10")
        A("s_add_u32 s63, s62, s3")
        for tb in range(1, 4): A("s_add_u32 s%d, s63, %d" % (63 + tb, tb * MBS))
    def flag_group(va, saddr, soff):
        return ["v_mov_b32 v%d, s%d" % (va, saddr), "v_mov_b32 v%d, 1" % (va + 1 if va % 2 == 0 else va + 2), "s_mov_b64 exec, 1",
                "buffer_store_dword v%d, v%d, s[%d:%d], %s offen sc1" % (va + 1 if va % 2 == 0 else va + 2, va, SRD_W, SRD_W + 3, soff), "s_mov_b64 exec, -1"]
    def spin(lab, test, reload):
        A("s_mov_b32 s37, 0x40000")
        A.label(lab)
        for x in test: A(x)
        A("s_cmp_eq_u64 vcc, -1")
        A("s_cbranch_scc1 %s_ok" % lab)
        if O("slp", 2): A("s_sleep %d" % O("slp", 2))
        A(reload)
        A("s_sub_u32 s37, s37, 1")
        A("s_waitcnt vmcnt(0)")
        A("s_cbranch_scc0 %s" % lab)
        A.label(lab + "_ok")

    def tailP():
        VH, VF, V_PD, WP = 11, 12, 14, 16
        V_RW, V_RR, V_ZS, V_ZL, V_KS, V_KL, V_P4, V_ZR = 24, 25, 26, 27, 28, 29, 30, 31
        MX = [160, 162, 164, 166]; MN = [168, 170, 172, 174]; SP = MX; SM = MN; PB16 = 176
        R_, G_, C_, RG, X1, X2, ONE, H8 = 161, 163, 165, 167, 169, 171, 173, 175
        VPW, VPR, t0 = 128, 132, 136
        def rsag2(op, qa, opb, qb):
            seqs = []
            for (o, q) in ((op, qa), (opb, qb)):
                seqs.append([
                    "v_permlane32_swap_b32 v%d, v%d" % (q[0], q[1]), "v_permlane32_swap_b32 v%d, v%d" % (q[2], q[3]),
                    "%s v%d, v%d, v%d" % (o, q[0], q[0], q[1]), "%s v%d, v%d, v%d" % (o, q[2], q[2], q[3]),
                    "v_permlane16_swap_b32 v%d, v%d" % (q[0], q[2]), "%s v%d, v%d, v%d" % (o, q[0], q[0], q[2]),
                    "v_mov_b32 v%d, v%d" % (q[2], q[0]), "v_permlane16_swap_b32 v%d, v%d" % (q[0], q[2]),
                    "v_mov_b32 v%d, v%d" % (q[1], q[0]), "v_mov_b32 v%d, v%d" % (q[3], q[2]),
                    "v_permlane32_swap_b32 v%d, v%d" % (q[0], q[1]), "v_permlane32_swap_b32 v%d, v%d" % (q[2], q[3])])
            for x, y in zip(*seqs):
                A(x); A(y)
        def feature(cb0):
            for tb in range(4):
                for h in range(2):
                    b = accr(cb0 + h, tb)
                    A("v_cvt_pk_bf16_f32 v%d, v%d, v%d" % (PB16 + 4 * tb + 2 * h, b, b + 1))
                    A("v_cvt_pk_bf16_f32 v%d, v%d, v%d" % (PB16 + 4 * tb + 2 * h + 1, b + 2, b + 3))
            for tb in range(4):
                for fb in range(2):
                    A("v_mfma_f32_16x16x32_bf16 %s, %s, %s, 0" % (acc(cb0 + fb, tb), vr(WP + 4 * fb, 4), vr(PB16 + 4 * tb, 4)))
        def feature2(cb0):
            for tb in range(4):
                p0 = accr(cb0, tb); p1 = accr(cb0 + 1, tb)
                for step in range(4):
                    for (op3, op2, d) in (("v_max3_f32", "v_max_f32", MX[tb]), ("v_min3_f32", "v_min_f32", MN[tb])):
                        if step == 0: A("%s v%d, v%d, v%d, v%d" % (op3, d, p0, p0 + 1, p0 + 2))
                        if step == 1: A("%s v%d, v%d, v%d, v%d" % (op3, d, d, p0 + 3, p1))
                        if step == 2: A("%s v%d, v%d, v%d, v%d" % (op3, d, d, p1 + 1, p1 + 2))
                        if step == 3: A("%s v%d, v%d, v%d" % (op2, d, d, p1 + 3))
            rsag2("v_max_f32", MX, "v_min_f32", MN)
            for b in MX + MN: A("v_mul_f32 v%d, s%d, v%d" % (b, S_C, b))
        def exps(cb0, tb, EM):
            for h in range(2):
                p = accr(cb0 + h, tb)
                for u in range(2):
                    pk("v_pk_fma_f32", vr(EM + 4 * h + 2 * u, 2), vr(p + 2 * u, 2), sr(S_C, 2), vr(MN[tb], 2), "op_sel_hi:[1,1,0] neg_lo:[1,0,0] neg_hi:[1,0,0]")
                    pk("v_pk_fma_f32", vr(p + 2 * u, 2), vr(p + 2 * u, 2), sr(S_C, 2), vr(MX[tb], 2), "op_sel_hi:[1,1,0] neg_lo:[0,0,1] neg_hi:[0,0,1]")
            for h in range(2):
                p = accr(cb0 + h, tb)
                for r in range(4):
                    A("v_exp_f32 v%d, v%d" % (p + r, p + r))
                    A("v_exp_f32 v%d, v%d" % (EM + 4 * h + r, EM + 4 * h + r))
        A("v_bfe_u32 v24, v1, 2, 2")
        A("v_lshrrev_b32 v25, 4, v1")
        A("v_lshl_add_u32 v24, v25, 2, v24")
        A("v_lshlrev_b32 v24, 6, v24")
        A("v_and_b32 v25, 3, v1")
        A("v_lshl_add_u32 v24, v25, 3, v24")
        A("v_add_u32 v24, %d, v24" % WPB)
        for fb in range(2):
            for t in range(2):
                A("ds_read_b64_tr_b16 %s, v24 offset:%d" % (vr(WP + 4 * fb + 2 * t, 2), fb * 32 + t * 1024))
        hsetup(VH, None, 12)
        dbgld = "buffer_load_dword v%d, v%d, s[%d:%d], 0 offen sc1" % (V_PD, P_L4, SRD_D, SRD_D + 3)
        A(dbgld)
        A("s_setprio %d" % O("pp0", 3))
        st0 = glu_pair(6, 0, VH)
        for x in st0: A(x)
        st0 = []
        A("s_setprio %d" % O("pp1", 0))
        stamp()
        VB = accr(2, 0)
        def khead():
            feature(0)
            for db in range(2):
                for tb in range(4):
                    s = VB + db * 16 + tb * 4; d = VB + db * 8 + tb * 2
                    A("v_cvt_pk_bf16_f32 v%d, v%d, v%d" % (d, s, s + 1))
                    A("v_cvt_pk_bf16_f32 v%d, v%d, v%d" % (d + 1, s + 2, s + 3))
            feature2(0)
        A("s_waitcnt lgkmcnt(0)")
        spread(khead, st0, 12)
        A("s_waitcnt vmcnt(0)")
        for x in flag_group(VF, 77, "0"): A(x)
        A("v_bfe_u32 v%d, v1, 2, 2" % R_)
        A("v_lshrrev_b32 v%d, 4, v1" % G_)
        A("v_and_b32 v%d, 3, v1" % C_)
        A("v_lshl_add_u32 v%d, v%d, 2, v%d" % (RG, G_, R_))
        A("s_lshl_b32 s7, s%d, 13" % S_W)
        A("s_add_u32 s7, s7, %d" % SCR)
        A("v_and_b32 v%d, 15, v1" % X1)
        A("v_lshlrev_b32 v%d, 7, v%d" % (X1, X1))
        A("v_xor_b32 v%d, v%d, v%d" % (X2, G_, C_))
        A("v_lshl_add_u32 v%d, v%d, 3, v%d" % (X1, X2, X1))
        A("v_add_u32 v%d, s7, v%d" % (X1, X1))
        for q in range(4):
            A("v_xor_b32 v%d, %d, v%d" % (X2, q, R_))
            A("v_lshl_add_u32 v%d, v%d, 5, v%d" % (VPW + q, X2, X1))
        A("v_lshlrev_b32 v%d, 7, v%d" % (X1, RG))
        A("v_xor_b32 v%d, v%d, v%d" % (X2, C_, R_))
        A("v_lshl_add_u32 v%d, v%d, 3, v%d" % (X1, X2, X1))
        A("v_add_u32 v%d, s7, v%d" % (X1, X1))
        for q in range(4):
            A("v_xor_b32 v%d, %d, v%d" % (X2, q, G_))
            A("v_lshl_add_u32 v%d, v%d, 5, v%d" % (VPR + q, X2, X1))
        EMR = [PB16, PB16 + 8, VB + 16, VB + 24]
        for tb in range(4): exps(0, tb, EMR[tb])
        spin("L_dpoll", ["v_cmp_eq_u32 vcc, s46, v%d" % V_PD, "s_nop 0"], dbgld)
        for tb in range(4):
            p0 = accr(0, tb); p1 = accr(1, tb); e = EMR[tb]
            pk("v_pk_add_f32", vr(t0, 2), vr(p0, 2), vr(p0 + 2, 2))
            pk("v_pk_add_f32", vr(t0 + 2, 2), vr(e, 2), vr(e + 2, 2))
            pk("v_pk_add_f32", vr(t0, 2), vr(t0, 2), vr(p1, 2))
            pk("v_pk_add_f32", vr(t0 + 2, 2), vr(t0 + 2, 2), vr(e + 4, 2))
            pk("v_pk_add_f32", vr(t0, 2), vr(t0, 2), vr(p1 + 2, 2))
            pk("v_pk_add_f32", vr(t0 + 2, 2), vr(t0 + 2, 2), vr(e + 6, 2))
            A("v_add_f32 v%d, v%d, v%d" % (SP[tb], t0, t0 + 1))
            A("v_add_f32 v%d, v%d, v%d" % (SM[tb], t0 + 2, t0 + 3))
        rsag2("v_add_f32", SP, "v_add_f32", SM)
        for i in SP + SM: A("v_rcp_f32 v%d, v%d" % (i, i))
        BAR()
        for tb in range(4):
            srcs = [(accr(0, tb), SP), (accr(1, tb), SP), (EMR[tb], SM), (EMR[tb] + 4, SM)]
            for q, (p, sc) in enumerate(srcs):
                for u in range(2): pk("v_pk_mul_f32", vr(p + 2 * u, 2), vr(p + 2 * u, 2), vr(sc[tb], 2), None, "op_sel_hi:[1,0]")
            for q, (p, sc) in enumerate(srcs):
                A("v_cvt_pk_bf16_f32 v%d, v%d, v%d" % (p, p, p + 1))
                A("v_cvt_pk_bf16_f32 v%d, v%d, v%d" % (p + 1, p + 2, p + 3))
            for q, (p, sc) in enumerate(srcs):
                A("ds_write_b64 v%d, %s offset:%d" % (VPW + q, vr(p, 2), tb * 2048))
        ZRED = AB + 3 * ST2; S_KVB = 6
        A("v_add_u32 v%d, s7, v%d" % (V_RW, P_VL))
        A("s_lshl_b32 s3, s%d, 11" % S_W)
        A("v_add_u32 v%d, s3, v%d" % (V_KS, P_VL))
        A("v_add_u32 v%d, %d, v%d" % (V_RR, SCR, V_KS))
        A("v_lshl_add_u32 v%d, v%d, 2, v%d" % (X2, G_, C_))
        A("v_lshlrev_b32 v%d, 4, v%d" % (V_ZL, X2))
        A("v_add_u32 v%d, 8192, v%d" % (V_ZL, V_ZL))
        A("s_lshl_b32 s3, s%d, 10" % S_W)
        A("s_add_u32 s3, s3, %d" % ZRED)
        A("v_add_u32 v%d, s3, v%d" % (V_ZS, P_VL))
        A("v_add_u32 v%d, %d, v%d" % (V_ZR, ZRED, P_VL))
        A("s_lshr_b32 s3, s%d, 1" % S_W)
        A("s_lshl_b32 s3, s3, 12")
        A("s_and_b32 s6, s%d, 1" % S_W)
        A("s_lshl_b32 s6, s6, 10")
        A("s_add_u32 s3, s3, s6")
        A("v_add_u32 v%d, s3, v%d" % (V_KL, P_VL))
        A("v_and_b32 v%d, 124, v%d" % (V_P4, P_L4))
        A("s_lshl_b32 s3, s%d, 3" % S_J)
        A("s_mul_i32 s%d, s3, 9216" % S_KVB)
        A("s_add_u32 s%d, s%d, %d" % (S_KVB, S_KVB, WS_KVP))
        A("s_mul_i32 s3, s%d, 9216" % S_I)
        A("s_add_u32 s7, s%d, s3" % S_KVB)
        A("s_waitcnt lgkmcnt(0)")
        for fblk in range(4):
            for ks in range(2):
                for t in range(2):
                    A("ds_read_b64_tr_b16 %s, v%d offset:%d" % (ar(8 * fblk + 4 * ks + 2 * t, 2), VPR + fblk, (32 * ks + 16 * t) * 128))
        A("v_mov_b32 v%d, 0x3f803f80" % ONE)
        for fblk in range(4):
            A("v_cmp_eq_u32 vcc, %d, v%d" % (fblk, C_))
            for r in range(4): A("v_cndmask_b32 v%d, 0, v%d, vcc" % (PB16 + 4 * fblk + r, ONE))
        stamp()
        V2 = Cnt(63)
        p2 = {"pend": [], "block": None, "events": {}, "done": set(), "bar": -1}
        def out(x):
            if isinstance(x, tuple): V2.tag[x[1]] = V2.n
            else:
                A(x)
                if x.startswith(("buffer_load", "buffer_store")): V2.issue()
        KV = accr(0, 0); ZB = VB + 16; QE = 128; LB = 32
        A("s_waitcnt lgkmcnt(0)")
        for fblk in range(4):
            for ks in range(2):
                for db in range(2):
                    d = vr(KV + 8 * fblk + 4 * db, 4)
                    A("v_mfma_f32_16x16x32_bf16 %s, %s, %s, %s" % (d, ar(8 * fblk + 4 * ks, 4), vr(VB + db * 8 + ks * 4, 4), "0" if ks == 0 else d))
                A("v_mfma_f32_16x16x32_bf16 %s, %s, %s, %s" % (vr(ZB, 4), ar(8 * fblk + 4 * ks, 4), vr(PB16 + 4 * fblk, 4), "0" if (ks == 0 and fblk == 0) else vr(ZB, 4)))
        feature(4)
        for b in range(8): A("ds_write_b128 v%d, %s offset:%d" % (V_RW, vr(KV + 4 * b, 4), b * 1024))
        A("ds_write_b128 v%d, %s" % (V_ZS, vr(ZB, 4)))
        def qexp():
            for half in range(2):
                for tb in (2 * half, 2 * half + 1): exps(4, tb, PB16 + 8 * (tb & 1))
                for tb in (2 * half, 2 * half + 1):
                    e = PB16 + 8 * (tb & 1)
                    for h in range(2):
                        p = accr(4 + h, tb)
                        A("v_cvt_pk_bf16_f32 v%d, v%d, v%d" % (QE + 8 * tb + 2 * h, p, p + 1))
                        A("v_cvt_pk_bf16_f32 v%d, v%d, v%d" % (QE + 8 * tb + 2 * h + 1, p + 2, p + 3))
                        A("v_cvt_pk_bf16_f32 v%d, v%d, v%d" % (QE + 8 * tb + 4 + 2 * h, e + 4 * h, e + 4 * h + 1))
                        A("v_cvt_pk_bf16_f32 v%d, v%d, v%d" % (QE + 8 * tb + 4 + 2 * h + 1, e + 4 * h + 2, e + 4 * h + 3))
        GX = 48
        def gload():
            mk_srd(A, 72, 42, 43, None, 2048)
            A("v_and_b32 v%d, 31, v1" % X1)
            A("v_lshlrev_b32 v%d, 4, v%d" % (X1, X1))
            A("v_lshrrev_b32 v0, 5, v1")
            A("s_lshl_b32 s3, s45, 4")
            A("v_add_u32 v0, s3, v0")
            A("s_lshl_b32 s3, s%d, 1" % S_J)
            A("v_add_u32 v0, s3, v0")
            A("v_lshl_add_u32 v%d, v0, 11, v%d" % (X2, X1))
            for q in range(4):
                A("buffer_load_dwordx4 %s, v%d, s[%d:%d], 0 offen offset:%d" % (vr(GX + 4 * q, 4), X2, SRD_T, SRD_T + 3, 512 * q))
                A("buffer_load_dwordx4 %s, v%d, s[72:75], 0 offen offset:%d" % (vr(80 + 4 * q, 4), X1, 512 * q))
        def gcalc():
            A("v_mov_b32 v96, 0"); A("v_mov_b32 v97, 0")
            for q in range(8):
                A("v_dot2c_f32_bf16 v96, v%d, v%d" % (GX + 2 * q, 80 + 2 * q))
                A("v_dot2c_f32_bf16 v97, v%d, v%d" % (GX + 2 * q + 1, 80 + 2 * q + 1))
            A("v_lshlrev_b32 v0, 2, v0")
            A("v_add_u32 v0, %d, v0" % WS_G)
            A("s_nop 1")
            A("v_add_f32 v96, v96, v97")
            for sh in (8, 4, 2, 1): A("v_add_f32_dpp v96, v96, v96 row_ror:%d row_mask:0xf bank_mask:0xf" % sh)
            A("v_mov_b32 v97, v96")
            A("v_permlane16_swap_b32 v96, v97")
            A("v_add_f32 v96, v96, v97")
            A("v_mul_f32 v96, s%d, v96" % S_C)
            A("v_exp_f32 v96, -v96")
            A("v_add_f32 v96, 1.0, v96")
            A("v_rcp_f32 v%d, v96" % X1)
            A("buffer_store_dword v%d, v0, s[%d:%d], 0 offen sc1" % (X1, SRD_W, SRD_W + 3))
        def red():
            for w in range(4):
                A("ds_read_b128 %s, v%d offset:%d" % (vr(KV + 8 * w, 4), V_RR, w * 8192))
                A("ds_read_b128 %s, v%d offset:%d" % (vr(KV + 8 * w + 4, 4), V_RR, w * 8192 + 1024))
                A("ds_read_b128 %s, v%d offset:%d" % (vr(VB + 4 * w, 4), V_ZR, w * 1024))
            feature2(4)
            A("s_waitcnt lgkmcnt(0)")
            for w in range(1, 4):
                for u in range(4): pk("v_pk_add_f32", vr(KV + 2 * u, 2), vr(KV + 2 * u, 2), vr(KV + 8 * w + 2 * u, 2))
                for u in range(2): pk("v_pk_add_f32", vr(VB + 2 * u, 2), vr(VB + 2 * u, 2), vr(VB + 4 * w + 2 * u, 2))
            A("buffer_store_dwordx4 %s, v%d, s[%d:%d], s7 offen sc1" % (vr(VB, 4), V_ZL, SRD_W, SRD_W + 3))
            A("buffer_store_dwordx4 %s, v%d, s[%d:%d], s7 offen sc1" % (vr(KV, 4), V_KS, SRD_W, SRD_W + 3))
            A("buffer_store_dwordx4 %s, v%d, s[%d:%d], s7 offen offset:1024 sc1" % (vr(KV + 4, 4), V_KS, SRD_W, SRD_W + 3))
        A("s_add_u32 s3, s%d, 112" % S_J)
        A("s_lshl_b32 s3, s3, 10")
        A("s_add_u32 s63, s62, s3")
        for tb in range(1, 4): A("s_add_u32 s%d, s63, %d" % (63 + tb, tb * MBS))
        A("s_mov_b32 s67, 0x358637bd")
        A("s_waitcnt lgkmcnt(0)"); BAR()
        stamp()
        red()
        gload()
        qexp()
        A("s_waitcnt vmcnt(8)")
        for x in flag_group(VF, 45, "s%d" % S_F1): out(x)
        A("s_waitcnt vmcnt(1)")
        gcalc(); V2.issue()
        A("s_setprio %d" % O("pp2", 2))
        stamp()
        BAR()
        stamp(); stamp.real()
        side = []
        import re
        def unpack(x):
            if not x.startswith("v_pk_") or not O("unpack", 0): return [x]
            I = parse(x); n = len(I.ops) - 1
            def arr(name, dflt):
                m = re.search(name + r":\[([01,]+)\]", I.mods)
                return [int(c) for c in m.group(1).split(",")] if m else [dflt] * n
            sel = [arr("op_sel", 0), arr("op_sel_hi", 1)]; neg = [arr("neg_lo", 0), arr("neg_hi", 0)]
            def half(o, h):
                m = re.match(r"([vs])\[(\d+):\d+\]", o)
                return "%s%d" % (m.group(1), int(m.group(2)) + h) if m else o
            res = []
            for h in range(2):
                src = [("-" if neg[h][k] else "") + half(I.ops[1 + k], sel[h][k]) for k in range(n)]
                if n == 2 and not src[1].startswith("v"): src = src[::-1]
                res.append("%s %s, %s" % (I.op.replace("v_pk_", "v_"), half(I.ops[0], h), ", ".join(src)))
            return res
        def S(fn):
            for x in capture(fn)[0]: side.extend(unpack(x))
        p2["done"].add("qdone"); side.append(("join", "kvl"))
        AF = LB + 12; ZQ = 48; KF = 64; AUX = 80; NN = [32, 48, 88, 104]; NA = [120, 160, 168, 176]
        def oph1():
            for i in range(1, 8):
                for u in range(6): pk("v_pk_add_f32", vr(LB + 2 * u, 2), vr(LB + 2 * u, 2), vr(LB + 12 * i + 2 * u, 2))
            for h in range(2):
                A("v_cvt_pk_bf16_f32 v%d, v%d, v%d" % (AF + 2 * h, LB + 4 * h, LB + 4 * h + 1))
                A("v_cvt_pk_bf16_f32 v%d, v%d, v%d" % (AF + 2 * h + 1, LB + 4 * h + 2, LB + 4 * h + 3))
            A("s_lshl_b32 s3, s%d, 10" % S_W)
            A("v_add_u32 v%d, %d, v%d" % (V_RR, SCR, P_VL))
            A("v_add_u32 v%d, s3, v%d" % (V_RW, V_RR))
            A("ds_write_b128 v%d, %s" % (V_RW, vr(AF, 4)))
            for fblk in range(4):
                for r in range(4):
                    A("v_mov_b32_dpp v%d, v%d quad_perm:[%d,%d,%d,%d] row_mask:0xf bank_mask:0xf" % (ZQ + 4 * fblk + r, LB + 8 + r, fblk, fblk, fblk, fblk))
            for fblk in range(4):
                A("v_cvt_pk_bf16_f32 v%d, v%d, v%d" % (AUX + 2 * fblk, ZQ + 4 * fblk, ZQ + 4 * fblk + 1))
                A("v_cvt_pk_bf16_f32 v%d, v%d, v%d" % (AUX + 2 * fblk + 1, ZQ + 4 * fblk + 2, ZQ + 4 * fblk + 3))
            A("v_and_b32 v%d, 3, v1" % ZQ)
            A("v_mov_b32 v%d, 0x3f803f80" % (ZQ + 1))
        S(oph1)
        iw = max(i for i, x in enumerate(side) if isinstance(x, str) and x.startswith("ds_write_b128"))
        side.insert(iw + 1, ("note",))
        side.append(["v_cmp_eq_u32 vcc, 1, v%d" % ZQ, "v_cndmask_b32 v%d, 0, v%d, vcc" % (ZQ + 1, ZQ + 1)])
        side.append(["v_cmp_eq_u32 vcc, 0, v%d" % ZQ] + ["v_cndmask_b32 v%d, v%d, v%d, vcc" % (AUX + r, ZQ + 1, AUX + r) for r in range(8)])
        def auxm():
            for tb in range(4):
                for s in range(2):
                    A("v_mfma_f32_16x16x32_bf16 %s, %s, %s, 0" % (vr(NA[tb] + 4 * s, 4), vr(AUX + 4 * s, 4), vr(QE + 8 * tb + 4 * s, 4)))
            for x in NA:
                A("v_rcp_f32 v%d, v%d" % (x + 1, x + 1)); A("v_rcp_f32 v%d, v%d" % (x + 5, x + 5))
            for x in NA: A("v_fma_f32 v%d, v%d, v%d, s67" % (x + 2, x, x + 1))
            for x in NA: A("v_fma_f32 v%d, v%d, v%d, v%d" % (x + 2, x + 4, x + 5, x + 2))
            for x in NA: A("v_rcp_f32 v%d, v%d" % (x + 2, x + 2))
            for x in NA:
                A("v_mul_f32 v%d, v%d, v%d" % (x, x + 1, x + 2)); A("v_mul_f32 v%d, v%d, v%d" % (x + 4, x + 5, x + 2))
        S(auxm); side.append(("since",))
        def oph2():
            for q in range(4): A("ds_read_b128 %s, v%d offset:%d" % (vr(KF + 4 * q, 4), V_RR, q * 1024))
            A("s_waitcnt lgkmcnt(0)")
            for tb in range(4):
                for s in range(2):
                    for db in range(2):
                        A("v_mfma_f32_16x16x32_bf16 %s, %s, %s, 0" % (vr(NN[tb] + 8 * s + 4 * db, 4), vr(KF + 8 * s + 4 * db, 4), vr(QE + 8 * tb + 4 * s, 4)))
            for n, x in zip(NN, NA):
                for u in range(4): pk("v_pk_mul_f32", vr(n + 2 * u, 2), vr(n + 2 * u, 2), vr(x, 2), None, "op_sel_hi:[1,0]")
                for u in range(4): pk("v_pk_fma_f32", vr(n + 2 * u, 2), vr(n + 8 + 2 * u, 2), vr(x + 4, 2), vr(n + 2 * u, 2), "op_sel_hi:[1,0,1]")
                for u in range(4): A("v_cvt_pk_bf16_f32 v%d, v%d, v%d" % (n + 8 + u, n + 2 * u, n + 2 * u + 1))
            for n in NN: doswap(n + 8)
            for tb, n in enumerate(NN):
                A("buffer_store_dwordx4 %s, v%d, s[%d:%d], s%d offen sc1" % (vr(n + 8, 4), VH, SRD_W, SRD_W + 3, 63 + tb))
        S(oph2); side.append(("ev", "ost"))
        LAG = O("lag", 3)
        def at(lag, need, fn): p2["events"].setdefault(p2["bar"] + lag, []).append((need, fn))
        t1 = ["v_cmp_eq_u32 vcc, 1, v%d" % V_PD, "s_nop 0"]
        kvpoll = "buffer_load_dword v%d, v%d, s[%d:%d], s%d offen sc1" % (V_PD, V_P4, SRD_W, SRD_W + 3, S_F1)
        opoll = "buffer_load_dword v%d, v%d, s[%d:%d], s47 offen sc1" % (V_PD, P_L4, SRD_W, SRD_W + 3)
        def e4():
            assert "qdone" in p2["done"]
            L = []
            for i in range(8):
                L += ["buffer_load_dwordx4 %s, v%d, s[%d:%d], s%d offen sc1" % (vr(LB + 12 * i, 4), V_KL, SRD_W, SRD_W + 3, S_KVB),
                      "buffer_load_dwordx4 %s, v%d, s[%d:%d], s%d offen offset:2048 sc1" % (vr(LB + 12 * i + 4, 4), V_KL, SRD_W, SRD_W + 3, S_KVB),
                      "buffer_load_dwordx4 %s, v%d, s[%d:%d], s%d offen sc1" % (vr(LB + 12 * i + 8, 4), V_ZL, SRD_W, SRD_W + 3, S_KVB),
                      "s_add_u32 s%d, s%d, 9216" % (S_KVB, S_KVB)]
            n = O("kvseg", 1); per = 32 // n
            for q in range(n):
                side.insert(2 * q, L[q * per:(q + 1) * per])
                side.insert(2 * q + 1, ("bar",) if q < n - 1 else ("ev", "kvl"))
        def ev_kvl():
            V2.tag["kvl"] = V2.n
            at(O("lagl", 3), ["kvl"], lambda: p2["done"].add("kvl"))
        def ev_gld():
            V2.tag["gld"] = V2.n
            at(LAG, ["gld"], lambda: p2["done"].add("gld"))
        def ev_ost():
            V2.tag["ost"] = V2.n
            def e6():
                for x in flag_group(VF, 19, "0"): out(x)
                print("o flag after barrier", p2["bar"], file=sys.stderr)
            print("o stored after barrier", p2["bar"], file=sys.stderr)
            at(O("lags", 4), ["ost"], e6)
        EV = {"kvl": ev_kvl, "ost": ev_ost, "gld": ev_gld}
        def cost(x): return 2 if x.startswith(TRANS + ("v_mfma",)) else 0.25 if x.startswith("s_") else 1
        def side_step(budget):
            while budget > 0 and side and p2["block"] is None:
                x = side[0]
                if isinstance(x, tuple):
                    if x[0] == "bar": p2["block"] = "bar"; side.pop(0)
                    elif x[0] == "note": p2["noted"] = p2["bar"]; side.pop(0)
                    elif x[0] == "since":
                        if p2["noted"] == p2["bar"]: p2["block"] = "bar"
                        side.pop(0)
                    elif x[0] == "ev": side.pop(0); EV[x[1]]()
                    elif x[0] == "mark": side.pop(0); p2["done"].add(x[1])
                    elif x[0] == "join":
                        if x[1] in p2["done"]: side.pop(0)
                        else: return
                    continue
                side.pop(0)
                for y in (x if isinstance(x, list) else [x]):
                    out(y); budget -= cost(y)
        def dma2(t):
            stage = t % NS
            L = [m0set(0, stage), lda(0), lda(1), lda(2), lda(3)]
            if t >= NH:
                ldh = lambda n: "buffer_load_dwordx4 v%d, s[%d:%d], s%d offen offset:%d sc1 lds" % (P_AH, SRD_A, SRD_A + 3, S_AK, 1024 * n)
                L = ["s_add_u32 m0, s%d, %d" % (S_M0H, ST2 * stage), ldh(0), ldh(1)]
            L += [m0set(1, stage), ldw(0), ldw(1), ldw(2), ldw(3),
                  "s_add_u32 s%d, s%d, 2048" % (S_AK, S_AK), "s_add_u32 s%d, s%d, %d" % (S_WK, S_WK, 64 * 2048),
                  "s_add_u32 s%d, s%d, 1" % (S_KT, S_KT), "s_cmp_eq_u32 s%d, s%d" % (S_KT, S_SW),
                  "s_cselect_b32 s%d, s%d, s%d" % (SRD_B, S_B2, SRD_B), "s_cselect_b32 s%d, s%d, s%d" % (SRD_B + 1, S_B2 + 1, SRD_B + 1),
                  "s_cselect_b32 s%d, s%d, s%d" % (SRD_B + 2, S_B2 + 2, SRD_B + 2), "s_cselect_b32 s%d, s%d, s%d" % (S_WK, S_WK0, S_WK),
                  "s_cselect_b32 s%d, s%d, s%d" % (S_AK, S_AK0, S_AK), ("tag", ("D", t))]
            return L
        SEGB = O("segb", 60)
        at(KCH + 1, [], e4)
        for t in range(NT2 - 1):
            evs = p2["events"].pop(t, [])
            tags = ([("D", t + 1)] if t + 1 >= T0 + NS else []) + [x for need, fn in evs for x in need]
            A("s_waitcnt lgkmcnt(0)" + (" vmcnt(%d)" % V2.wait_for(tags) if tags else "")); BAR()
            p2["bar"] = t; p2["block"] = None
            late_ev = [fn for need, fn in evs]
            if O("ilv", 1):
                for fn in late_ev:
                    if fn.__name__ == "<lambda>": fn()
                late_ev = [fn for fn in late_ev if fn.__name__ != "<lambda>"]
            heavy = side and isinstance(side[0], list) and len(side[0]) > 9
            if T0 <= t and t + NS < NT2:
                for x in dma2(t + NS):
                    out(x)
                    if O("ilv", 1) and not heavy and isinstance(x, str) and x.startswith("buffer_load"):
                        nxt = [y for y in side[:12] if isinstance(y, str) and y.startswith("buffer_store")]
                        if not nxt: side_step(SEGB / 8.0)
            for fn in late_ev: fn()
            heavy = heavy or (side and isinstance(side[0], list) and len(side[0]) > 9)
            side_step(SEGB / 8.0 if (O("ilv", 1) and not heavy and t + NS < NT2 and not [y for y in side[:14] if isinstance(y, str) and y.startswith("buffer_store")]) else SEGB if not O("ilv", 1) or heavy or not side or isinstance(side[0], list) else 16)
            if STAMP == 2 and t % 3 == 1: stamp.off = False; stamp(); stamp.off = True
            if O("verbose", 0): print("seg", t, "side", len(side), sorted(p2["events"].keys()), file=sys.stderr)
        assert not side and not p2["events"]
        stamp(); stamp.real()
        if STAMP < 5: stamp.finish(26, SRD_W, T, "L_end")
        A("s_branch L_end")

    def tailG():
        VH, VS = 23, 25
        A("s_setprio 1")
        hsetup(VH, VS, 27)
        A("s_add_u32 s67, s63, 3072")
        A("s_sub_u32 s3, s63, 512")
        A("s_bitcmp1_b32 s%d, 0" % S_J)
        A("s_cselect_b32 s67, s3, s67")
        A("s_add_u32 s76, s67, %d" % (2 * MBS))
        st1 = glu_pair(0, 1, VH)
        st2 = spread(lambda: glu_pair(4, 2, VH), st1, 35)
        def last():
            g6, u6 = glu(8)
            for tp in range(2): packswap(u6[2 * tp], g6[2 * tp], g6[2 * tp + 1])
            for tp in range(2): doswap(u6[2 * tp])
            return u6
        u6 = spread(last, st2, 18)
        for tp in range(2):
            A("buffer_store_dwordx4 %s, v%d, s[%d:%d], s%d offen sc1" % (vr(u6[2 * tp], 4), VS, SRD_W, SRD_W + 3, 67 if tp == 0 else 76))
        GB1 = O("gb1", 1)
        if GB1 == 0: BAR()
        XRD, XRD2, WRD, TOK, GA, VL, Z0, V_PD, VF = 2, 3, 4, 9, 11, 13, 15, 17, 19
        VG = [8, 10, 12, 14]; C1 = [16, 18, 20, 22]; C2 = [24, 26, 28, 30]
        A("v_lshlrev_b32 v%d, 4, v1" % VL)
        mk_srd(A, SRD_O, 56, 57, None, 2048 * 2048)
        A("s_lshr_b32 s%d, s%d, 1" % (S_WM, S_W)); A("s_and_b32 s%d, s%d, 1" % (S_WN, S_W))
        A("s_lshl_b32 s6, s%d, 7" % S_MT)
        A("s_lshl_b32 s3, s%d, 6" % S_WM)
        A("s_add_u32 s6, s6, s3")
        A("s_lshl_b32 s3, s%d, 5" % S_KH)
        A("s_add_u32 s6, s6, s3")
        A("v_and_b32 v27, 15, v1")
        A("v_add_u32 v%d, s6, v27" % TOK)
        A("v_lshlrev_b32 v%d, 2, v%d" % (GA, TOK))
        A("v_add_u32 v%d, %d, v%d" % (GA, WS_G, GA))
        A("s_lshl_b32 s3, s%d, 13" % S_WM)
        A("s_add_u32 s3, s3, %d" % AB)
        A("s_lshl_b32 s6, s%d, 12" % S_KH)
        A("s_add_u32 s7, s3, s6")
        A("v_add_u32 v%d, s7, v%d" % (XRD, VL))
        A("s_sub_u32 s3, s3, s6")
        A("v_add_u32 v%d, s3, v%d" % (XRD2, VL))
        A("v_lshrrev_b32 v29, 4, v1")
        A("v_bfe_u32 v27, v1, 2, 2")
        A("v_lshl_add_u32 v29, v29, 3, v27")
        A("v_lshlrev_b32 v29, 8, v29")
        A("v_and_b32 v31, 3, v1")
        A("v_lshl_add_u32 v29, v31, 3, v29")
        A("v_bfe_u32 v31, v1, 4, 1")
        A("v_lshl_add_u32 v27, v31, 2, v27")
        A("s_lshl_b32 s3, s%d, 2" % S_WN)
        for cb in range(4):
            A("s_add_u32 s6, s3, %d" % cb)
            A("v_xor_b32 v31, s6, v27")
            A("v_lshl_add_u32 v%d, v31, 5, v29" % (WRD + cb))
        A("v_mov_b32 v%d, 0" % Z0)
        A("s_sub_u32 s3, s%d, %d" % (S_XF, WS_FLG))
        A("s_lshl_b32 s3, s3, 7")
        A("s_add_u32 s60, s3, %d" % WS_XCH)
        A("s_xor_b32 s3, s3, 32768")
        A("s_add_u32 s62, s3, %d" % WS_XCH)
        A("s_xor_b32 s64, s%d, 256" % S_XF)
        A("s_lshl_b32 s72, s%d, 8" % S_NT)
        A("s_lshl_b32 s3, s%d, 7" % S_WN)
        A("s_add_u32 s72, s72, s3")
        A("s_add_u32 s73, s72, %d" % (8 * 2048))
        RA[:] = [27, 29]; RW[:] = [23, 25, 31, 21]
        for g in wsetup(32, False):
            for x in g: A(x)
        A("s_mul_i32 s3, s%d, %d" % (S_W, 2 * MBS))
        A("v_add_u32 v%d, s3, v%d" % (RA[0], VL))
        A("v_add_u32 v%d, %d, v%d" % (RA[1], MBS - 2048, RA[0]))
        A("s_mov_b32 s%d, 0" % S_AK)
        A("s_mul_i32 s3, s%d, %d" % (S_MT, 8 * MBS))
        A("s_mul_i32 s6, s%d, %d" % (S_KH, NH * 2048))
        A("s_add_u32 s3, s3, s6")
        mk_srd(A, SRD_A, 58, 59, 3, 128 * MBS)
        jh = (64 * NH - 1) // 112; jf = 64 * NH // 112
        full = (1 << 64) - 1
        ih = full ^ ((1 << (2 * jh + 2)) - 1); if_ = (1 << (2 * jf)) - 1
        A("s_mov_b32 s66, 0x%x" % (if_ & 0xffffffff)); A("s_mov_b32 s67, 0x%x" % (if_ >> 32))
        A("s_cmp_eq_u32 s%d, 0" % S_KH)
        A("s_cselect_b32 s66, 0x%x, s66" % (ih & 0xffffffff)); A("s_cselect_b32 s67, 0x%x, s67" % (ih >> 32))
        A("s_lshl_b32 s76, s%d, 9" % S_MT)
        A("s_add_u32 s76, s76, %d" % WS_FLGH)
        A("s_mov_b32 s46, 0x01010101")
        A("v_lshlrev_b32 v36, 2, v1")
        A("v_lshlrev_b32 v37, 3, v1")
        dbgld = "buffer_load_dword v38, v36, s[%d:%d], 0 offen sc1" % (SRD_D, SRD_D + 3)
        hld = "buffer_load_dwordx2 v[38:39], v37, s[%d:%d], s76 offen sc1" % (SRD_W, SRD_W + 3)
        A(dbgld)
        A("s_waitcnt vmcnt(0)")
        for x in ["v_mov_b32 v40, s77", "v_mov_b32 v41, 1", "s_mov_b64 exec, 1",
                  "buffer_store_dword v41, v40, s[%d:%d], 0 offen sc1" % (SRD_W, SRD_W + 3), "s_mov_b64 exec, -1"]: A(x)
        if GB1: BAR()
        BAR()
        spin("L_dpollG", ["v_cmp_eq_u32 vcc, s46, v38", "s_nop 0"], dbgld)
        def lanes(j0, j1): return full ^ (((1 << (2 * j1 + 2)) - 1) ^ ((1 << (2 * j0)) - 1))
        ma = lanes(0, (64 * NS - 1) // 112); mb = lanes(jf, (64 * (NH + NS) - 1) // 112)
        A("s_mov_b32 s6, 0x%x" % (mb & 0xffffffff)); A("s_mov_b32 s7, 0x%x" % (mb >> 32))
        A("s_cmp_eq_u32 s%d, 0" % S_KH)
        A("s_cselect_b32 s6, 0x%x, s6" % (ma & 0xffffffff)); A("s_cselect_b32 s7, 0x%x, s7" % (ma >> 32))
        htest = lambda m: ["v_and_b32 v38, v38, v39", "v_cmp_eq_u32 vcc, 1, v38", "s_nop 0", "s_or_b64 vcc, vcc, %s" % m]
        A(hld); A("s_waitcnt vmcnt(0)")
        spin("L_hpoll", htest("s[6:7]" if O("h2", 1) else "s[66:67]"), hld)
        VG2 = Cnt(63); pend = []
        def outg(x):
            if isinstance(x, tuple): VG2.tag[x[1]] = VG2.n
            else:
                A(x)
                if x.startswith("buffer_"): VG2.issue()
        def adma(stg):
            return [[m0set(0, stg), lda(0)], [lda(1)], [lda(2)], [lda(3), "s_add_u32 s%d, s%d, 2048" % (S_AK, S_AK), ("tag", ("D", stg))]]
        for stg in range(2):
            for g in adma(stg):
                for x in g: outg(x)
        ACC2 = [32, 96]
        def a2(s, cb, tb): return ACC2[s] + 4 * (cb * 4 + tb)
        def xf2(p, tb): return ar(32 * p + 4 * tb, 4)
        def wf2(p, cb, half=None):
            b = 32 * p + 16 + 4 * cb
            return ar(b, 4) if half is None else ar(b + 2 * half, 2)
        def reads2(t, ks, p):
            so = (t % NS) * ST2
            xr = lambda tb: "ds_read_b128 %s, v%d offset:%d" % (xf2(p, tb), XRD if tb < 2 else XRD2, so + tb * 2048 + ks * 1024)
            wr = lambda cb, u: "ds_read_b64_tr_b16 %s, v%d offset:%d" % (wf2(p, cb, u), WRD + cb, so + (ks * 32 + 4 * u) * 256)
            R = [xr(0), wr(0, 0), wr(0, 1), xr(1)] + ([] if t >= NH else [xr(2), xr(3)])
            for cb in range(1, 4): R += [wr(cb, 0), wr(cb, 1)]
            return R
        if O("h2", 1):
            A("v_mov_b32 v39, v38")
            spin("L_hpoll2", htest("s[66:67]"), hld)
        A("s_waitcnt vmcnt(4)"); BAR()
        for x in reads2(0, 0, 0): A(x)
        pend += adma(2) + adma(3)
        side = []
        A("s_lshl_b32 s%d, s%d, 7" % (S_F1, S_J))
        A("s_add_u32 s%d, s%d, %d" % (S_F1, S_F1, WS_FLG1))
        A("s_lshl_b32 s47, s%d, 8" % S_MT)
        A("s_add_u32 s47, s47, %d" % WS_FLGO)
        A("v_lshlrev_b32 v%d, 2, v1" % C2[0])
        A("v_and_b32 v%d, 124, v%d" % (C2[1], C2[0]))
        t1 = ["v_cmp_eq_u32 vcc, 1, v%d" % V_PD, "s_nop 0"]
        kvpoll = "buffer_load_dword v%d, v%d, s[%d:%d], s%d offen sc1" % (V_PD, C2[1], SRD_W, SRD_W + 3, S_F1)
        opoll = "buffer_load_dword v%d, v%d, s[%d:%d], s47 offen sc1" % (V_PD, C2[0], SRD_W, SRD_W + 3)
        xpoll = "buffer_load_dword v%d, v%d, s[%d:%d], s64 offen sc1" % (V_PD, Z0, SRD_W, SRD_W + 3)
        XL, XP = O("xlag", 2), O("xpl", 2)
        for t in range(NT2):
            half = t >= NH; aset = 0 if t < NF1 else 1; ntb = 2 if half else 4; NG = 4 * ntb
            if STAMP >= 5 and O("s0", 8) <= t < O("s0", 8) + 18: stamp.off = False; stamp(); stamp.off = True
            if t == NF1:
                A("s_waitcnt vmcnt(0)")
                for tb in range(4): side.append("v_sub_f32 v%d, 1.0, v%d" % (C1[tb], VG[tb]))
                side.append("s_cmp_eq_u32 s%d, 1\ns_cselect_b64 vcc, -1, 0" % S_KH)
                for tb in range(4): side.append("v_cndmask_b32 v%d, v%d, v%d, vcc" % (C2[tb], C1[tb], VG[tb]))
                for cb in range(4):
                    for tb in range(4):
                        for r in range(4): side.append("v_mul_f32 v%d, v%d, v%d" % (a2(0, cb, tb) + r, a2(0, cb, tb) + r, C1[tb]))
            if t == NH:
                assert not side
                for tb in (2, 3, 0, 1):
                    for cb in range(4):
                        for u in range(2):
                            pk("v_pk_fma_f32", vr(a2(0, cb, tb) + 2 * u, 2), vr(a2(1, cb, tb) + 2 * u, 2), vr(C2[tb], 2), vr(a2(0, cb, tb) + 2 * u, 2), "op_sel_hi:[1,0,1]")
                    if tb >= 2:
                        for cb in range(4):
                            a0 = a2(0, cb, tb); d = 160 + 8 * (tb - 2) + 2 * cb
                            A("v_cvt_pk_bf16_f32 v%d, v%d, v%d" % (d, a0, a0 + 1))
                            A("v_cvt_pk_bf16_f32 v%d, v%d, v%d" % (d + 1, a0 + 2, a0 + 3))
                        for q in range(2):
                            A("buffer_store_dwordx4 %s, v%d, s[%d:%d], s60 offen offset:%d sc1" % (vr(160 + 8 * (tb - 2) + 4 * q, 4), VL, SRD_W, SRD_W + 3, (tb - 2) * 2048 + q * 1024))
            for ks in range(2):
                rd = reads2(t, 1, 1) if ks == 0 else (reads2(t + 1, 0, 0) if t + 1 < NT2 else [])
                PRE = 0
                if ks == 1 and t + 1 < NT2:
                    if t == KCH - 2 + PRE: outg(kvpoll)
                    if t == KCH: A("s_waitcnt vmcnt(0)"); spin("L_kvpoll", t1, kvpoll)
                    if t == ODL - O("opl", 3): A(opoll)
                    if t == ODL: A("s_waitcnt vmcnt(0)"); spin("L_opoll", t1, opoll)
                    if t == ODL:
                        for tb in range(4):
                            if tb == 2: A("s_lshl_b32 s3, s%d, 8" % S_KH); A("v_subrev_u32 v%d, s3, v%d" % (GA, GA))
                            A("buffer_load_dword v%d, v%d, s[%d:%d], 0 offen offset:%d sc1" % (VG[tb], GA, SRD_W, SRD_W + 3, 64 * tb))
                    if t == NH - 1 + XL:
                        A("s_waitcnt vmcnt(0)")
                        for x in flag_group(VF, S_XF, "0"): A(x)
                    if t == NT2 - 2 - XP: A(xpoll)
                    if t == NT2 - 2:
                        A("s_waitcnt vmcnt(0)")
                        spin("L_xpoll", ["v_cmp_eq_u32 vcc, 1, v%d" % V_PD, "s_nop 0"], xpoll)
                        for q in range(4):
                            A("buffer_load_dwordx4 %s, v%d, s[%d:%d], s62 offen offset:%d sc1" % (vr(176 + 4 * q, 4), VL, SRD_W, SRD_W + 3, q * 1024))
                own = ks == 1 and t + 1 < T0 + NS
                A("s_waitcnt lgkmcnt(0)" + (" vmcnt(%d)" % VG2.wait_for([("D", t + 1)]) if own else ""))
                if ks == 1 and t + 1 < NT2:
                    assert not pend
                    BAR()
                    if t < T0:
                        stg = t % NS
                        pend += [[m0set(0, stg), lda(0)], [lda(1)], [lda(2)], [lda(3)], [m0set(1, stg), ldw(0)], [ldw(1)], [ldw(2)],
                                 [ldw(3), "s_add_u32 s%d, s%d, 2048" % (S_AK, S_AK), "s_add_u32 s%d, s%d, %d" % (S_WK, S_WK, 64 * 2048), ("tag", ("D", t + NS))]]
                g = 0; k = 0
                for cb in range(4):
                    for tb in range(ntb):
                        d = vr(a2(aset, cb, tb), 4)
                        A("v_mfma_f32_16x16x32_bf16 %s, %s, %s, %s" % (d, wf2(ks, cb), xf2(ks, tb), "0" if (t in (0, NF1, NH) and ks == 0) else d))
                        for _ in range(1 if len(rd) - k <= NG - g else 2):
                            if k < len(rd): A(rd[k]); k += 1
                        for _ in range(2 if NH - NF1 < 3 else 1):
                            if side: A(side.pop(0))
                        left = (NG - g) + (16 if ks == 1 else 0)
                        if pend and (g % 4 == 3 or len(pend) * 4 > left + 3):
                            for x in pend.pop(0): outg(x)
                        g += 1
        VO = 21
        A("v_lshlrev_b32 v%d, 11, v%d" % (VO, TOK))
        A("v_bfe_u32 v23, v1, 4, 1")
        A("v_lshl_add_u32 v%d, v23, 5, v%d" % (VO, VO))
        A("v_lshrrev_b32 v23, 5, v1")
        A("v_lshl_add_u32 v%d, v23, 4, v%d" % (VO, VO))
        A("v_bfe_u32 v23, v1, 3, 1")
        A("v_mul_u32_u24 v25, %d, v23" % (8 * 2048 - 64))
        A("v_sub_u32 v%d, v%d, v25" % (VO, VO))
        A("v_cmp_eq_u32 vcc, 0, v23")
        for tb in range(2):
            for cb in range(4):
                for u in range(2):
                    pk("v_pk_fma_f32", vr(a2(0, cb, tb) + 2 * u, 2), vr(a2(1, cb, tb) + 2 * u, 2), vr(VG[tb], 2), vr(a2(0, cb, tb) + 2 * u, 2), "op_sel_hi:[1,0,1]")
        for tb in range(2):
            A("s_waitcnt vmcnt(2)")
            for cb in range(4):
                for u in range(2):
                    src = 176 + 8 * tb + 2 * cb + u; pp = a2(0, cb, tb + 2) + 2 * u
                    A("v_lshlrev_b32 v%d, 16, v%d" % (pp, src))
                    A("v_and_b32 v%d, 0xffff0000, v%d" % (pp + 1, src))
            for cb in range(4):
                for u in range(2): pk("v_pk_add_f32", vr(a2(0, cb, tb) + 2 * u, 2), vr(a2(0, cb, tb) + 2 * u, 2), vr(a2(0, cb, tb + 2) + 2 * u, 2))
            d0 = 160 + 8 * tb; d1 = d0 + 4; e0 = 96 + 8 + 16 * tb; e1 = e0 + 4
            for cp in range(2): packswap(d0 + 4 * cp, a2(0, 2 * cp, tb), a2(0, 2 * cp + 1, tb))
            for cp in range(2): doswap(d0 + 4 * cp)
            for r in range(4): A("v_cndmask_b32_dpp v%d, v%d, v%d, vcc row_ror:8 row_mask:0xf bank_mask:0xf" % (e0 + r, d1 + r, d0 + r))
            A("s_not_b64 vcc, vcc")
            for r in range(4): A("v_cndmask_b32_dpp v%d, v%d, v%d, vcc row_ror:8 row_mask:0xf bank_mask:0xf" % (e1 + r, d0 + r, d1 + r))
            A("s_not_b64 vcc, vcc")
            A("buffer_store_dwordx4 %s, v%d, s[%d:%d], s72 offen sc1" % (vr(e0, 4), VO, SRD_O, SRD_O + 3))
            A("buffer_store_dwordx4 %s, v%d, s[%d:%d], s73 offen sc1" % (vr(e1, 4), VO, SRD_O, SRD_O + 3))
            A("s_add_u32 s72, s72, 32768"); A("s_add_u32 s73, s73, 32768")
    cur["c"] = 0
    st["plan"] = [(V_DMA + n, SRD_X, S_XK, n // 4 if n % 4 == 0 else None, 1024 * (n & 3)) for n in range(6)] + \
                 [(V_DMA + 6 + q, SRD_1, S_WK1, 2 if q == 0 else None, 1024 * q) for q in range(3)]
    st["pitch"] = 6144
    for n in range(6): A("v_add_u32 v%d, %d, v%d" % (V_DMA + n, n * 16384 - 1024 * (n & 3), T + (n & 1)))
    A("s_mul_i32 s%d, s%d, 3072" % (S_M0 + 2, S_W))
    A("s_add_u32 s%d, s%d, %d" % (S_M0 + 2, S_M0 + 2, QB))
    A("s_waitcnt lgkmcnt(0)")
    mk_srd(A, SRD_X, 4, 5, 64, 2048 * 2048)
    D0 = dma_list(0)
    for g in D0[:6]:
        for x in g: A(x)
    A("s_lshl_b32 s3, s%d, 6" % S_J)
    mk_srd(A, SRD_1, 6, 7, 3, 1024 * 6144)
    A("s_mul_i32 s3, s%d, 192" % S_W)
    for q in range(3):
        A("v_add_u32 v%d, s3, v1" % T)
        if q: A("v_add_u32 v%d, %d, v%d" % (T, 64 * q, T))
        A("v_mul_u32_u24 v%d, 5462, v%d" % (T + 1, T))
        A("v_lshrrev_b32 v%d, 16, v%d" % (T + 1, T + 1))
        A("v_mul_u32_u24 v%d, 12, v%d" % (T + 2, T + 1))
        A("v_sub_u32 v%d, v%d, v%d" % (T + 2, T, T + 2))
        A("v_bfe_u32 v%d, v%d, 2, 1" % (T + 3, T + 1))
        A("v_lshlrev_b32 v%d, 1, v%d" % (T + 3, T + 3))
        A("v_xor_b32 v%d, v%d, v%d" % (T + 2, T + 2, T + 3))
        rowperm(T + 4, T + 1, T + 3)
        A("v_mul_u32_u24 v%d, 6144, v%d" % (T + 1, T + 4))
        A("v_lshrrev_b32 v%d, 2, v%d" % (T + 3, T + 2))
        A("v_lshlrev_b32 v%d, 11, v%d" % (T + 3, T + 3))
        A("v_and_b32 v%d, 3, v%d" % (T + 2, T + 2))
        A("v_lshlrev_b32 v%d, 4, v%d" % (T + 2, T + 2))
        A("v_add3_u32 v%d, v%d, v%d, v%d" % (T + 1, T + 1, T + 2, T + 3))
        A("v_subrev_u32 v%d, %d, v%d" % (V_DMA + 6 + q, 1024 * q, T + 1))
        for x in D0[6 + q]: A(x)
    flags_and_reads(0)
    A("s_lshl_b32 s3, s%d, 11" % S_J)
    mk_srd(A, SRD_P, 66, 67, 3, 65536)
    mk_srd(A, SRD_T, 4, 5, None, 2048 * 2048)
    A("s_and_b32 s3, s%d, 1" % S_W)
    A("s_lshl_b32 s47, s3, 10")
    A("v_lshl_add_u32 v%d, v1, 4, s47" % V_TCH)
    mk_srd(A, SRD_D, 56, 57, None, 256)
    A("s_load_dwordx2 s[4:5], s[0:1], 24")
    A("s_lshl_b32 s3, s%d, 3" % S_J)
    A("s_add_u32 s3, s3, s%d" % S_I)
    A("s_cmp_eq_u32 s%d, 0" % S_W)
    A("s_cselect_b32 s3, s3, 0x1000")
    A("v_mov_b32 v%d, s3" % T)
    A("v_mov_b32 v%d, 1" % (T + 1))
    late = dma_list(1) + [["s_add_u32 m0, s47, %d" % WPB, "buffer_load_dwordx4 v%d, s[%d:%d], 0 offen lds" % (V_TCH, SRD_P, SRD_P + 3)]]
    k1_loop(0, late, 1, "buffer_store_byte v%d, v%d, s[%d:%d], 0 offen sc1" % (T + 1, T, SRD_D, SRD_D + 3), otouch(0) + wotouch(), 1 + O("otouch", 0), wsetup(), wdma(), prest())
    if O("k1only", 0):
        stamp.finish(30, SRD_W, T, "L_end"); A("s_branch L_end")
    else:
        tailP()
    A.label("L_classG")
    cur["c"] = 1
    stamp.regs = []
    st["plan"] = [(V_DMA + n, SRD_X, S_XK, 1 if n == 0 else None, 1024 * (2 + n)) for n in range(2)] + \
                 [(V_DMA + 2 + g, SRD_1, S_WK1, 3 + g // 4 if g % 4 == 0 else None, 1024 * (g & 3)) for g in range(7)]
    st["pitch"] = 7168
    for n in range(2): A("v_add_u32 v%d, %d, v%d" % (V_DMA + n, (6 + n) * 16384 - 1024 * (2 + n), T + (n & 1)))
    A("s_and_b32 s3, s%d, 1" % S_W)
    A("s_mul_i32 s3, s3, 7168")
    A("s_cmp_ge_u32 s%d, 2" % S_W)
    A("s_mov_b32 s60, %d" % GB)
    A("s_cselect_b32 s%d, %d, s60" % (S_M0 + 3, UB))
    A("s_add_u32 s%d, s%d, s3" % (S_M0 + 3, S_M0 + 3))
    A("s_add_u32 s%d, s%d, 4096" % (S_M0 + 4, S_M0 + 3))
    U = 32
    A("s_lshr_b32 s60, s2, 6")
    A("s_and_b32 s61, s%d, 1" % S_W)
    A("s_lshl_b32 s3, s60, 6")
    A("v_add_u32 v%d, s3, v1" % (U + 4))
    A("v_lshlrev_b32 v%d, 11, v%d" % (U + 4, U + 4))
    A("s_lshl_b32 s3, s61, 7")
    A("v_add_u32 v%d, s3, v%d" % (U + 4, U + 4))
    A("s_lshl_b32 s62, s%d, 4" % S_I)
    A("s_lshl_b32 s3, s61, 3")
    A("s_add_u32 s62, s62, s3")
    A("s_and_b32 s63, s%d, 28" % S_J)
    A("v_mul_u32_u24 v%d, 10923, v1" % (U + 5))
    A("v_lshrrev_b32 v%d, 16, v%d" % (U + 5, U + 5))
    A("v_mul_u32_u24 v%d, 6, v%d" % (U + 6, U + 5))
    A("v_sub_u32 v%d, v1, v%d" % (U + 6, U + 6))
    A("v_add_u32 v%d, s62, v%d" % (U + 5, U + 5))
    A("v_mul_u32_u24 v%d, 6144, v%d" % (U + 5, U + 5))
    A("v_lshrrev_b32 v%d, 1, v%d" % (U + 7, U + 6))
    A("v_lshl_add_u32 v%d, v%d, 11, v%d" % (U + 5, U + 7, U + 5))
    A("v_and_b32 v%d, 1, v%d" % (U + 6, U + 6))
    A("v_lshl_add_u32 v%d, v%d, 7, v%d" % (U + 5, U + 6, U + 5))
    A("s_lshl_b32 s3, s63, 6")
    A("v_add_u32 v%d, s3, v%d" % (U + 5, U + 5))
    A("v_mov_b32 v%d, 0x7ffffff0" % (U + 9))
    A("v_cmp_gt_u32 vcc, 48, v1")
    A("v_cndmask_b32 v%d, v%d, v%d, vcc" % (U + 5, U + 9, U + 5))
    A("v_mul_u32_u24 v%d, 9363, v1" % (U + 6))
    A("v_lshrrev_b32 v%d, 16, v%d" % (U + 6, U + 6))
    A("v_mul_u32_u24 v%d, 7, v%d" % (U + 7, U + 6))
    A("v_sub_u32 v%d, v1, v%d" % (U + 7, U + 7))
    A("v_add_u32 v%d, s62, v%d" % (U + 6, U + 6))
    A("v_mul_u32_u24 v%d, 7168, v%d" % (U + 6, U + 6))
    A("v_lshl_add_u32 v%d, v%d, 7, v%d" % (U + 6, U + 7, U + 6))
    A("s_mul_i32 s3, s63, 224")
    A("v_add_u32 v%d, s3, v%d" % (U + 6, U + 6))
    A("v_cmp_gt_u32 vcc, 56, v1")
    A("v_cndmask_b32 v%d, v%d, v%d, vcc" % (U + 6, U + 9, U + 6))
    A("s_and_b32 s3, s2, 63")
    A("s_lshl_b32 s3, s3, 1")
    A("s_add_u32 s3, s3, s61")
    A("s_lshl_b32 s3, s3, 13")
    A("v_lshlrev_b32 v%d, 7, v1" % (U + 7))
    A("v_add_u32 v%d, s3, v%d" % (U + 7, U + 7))
    A("s_waitcnt lgkmcnt(0)")
    mk_srd(A, SRD_X, 4, 5, 64, 2048 * 2048)
    def sel(cond_sgpr, val, voff, lo, hi, size, step, start):
        A("s_cmp_eq_u32 s%d, %d" % (cond_sgpr, val))
        A("s_cselect_b64 vcc, -1, 0")
        A("s_cselect_b32 s%d, s%d, s%d" % (SRD_T, lo, SRD_T))
        A("s_cselect_b32 s%d, s%d, s%d" % (SRD_T + 1, hi, SRD_T + 1))
        A("s_cselect_b32 s%d, %d, s%d" % (SRD_T + 2, size, SRD_T + 2))
        A("s_cselect_b32 s%d, %d, s%d" % (S_TSTEP, step, S_TSTEP))
        A("s_cselect_b32 s%d, %d, s%d" % (S_TK, start, S_TK))
        A("v_cndmask_b32 v%d, v%d, v%d, vcc" % (V_TCH, V_TCH, voff))
    A("s_mov_b32 s%d, s6" % SRD_T); A("s_mov_b32 s%d, s7" % (SRD_T + 1))
    A("s_mov_b32 s%d, %d" % (SRD_T + 2, 1024 * 6144)); A("s_mov_b32 s%d, 0x20000" % (SRD_T + 3))
    A("s_mov_b32 s%d, %d" % (S_TSTEP, 128 * 6144)); A("s_mov_b32 s%d, 0" % S_TK)
    A("v_mov_b32 v%d, v%d" % (V_TCH, U + 5))
    sel(60, 1, U + 6, 52, 53, 1024 * 7168, 128 * 7168, 0)
    sel(60, 2, U + 6, 54, 55, 1024 * 7168, 128 * 7168, 0)
    sel(60, 3, U + 7, 40, 41, 3584 * 2048, 1 << 20, (1 << 32) - (1 << 20))
    A("s_lshr_b32 s61, s%d, 1" % S_W)
    sel(61, 0, U + 4, SRD_X, SRD_X + 1, 256 * 2048, 256, 0)
    st["touch"] = lambda: ["buffer_load_dword v%d, v%d, s[%d:%d], s%d offen" % (V_TCH + 1, V_TCH, SRD_T, SRD_T + 3, S_TK),
                           "s_add_u32 s%d, s%d, s%d" % (S_TK, S_TK, S_TSTEP)]
    for x in st["touch"](): A(x)
    D0 = dma_list(0)
    for g in D0[:2]:
        for x in g: A(x)
    A("s_cmp_ge_u32 s%d, 2" % S_W)
    A("s_cselect_b32 s60, s54, s52")
    A("s_cselect_b32 s61, s55, s53")
    A("s_mul_i32 s3, s%d, 224" % S_J)
    mk_srd(A, SRD_1, 60, 61, 3, 1024 * 7168)
    A("s_and_b32 s3, s%d, 1" % S_W)
    A("s_mul_i32 s3, s3, 448")
    A("s_and_b32 s65, s%d, 1" % S_J)
    A("s_lshl_b32 s65, s65, 1")
    for g in range(7):
        A("v_add_u32 v%d, s3, v1" % T)
        if g: A("v_add_u32 v%d, %d, v%d" % (T, 64 * g, T))
        A("v_mul_u32_u24 v%d, 4682, v%d" % (T + 1, T))
        A("v_lshrrev_b32 v%d, 16, v%d" % (T + 1, T + 1))
        A("v_mul_u32_u24 v%d, 14, v%d" % (T + 2, T + 1))
        A("v_sub_u32 v%d, v%d, v%d" % (T + 2, T, T + 2))
        A("v_add_u32 v%d, s65, v%d" % (T + 2, T + 2))
        A("v_subrev_u32 v%d, 14, v%d" % (T + 3, T + 2))
        A("v_min_u32 v%d, v%d, v%d" % (T + 2, T + 2, T + 3))
        rowperm(T + 4, T + 1, T + 3)
        A("v_mul_u32_u24 v%d, 7168, v%d" % (T + 1, T + 4))
        A("v_lshl_add_u32 v%d, v%d, 4, v%d" % (T + 1, T + 2, T + 1))
        A("v_subrev_u32 v%d, %d, v%d" % (V_DMA + 2 + g, 1024 * (g & 3), T + 1))
        for x in D0[2 + g]: A(x)
    flags_and_reads(1)
    mk_srd(A, SRD_D, 56, 57, None, 256)
    A("s_load_dwordx2 s[56:57], s[0:1], 72")
    k1_loop(1, dma_list(1) + [st["touch"]()], 1, None, [st["touch"]()] + otouch(1), 1 + 2 * O("otouch", 0), None, None, None)
    if not O("k1only", 0): tailG()
    if STAMP >= 5: stamp.finish(26, SRD_W, 23, "L_end")
    assert NBAR[0] == NBAR[1], NBAR
    A.label("L_end")
    A("s_endpgm")
    A.label("L_code_end")
    return name, LDS

A = Asm()
n1, l1 = gen(A)
hdr = "; @launch grid=(256,1,1) block=(512,1,1) lds=%d\n" % l1
hdr += '.amdgcn_target "amdgcn-amd-amdhsa--gfx950"\n.text\n'
open(OUT, "w").write(hdr + A.text() + '.section .rodata,"a"\n' + kernel_desc(n1, 256, 192))
```
